```python
import torch

def _softmax(x, axis=-1):
    return torch.softmax(x, dim=axis)

def _gelu(x):
    return torch.nn.functional.gelu(x, approximate='tanh')

def _silu(x):
    return torch.nn.functional.silu(x)

def _sigmoid(x):
    return torch.sigmoid(x)

def _layernorm(x, axis=-1, eps=1e-05):
    m = x.mean(dim=axis, keepdim=True)
    v = x.var(dim=axis, keepdim=True, unbiased=False)
    return (x - m) / torch.sqrt(v + eps)

def _scatter_add(tgt, idx, src, axis=0):
    return tgt.clone().index_add_(axis, idx, src)

def _segment_sum(src, seg, n):
    out = torch.zeros((n,) + src.shape[1:], dtype=src.dtype)
    return out.index_add_(0, seg, src)

def _pad(x, pw):
    flat = tuple((v for pair in reversed(pw) for v in pair))
    return torch.nn.functional.pad(x, flat)
kernel_name = 'adaLN_cond__mha_block_cached__moe_arch_mod__prompt'

def setup_inputs():

    _w = lambda a: (lambda t: t.to(torch.bfloat16) if t.is_floating_point() else t)(torch.as_tensor(a))

    def _A_setup():
        B, Sq, D = (1, 2048, 1024)
        H, Sk, Dh = (32, 2048, 128)
        return {'x': _w((lambda *s: torch.randn(*s, dtype=torch.bfloat16) * 0.1)(B, Sq, D)), 'k_cache': _w((lambda *s: torch.randn(*s, dtype=torch.bfloat16) * 0.8)(B, H, Sk, Dh)), 'v_cache': _w((lambda *s: torch.randn(*s, dtype=torch.bfloat16) * 0.8)(B, H, Sk, Dh)), 'wq': _w((lambda *s: torch.randn(*s, dtype=torch.bfloat16) * 0.8)(D, H * Dh) * D ** (-0.5)), 'wo': _w((lambda *s: torch.randn(*s, dtype=torch.bfloat16) * 0.8)(H * Dh, D) * (H * Dh) ** (-0.5))}
    _A_in = _A_setup()

    def _B_setup():
        B, S, D, F, C = (1, 2048, 1024, 3584, 2)
        return {'x': _w((lambda *s: torch.randn(*s, dtype=torch.bfloat16) * 0.1)(B, S, D)), 'w_r': _w((lambda *s: torch.randn(*s, dtype=torch.bfloat16) * 3.2)(D)), 'w_gate': _w((lambda *s: torch.randn(*s, dtype=torch.bfloat16) * 0.2)(D, F)), 'w_up': _w((lambda *s: torch.randn(*s, dtype=torch.bfloat16) * 0.2)(D, F)), 'w_down': _w((lambda *s: torch.randn(*s, dtype=torch.bfloat16) * 0.2)(F, D))}
    _B_in = _B_setup()
    return {'A_x': _A_in['x'], 'A_k_cache': _A_in['k_cache'], 'A_v_cache': _A_in['v_cache'], 'A_wq': _A_in['wq'], 'A_wo': _A_in['wo'], 'B_x': _B_in['x'], 'B_w_r': _B_in['w_r'], 'B_w_gate': _B_in['w_gate'], 'B_w_up': _B_in['w_up'], 'B_w_down': _B_in['w_down'], 'c': _w((lambda *s: torch.randn(*s, dtype=torch.bfloat16) * 0.2)(1, 1024) * 8.0), 'w_mod': _w((lambda *s: torch.randn(*s, dtype=torch.bfloat16) * 0.2)(1024, 6 * 1024) * 1024 ** (-0.5) * 8.0)}

def reference(A_x, A_k_cache, A_v_cache, A_wq, A_wo, B_x, B_w_r, B_w_gate, B_w_up, B_w_down, c, w_mod):

    def _A_ref(x, k_cache, v_cache, wq, wo):
        B, Sq, D = x.shape
        H, Dh = (32, 128)
        q = (lambda x, *d: x.permute(*d))((x @ wq).reshape(B, Sq, H, Dh), 0, 2, 1, 3)
        scores = torch.einsum('bhqd,bhkd->bhqk', q, k_cache) * Dh ** (-0.5)
        p = _softmax(scores, axis=-1)
        o = torch.einsum('bhqk,bhkd->bhqd', p, v_cache)
        return (lambda x, *d: x.permute(*d))(o, 0, 2, 1, 3).reshape(B, Sq, H * Dh) @ wo

    def _B_ref(x, w_r, w_gate, w_up, w_down):
        B, S, D = x.shape
        C = 2
        r = x @ w_r
        idx = torch.argsort(-r, axis=-1)[:, :C]
        idx_e = (lambda x, n, axis: torch.repeat_interleave(x, n, dim=axis))(idx.reshape(B, C, 1), D, axis=2)
        x_sel = (lambda x, i, axis: torch.take_along_dim(x, i, dim=axis))(x, idx_e, axis=1)
        g = _silu(x_sel @ w_gate)
        u = x_sel @ w_up
        y = g * u @ w_down
        r_sel = _sigmoid((lambda x, i, axis: torch.take_along_dim(x, i, dim=axis))(r, idx, axis=1))
        y = y * r_sel.reshape(B, C, 1)
        b_off = (torch.arange(B) * S).reshape(B, 1)
        flat_idx = (idx + b_off).reshape(B * C)
        zero = (x * 0.0).reshape(B * S, D)
        upd = _scatter_add(zero, flat_idx, y.reshape(B * C, D), axis=0)
        return x + upd.reshape(B, S, D)
    x = A_x
    mod = (_silu(c) @ w_mod).reshape(c.shape[0], 6, 1, -1)
    sa, ca, ga, sb, cb, gb = (mod[:, 0].clone(), mod[:, 1].clone(), mod[:, 2].clone(), mod[:, 3].clone(), mod[:, 4].clone(), mod[:, 5].clone())
    h = _layernorm(x, axis=-1) * (1 + ca) + sa
    x = x + ga * _A_ref(h, A_k_cache, A_v_cache, A_wq, A_wo)
    h = _layernorm(x, axis=-1) * (1 + cb) + sb
    x = x + gb * _B_ref(h, B_w_r, B_w_gate, B_w_up, B_w_down)
    return x
```

```python
class Asm:
    def __init__(self):
        self.lines = []
        self.kernels = []
        self.uid = 0
    def __call__(self, s=""):
        for l in s.split("\n"):
            l = l.strip()
            if l:
                self.lines.append(("" if l.endswith(":") else "    ") + l)
    def c(self, s):
        self.lines.append("    ; " + s)
    def label(self, base):
        self.uid += 1
        return f"L_{base}_{self.uid}"
    def begin_kernel(self, name):
        self.lines += [f".globl {name}", ".p2align 8", f".type {name},@function", f"{name}:"]
    def end_kernel(self, name, vgpr, agpr=0, sgpr=96):
        accum = (vgpr + 3) // 4 * 4
        total = accum + agpr if agpr else vgpr
        self.kernels.append((name, total, sgpr, accum))
    def srd(self, d, base, nbytes, off=None):
        if off is None:
            self(f"s_mov_b32 s{d}, s{base}")
            self(f"s_and_b32 s{d+1}, s{base+1}, 0xffff")
        else:
            self(f"s_add_u32 s{d}, s{base}, {off}")
            self(f"s_addc_u32 s{d+1}, s{base+1}, 0")
            self(f"s_and_b32 s{d+1}, s{d+1}, 0xffff")
        self(f"s_mov_b32 s{d+2}, {nbytes}")
        self(f"s_mov_b32 s{d+3}, 0x20000")
    def text(self, header):
        out = list(header)
        out += ['.amdgcn_target "amdgcn-amd-amdhsa--gfx950"', ".text"]
        out += self.lines
        out += ['.section .rodata,"a"']
        for name, v, s, acc in self.kernels:
            out += [".p2align 6", f".amdhsa_kernel {name}",
                    f"  .amdhsa_next_free_vgpr {v}", f"  .amdhsa_next_free_sgpr {s}", f"  .amdhsa_accum_offset {acc}",
                    "  .amdhsa_group_segment_fixed_size 0", "  .amdhsa_kernarg_size 120",
                    "  .amdhsa_user_sgpr_count 2", "  .amdhsa_user_sgpr_kernarg_segment_ptr 1",
                    "  .amdhsa_system_sgpr_workgroup_id_x 1",
                    "  .amdhsa_float_denorm_mode_32 3",
                    ".end_amdhsa_kernel"]
        return "\n".join(out) + "\n"
```

```python
from gen_common import *

PIECE = 1056
TILE = 16 * PIECE
KRING = 0
VRING = 4 * TILE
LDS_FLAG = 8 * TILE
LDS_TOTAL = 8 * TILE + 64

def mf(d, A, B, c=None):
    return f"v_mfma_f32_16x16x32_bf16 {d}, {A}, {B}, {c if c is not None else d}"

def emit(a, mfmas, gaps):
    for g, m in enumerate(mfmas):
        a(m)
        for s in gaps.get(g, []):
            a(s)

S_W, S_B = 12, 16
S_K, S_V, S_O = 4, 8, 20
sWAVE, sKOFF, sVOFF, sWOFF, sBOFF, sCNT, sMW, sWP = 24, 25, 26, 27, 28, 29, 30, 31
vLANE16, vWOFF, vKV, vA, vKADDR, vBOFF = 1, 2, 3, 4, 5, 6
ACC = 16
AFR = [("v", 144 + 4*i) for i in range(4)]
BRING = [("a", 144 + 4*i) for i in range(28)] + [("v", 160 + 4*i) for i in range(4)]

class Gemm:
    def __init__(self, a, wstride, bq):
        self.a, self.ws, self.bq = a, wstride, bq
    def acc(self, nb, qb): return R("v", ACC + 4 * (qb * 8 + nb))
    def bfrag(self, c, qb, ks):
        f, i = BRING[(c % 4) * 8 + qb * 2 + ks]; return R(f, i)
    def afrag(self, nb, ks):
        f, i = AFR[(nb % 2) * 2 + ks]; return f, i
    def a_reads(self, c, nb):
        out = []
        for ks in range(2):
            f, i = self.afrag(nb, ks)
            for jj in range(2):
                out.append(f"ds_read_b64_tr_b16 {R(f, i + 2*jj, 2)}, v{vA} offset:{(c % 4)*TILE + (2*ks + jj)*256 + nb*32}")
        return out
    def dma_pre(self, c, p):
        out = [f"s_add_u32 m0, s{sMW}, {VRING + (c % 4)*TILE + p*PIECE}"]
        return out
    def dma(self, c, p):
        return f"buffer_load_dwordx4 v{vWOFF}, s[{S_W}:{S_W+3}], s{sWOFF} offen lds"
    def dma_post(self, p):
        return f"s_add_u32 s{sWOFF}, s{sWOFF}, {self.ws if p < 3 else 61*self.ws}"
    def bload(self, c, i):
        qb, ks = i // 2, i % 2
        return f"buffer_load_dwordx4 {self.bfrag(c, qb, ks)}, v{vBOFF+qb}, s[{S_B}:{S_B+3}], s{sBOFF} offen offset:{ks*1024}"
    def prologue(self):
        a = self.a
        for c in range(4):
            for p in range(4 if c < 3 else 1):
                a(self.dma_pre(c, p)[0]); a("s_nop 0"); a(self.dma(c, p)); a(self.dma_post(p))
            if c < 3:
                for i in range(8): a(self.bload(c, i))
                a(f"s_add_u32 s{sBOFF}, s{sBOFF}, 2048")
    def start(self):
        a = self.a
        a("s_waitcnt vmcnt(25)\ns_barrier")
        for s in self.a_reads(0, 0): a(s)
        a("s_waitcnt lgkmcnt(0)")
    def chunk(self, c, first=False, vm=None, bar_wait="vmcnt(23)", last=False):
        a = self.a
        for nb in range(8):
            ms = []
            for qb in range(4):
                for ks in ((0, 1) if qb % 2 == 0 else (1, 0)):
                    f, i = self.afrag(nb, ks)
                    z = "0" if (first and len(ms) % 2 == 0) else None
                    ms.append(mf(self.acc(nb, qb), R(f, i), self.bfrag(c, qb, ks), z))
            gaps = {g: [] for g in range(8)}
            if not (last and nb == 7):
                rd = self.a_reads(c, nb + 1) if nb < 7 else self.a_reads(c + 1, 0)
                gaps[0] += rd[0:2]; gaps[1] += rd[2:4]
            if vm is None:
                ops = [(None, self.bload(c + 3, nb), f"s_add_u32 s{sBOFF}, s{sBOFF}, 2048" if nb == 7 else None)]
                if nb % 2 == 1:
                    cc, p = (c + 4, 0) if nb == 7 else (c + 3, (nb + 1) // 2)
                    ops.append((self.dma_pre(cc, p)[0], self.dma(cc, p), self.dma_post(p)))
            else:
                ops = vm.get(nb, [])
            for k, (pre, ins, post) in enumerate(ops):
                g = 3 + 2 * k
                if pre: gaps[g - 1].insert(0, pre)
                gaps[g].append(ins)
                if post: gaps[g + 1].append(post)
            if nb == 6 and bar_wait:
                gaps[7] += [f"s_waitcnt {bar_wait} lgkmcnt(0)", "s_barrier"]
            elif not (last and nb == 7):
                gaps[7].append("s_waitcnt lgkmcnt(0)")
            emit(a, ms, gaps)

def pack_pairs(a, dst, src, scale_pair=None):
    if scale_pair is not None:
        for i in range(0, 8, 2):
            a(f"v_pk_mul_f32 v[{src+i}:{src+i+1}], v[{src+i}:{src+i+1}], {scale_pair}")
    for i in range(4):
        a(f"v_cvt_pk_bf16_f32 v{dst+i}, v{src+2*i}, v{src+2*i+1}")

def shuffle(a, regs):
    a("s_nop 1")
    for sw in ("v_permlane32_swap_b32", "v_permlane16_swap_b32"):
        for d in regs:
            a(f"{sw} v{d}, v{d+2}\n{sw} v{d+1}, v{d+3}")
        if len(regs) < 2: a("s_nop 1")

def common_setup(a):
    a(f"""
    v_lshrrev_b32 v10, 6, v0
    v_and_b32 v11, 63, v0
    v_readfirstlane_b32 s{sWAVE}, v10
    v_lshlrev_b32 v{vLANE16}, 4, v11
    v_lshrrev_b32 v12, 4, v11
    v_and_b32 v13, 15, v11
    v_lshrrev_b32 v14, 2, v11
    v_mul_u32_u24 v{vA}, {PIECE}, v14
    v_and_b32 v14, 3, v11
    v_lshl_add_u32 v{vA}, v14, 3, v{vA}
    v_add_u32 v{vA}, {VRING}, v{vA}
    s_mul_i32 s{sMW}, s{sWAVE}, {4*PIECE}
    """)

QF = 16
SB_ = 80
MB = 96
PB_ = 112
KF = 176
VF = 208
ONES, IDX = 224, 228
OACC, LACC = 0, 128

class Attn:
    def __init__(self, a, safe):
        self.a, self.safe = a, safe
    def kread(self, T, kb, ds):
        return f"ds_read_b128 {R('v', KF + 16*(kb % 2) + 4*ds)}, v{vKADDR} offset:{(T % 4)*TILE + kb*256 + ds*64}"
    def vreads(self, T, db, ks):
        return [f"ds_read_b64_tr_b16 {R('v', VF + 8*(db % 2) + 4*ks + 2*jj, 2)}, v{vA} offset:{(T % 4)*TILE + (2*ks + jj)*256 + db*32}" for jj in range(2)]
    def dma(self, kind, T, p):
        ring, srd, so = (KRING, S_K, sKOFF) if kind == "K" else (VRING, S_V, sVOFF)
        return (f"s_add_u32 m0, s{sMW}, {ring + (T % 4)*TILE + 32*p}",
                f"buffer_load_dwordx4 v{vKV}, s[{srd}:{srd+3}], s{so} offen offset:{p*1024} lds",
                f"s_add_u32 s{so}, s{so}, 16384" if p == 3 else None)
    def qk(self, kb, qb):
        order = (0, 1, 2, 3) if qb % 2 == 0 else (3, 2, 1, 0)
        d = R("v", SB_ + 4*qb)
        return [mf(d, R("v", KF + 16*(kb % 2) + 4*ds), R("v", QF + 16*qb + 4*ds),
                   (R("v", MB + 4*qb) if self.safe else "0") if n == 0 else None) for n, ds in enumerate(order)]
    def pv(self, T, db, qbs):
        out = []
        for qb in qbs:
            for ks in ((0, 1) if qb % 2 == 0 else (1, 0)):
                out.append(mf(R("a", OACC + 4*(qb*8 + db)), R("v", VF + 8*(db % 2) + 4*ks), R("v", PB_ + 32*(T % 2) + 8*qb + 4*ks)))
        return out
    def exp(self, blk, i):
        r_ = SB_ + 4*(blk % 4) + i
        return f"v_exp_f32 v{r_}, v{r_}"
    def cvt(self, X, blk, h):
        kb, qb = blk // 4, blk % 4
        return f"v_cvt_pk_bf16_f32 v{PB_ + 32*(X % 2) + 8*qb + 2*kb + h}, v{SB_ + 4*qb + 2*h}, v{SB_ + 4*qb + 2*h + 1}"
    def smf(self, T, qb):
        return f"v_smfmac_f32_16x16x64_bf16 {R('a', LACC + 4*qb)}, {R('v', ONES)}, {R('v', PB_ + 32*(T % 2) + 8*qb, 8)}, v{IDX}"
    def kread_at(self, T, s):
        n = s + 5
        X, kb, ds = T + 1 + n // 16, (n % 16) // 4, n % 4
        return X, kb, ds
    def dma_ops(self, T):
        ops = {}
        for s in range(1, 16, 2):
            n = (s - 11) // 2
            st = T + 3 if n >= 0 else T + 2
            n %= 8
            ops[s] = ("K", st + 1, n) if n < 4 else ("V", st, n - 4)
        return ops
    def iteration(self, T, do_qk=True, do_pv=True, dma=True, tail=None):
        a = self.a
        dmas = self.dma_ops(T) if dma else {}
        for s in range(16):
            kb, qb = s // 4, s % 4
            db = s // 2
            full = do_qk and do_pv
            ms = (self.qk(kb, qb) if do_qk else []) + (self.pv(T, db, (2*(s % 2), 2*(s % 2) + 1)) if do_pv else [])
            E, C = [], []
            if s >= 1:
                if do_qk: E = [self.exp(s - 1, i) for i in range(4)]
            elif do_pv: E = [self.exp(15, i) for i in range(4)]
            if s >= 2:
                if do_qk: C = [self.cvt(T + 1, s - 2, h) for h in range(2)]
            elif do_pv: C = [self.cvt(T, 14 + s, h) for h in range(2)]
            KR, VR = [], []
            X, kkb, ds = self.kread_at(T, s)
            if do_qk and X <= 31: KR = [self.kread(X, kkb, ds)]
            n = s + 2
            if n < 16:
                if do_pv: VR = self.vreads(T, n // 2, n % 2)
            elif do_qk: VR = self.vreads(T + 1, 0, n % 2)
            D = self.dma(*dmas[s]) if s in dmas else None
            gaps = {g: [] for g in range(9)}
            if full:
                gaps[0] = [E[0]]; gaps[2] = [E[1]]; gaps[4] = [E[2]]; gaps[6] = [E[3]]
                gaps[1] = C
                gaps[3] = (["s_waitcnt lgkmcnt(1)"] if s % 2 == 0 else []) + VR
                gaps[5] = KR
                last = 7
                if s % 4 == 3:
                    ms.append(self.smf(T, s // 4)); last = 8
                if D:
                    gaps[6].insert(0, D[0]); gaps[7].append(D[1])
                    if D[2]: gaps[last].append(D[2])
                if s % 4 == 3: gaps[last].append(f"s_waitcnt lgkmcnt({len(KR) + len(VR)})")
                if s == 10: gaps[last] += ["s_waitcnt vmcnt(8)", "s_barrier"]
                if s == 15 and tail: gaps[last] += tail
            elif do_qk:
                gaps[0] = VR
                gaps[1] = C
                if D:
                    gaps[1] = [D[0]] + gaps[1]; gaps[2] = [D[1]] + ([D[2]] if D[2] else [])
                gaps[3] = KR + (E if E else ["s_nop 3"])
                if s % 4 == 3: gaps[3].append(f"s_waitcnt lgkmcnt({len(KR) + len(VR)})")
                if s == 10: gaps[3] += ["s_waitcnt vmcnt(8)", "s_barrier"]
                if s == 15: gaps[3].append("s_nop 3")
            else:
                pre = E + C
                if s < 2: pre += ["s_nop 1"]
                if s % 2 == 0: pre += ["s_waitcnt lgkmcnt(0)"]
                for x in pre: a(x)
                gaps[0] = VR
                if s % 4 == 3: ms.append(self.smf(T, s // 4))
            emit(a, ms, gaps)
    def body(self):
        a = self.a
        for s in range(11, 16):
            X, kb, ds = self.kread_at(-2, s)
            a(self.kread(X, kb, ds))
        a("s_waitcnt lgkmcnt(1)")
        d = self.dma_ops
        self.dma_ops = lambda T: {s: o for s, o in d(T).items() if s >= 11}
        self.iteration(-1, do_pv=False)
        self.dma_ops = d
        loop, done = a.label("attn"), a.label("attn_done")
        a(f"s_mov_b32 s{sCNT}, 0")
        a(".p2align 3")
        a(f"{loop}:")
        for T in range(4):
            tail = None
            if T == 2: tail = [f"s_cmp_eq_u32 s{sCNT}, 7", f"s_cbranch_scc1 {done}"]
            if T == 3: tail = [f"s_add_u32 s{sCNT}, s{sCNT}, 1", f"s_branch {loop}"]
            self.iteration(T, tail=tail)
        a(f"{done}:")
        self.iteration(31, do_qk=False, dma=False)

def attn_epilogue(a, check):
    a("s_nop 7")
    T = 80
    for qb in range(4):
        a(f"v_accvgpr_read_b32 v{T+2*qb}, a{LACC+4*qb}\nv_accvgpr_read_b32 v{T+2*qb+1}, a{LACC+4*qb+1}")
    for qb in range(4):
        a(f"v_add_f32 v{T+2*qb}, v{T+2*qb}, v{T+2*qb+1}")
    if check:
        a(f"s_mov_b32 s42, {f2u(2.0**-24)}\ns_mov_b32 s43, {f2u(2.0**60)}\ns_mov_b64 s[40:41], 0")
        for qb in range(4):
            a(f"v_cmp_nle_f32 vcc, s42, v{T+2*qb}\ns_or_b64 s[40:41], s[40:41], vcc")
            a(f"v_cmp_nge_f32 vcc, s43, v{T+2*qb}\ns_or_b64 s[40:41], s[40:41], vcc")
        for i in range(4): a(f"v_mov_b32 v{KF+i}, 0")
    for qb in range(4):
        a(f"v_rcp_f32 v{T+2*qb}, v{T+2*qb}")
    for qb in range(4):
        a(f"v_mov_b32 v{T+2*qb+1}, v{T+2*qb}")
    n = 0
    for qb in range(4):
        for s in range(4):
            src = 96 + 8 * (n % 2); dst = 112 + 4 * n
            for i in range(8):
                a(f"v_accvgpr_read_b32 v{src+i}, a{OACC + 4*(qb*8 + 2*s) + i}")
            pack_pairs(a, dst, src, f"v[{T+2*qb}:{T+2*qb+1}]")
            a(f"buffer_store_dwordx4 {R('v', dst)}, v{vBOFF+qb}, s[{S_O}:{S_O+3}], 0 offen offset:{s*1024}")
            if check and n:
                a(mf(R("v", KF + 4), R("v", KF), R("v", dst - 4), "0" if n == 1 else None))
            n += 1
    if check:
        a("s_nop 0")
        a(mf(R("v", KF + 4), R("v", KF), R("v", 112 + 60)))
        a(f"s_nop 7\nv_cmp_u_f32 vcc, v{KF+4}, v{KF+4}\ns_or_b64 s[40:41], s[40:41], vcc\ns_or_b32 s40, s40, s41")

def k_attn(a, name, diag=False, force_safe=False):
    a.begin_kernel(name)
    guard(a, 256)
    a(f"s_load_dwordx4 s[32:35], s[0:1], {KA['k']}")
    a(f"s_load_dwordx2 s[36:37], s[0:1], {KA['wq']}")
    a(f"s_load_dwordx2 s[38:39], s[0:1], {KA['ws']}")
    common_setup(a)
    a(f"""
    s_and_b32 s40, s2, 7
    s_lshl_b32 s40, s40, 2
    s_bfe_u32 s41, s2, 0x20003
    s_add_u32 s40, s40, s41
    s_lshr_b32 s41, s2, 5
    s_lshl_b32 s41, s41, 2
    s_add_u32 s41, s41, s{sWAVE}
    v_lshrrev_b32 v14, 1, v12
    v_lshlrev_b32 v14, 5, v14
    v_and_b32 v15, 1, v12
    v_lshl_add_u32 v14, v15, 2, v14
    v_lshl_add_u32 v14, v10, 3, v14
    v_lshlrev_b32 v14, 13, v14
    v_lshl_add_u32 v{vWOFF}, v13, 4, v14
    v_lshl_add_u32 v{vKV}, v10, 12, v{vLANE16}
    v_mul_u32_u24 v{vKADDR}, {PIECE}, v13
    v_lshl_add_u32 v{vKADDR}, v12, 4, v{vKADDR}
    s_mov_b32 s{sKOFF}, 0
    s_mov_b32 s{sVOFF}, 0
    s_mov_b32 s{sWOFF}, 0
    s_mov_b32 s{sBOFF}, 0
    s_lshl_b32 s42, s40, 19
    s_lshl_b32 s43, s40, 8
    s_sub_u32 s44, {8 << 20}, s43
    s_lshl_b32 s45, s41, 17
    s_add_u32 s45, s45, {WS_H}
    s_lshl_b32 s46, s41, 19
    s_lshl_b32 s47, s40, 12
    s_add_u32 s46, s46, s47
    s_add_u32 s46, s46, {WS_O}
    """)
    for qb in range(4):
        a(f"v_add_u32 v{vBOFF+qb}, {qb*32768}, v{vLANE16}")
    st = Stamps(a, diag, 2)
    a("s_waitcnt lgkmcnt(0)")
    st.setup(sWAVE); st.stamp()
    a.srd(S_W, 36, "s44", "s43")
    a.srd(S_B, 38, 1 << 17, "s45")
    g = Gemm(a, 8192, 32768)
    g.prologue()
    a.srd(S_K, 32, 1 << 19, "s42")
    a.srd(S_V, 34, 1 << 19, "s42")
    a.srd(S_O, 38, (1 << 19) - (31 << 12), "s46")
    for i in range(144):
        a(f"v_accvgpr_write_b32 a{i}, 0")
    for i in range(4):
        a(f"v_mov_b32 v{ONES+i}, 0x3f803f80")
    a(f"v_and_b32 v14, 1, v11\nv_mul_u32_u24 v14, 0xaaaa, v14\nv_add_u32 v14, 0x4444, v14\nv_lshl_add_u32 v{IDX}, v14, 16, v14")
    for i in range(128):
        a(f"v_mov_b32 v{ACC+i}, 0")
    g.start()
    st.stamp()
    loop = a.label("qproj")
    a(f"s_mov_b32 s{sCNT}, 0\n{loop}:")
    for c in range(4):
        g.chunk(c)
    a(f"s_add_u32 s{sCNT}, s{sCNT}, 1\ns_cmp_lt_u32 s{sCNT}, 3\ns_cbranch_scc1 {loop}")
    at = Attn(a, False)
    seq = [("K", 0, p) for p in range(4)]
    for T in range(2):
        seq += [("K", T + 1, p) for p in range(4)] + [("V", T, p) for p in range(4)]
    seq = [at.dma(*x) for x in seq]
    vm = {nb: [(None, g.bload(15, nb), None)] + ([(g.dma_pre(15, (nb+1)//2)[0], g.dma(15, (nb+1)//2), g.dma_post((nb+1)//2))] if nb in (1, 3, 5) else []) for nb in range(8)}
    g.chunk(12, vm=vm)
    g.chunk(13, vm={nb: [seq[nb]] for nb in range(8)}, bar_wait="vmcnt(19)")
    g.chunk(14, vm={nb: [seq[8 + nb]] for nb in range(8)}, bar_wait="vmcnt(15)")
    g.chunk(15, vm={nb: [seq[16 + nb]] for nb in range(4)}, bar_wait="vmcnt(16)", last=True)
    st.stamp()
    sc = LOG2E * 128 ** -0.5
    a(f"s_mov_b32 s42, {f2u(sc)}\ns_mov_b32 s43, s42\ns_nop 5")
    for n in range(16):
        pack_pairs(a, QF + 4*n, ACC + 8*n, "s[42:43]")
    shuffle(a, [QF + 4*n for n in range(16)])
    for qb in range(4):
        a(f"v_add_u32 v{vBOFF+qb}, {qb*131072}, v{vLANE16}")
    safe = a.label("safe")
    if force_safe:
        a(f"s_waitcnt vmcnt(0)\ns_barrier\ns_branch {safe}")
    st.stamp()
    at.body()
    st.stamp()
    attn_epilogue(a, True)
    a(f"""
    v_mov_b32 v14, s40
    s_lshl_b32 s41, s{sWAVE}, 2
    s_add_u32 s41, s41, {LDS_FLAG}
    v_mov_b32 v15, s41
    ds_write_b32 v15, v14
    v_mov_b32 v15, {LDS_FLAG}
    s_waitcnt lgkmcnt(0)
    s_barrier
    ds_read_b128 v[80:83], v15
    s_waitcnt lgkmcnt(0)
    v_or_b32 v80, v80, v81
    v_or3_b32 v80, v80, v82, v83
    s_nop 0
    v_readfirstlane_b32 s40, v80
    s_nop 3
    s_cmp_lg_u32 s40, 0
    s_cbranch_scc1 {safe}
    """)
    st.stamp(); st.flush()
    a("s_endpgm")
    a(f"{safe}:")
    a("s_waitcnt vmcnt(0) lgkmcnt(0)\ns_barrier")
    at = Attn(a, True)
    for i in range(4):
        a(f"v_mov_b32 v{MB+4*i}, 0xff800000")
    mloop = a.label("maxloop")
    a(f"s_mov_b32 s{sKOFF}, 0\ns_mov_b32 s{sVOFF}, 0\n{mloop}:")
    for p in range(4):
        pre, ins, post = at.dma("K", 0, p)
        a(pre); a("s_nop 0"); a(ins)
        if post: a(post)
    a("s_waitcnt vmcnt(0)\ns_barrier")
    fast = Attn(a, False)
    for kb in range(4):
        for ds in range(4): a(at.kread(0, kb, ds))
        a("s_waitcnt lgkmcnt(0)")
        for qb in range(4):
            for m in fast.qk(kb, qb): a(m)
        a("s_nop 7")
        for qb in range(4):
            a(f"v_max3_f32 v{MB+4*qb}, v{MB+4*qb}, v{SB_+4*qb}, v{SB_+4*qb+1}")
            a(f"v_max3_f32 v{MB+4*qb}, v{MB+4*qb}, v{SB_+4*qb+2}, v{SB_+4*qb+3}")
    a(f"s_barrier\ns_cmp_lt_u32 s{sKOFF}, {32*16384}\ns_cbranch_scc1 {mloop}")
    for sw in ("v_permlane16_swap_b32", "v_permlane32_swap_b32"):
        for qb in range(4): a(f"v_mov_b32 v{MB+4*qb+1}, v{MB+4*qb}")
        a("s_nop 1")
        for qb in range(4): a(f"{sw} v{MB+4*qb}, v{MB+4*qb+1}")
        a("s_nop 0")
        for qb in range(4): a(f"v_max_f32 v{MB+4*qb}, v{MB+4*qb}, v{MB+4*qb+1}")
    for qb in range(4):
        a(f"v_sub_f32 v{MB+4*qb}, 0, v{MB+4*qb}")
        for i in range(1, 4): a(f"v_mov_b32 v{MB+4*qb+i}, v{MB+4*qb}")
    for i in range(144):
        a(f"v_accvgpr_write_b32 a{i}, 0")
    a(f"s_mov_b32 s{sKOFF}, 0")
    for pre, ins, post in seq:
        a(pre); a("s_nop 0"); a(ins)
        if post: a(post)
    a("s_waitcnt vmcnt(16)\ns_barrier")
    at.body()
    attn_epilogue(a, False)
    a("s_endpgm")
    a.end_kernel(name, 256, 256, sgpr=102 if diag else 64)

def k_oproj(a, name, diag=False):
    a.begin_kernel(name)
    guard(a, 256)
    a(f"s_load_dwordx2 s[36:37], s[0:1], {KA['wo']}")
    a(f"s_load_dwordx2 s[38:39], s[0:1], {KA['ws']}")
    common_setup(a)
    a(f"""
    s_bfe_u32 s40, s2, 0x20001
    s_and_b32 s41, s2, 1
    s_lshl_b32 s41, s41, 2
    s_lshr_b32 s42, s2, 6
    s_add_u32 s41, s41, s42
    s_lshl_b32 s41, s41, 2
    s_add_u32 s41, s41, s{sWAVE}
    s_bfe_u32 s42, s2, 0x30003
    v_lshlrev_b32 v14, 4, v12
    v_lshl_add_u32 v14, v10, 2, v14
    v_lshlrev_b32 v14, 11, v14
    v_lshl_add_u32 v{vWOFF}, v13, 4, v14
    s_mov_b32 s{sWOFF}, 0
    s_mov_b32 s{sBOFF}, 0
    s_lshl_b32 s43, s40, 21
    s_lshl_b32 s44, s42, 8
    s_add_u32 s43, s43, s44
    s_sub_u32 s44, {8 << 20}, s43
    s_lshl_b32 s45, s41, 19
    s_lshl_b32 s46, s40, 15
    s_add_u32 s45, s45, s46
    s_add_u32 s45, s45, {WS_O}
    s_lshl_b32 s46, s40, 22
    s_lshl_b32 s47, s41, 17
    s_add_u32 s46, s46, s47
    s_lshl_b32 s47, s42, 12
    s_add_u32 s46, s46, s47
    s_add_u32 s46, s46, {WS_P}
    """)
    for qb in range(4):
        a(f"v_add_u32 v{vBOFF+qb}, {qb*131072}, v{vLANE16}")
    st = Stamps(a, diag, 3)
    a("s_waitcnt lgkmcnt(0)")
    st.setup(sWAVE); st.stamp()
    a.srd(S_W, 36, "s44", "s43")
    a.srd(S_B, 38, (1 << 19) - (3 << 15), "s45")
    g = Gemm(a, 2048, 131072)
    g.prologue()
    a.srd(S_O, 38, (1 << 17) - (7 << 12), "s46")
    for i in range(128):
        a(f"v_mov_b32 v{ACC+i}, 0")
    g.start()
    st.stamp()
    loop = a.label("oproj")
    a(f"s_mov_b32 s{sCNT}, 0\n{loop}:")
    for c in range(4):
        g.chunk(c)
    a(f"s_add_u32 s{sCNT}, s{sCNT}, 1\ns_cmp_lt_u32 s{sCNT}, 3\ns_cbranch_scc1 {loop}")
    vm = {nb: [(None, g.bload(15, nb), None)] + ([(g.dma_pre(15, (nb+1)//2)[0], g.dma(15, (nb+1)//2), g.dma_post((nb+1)//2))] if nb in (1, 3, 5) else []) for nb in range(8)}
    g.chunk(12, vm=vm)
    g.chunk(13, vm={}, bar_wait="vmcnt(12)")
    g.chunk(14, vm={}, bar_wait="vmcnt(0)")
    g.chunk(15, vm={}, bar_wait=None, last=True)
    st.stamp()
    for qb in range(4):
        a(f"v_add_u32 v{vBOFF+qb}, {qb*32768}, v{vLANE16}")
    a("s_nop 3")
    for qb in range(4):
        for s in range(4):
            n = qb * 4 + s
            pack_pairs(a, 160 + 4*n, ACC + 8*n)
        shuffle(a, [160 + 16*qb + 4*s for s in range(4)])
        for s in range(4):
            a(f"buffer_store_dwordx4 {R('v', 160 + 16*qb + 4*s)}, v{vBOFF+qb}, s[{S_O}:{S_O+3}], 0 offen offset:{s*1024}")
    st.stamp(); st.flush()
    a("s_endpgm")
    a.end_kernel(name, 256, 256, sgpr=102 if diag else 64)
```

```python
from asmlib import Asm

KA = dict(x=0, k=8, v=16, wq=24, wo=32, bx=40, wr=48, wg=56, wu=64, wd=72, c=80, wmod=88, out=96, dbg=104, ws=112)
WS_MOD = 0x0
WS_KEYS = 0x8000
WS_YP = 0x100000
WS_H = 0x400000
WS_H2 = 0x800000
WS_X1 = 0xC00000
WS_O = 0x1000000
WS_P = 0x2000000
WS_TS = 0x4000000
LOG2E = 1.4426950408889634

def f2u(x):
    import struct
    return "0x%08x" % struct.unpack("<I", struct.pack("<f", x))[0]

def R(f, i, n=4):
    return f"{f}[{i}:{i+n-1}]" if n > 1 else f"{f}{i}"

def guard(a, nwg):
    l = a.label("go")
    a(f"s_cmp_lt_u32 s2, {nwg}\ns_cbranch_scc1 {l}\ns_endpgm\n{l}:")

class Stamps:
    def __init__(self, a, enabled, kid, sbase=80, vtmp=(254, 255)):
        self.a, self.on, self.kid, self.s, self.v, self.n = a, enabled, kid, sbase, vtmp, 0
    def setup(self, wave_sgpr):
        if not self.on: return
        a, s = self.a, self.s
        a(f"s_load_dwordx2 s[{s}:{s+1}], s[0:1], {KA['ws']}\ns_waitcnt lgkmcnt(0)")
        a.srd(s + 4, s, 1 << 22, WS_TS + self.kid * (1 << 20))
        a(f"s_lshl_b32 s{s+8}, s2, 4\ns_add_u32 s{s+8}, s{s+8}, s{wave_sgpr}\ns_lshl_b32 s{s+8}, s{s+8}, 7")
    def stamp(self):
        if not self.on: return
        a, s, v = self.a, self.s, self.v
        a(f"s_memrealtime s[{s}:{s+1}]\ns_memtime s[{s+2}:{s+3}]\ns_waitcnt lgkmcnt(0)")
        a(f"s_mov_b32 s{s+10+2*self.n}, s{s}\ns_mov_b32 s{s+11+2*self.n}, s{s+2}")
        self.n += 1
    def flush(self):
        if not self.on: return
        a, s, v = self.a, self.s, self.v
        a(f"v_mov_b32 v{v[1]}, 0")
        for i in range(2 * self.n):
            a(f"v_mov_b32 v{v[0]}, s{s+10+i}\nbuffer_store_dword v{v[0]}, v{v[1]}, s[{s+4}:{s+7}], s{s+8} offen offset:{4*i}\ns_nop 1")

def bf16_round(a, dst_lo, dst_hi, src_lo, src_hi, tmp):
    a(f"v_cvt_pk_bf16_f32 v{tmp}, v{src_lo}, v{src_hi}")
    a(f"v_lshlrev_b32 v{dst_lo}, 16, v{tmp}")
    a(f"v_and_b32 v{dst_hi}, 0xffff0000, v{tmp}")

def unpack(a, lo, hi, src):
    a(f"v_lshlrev_b32 v{lo}, 16, v{src}")
    a(f"v_and_b32 v{hi}, 0xffff0000, v{src}")
```

```python
from gen_common import *

def allreduce8(a, regs, tmps, op="v_add_f32"):
    a("s_nop 1")
    for r_ in regs:
        a(f"{op}_dpp v{r_}, v{r_}, v{r_} row_ror:8 row_mask:0xf bank_mask:0xf")
    for sw in ("v_permlane16_swap_b32", "v_permlane32_swap_b32"):
        for r_, t in zip(regs, tmps):
            a(f"v_mov_b32 v{t}, v{r_}")
        a("s_nop 1")
        for r_, t in zip(regs, tmps):
            a(f"{sw} v{r_}, v{t}")
        a("s_nop 0")
        for r_, t in zip(regs, tmps):
            a(f"{op} v{r_}, v{r_}, v{t}")

def k_mod(a, name, diag=False):
    a.begin_kernel(name)
    guard(a, 192)
    a(f"s_load_dwordx4 s[4:7], s[0:1], {KA['c']}")
    a(f"s_load_dwordx2 s[8:9], s[0:1], {KA['ws']}")
    a("""
    s_and_b32 s10, s2, 7
    s_lshr_b32 s11, s2, 3
    s_lshr_b32 s12, s11, 1
    s_lshl_b32 s12, s12, 4
    s_lshl_b32 s10, s10, 1
    s_add_u32 s12, s12, s10
    s_and_b32 s11, s11, 1
    s_add_u32 s12, s12, s11
    s_lshl_b32 s13, s12, 6
    v_lshrrev_b32 v1, 2, v0
    v_and_b32 v2, 3, v0
    v_mul_u32_u24 v3, 98304, v1
    v_lshl_add_u32 v3, v2, 4, v3
    v_lshlrev_b32 v1, 4, v1
    v_lshrrev_b32 v60, 6, v0
    """)
    for i in range(8):
        a(f"s_add_u32 s{32+i}, s13, {i*12288}")
    a("v_readfirstlane_b32 s14, v60")
    st = Stamps(a, diag, 0, vtmp=(62, 63));
    a("s_waitcnt lgkmcnt(0)")
    st.setup(14); st.stamp()
    a.srd(16, 4, 2048)
    a.srd(20, 6, 1024 * 12288)
    a.srd(24, 8, 12288, WS_MOD)
    a("buffer_load_dwordx4 v[4:7], v1, s[16:19], 0 offen")
    for i in range(8):
        a(f"buffer_load_dwordx4 {R('v', 8+4*i)}, v3, s[20:23], s{32+i} offen")
    a("s_waitcnt vmcnt(8)")
    for j in range(4):
        unpack(a, 40 + 2*j, 41 + 2*j, 4 + j)
    for j in range(8):
        a(f"v_mul_f32 v{48+j}, {f2u(-LOG2E)}, v{40+j}")
    for j in range(8):
        a(f"v_exp_f32 v{48+j}, v{48+j}")
    for j in range(8):
        a(f"v_add_f32 v{48+j}, 1.0, v{48+j}")
    for j in range(8):
        a(f"v_rcp_f32 v{48+j}, v{48+j}")
    for j in range(8):
        a(f"v_mul_f32 v{40+j}, v{40+j}, v{48+j}")
    for j in range(4):
        bf16_round(a, 40 + 2*j, 41 + 2*j, 40 + 2*j, 41 + 2*j, 56)
    for i in range(8):
        a(f"s_waitcnt vmcnt({7-i})")
        for j in range(4):
            unpack(a, 56, 57, 8 + 4*i + j)
            if i == 0:
                a(f"v_mul_f32 v{48+2*j}, v40, v56\nv_mul_f32 v{49+2*j}, v40, v57")
            else:
                a(f"v_fmac_f32 v{48+2*j}, v{40+i}, v56\nv_fmac_f32 v{49+2*j}, v{40+i}, v57")
    a("s_nop 1")
    for sh in (8, 4):
        for j in range(8):
            a(f"v_add_f32_dpp v{48+j}, v{48+j}, v{48+j} row_ror:{sh} row_mask:0xf bank_mask:0xf")
    a("""
    v_lshrrev_b32 v1, 4, v0
    v_lshlrev_b32 v1, 7, v1
    v_lshl_add_u32 v1, v2, 5, v1
    v_and_b32 v3, 15, v0
    v_cmp_gt_u32 vcc, 4, v3
    s_and_saveexec_b64 s[28:29], vcc
    ds_write_b128 v1, v[48:51]
    ds_write_b128 v1, v[52:55] offset:16
    s_mov_b64 exec, s[28:29]
    s_waitcnt lgkmcnt(0)
    s_barrier
    """)
    l = a.label("w0")
    a(f"s_cmp_eq_u32 s14, 0\ns_cbranch_scc1 {l}")
    st.stamp(); st.flush(); st.n -= 1 if diag else 0
    a(f"s_endpgm\n{l}:")
    a("""
    v_and_b32 v1, 31, v0
    v_lshrrev_b32 v2, 5, v0
    v_lshlrev_b32 v2, 11, v2
    v_lshl_add_u32 v2, v1, 2, v2
    """)
    for i in range(0, 8, 2):
        a(f"ds_read2_b32 v[{8+i}:{9+i}], v2 offset0:{i*32} offset1:{i*32+32}")
    for i in range(8, 16):
        a(f"ds_read_b32 v{8+i}, v2 offset:{i*128}")
    a("s_waitcnt lgkmcnt(0)")
    for st_ in (8, 4, 2, 1):
        for i in range(st_):
            a(f"v_add_f32 v{8+i}, v{8+i}, v{8+i+st_}")
    a("""
    v_mov_b32 v9, v8
    s_nop 1
    v_permlane32_swap_b32 v8, v9
    s_nop 0
    v_add_f32 v8, v8, v9
    v_cvt_pk_bf16_f32 v8, v8, v8
    v_lshlrev_b32 v1, 1, v1
    buffer_store_short v8, v1, s[24:27], s13 offen
    """)
    st.stamp(); st.flush()
    a("s_endpgm")
    a.end_kernel(name, 64, sgpr=102 if diag else 48)

def ln_core(a, X, sc, sh, T, wave_sgpr, lds_off, vrow64):
    t0, t1, t2, t3 = T[0], T[1], T[2], T[3]
    a(f"v_add_f32 v{t0}, v{X[0]}, v{X[1]}\nv_add_f32 v{t1}, v{X[2]}, v{X[3]}")
    for i in range(4, 16, 2):
        a(f"v_add_f32 v{t0}, v{t0}, v{X[i]}\nv_add_f32 v{t1}, v{t1}, v{X[i+1]}")
    a(f"v_add_f32 v{t0}, v{t0}, v{t1}")
    allreduce8(a, [t0], [t2])
    a(f"v_mul_f32 v{t0}, {f2u(1/128)}, v{t0}")
    for i in range(16):
        a(f"v_sub_f32 v{t2}, v{X[i]}, v{t0}")
        a(f"v_mul_f32 v{t1}, v{t2}, v{t2}" if i == 0 else f"v_fmac_f32 v{t1}, v{t2}, v{t2}")
    allreduce8(a, [t1], [t2])
    assert t1 == t0 + 1 and t0 % 2 == 0
    a(f"s_lshl_b32 s40, s{wave_sgpr}, 3\nv_add_u32 v{t2}, s40, v{vrow64}")
    a(f"ds_write_b64 v{t2}, v[{t0}:{t1}]")
    a("s_waitcnt lgkmcnt(0)\ns_barrier")
    B = T[4]
    assert B % 2 == 0
    for i in range(4):
        a(f"ds_read_b128 {R('v', B+4*i)}, v{vrow64} offset:{16*i}")
    a("s_waitcnt lgkmcnt(0)")
    a(f"v_add_f32 v{t0}, v{B}, v{B+2}\nv_add_f32 v{t1}, v{B+1}, v{B+3}")
    for i in range(2, 8):
        a(f"v_add_f32 v{t0}, v{t0}, v{B+2*i}\nv_add_f32 v{t1}, v{t1}, v{B+2*i+1}")
    a(f"v_mul_f32 v{t0}, 0.125, v{t0}".replace("0.125", f2u(0.125)))
    for i in range(8):
        a(f"v_sub_f32 v{t2}, v{B+2*i}, v{t0}")
        a(f"v_mul_f32 v{t3}, v{t2}, v{t2}" if i == 0 else f"v_fmac_f32 v{t3}, v{t2}, v{t2}")
    a(f"v_fmac_f32 v{t1}, {f2u(128.0)}, v{t3}")
    a(f"v_mul_f32 v{t1}, {f2u(1/1024)}, v{t1}")
    bf16_round(a, t0, t1, t0, t1, t2)
    a(f"v_add_f32 v{t1}, {f2u(1e-5)}, v{t1}")
    a(f"v_cvt_pk_bf16_f32 v{t1}, v{t1}, v{t1}\nv_lshlrev_b32 v{t1}, 16, v{t1}")
    a(f"v_sqrt_f32 v{t1}, v{t1}\ns_nop 0")
    a(f"v_cvt_pk_bf16_f32 v{t1}, v{t1}, v{t1}\nv_lshlrev_b32 v{t1}, 16, v{t1}")
    a(f"v_rcp_f32 v{t1}, v{t1}")
    u0, u1 = B, B + 1
    for j in range(8):
        x0, x1 = X[2*j], X[2*j+1]
        a(f"v_sub_f32 v{x0}, v{x0}, v{t0}\nv_sub_f32 v{x1}, v{x1}, v{t0}")
        bf16_round(a, x0, x1, x0, x1, t2)
        a(f"v_mul_f32 v{x0}, v{x0}, v{t1}\nv_mul_f32 v{x1}, v{x1}, v{t1}")
        bf16_round(a, x0, x1, x0, x1, t2)
        unpack(a, u0, u1, sc[j])
        a(f"v_add_f32 v{u0}, 1.0, v{u0}\nv_add_f32 v{u1}, 1.0, v{u1}")
        bf16_round(a, u0, u1, u0, u1, t2)
        a(f"v_mul_f32 v{x0}, v{x0}, v{u0}\nv_mul_f32 v{x1}, v{x1}, v{u1}")
        bf16_round(a, x0, x1, x0, x1, t2)
        unpack(a, u0, u1, sh[j])
        a(f"v_add_f32 v{x0}, v{x0}, v{u0}\nv_add_f32 v{x1}, v{x1}, v{u1}")
        a(f"v_cvt_pk_bf16_f32 v{sh[j]}, v{x0}, v{x1}")

def row_prologue(a):
    a("""
    v_lshrrev_b32 v4, 6, v0
    v_and_b32 v1, 7, v0
    v_readfirstlane_b32 s14, v4
    v_bfe_u32 v2, v0, 3, 3
    v_lshl_add_u32 v2, v4, 4, v2
    v_lshlrev_b32 v2, 4, v2
    """)

def k_ln1(a, name, diag=False):
    a.begin_kernel(name)
    guard(a, 256)
    a(f"s_load_dwordx2 s[4:5], s[0:1], {KA['x']}")
    a(f"s_load_dwordx2 s[8:9], s[0:1], {KA['ws']}")
    row_prologue(a)
    a("""
    v_lshl_add_u32 v3, v1, 11, v2
    s_lshl_b32 s13, s2, 14
    v_lshlrev_b32 v5, 6, v1
    """)
    st = Stamps(a, diag, 1, vtmp=(70, 71))
    a("s_waitcnt lgkmcnt(0)")
    st.setup(14); st.stamp()
    a.srd(16, 4, 2048 * 2048)
    a.srd(20, 8, 12288, WS_MOD)
    a.srd(24, 8, 4 << 20, WS_H)
    a("buffer_load_dwordx4 v[8:11], v3, s[16:19], s13 offen")
    a("buffer_load_dwordx4 v[12:15], v3, s[16:19], s13 offen offset:128")
    a("buffer_load_dwordx4 v[16:19], v2, s[20:23], 0 offen")
    a("buffer_load_dwordx4 v[20:23], v2, s[20:23], 0 offen offset:128")
    a("buffer_load_dwordx4 v[24:27], v2, s[20:23], 0 offen offset:2048")
    a("buffer_load_dwordx4 v[28:31], v2, s[20:23], 0 offen offset:2176")
    a("""
    v_lshlrev_b32 v6, 4, v2
    v_lshl_add_u32 v6, v1, 4, v6
    s_lshr_b32 s15, s2, 1
    s_lshl_b32 s15, s15, 15
    s_and_b32 s12, s2, 1
    s_lshl_b32 s12, s12, 7
    s_add_u32 s15, s15, s12
    s_waitcnt vmcnt(4)
    """)
    X = list(range(32, 48))
    for j in range(8):
        unpack(a, X[2*j], X[2*j+1], 8 + j)
    a("s_waitcnt vmcnt(0)")
    ln_core(a, X, list(range(24, 32)), list(range(16, 24)), [48, 49, 50, 51, 52], 14, 0, 5)
    a("buffer_store_dwordx4 v[16:19], v6, s[24:27], s15 offen")
    a("buffer_store_dwordx4 v[20:23], v6, s[24:27], s15 offen offset:2048")
    st.stamp(); st.flush()
    a("s_endpgm")
    a.end_kernel(name, 72, sgpr=102 if diag else 48)

def k_ln2(a, name, nsplit=4, diag=False):
    a.begin_kernel(name)
    guard(a, 256)
    a(f"s_load_dwordx2 s[4:5], s[0:1], {KA['x']}")
    a(f"s_load_dwordx2 s[6:7], s[0:1], {KA['wr']}")
    a(f"s_load_dwordx2 s[8:9], s[0:1], {KA['ws']}")
    a(f"s_load_dwordx2 s[10:11], s[0:1], {KA['out']}")
    row_prologue(a)
    a("""
    v_lshl_add_u32 v3, v1, 11, v2
    s_lshl_b32 s13, s2, 14
    v_lshlrev_b32 v5, 6, v1
    v_lshlrev_b32 v6, 4, v2
    v_lshl_add_u32 v6, v1, 4, v6
    s_lshr_b32 s15, s2, 1
    s_lshl_b32 s15, s15, 15
    s_and_b32 s12, s2, 1
    s_lshl_b32 s12, s12, 7
    s_add_u32 s15, s15, s12
    """)
    st = Stamps(a, diag, 4, vtmp=(126, 127))
    a("s_waitcnt lgkmcnt(0)")
    st.setup(14); st.stamp()
    a.srd(16, 4, 2048 * 2048)
    a.srd(20, 8, 12288, WS_MOD)
    a.srd(24, 8, nsplit << 22, WS_P)
    a.srd(28, 6, 2048)
    a.srd(32, 10, 2048 * 2048)
    a.srd(36, 8, 16 << 20, 0)
    PB = 72
    for s in range(nsplit):
        if s: a(f"s_add_u32 s15, s15, {1 << 22}")
        a(f"buffer_load_dwordx4 {R('v', PB+8*s)}, v6, s[24:27], s15 offen")
        a(f"buffer_load_dwordx4 {R('v', PB+8*s+4)}, v6, s[24:27], s15 offen offset:2048")
    a("buffer_load_dwordx4 v[8:11], v3, s[16:19], s13 offen")
    a("buffer_load_dwordx4 v[12:15], v3, s[16:19], s13 offen offset:128")
    a("s_movk_i32 s41, 4096\ns_movk_i32 s42, 8192")
    GA, SB, CB, GB, WR = 104, 16, 24, 112, 120 - 64
    def ld(dst, soff, off):
        a(f"buffer_load_dwordx4 {R('v', dst)}, v2, s[20:23], {soff} offen offset:{off}")
        a(f"buffer_load_dwordx4 {R('v', dst+4)}, v2, s[20:23], {soff} offen offset:{off+128}")
    ld(GA, "s41", 0); ld(SB, "s41", 2048); ld(CB, "s42", 0); ld(GB, "s42", 2048)
    X = list(range(32, 48))
    a(f"s_waitcnt vmcnt({2*nsplit - 2 + 10})")
    for j in range(8):
        unpack(a, X[2*j], X[2*j+1], PB + j)
    for s in range(1, nsplit):
        a(f"s_waitcnt vmcnt({2*(nsplit-1-s) + 10})")
        for j in range(8):
            unpack(a, 48, 49, PB + 8*s + j)
            a(f"v_add_f32 v{X[2*j]}, v{X[2*j]}, v48\nv_add_f32 v{X[2*j+1]}, v{X[2*j+1]}, v49")
    WR = PB + 8
    a(f"buffer_load_dwordx4 {R('v', WR)}, v2, s[28:31], 0 offen")
    a(f"buffer_load_dwordx4 {R('v', WR+4)}, v2, s[28:31], 0 offen offset:128")
    a("s_waitcnt vmcnt(8)")
    X1P = PB
    for j in range(8):
        x0, x1 = X[2*j], X[2*j+1]
        bf16_round(a, x0, x1, x0, x1, 50)
        unpack(a, 48, 49, GA + j)
        a(f"v_mul_f32 v{x0}, v{x0}, v48\nv_mul_f32 v{x1}, v{x1}, v49")
        bf16_round(a, x0, x1, x0, x1, 50)
        unpack(a, 48, 49, 8 + j)
        a(f"v_add_f32 v{x0}, v{x0}, v48\nv_add_f32 v{x1}, v{x1}, v49")
        a(f"v_cvt_pk_bf16_f32 v{X1P+j}, v{x0}, v{x1}")
        unpack(a, x0, x1, X1P + j)
    a(f"s_add_u32 s43, s13, {WS_X1}\ns_add_u32 s44, s13, {WS_H2}")
    a(f"buffer_store_dwordx4 {R('v', X1P)}, v3, s[36:39], s43 offen")
    a(f"buffer_store_dwordx4 {R('v', X1P+4)}, v3, s[36:39], s43 offen offset:128")
    a("s_waitcnt vmcnt(2)")
    ln_core(a, X, list(range(CB, CB + 8)), list(range(SB, SB + 8)), [48, 49, 50, 51, 52], 14, 0, 5)
    a(f"buffer_store_dwordx4 {R('v', SB)}, v3, s[36:39], s44 offen")
    a(f"buffer_store_dwordx4 {R('v', SB+4)}, v3, s[36:39], s44 offen offset:128")
    for j in range(8):
        x0, x1 = X[2*j], X[2*j+1]
        unpack(a, x0, x1, SB + j)
        unpack(a, 48, 49, WR + j)
        a(f"v_mul_f32 v52, v{x0}, v48\nv_mul_f32 v53, v{x1}, v49" if j == 0 else f"v_fmac_f32 v52, v{x0}, v48\nv_fmac_f32 v53, v{x1}, v49")
        unpack(a, 48, 49, GB + j)
        a(f"v_mul_f32 v{x0}, v{x0}, v48\nv_mul_f32 v{x1}, v{x1}, v49")
        bf16_round(a, x0, x1, x0, x1, 50)
        unpack(a, 48, 49, X1P + j)
        a(f"v_add_f32 v{x0}, v{x0}, v48\nv_add_f32 v{x1}, v{x1}, v49")
        a(f"v_cvt_pk_bf16_f32 v{GB+j}, v{x0}, v{x1}")
    a(f"buffer_store_dwordx4 {R('v', GB)}, v3, s[32:35], s13 offen")
    a(f"buffer_store_dwordx4 {R('v', GB+4)}, v3, s[32:35], s13 offen offset:128")
    a("v_add_f32 v52, v52, v53")
    allreduce8(a, [52], [53])
    a("""
    s_lshl_b32 s40, s14, 2
    v_lshlrev_b32 v53, 5, v1
    v_add_u32 v54, s40, v53
    ds_write_b32 v54, v52 offset:512
    s_waitcnt lgkmcnt(0)
    s_barrier
    """)
    l = a.label("w0")
    a(f"s_cmp_eq_u32 s14, 0\ns_cbranch_scc1 {l}")
    st.stamp(); st.flush(); st.n -= 1 if diag else 0
    a(f"s_endpgm\n{l}:")
    a(f"""
    ds_read_b128 v[56:59], v53 offset:512
    ds_read_b128 v[60:63], v53 offset:528
    s_lshl_b32 s40, s2, 3
    v_add_u32 v54, s40, v1
    v_sub_u32 v55, 2047, v54
    v_lshlrev_b32 v54, 2, v54
    s_waitcnt lgkmcnt(0)
    v_add_f32 v56, v56, v57
    v_add_f32 v58, v58, v59
    v_add_f32 v60, v60, v61
    v_add_f32 v62, v62, v63
    v_add_f32 v56, v56, v58
    v_add_f32 v60, v60, v62
    v_add_f32 v56, v56, v60
    v_cvt_pk_bf16_f32 v56, v56, v56
    v_ashrrev_i32 v57, 31, v56
    v_or_b32 v57, 0x80000000, v57
    v_xor_b32 v56, v56, v57
    v_and_b32 v56, 0xffff0000, v56
    v_or_b32 v56, v56, v55
    s_mov_b32 s40, {WS_KEYS}
    buffer_store_dword v56, v54, s[36:39], s40 offen
    """)
    st.stamp(); st.flush()
    a("s_endpgm")
    a.end_kernel(name, 128, sgpr=102 if diag else 48)

def top2_scan(a, srd, K0, lane16):
    m1, m2, t, u = K0, K0 + 1, K0 + 2, K0 + 3
    a(f"v_max_u32 v4, v{K0}, v{K0+1}\nv_min_u32 v5, v{K0}, v{K0+1}")
    for i in range(2, 32):
        a(f"v_med3_u32 v5, v4, v5, v{K0+i}\nv_max_u32 v4, v4, v{K0+i}")
    for sh in (8, 4, 2, 1):
        a("s_nop 1")
        a(f"v_min_u32_dpp v6, v4, v4 row_ror:{sh} row_mask:0xf bank_mask:0xf")
        a(f"v_max_u32_dpp v7, v5, v5 row_ror:{sh} row_mask:0xf bank_mask:0xf")
        a(f"v_max_u32_dpp v4, v4, v4 row_ror:{sh} row_mask:0xf bank_mask:0xf")
        a(f"v_max_u32 v5, v6, v7")
    a("s_nop 1")
    a("v_readlane_b32 s50, v4, 0\nv_readlane_b32 s51, v5, 0")
    for ln in (16, 32, 48):
        a(f"v_readlane_b32 s52, v4, {ln}\nv_readlane_b32 s53, v5, {ln}\ns_nop 3")
        a("s_min_u32 s54, s50, s52\ns_max_u32 s51, s51, s53\ns_max_u32 s50, s50, s52\ns_max_u32 s51, s51, s54")

def k_moe(a, name, diag=False):
    a.begin_kernel(name)
    guard(a, 224)
    a(f"s_load_dwordx4 s[4:7], s[0:1], {KA['wg']}")
    a(f"s_load_dwordx2 s[8:9], s[0:1], {KA['wd']}")
    a(f"s_load_dwordx2 s[10:11], s[0:1], {KA['ws']}")
    a("""
    v_lshrrev_b32 v4, 6, v0
    v_and_b32 v1, 63, v0
    v_readfirstlane_b32 s14, v4
    s_and_b32 s12, s2, 7
    s_lshr_b32 s13, s2, 3
    s_lshr_b32 s15, s13, 2
    s_lshl_b32 s15, s15, 5
    s_lshl_b32 s12, s12, 2
    s_add_u32 s15, s15, s12
    s_and_b32 s13, s13, 3
    s_add_u32 s15, s15, s13
    v_lshlrev_b32 v2, 4, v1
    v_lshrrev_b32 v3, 1, v1
    v_mul_u32_u24 v3, 7168, v3
    v_and_b32 v5, 1, v1
    v_lshl_add_u32 v3, v5, 4, v3
    v_lshrrev_b32 v6, 5, v1
    v_and_b32 v7, 31, v1
    v_lshlrev_b32 v7, 4, v7
    v_lshl_add_u32 v8, v6, 11, v7
    """)
    st = Stamps(a, diag, 5, vtmp=(126, 127))
    a("s_waitcnt lgkmcnt(0)")
    st.setup(14); st.stamp()
    a.srd(16, 4, 1024 * 7168)
    a.srd(20, 6, 1024 * 7168)
    a.srd(24, 8, 3584 * 2048)
    a.srd(28, 10, 16 << 20, 0)
    a(f"s_mov_b32 s40, {WS_KEYS}\ns_mov_b32 s41, {WS_KEYS + 4096}")
    for i in range(8):
        a(f"buffer_load_dwordx4 {R('v', 16+4*i)}, v2, s[28:31], s{40 + i//4} offen offset:{(i%4)*1024}")
    a(f"s_mul_i32 s42, s14, 24576\ns_mul_i32 s43, s14, {256*7168}\ns_lshl_b32 s44, s15, 5\ns_add_u32 s43, s43, s44")
    for p in range(8):
        for m in range(2):
            a(f"s_add_u32 m0, s42, {m*8192 + p*1024}\ns_nop 0")
            a(f"buffer_load_dwordx4 v3, s[{16+4*m}:{19+4*m}], s43 offen lds")
        if p < 7: a(f"s_add_u32 s43, s43, {32*7168}")
    a("s_lshl_b32 s43, s15, 15\ns_lshl_b32 s44, s14, 9\ns_add_u32 s43, s43, s44")
    for p in range(8):
        a(f"s_add_u32 m0, s42, {16384 + p*1024}\ns_nop 0")
        a(f"buffer_load_dwordx4 v8, s[24:27], s43 offen lds")
        if p < 7: a(f"s_add_u32 s43, s43, 4096")
    a("s_waitcnt vmcnt(24)")
    top2_scan(a, 28, 16, 2)
    a(f"""
    s_and_b32 s52, s50, 0xffff
    s_and_b32 s53, s51, 0xffff
    s_sub_u32 s52, 2047, s52
    s_sub_u32 s53, 2047, s53
    s_lshl_b32 s52, s52, 11
    s_lshl_b32 s53, s53, 11
    v_and_b32 v5, 1, v1
    v_cmp_eq_u32 vcc, 1, v5
    v_mov_b32 v6, s52
    v_mov_b32 v7, s53
    v_cndmask_b32 v6, v6, v7, vcc
    v_and_b32 v7, 48, v1
    v_add_u32 v6, v6, v7
    s_lshl_b32 s44, s14, 9
    s_add_u32 s44, s44, {WS_H2}
    """)
    for ks in range(8):
        a(f"buffer_load_dwordx4 {R('v', 16+4*ks)}, v6, s[28:31], s44 offen offset:{ks*64}")
    l = a.label("nopub")
    a(f"s_or_b32 s45, s2, s14\ns_cmp_eq_u32 s45, 0\ns_cbranch_scc0 {l}")
    a(f"v_mov_b32 v10, s50\nv_mov_b32 v11, s51\nv_mov_b32 v9, 0\ns_mov_b32 s45, {WS_KEYS + 8192}\nbuffer_store_dwordx2 v[10:11], v9, s[28:31], s45 offen\ns_waitcnt vmcnt(0)")
    a(f"{l}:")
    a("""
    v_lshrrev_b32 v5, 4, v1
    v_lshlrev_b32 v5, 8, v5
    v_and_b32 v7, 15, v1
    v_lshl_add_u32 v5, v7, 3, v5
    v_add_u32 v5, s42, v5
    s_waitcnt vmcnt(16)
    """)
    for half in range(2):
        for ks in range(4 * half, 4 * half + 4):
            for m in range(2):
                for jj in range(2):
                    d = 48 + 8 * (ks % 4) + 4 * m + 2 * jj
                    a(f"ds_read_b64_tr_b16 v[{d}:{d+1}], v5 offset:{m*8192 + ks*1024 + jj*128}")
            if ks % 4 == 2:
                a("s_waitcnt lgkmcnt(8)")
        a("s_waitcnt vmcnt(0) lgkmcnt(0)")
        for ks in range(4 * half, 4 * half + 4):
            for m in range(2):
                c = "0" if ks == 0 else R('v', 80 + 4*m)
                a(f"v_mfma_f32_16x16x32_bf16 {R('v', 80+4*m)}, {R('v', 48 + 8*(ks%4) + 4*m)}, {R('v', 16+4*ks)}, {c}")
    a("s_lshl_b32 s45, s14, 11\nv_add_u32 v9, s45, v2\nv_add_u32 v9, 98304, v9\nv_add_u32 v10, 98304, v2\ns_nop 7")
    a("ds_write_b128 v9, v[80:83]\nds_write_b128 v9, v[84:87] offset:1024")
    a("""
    v_lshrrev_b32 v5, 2, v1
    v_lshlrev_b32 v5, 9, v5
    v_and_b32 v7, 3, v1
    v_lshl_add_u32 v5, v7, 3, v5
    v_add_u32 v5, s42, v5
    """)
    for nb in range(16):
        if nb == 12: a("s_waitcnt lgkmcnt(4)")
        a(f"ds_read_b64_tr_b16 v[{16+2*nb}:{17+2*nb}], v5 offset:{16384 + nb*32}")
    a("s_waitcnt lgkmcnt(0)\ns_barrier")
    for w in range(4):
        a(f"ds_read_b128 {R('v', 48+8*w)}, v10 offset:{w*2048}\nds_read_b128 {R('v', 52+8*w)}, v10 offset:{w*2048+1024}")
    a("s_waitcnt lgkmcnt(0)")
    for i in range(8):
        a(f"v_add_f32 v{48+i}, v{48+i}, v{56+i}\nv_add_f32 v{64+i}, v{64+i}, v{72+i}")
    for i in range(8):
        a(f"v_add_f32 v{48+i}, v{48+i}, v{64+i}")
    for j in range(4):
        bf16_round(a, 48 + 2*j, 49 + 2*j, 48 + 2*j, 49 + 2*j, 56)
    for i in range(4): a(f"v_mul_f32 v{56+i}, {f2u(-LOG2E)}, v{48+i}")
    for i in range(4): a(f"v_exp_f32 v{56+i}, v{56+i}")
    for i in range(4): a(f"v_add_f32 v{56+i}, 1.0, v{56+i}")
    for i in range(4): a(f"v_rcp_f32 v{56+i}, v{56+i}")
    for i in range(4): a(f"v_mul_f32 v{48+i}, v{48+i}, v{56+i}")
    for j in range(2):
        bf16_round(a, 48 + 2*j, 49 + 2*j, 48 + 2*j, 49 + 2*j, 56)
    for i in range(4): a(f"v_mul_f32 v{48+i}, v{48+i}, v{52+i}")
    a("v_cvt_pk_bf16_f32 v56, v48, v49\nv_cvt_pk_bf16_f32 v57, v50, v51")
    a("v_bfe_u32 v7, v1, 1, 3")
    for j in range(8):
        a(f"v_cmp_eq_u32 vcc, {j}, v7\ns_nop 1\nv_cndmask_b32 v{60+2*j}, 0, v56, vcc\nv_cndmask_b32 v{61+2*j}, 0, v57, vcc")
    a("s_nop 1")
    for h in range(2):
        for j in range(8):
            nb = 8 * h + j
            c = "0" if j == 0 else R('v', 80 + 4*h)
            a(f"v_mfma_f32_16x16x16_bf16 {R('v', 80+4*h)}, v[{16+2*nb}:{17+2*nb}], v[{60+2*j}:{61+2*j}], {c}")
    a(f"""
    v_and_b32 v5, 1, v1
    v_lshlrev_b32 v5, 12, v5
    v_lshl_add_u32 v5, v7, 6, v5
    v_and_b32 v6, 48, v1
    v_add_u32 v5, v5, v6
    s_lshl_b32 s45, s15, 13
    s_lshl_b32 s44, s14, 10
    s_add_u32 s45, s45, s44
    s_add_u32 s45, s45, {WS_YP}
    s_nop 1
    buffer_store_dwordx4 v[80:83], v5, s[28:31], s45 offen
    buffer_store_dwordx4 v[84:87], v5, s[28:31], s45 offen offset:512
    """)
    st.stamp(); st.flush()
    a("s_endpgm")
    a.end_kernel(name, 128, sgpr=102 if diag else 64)

def k_fin(a, name, diag=False):
    a.begin_kernel(name)
    guard(a, 64)
    a(f"s_load_dwordx2 s[8:9], s[0:1], {KA['out']}")
    a(f"s_load_dwordx2 s[10:11], s[0:1], {KA['ws']}")
    a("""
    v_lshrrev_b32 v4, 6, v0
    v_and_b32 v1, 7, v0
    v_readfirstlane_b32 s14, v4
    v_lshrrev_b32 v2, 3, v0
    v_lshlrev_b32 v2, 13, v2
    v_lshl_add_u32 v2, v1, 4, v2
    """)
    st = Stamps(a, diag, 6, vtmp=(62, 63))
    a("s_waitcnt lgkmcnt(0)")
    st.setup(14); st.stamp()
    a(f"s_load_dwordx2 s[50:51], s[10:11], {WS_KEYS + 8192}")
    a.srd(28, 10, 16 << 20, 0)
    a.srd(32, 8, 2048 * 2048)
    a(f"s_lshl_b32 s40, s2, 7\ns_add_u32 s40, s40, {WS_YP}")
    for i in range(7):
        a(f"buffer_load_dwordx4 {R('v', 8+4*i)}, v2, s[28:31], s40 offen")
        if i < 6: a(f"s_add_u32 s40, s40, {32*8192}")
    a(f"""
    s_waitcnt lgkmcnt(0)
    s_cmp_lt_u32 s2, 32
    s_cselect_b32 s50, s50, s51
    s_and_b32 s52, s50, 0xffff
    s_sub_u32 s52, 2047, s52
    s_and_b32 s52, s52, 2047
    s_lshl_b32 s52, s52, 11
    s_and_b32 s53, s2, 31
    s_lshl_b32 s53, s53, 6
    s_add_u32 s52, s52, s53
    s_add_u32 s54, s52, {WS_H2}
    s_add_u32 s55, s52, {WS_X1}
    s_add_u32 s53, s53, {WS_MOD + 10240}
    v_lshlrev_b32 v3, 3, v1
    buffer_load_dwordx2 v[40:41], v3, s[28:31], s54 offen
    buffer_load_dwordx2 v[42:43], v3, s[28:31], s55 offen
    buffer_load_dwordx2 v[44:45], v3, s[28:31], s53 offen
    """)
    for i in range(1, 7):
        a(f"s_waitcnt vmcnt({6 - i + 3})")
        for j in range(4):
            a(f"v_add_f32 v{8+j}, v{8+j}, v{8+4*i+j}")
    allreduce8(a, [8, 9, 10, 11], [12, 13, 14, 15])
    a("""
    s_lshl_b32 s40, s14, 7
    v_lshlrev_b32 v5, 4, v1
    v_add_u32 v6, s40, v5
    ds_write_b128 v6, v[8:11]
    s_waitcnt lgkmcnt(0)
    s_barrier
    """)
    l = a.label("w0")
    a(f"s_cmp_eq_u32 s14, 0\ns_cbranch_scc1 {l}")
    st.stamp(); st.flush(); st.n -= 1 if diag else 0
    a(f"s_endpgm\n{l}:")
    for w in range(4):
        a(f"ds_read_b128 {R('v', 8+4*w)}, v5 offset:{128*w}")
    a(f"""
    s_and_b32 s56, s50, 0xffff0000
    s_ashr_i32 s57, s56, 31
    s_not_b32 s57, s57
    s_or_b32 s57, s57, 0x80000000
    s_xor_b32 s56, s56, s57
    s_and_b32 s56, s56, 0xffff0000
    v_mov_b32 v30, s56
    v_mul_f32 v30, {f2u(-LOG2E)}, v30
    v_exp_f32 v30, v30
    s_nop 0
    v_add_f32 v30, 1.0, v30
    v_rcp_f32 v30, v30
    s_nop 0
    v_cvt_pk_bf16_f32 v30, v30, v30
    v_lshlrev_b32 v30, 16, v30
    s_waitcnt vmcnt(0) lgkmcnt(0)
    """)
    for j in range(4):
        a(f"v_add_f32 v{8+j}, v{8+j}, v{12+j}\nv_add_f32 v{16+j}, v{16+j}, v{20+j}")
    for j in range(4):
        a(f"v_add_f32 v{8+j}, v{8+j}, v{16+j}")
    for j in range(2):
        x0, x1 = 8 + 2*j, 9 + 2*j
        bf16_round(a, x0, x1, x0, x1, 31)
        a(f"v_mul_f32 v{x0}, v{x0}, v30\nv_mul_f32 v{x1}, v{x1}, v30")
        bf16_round(a, x0, x1, x0, x1, 31)
        unpack(a, 32, 33, 40 + j)
        a(f"v_add_f32 v{x0}, v{x0}, v32\nv_add_f32 v{x1}, v{x1}, v33")
        bf16_round(a, x0, x1, x0, x1, 31)
        unpack(a, 32, 33, 44 + j)
        a(f"v_mul_f32 v{x0}, v{x0}, v32\nv_mul_f32 v{x1}, v{x1}, v33")
        bf16_round(a, x0, x1, x0, x1, 31)
        unpack(a, 32, 33, 42 + j)
        a(f"v_add_f32 v{x0}, v{x0}, v32\nv_add_f32 v{x1}, v{x1}, v33")
        a(f"v_cvt_pk_bf16_f32 v{34+j}, v{x0}, v{x1}")
    a("buffer_store_dwordx2 v[34:35], v3, s[32:35], s52 offen")
    st.stamp(); st.flush()
    a("s_endpgm")
    a.end_kernel(name, 64, sgpr=102 if diag else 64)
```

```python
import sys
from gen_common import *
import gen_small as S, gen_big as B

HEAD = open("adaLN_cond__mha_block_cached__moe_arch_mod__prompt.s.ref").read().split("\n")[:16]

def generate(diag=False, force_safe=False):
    a = Asm()
    launches = [("mod_kernel", 192, 512, 4096), ("ln1_kernel", 256, 512, 1024), ("attn_kernel", 256, 256, B.LDS_TOTAL),
                ("oproj_kernel", 256, 256, B.LDS_TOTAL), ("ln2_kernel", 256, 512, 1024), ("moe_kernel", 224, 256, 106496), ("fin_kernel", 64, 256, 512)]
    S.k_mod(a, "mod_kernel", diag)
    S.k_ln1(a, "ln1_kernel", diag)
    B.k_attn(a, "attn_kernel", diag, force_safe)
    B.k_oproj(a, "oproj_kernel", diag)
    S.k_ln2(a, "ln2_kernel", 4, diag)
    S.k_moe(a, "moe_kernel", diag)
    S.k_fin(a, "fin_kernel", diag)
    hdr = HEAD + [f"; @launch kernel={n} grid=({g},1,1) block=({b},1,1) lds={l}" for n, g, b, l in launches]
    return a.text(hdr)

if __name__ == "__main__":
    out = sys.argv[1]
    open(out, "w").write(generate(diag="diag" in sys.argv, force_safe="safe" in sys.argv))
```

```python
from gen_common import *

PIECE = 1056
TILE = 16 * PIECE
KRING = 0
VRING = 4 * TILE
LDS_FLAG = 8 * TILE
LDS_TOTAL = 8 * TILE + 64

OPT = dict(wt="", pf=0)
S_PF = 48
sPF, vPF, vDUM = 64, 229, 230

def mf(d, A, B, c=None):
    return f"v_mfma_f32_16x16x32_bf16 {d}, {A}, {B}, {c if c is not None else d}"

def emit(a, mfmas, gaps):
    for g, m in enumerate(mfmas):
        a(m)
        for s in gaps.get(g, []):
            a(s)

S_W, S_B = 12, 16
S_K, S_V, S_O = 4, 8, 20
sWAVE, sKOFF, sVOFF, sWOFF, sBOFF, sCNT, sMW, sWP = 24, 25, 26, 27, 28, 29, 30, 31
vLANE16, vWOFF, vKV, vA, vKADDR, vBOFF = 1, 2, 3, 4, 5, 6
ACC = 16
AFR = [("v", 144 + 4*i) for i in range(4)]
BRING = [("a", 144 + 4*i) for i in range(28)] + [("v", 160 + 4*i) for i in range(4)]

class Gemm:
    def __init__(self, a, wstride, bq):
        self.a, self.ws, self.bq = a, wstride, bq
    def acc(self, nb, qb): return R("v", ACC + 4 * (qb * 8 + nb))
    def bfrag(self, c, qb, ks):
        f, i = BRING[(c % 4) * 8 + qb * 2 + ks]; return R(f, i)
    def afrag(self, nb, ks):
        f, i = AFR[(nb % 2) * 2 + ks]; return f, i
    def a_reads(self, c, nb):
        out = []
        for ks in range(2):
            f, i = self.afrag(nb, ks)
            for jj in range(2):
                out.append(f"ds_read_b64_tr_b16 {R(f, i + 2*jj, 2)}, v{vA} offset:{(c % 4)*TILE + (2*ks + jj)*256 + nb*32}")
        return out
    def dma_pre(self, c, p):
        out = [f"s_add_u32 m0, s{sMW}, {VRING + (c % 4)*TILE + p*PIECE}"]
        return out
    def dma(self, c, p):
        return f"buffer_load_dwordx4 v{vWOFF}, s[{S_W}:{S_W+3}], s{sWOFF} offen lds"
    def dma_post(self, p):
        return f"s_add_u32 s{sWOFF}, s{sWOFF}, {self.ws if p < 3 else 61*self.ws}"
    def bload(self, c, i):
        qb, ks = i // 2, i % 2
        return f"buffer_load_dwordx4 {self.bfrag(c, qb, ks)}, v{vBOFF+qb}, s[{S_B}:{S_B+3}], s{sBOFF} offen offset:{ks*1024}"
    def prologue(self):
        a = self.a
        for c in range(4):
            for p in range(4 if c < 3 else 1):
                a(self.dma_pre(c, p)[0]); a("s_nop 0"); a(self.dma(c, p)); a(self.dma_post(p))
            if c < 3:
                for i in range(8): a(self.bload(c, i))
                a(f"s_add_u32 s{sBOFF}, s{sBOFF}, 2048")
    def start(self):
        a = self.a
        a("s_waitcnt vmcnt(25)\ns_barrier")
        for s in self.a_reads(0, 0): a(s)
        a("s_waitcnt lgkmcnt(0)")
    def chunk(self, c, first=False, vm=None, bar_wait="vmcnt(23)", last=False):
        a = self.a
        for nb in range(8):
            ms = []
            for qb in range(4):
                for ks in ((0, 1) if qb % 2 == 0 else (1, 0)):
                    f, i = self.afrag(nb, ks)
                    z = "0" if (first and len(ms) % 2 == 0) else None
                    ms.append(mf(self.acc(nb, qb), R(f, i), self.bfrag(c, qb, ks), z))
            gaps = {g: [] for g in range(8)}
            if not (last and nb == 7):
                rd = self.a_reads(c, nb + 1) if nb < 7 else self.a_reads(c + 1, 0)
                gaps[0] += rd[0:2]; gaps[1] += rd[2:4]
            if vm is None:
                ops = [(None, self.bload(c + 3, nb), f"s_add_u32 s{sBOFF}, s{sBOFF}, 2048" if nb == 7 else None)]
                if nb % 2 == 1:
                    cc, p = (c + 4, 0) if nb == 7 else (c + 3, (nb + 1) // 2)
                    ops.append((self.dma_pre(cc, p)[0], self.dma(cc, p), self.dma_post(p)))
            else:
                ops = vm.get(nb, [])
            for k, (pre, ins, post) in enumerate(ops):
                g = 3 + 2 * k
                if pre: gaps[g - 1].insert(0, pre)
                gaps[g].append(ins)
                if post: gaps[g + 1].append(post)
            if nb == 6 and bar_wait:
                gaps[7] += [f"s_waitcnt {bar_wait} lgkmcnt(0)", "s_barrier"]
            elif not (last and nb == 7):
                gaps[7].append("s_waitcnt lgkmcnt(0)")
            emit(a, ms, gaps)

def pack_pairs(a, dst, src, scale_pair=None):
    if scale_pair is not None:
        for i in range(0, 8, 2):
            a(f"v_pk_mul_f32 v[{src+i}:{src+i+1}], v[{src+i}:{src+i+1}], {scale_pair}")
    for i in range(4):
        a(f"v_cvt_pk_bf16_f32 v{dst+i}, v{src+2*i}, v{src+2*i+1}")

def shuffle(a, regs):
    a("s_nop 1")
    for sw in ("v_permlane32_swap_b32", "v_permlane16_swap_b32"):
        for d in regs:
            a(f"{sw} v{d}, v{d+2}\n{sw} v{d+1}, v{d+3}")
        if len(regs) < 2: a("s_nop 1")

def common_setup(a):
    a(f"""
    v_lshrrev_b32 v10, 6, v0
    v_and_b32 v11, 63, v0
    v_readfirstlane_b32 s{sWAVE}, v10
    v_lshlrev_b32 v{vLANE16}, 4, v11
    v_lshrrev_b32 v12, 4, v11
    v_and_b32 v13, 15, v11
    v_lshrrev_b32 v14, 2, v11
    v_mul_u32_u24 v{vA}, {PIECE}, v14
    v_and_b32 v14, 3, v11
    v_lshl_add_u32 v{vA}, v14, 3, v{vA}
    v_add_u32 v{vA}, {VRING}, v{vA}
    s_mul_i32 s{sMW}, s{sWAVE}, {4*PIECE}
    """)

QF = 16
SB_ = 80
MB = 96
PB_ = 112
KF = 176
VF = 208
ONES, IDX = 224, 228
OACC, LACC = 0, 128

class Attn:
    def __init__(self, a, safe):
        self.a, self.safe = a, safe
        self.pf = OPT["pf"] and not safe
    def pfload(self, T):
        return f"buffer_load_dword v{vDUM + T % 4}, v{vPF}, s[{S_PF + 4*(T % 4)}:{S_PF + 4*(T % 4) + 3}], s{sPF} offen"
    def kread(self, T, kb, ds):
        return f"ds_read_b128 {R('v', KF + 16*(kb % 2) + 4*ds)}, v{vKADDR} offset:{(T % 4)*TILE + kb*256 + ds*64}"
    def vreads(self, T, db, ks):
        return [f"ds_read_b64_tr_b16 {R('v', VF + 8*(db % 2) + 4*ks + 2*jj, 2)}, v{vA} offset:{(T % 4)*TILE + (2*ks + jj)*256 + db*32}" for jj in range(2)]
    def dma(self, kind, T, p):
        ring, srd, so = (KRING, S_K, sKOFF) if kind == "K" else (VRING, S_V, sVOFF)
        return (f"s_add_u32 m0, s{sMW}, {ring + (T % 4)*TILE + 32*p}",
                f"buffer_load_dwordx4 v{vKV}, s[{srd}:{srd+3}], s{so} offen offset:{p*1024} lds",
                f"s_add_u32 s{so}, s{so}, 16384" if p == 3 else None)
    def qk(self, kb, qb):
        order = (0, 1, 2, 3) if qb % 2 == 0 else (3, 2, 1, 0)
        d = R("v", SB_ + 4*qb)
        return [mf(d, R("v", KF + 16*(kb % 2) + 4*ds), R("v", QF + 16*qb + 4*ds),
                   (R("v", MB + 4*qb) if self.safe else "0") if n == 0 else None) for n, ds in enumerate(order)]
    def pv(self, T, db, qbs):
        out = []
        for qb in qbs:
            for ks in ((0, 1) if qb % 2 == 0 else (1, 0)):
                out.append(mf(R("a", OACC + 4*(qb*8 + db)), R("v", VF + 8*(db % 2) + 4*ks), R("v", PB_ + 32*(T % 2) + 8*qb + 4*ks)))
        return out
    def exp(self, blk, i):
        r_ = SB_ + 4*(blk % 4) + i
        return f"v_exp_f32 v{r_}, v{r_}"
    def cvt(self, X, blk, h):
        kb, qb = blk // 4, blk % 4
        return f"v_cvt_pk_bf16_f32 v{PB_ + 32*(X % 2) + 8*qb + 2*kb + h}, v{SB_ + 4*qb + 2*h}, v{SB_ + 4*qb + 2*h + 1}"
    def smf(self, T, qb):
        return f"v_smfmac_f32_16x16x64_bf16 {R('a', LACC + 4*qb)}, {R('v', ONES)}, {R('v', PB_ + 32*(T % 2) + 8*qb, 8)}, v{IDX}"
    def kread_at(self, T, s):
        n = s + 5
        X, kb, ds = T + 1 + n // 16, (n % 16) // 4, n % 4
        return X, kb, ds
    def dma_ops(self, T):
        ops = {}
        for s in range(1, 16, 2):
            n = (s - 11) // 2
            st = T + 3 if n >= 0 else T + 2
            n %= 8
            ops[s] = ("K", st + 1, n) if n < 4 else ("V", st, n - 4)
        return ops
    def iteration(self, T, do_qk=True, do_pv=True, dma=True, tail=None):
        a = self.a
        dmas = self.dma_ops(T) if dma else {}
        for s in range(16):
            kb, qb = s // 4, s % 4
            db = s // 2
            full = do_qk and do_pv
            ms = (self.qk(kb, qb) if do_qk else []) + (self.pv(T, db, (2*(s % 2), 2*(s % 2) + 1)) if do_pv else [])
            E, C = [], []
            if s >= 1:
                if do_qk: E = [self.exp(s - 1, i) for i in range(4)]
            elif do_pv: E = [self.exp(15, i) for i in range(4)]
            if s >= 2:
                if do_qk: C = [self.cvt(T + 1, s - 2, h) for h in range(2)]
            elif do_pv: C = [self.cvt(T, 14 + s, h) for h in range(2)]
            KR, VR = [], []
            X, kkb, ds = self.kread_at(T, s)
            if do_qk and X <= 31: KR = [self.kread(X, kkb, ds)]
            n = s + 2
            if n < 16:
                if do_pv: VR = self.vreads(T, n // 2, n % 2)
            elif do_qk: VR = self.vreads(T + 1, 0, n % 2)
            D = self.dma(*dmas[s]) if s in dmas else None
            gaps = {g: [] for g in range(9)}
            if full:
                gaps[0] = [E[0]]; gaps[2] = [E[1]]; gaps[4] = [E[2]]; gaps[6] = [E[3]]
                gaps[1] = C
                gaps[3] = (["s_waitcnt lgkmcnt(1)"] if s % 2 == 0 else []) + VR
                gaps[5] = KR
                last = 7
                if s % 4 == 3:
                    ms.append(self.smf(T, s // 4)); last = 8
                if D:
                    gaps[6].insert(0, D[0]); gaps[7].append(D[1])
                    if D[2]: gaps[last].append(D[2])
                if s % 4 == 3: gaps[last].append(f"s_waitcnt lgkmcnt({len(KR) + len(VR)})")
                if s == 10: gaps[last] += [f"s_waitcnt vmcnt({9 if self.pf else 8})", "s_barrier"]
                if s == 12 and self.pf: gaps[7].append(self.pfload(T))
                if s == 14 and self.pf and T % 4 == 3: gaps[7].append(f"s_add_u32 s{sPF}, s{sPF}, {1 << 20}")
                if s == 15 and tail: gaps[last] += tail
            elif do_qk:
                gaps[0] = VR
                gaps[1] = C
                if D:
                    gaps[1] = [D[0]] + gaps[1]; gaps[2] = [D[1]] + ([D[2]] if D[2] else [])
                gaps[3] = KR + (E if E else ["s_nop 3"])
                if s % 4 == 3: gaps[3].append(f"s_waitcnt lgkmcnt({len(KR) + len(VR)})")
                if s == 10: gaps[3] += ["s_waitcnt vmcnt(8)", "s_barrier"]
                if s == 12 and self.pf: gaps[2] = [self.pfload(3)]
                if s == 15: gaps[3].append("s_nop 3")
            else:
                pre = E + C
                if s < 2: pre += ["s_nop 1"]
                if s % 2 == 0: pre += ["s_waitcnt lgkmcnt(0)"]
                for x in pre: a(x)
                gaps[0] = VR
                if s % 4 == 3: ms.append(self.smf(T, s // 4))
            emit(a, ms, gaps)
    def body(self):
        a = self.a
        for s in range(11, 16):
            X, kb, ds = self.kread_at(-2, s)
            a(self.kread(X, kb, ds))
        a("s_waitcnt lgkmcnt(1)")
        d = self.dma_ops
        self.dma_ops = lambda T: {s: o for s, o in d(T).items() if s >= 11}
        self.iteration(-1, do_pv=False)
        self.dma_ops = d
        loop, done = a.label("attn"), a.label("attn_done")
        a(f"s_mov_b32 s{sCNT}, 0")
        a(".p2align 3")
        a(f"{loop}:")
        for T in range(4):
            tail = None
            if T == 2: tail = [f"s_cmp_eq_u32 s{sCNT}, 7", f"s_cbranch_scc1 {done}"]
            if T == 3: tail = [f"s_add_u32 s{sCNT}, s{sCNT}, 1", f"s_branch {loop}"]
            self.iteration(T, tail=tail)
        a(f"{done}:")
        self.iteration(31, do_qk=False, dma=False)

def attn_epilogue(a, check):
    a("s_nop 7")
    T = 80
    for qb in range(4):
        a(f"v_accvgpr_read_b32 v{T+2*qb}, a{LACC+4*qb}\nv_accvgpr_read_b32 v{T+2*qb+1}, a{LACC+4*qb+1}")
    for qb in range(4):
        a(f"v_add_f32 v{T+2*qb}, v{T+2*qb}, v{T+2*qb+1}")
    if check:
        a(f"s_mov_b32 s42, {f2u(2.0**-24)}\ns_mov_b32 s43, {f2u(2.0**60)}\ns_mov_b64 s[40:41], 0")
        for qb in range(4):
            a(f"v_cmp_nle_f32 vcc, s42, v{T+2*qb}\ns_or_b64 s[40:41], s[40:41], vcc")
            a(f"v_cmp_nge_f32 vcc, s43, v{T+2*qb}\ns_or_b64 s[40:41], s[40:41], vcc")
        for i in range(4): a(f"v_mov_b32 v{KF+i}, 0")
    for qb in range(4):
        a(f"v_rcp_f32 v{T+2*qb}, v{T+2*qb}")
    for qb in range(4):
        a(f"v_mov_b32 v{T+2*qb+1}, v{T+2*qb}")
    n = 0
    for qb in range(4):
        for s in range(4):
            src = 96 + 8 * (n % 2); dst = 112 + 4 * n
            for i in range(8):
                a(f"v_accvgpr_read_b32 v{src+i}, a{OACC + 4*(qb*8 + 2*s) + i}")
            pack_pairs(a, dst, src, f"v[{T+2*qb}:{T+2*qb+1}]")
            a(f"buffer_store_dwordx4 {R('v', dst)}, v{vBOFF+qb}, s[{S_O}:{S_O+3}], 0 offen offset:{s*1024} {OPT['wt']}")
            if check and n:
                a(mf(R("v", KF + 4), R("v", KF), R("v", dst - 4), "0" if n == 1 else None))
            n += 1
    if check:
        a("s_nop 0")
        a(mf(R("v", KF + 4), R("v", KF), R("v", 112 + 60)))
        a(f"s_nop 7\nv_cmp_u_f32 vcc, v{KF+4}, v{KF+4}\ns_or_b64 s[40:41], s[40:41], vcc\ns_or_b32 s40, s40, s41")

def k_attn(a, name, diag=False, force_safe=False):
    a.begin_kernel(name)
    guard(a, 256)
    a(f"s_load_dwordx4 s[32:35], s[0:1], {KA['k']}")
    a(f"s_load_dwordx2 s[36:37], s[0:1], {KA['wq']}")
    a(f"s_load_dwordx2 s[38:39], s[0:1], {KA['ws']}")
    common_setup(a)
    a(f"""
    s_and_b32 s40, s2, 7
    s_lshl_b32 s40, s40, 2
    s_bfe_u32 s41, s2, 0x20003
    s_add_u32 s40, s40, s41
    s_lshr_b32 s41, s2, 5
    s_lshl_b32 s41, s41, 2
    s_add_u32 s41, s41, s{sWAVE}
    v_lshrrev_b32 v14, 1, v12
    v_lshlrev_b32 v14, 5, v14
    v_and_b32 v15, 1, v12
    v_lshl_add_u32 v14, v15, 2, v14
    v_lshl_add_u32 v14, v10, 3, v14
    v_lshlrev_b32 v14, 13, v14
    v_lshl_add_u32 v{vWOFF}, v13, 4, v14
    v_lshl_add_u32 v{vKV}, v10, 12, v{vLANE16}
    v_mul_u32_u24 v{vKADDR}, {PIECE}, v13
    v_lshl_add_u32 v{vKADDR}, v12, 4, v{vKADDR}
    s_mov_b32 s{sKOFF}, 0
    s_mov_b32 s{sVOFF}, 0
    s_mov_b32 s{sWOFF}, 0
    s_mov_b32 s{sBOFF}, 0
    s_lshl_b32 s42, s40, 19
    s_lshl_b32 s43, s40, 8
    s_sub_u32 s44, {8 << 20}, s43
    s_lshl_b32 s45, s41, 17
    s_add_u32 s45, s45, {WS_H}
    s_lshl_b32 s46, s41, 19
    s_lshl_b32 s47, s40, 12
    s_add_u32 s46, s46, s47
    s_add_u32 s46, s46, {WS_O}
    """)
    for qb in range(4):
        a(f"v_add_u32 v{vBOFF+qb}, {qb*32768}, v{vLANE16}")
    st = Stamps(a, diag, 2)
    a("s_waitcnt lgkmcnt(0)")
    st.setup(sWAVE); st.stamp()
    a.srd(S_W, 36, "s44", "s43")
    a.srd(S_B, 38, 1 << 17, "s45")
    g = Gemm(a, 8192, 32768)
    g.prologue()
    if OPT["pf"]:
        a(f"s_load_dwordx2 s[66:67], s[0:1], {KA['wo']}\ns_load_dwordx4 s[68:71], s[0:1], {KA['wg']}\ns_load_dwordx2 s[72:73], s[0:1], {KA['wd']}")
        a(f"s_lshl_b32 s{sPF}, s2, 2\ns_add_u32 s{sPF}, s{sPF}, s{sWAVE}\ns_lshl_b32 s{sPF}, s{sPF}, 10")
        a(f"v_mul_u32_u24 v{vPF}, {OPT['pf']}, v11\nv_mov_b32 v14, 0x7f000000\nv_cmp_gt_u32 vcc, {1024 // OPT['pf']}, v11\ns_nop 1\nv_cndmask_b32 v{vPF}, v14, v{vPF}, vcc")
        a("s_waitcnt lgkmcnt(0)")
        for i in range(4):
            a.srd(S_PF + 4*i, 66 + 2*i, (8 << 20) if i == 0 else (7 << 20))
    a.srd(S_K, 32, 1 << 19, "s42")
    a.srd(S_V, 34, 1 << 19, "s42")
    a.srd(S_O, 38, (1 << 19) - (31 << 12), "s46")
    for i in range(144):
        a(f"v_accvgpr_write_b32 a{i}, 0")
    for i in range(4):
        a(f"v_mov_b32 v{ONES+i}, 0x3f803f80")
    a(f"v_and_b32 v14, 1, v11\nv_mul_u32_u24 v14, 0xaaaa, v14\nv_add_u32 v14, 0x4444, v14\nv_lshl_add_u32 v{IDX}, v14, 16, v14")
    for i in range(128):
        a(f"v_mov_b32 v{ACC+i}, 0")
    g.start()
    st.stamp()
    loop = a.label("qproj")
    a(f"s_mov_b32 s{sCNT}, 0\n{loop}:")
    for c in range(4):
        g.chunk(c)
    a(f"s_add_u32 s{sCNT}, s{sCNT}, 1\ns_cmp_lt_u32 s{sCNT}, 3\ns_cbranch_scc1 {loop}")
    at = Attn(a, False)
    seq = [("K", 0, p) for p in range(4)]
    for T in range(2):
        seq += [("K", T + 1, p) for p in range(4)] + [("V", T, p) for p in range(4)]
    seq = [at.dma(*x) for x in seq]
    vm = {nb: [(None, g.bload(15, nb), None)] + ([(g.dma_pre(15, (nb+1)//2)[0], g.dma(15, (nb+1)//2), g.dma_post((nb+1)//2))] if nb in (1, 3, 5) else []) for nb in range(8)}
    g.chunk(12, vm=vm)
    g.chunk(13, vm={nb: [seq[nb]] for nb in range(8)}, bar_wait="vmcnt(19)")
    g.chunk(14, vm={nb: [seq[8 + nb]] for nb in range(8)}, bar_wait="vmcnt(15)")
    g.chunk(15, vm={nb: [seq[16 + nb]] for nb in range(4)}, bar_wait="vmcnt(16)", last=True)
    st.stamp()
    sc = LOG2E * 128 ** -0.5
    a(f"s_mov_b32 s42, {f2u(sc)}\ns_mov_b32 s43, s42\ns_nop 5")
    for n in range(16):
        pack_pairs(a, QF + 4*n, ACC + 8*n, "s[42:43]")
    shuffle(a, [QF + 4*n for n in range(16)])
    for qb in range(4):
        a(f"v_add_u32 v{vBOFF+qb}, {qb*131072}, v{vLANE16}")
    safe = a.label("safe")
    if force_safe:
        a(f"s_waitcnt vmcnt(0)\ns_barrier\ns_branch {safe}")
    st.stamp()
    at.body()
    st.stamp()
    attn_epilogue(a, True)
    a(f"""
    v_mov_b32 v14, s40
    s_lshl_b32 s41, s{sWAVE}, 2
    s_add_u32 s41, s41, {LDS_FLAG}
    v_mov_b32 v15, s41
    ds_write_b32 v15, v14
    v_mov_b32 v15, {LDS_FLAG}
    s_waitcnt lgkmcnt(0)
    s_barrier
    ds_read_b128 v[80:83], v15
    s_waitcnt lgkmcnt(0)
    v_or_b32 v80, v80, v81
    v_or3_b32 v80, v80, v82, v83
    s_nop 0
    v_readfirstlane_b32 s40, v80
    s_nop 3
    s_cmp_lg_u32 s40, 0
    s_cbranch_scc1 {safe}
    """)
    st.stamp(); st.flush()
    a("s_endpgm")
    a(f"{safe}:")
    a("s_waitcnt vmcnt(0) lgkmcnt(0)\ns_barrier")
    at = Attn(a, True)
    for i in range(4):
        a(f"v_mov_b32 v{MB+4*i}, 0xff800000")
    mloop = a.label("maxloop")
    a(f"s_mov_b32 s{sKOFF}, 0\ns_mov_b32 s{sVOFF}, 0\n{mloop}:")
    for p in range(4):
        pre, ins, post = at.dma("K", 0, p)
        a(pre); a("s_nop 0"); a(ins)
        if post: a(post)
    a("s_waitcnt vmcnt(0)\ns_barrier")
    fast = Attn(a, False)
    for kb in range(4):
        for ds in range(4): a(at.kread(0, kb, ds))
        a("s_waitcnt lgkmcnt(0)")
        for qb in range(4):
            for m in fast.qk(kb, qb): a(m)
        a("s_nop 7")
        for qb in range(4):
            a(f"v_max3_f32 v{MB+4*qb}, v{MB+4*qb}, v{SB_+4*qb}, v{SB_+4*qb+1}")
            a(f"v_max3_f32 v{MB+4*qb}, v{MB+4*qb}, v{SB_+4*qb+2}, v{SB_+4*qb+3}")
    a(f"s_barrier\ns_cmp_lt_u32 s{sKOFF}, {32*16384}\ns_cbranch_scc1 {mloop}")
    for sw in ("v_permlane16_swap_b32", "v_permlane32_swap_b32"):
        for qb in range(4): a(f"v_mov_b32 v{MB+4*qb+1}, v{MB+4*qb}")
        a("s_nop 1")
        for qb in range(4): a(f"{sw} v{MB+4*qb}, v{MB+4*qb+1}")
        a("s_nop 0")
        for qb in range(4): a(f"v_max_f32 v{MB+4*qb}, v{MB+4*qb}, v{MB+4*qb+1}")
    for qb in range(4):
        a(f"v_sub_f32 v{MB+4*qb}, 0, v{MB+4*qb}")
        for i in range(1, 4): a(f"v_mov_b32 v{MB+4*qb+i}, v{MB+4*qb}")
    for i in range(144):
        a(f"v_accvgpr_write_b32 a{i}, 0")
    a(f"s_mov_b32 s{sKOFF}, 0")
    for pre, ins, post in seq:
        a(pre); a("s_nop 0"); a(ins)
        if post: a(post)
    a("s_waitcnt vmcnt(16)\ns_barrier")
    at.body()
    attn_epilogue(a, False)
    a("s_endpgm")
    a.end_kernel(name, 256, 256, sgpr=102 if diag else 80)

def k_oproj(a, name, diag=False):
    a.begin_kernel(name)
    guard(a, 256)
    a(f"s_load_dwordx2 s[36:37], s[0:1], {KA['wo']}")
    a(f"s_load_dwordx2 s[38:39], s[0:1], {KA['ws']}")
    common_setup(a)
    a(f"""
    s_bfe_u32 s40, s2, 0x20001
    s_and_b32 s41, s2, 1
    s_lshl_b32 s41, s41, 2
    s_lshr_b32 s42, s2, 6
    s_add_u32 s41, s41, s42
    s_lshl_b32 s41, s41, 2
    s_add_u32 s41, s41, s{sWAVE}
    s_bfe_u32 s42, s2, 0x30003
    v_lshlrev_b32 v14, 4, v12
    v_lshl_add_u32 v14, v10, 2, v14
    v_lshlrev_b32 v14, 11, v14
    v_lshl_add_u32 v{vWOFF}, v13, 4, v14
    s_mov_b32 s{sWOFF}, 0
    s_mov_b32 s{sBOFF}, 0
    s_lshl_b32 s43, s40, 21
    s_lshl_b32 s44, s42, 8
    s_add_u32 s43, s43, s44
    s_sub_u32 s44, {8 << 20}, s43
    s_lshl_b32 s45, s41, 19
    s_lshl_b32 s46, s40, 15
    s_add_u32 s45, s45, s46
    s_add_u32 s45, s45, {WS_O}
    s_lshl_b32 s46, s40, 22
    s_lshl_b32 s47, s41, 17
    s_add_u32 s46, s46, s47
    s_lshl_b32 s47, s42, 12
    s_add_u32 s46, s46, s47
    s_add_u32 s46, s46, {WS_P}
    """)
    for qb in range(4):
        a(f"v_add_u32 v{vBOFF+qb}, {qb*131072}, v{vLANE16}")
    st = Stamps(a, diag, 3)
    a("s_waitcnt lgkmcnt(0)")
    st.setup(sWAVE); st.stamp()
    a.srd(S_W, 36, "s44", "s43")
    a.srd(S_B, 38, (1 << 19) - (3 << 15), "s45")
    g = Gemm(a, 2048, 131072)
    g.prologue()
    a.srd(S_O, 38, (1 << 17) - (7 << 12), "s46")
    for i in range(128):
        a(f"v_mov_b32 v{ACC+i}, 0")
    g.start()
    st.stamp()
    loop = a.label("oproj")
    a(f"s_mov_b32 s{sCNT}, 0\n{loop}:")
    for c in range(4):
        g.chunk(c)
    a(f"s_add_u32 s{sCNT}, s{sCNT}, 1\ns_cmp_lt_u32 s{sCNT}, 3\ns_cbranch_scc1 {loop}")
    vm = {nb: [(None, g.bload(15, nb), None)] + ([(g.dma_pre(15, (nb+1)//2)[0], g.dma(15, (nb+1)//2), g.dma_post((nb+1)//2))] if nb in (1, 3, 5) else []) for nb in range(8)}
    g.chunk(12, vm=vm)
    g.chunk(13, vm={}, bar_wait="vmcnt(12)")
    g.chunk(14, vm={}, bar_wait="vmcnt(0)")
    g.chunk(15, vm={}, bar_wait=None, last=True)
    st.stamp()
    for qb in range(4):
        a(f"v_add_u32 v{vBOFF+qb}, {qb*32768}, v{vLANE16}")
    a("s_nop 3")
    for qb in range(4):
        for s in range(4):
            n = qb * 4 + s
            pack_pairs(a, 160 + 4*n, ACC + 8*n)
        shuffle(a, [160 + 16*qb + 4*s for s in range(4)])
        for s in range(4):
            a(f"buffer_store_dwordx4 {R('v', 160 + 16*qb + 4*s)}, v{vBOFF+qb}, s[{S_O}:{S_O+3}], 0 offen offset:{s*1024} {OPT['wt']}")
    st.stamp(); st.flush()
    a("s_endpgm")
    a.end_kernel(name, 256, 256, sgpr=102 if diag else 64)
```

```python
from gen_common import *
OPT = dict(wt='', pf1=0)

def allreduce8(a, regs, tmps, op="v_add_f32"):
    a("s_nop 1")
    for r_ in regs:
        a(f"{op}_dpp v{r_}, v{r_}, v{r_} row_ror:8 row_mask:0xf bank_mask:0xf")
    for sw in ("v_permlane16_swap_b32", "v_permlane32_swap_b32"):
        for r_, t in zip(regs, tmps):
            a(f"v_mov_b32 v{t}, v{r_}")
        a("s_nop 1")
        for r_, t in zip(regs, tmps):
            a(f"{sw} v{r_}, v{t}")
        a("s_nop 0")
        for r_, t in zip(regs, tmps):
            a(f"{op} v{r_}, v{r_}, v{t}")

def k_mod(a, name, diag=False):
    a.begin_kernel(name)
    guard(a, 192)
    a(f"s_load_dwordx4 s[4:7], s[0:1], {KA['c']}")
    a(f"s_load_dwordx2 s[8:9], s[0:1], {KA['ws']}")
    a("""
    s_and_b32 s10, s2, 7
    s_lshr_b32 s11, s2, 3
    s_lshr_b32 s12, s11, 1
    s_lshl_b32 s12, s12, 4
    s_lshl_b32 s10, s10, 1
    s_add_u32 s12, s12, s10
    s_and_b32 s11, s11, 1
    s_add_u32 s12, s12, s11
    s_lshl_b32 s13, s12, 6
    v_lshrrev_b32 v1, 2, v0
    v_and_b32 v2, 3, v0
    v_mul_u32_u24 v3, 98304, v1
    v_lshl_add_u32 v3, v2, 4, v3
    v_lshlrev_b32 v1, 4, v1
    v_lshrrev_b32 v60, 6, v0
    """)
    for i in range(8):
        a(f"s_add_u32 s{32+i}, s13, {i*12288}")
    a("v_readfirstlane_b32 s14, v60")
    st = Stamps(a, diag, 0, vtmp=(62, 63));
    a("s_waitcnt lgkmcnt(0)")
    st.setup(14); st.stamp()
    a.srd(16, 4, 2048)
    a.srd(20, 6, 1024 * 12288)
    a.srd(24, 8, 12288, WS_MOD)
    a("buffer_load_dwordx4 v[4:7], v1, s[16:19], 0 offen")
    for i in range(8):
        a(f"buffer_load_dwordx4 {R('v', 8+4*i)}, v3, s[20:23], s{32+i} offen")
    a("s_waitcnt vmcnt(8)")
    for j in range(4):
        unpack(a, 40 + 2*j, 41 + 2*j, 4 + j)
    for j in range(8):
        a(f"v_mul_f32 v{48+j}, {f2u(-LOG2E)}, v{40+j}")
    for j in range(8):
        a(f"v_exp_f32 v{48+j}, v{48+j}")
    for j in range(8):
        a(f"v_add_f32 v{48+j}, 1.0, v{48+j}")
    for j in range(8):
        a(f"v_rcp_f32 v{48+j}, v{48+j}")
    for j in range(8):
        a(f"v_mul_f32 v{40+j}, v{40+j}, v{48+j}")
    for j in range(4):
        bf16_round(a, 40 + 2*j, 41 + 2*j, 40 + 2*j, 41 + 2*j, 56)
    for i in range(8):
        a(f"s_waitcnt vmcnt({7-i})")
        for j in range(4):
            unpack(a, 56, 57, 8 + 4*i + j)
            if i == 0:
                a(f"v_mul_f32 v{48+2*j}, v40, v56\nv_mul_f32 v{49+2*j}, v40, v57")
            else:
                a(f"v_fmac_f32 v{48+2*j}, v{40+i}, v56\nv_fmac_f32 v{49+2*j}, v{40+i}, v57")
    a("s_nop 1")
    for sh in (8, 4):
        for j in range(8):
            a(f"v_add_f32_dpp v{48+j}, v{48+j}, v{48+j} row_ror:{sh} row_mask:0xf bank_mask:0xf")
    a("""
    v_lshrrev_b32 v1, 4, v0
    v_lshlrev_b32 v1, 7, v1
    v_lshl_add_u32 v1, v2, 5, v1
    v_and_b32 v3, 15, v0
    v_cmp_gt_u32 vcc, 4, v3
    s_and_saveexec_b64 s[28:29], vcc
    ds_write_b128 v1, v[48:51]
    ds_write_b128 v1, v[52:55] offset:16
    s_mov_b64 exec, s[28:29]
    s_waitcnt lgkmcnt(0)
    s_barrier
    """)
    l = a.label("w0")
    a(f"s_cmp_eq_u32 s14, 0\ns_cbranch_scc1 {l}")
    st.stamp(); st.flush(); st.n -= 1 if diag else 0
    a(f"s_endpgm\n{l}:")
    a("""
    v_and_b32 v1, 31, v0
    v_lshrrev_b32 v2, 5, v0
    v_lshlrev_b32 v2, 11, v2
    v_lshl_add_u32 v2, v1, 2, v2
    """)
    for i in range(0, 8, 2):
        a(f"ds_read2_b32 v[{8+i}:{9+i}], v2 offset0:{i*32} offset1:{i*32+32}")
    for i in range(8, 16):
        a(f"ds_read_b32 v{8+i}, v2 offset:{i*128}")
    a("s_waitcnt lgkmcnt(0)")
    for st_ in (8, 4, 2, 1):
        for i in range(st_):
            a(f"v_add_f32 v{8+i}, v{8+i}, v{8+i+st_}")
    a("""
    v_mov_b32 v9, v8
    s_nop 1
    v_permlane32_swap_b32 v8, v9
    s_nop 0
    v_add_f32 v8, v8, v9
    v_cvt_pk_bf16_f32 v8, v8, v8
    v_lshlrev_b32 v1, 1, v1
    buffer_store_short v8, v1, s[24:27], s13 offen
    """)
    st.stamp(); st.flush()
    a("s_endpgm")
    a.end_kernel(name, 64, sgpr=102 if diag else 48)

def ln_core(a, X, sc, sh, T, wave_sgpr, lds_off, vrow64):
    t0, t1, t2, t3 = T[0], T[1], T[2], T[3]
    a(f"v_add_f32 v{t0}, v{X[0]}, v{X[1]}\nv_add_f32 v{t1}, v{X[2]}, v{X[3]}")
    for i in range(4, 16, 2):
        a(f"v_add_f32 v{t0}, v{t0}, v{X[i]}\nv_add_f32 v{t1}, v{t1}, v{X[i+1]}")
    a(f"v_add_f32 v{t0}, v{t0}, v{t1}")
    allreduce8(a, [t0], [t2])
    a(f"v_mul_f32 v{t0}, {f2u(1/128)}, v{t0}")
    for i in range(16):
        a(f"v_sub_f32 v{t2}, v{X[i]}, v{t0}")
        a(f"v_mul_f32 v{t1}, v{t2}, v{t2}" if i == 0 else f"v_fmac_f32 v{t1}, v{t2}, v{t2}")
    allreduce8(a, [t1], [t2])
    assert t1 == t0 + 1 and t0 % 2 == 0
    a(f"s_lshl_b32 s40, s{wave_sgpr}, 3\nv_add_u32 v{t2}, s40, v{vrow64}")
    a(f"ds_write_b64 v{t2}, v[{t0}:{t1}]")
    a("s_waitcnt lgkmcnt(0)\ns_barrier")
    B = T[4]
    assert B % 2 == 0
    for i in range(4):
        a(f"ds_read_b128 {R('v', B+4*i)}, v{vrow64} offset:{16*i}")
    a("s_waitcnt lgkmcnt(0)")
    a(f"v_add_f32 v{t0}, v{B}, v{B+2}\nv_add_f32 v{t1}, v{B+1}, v{B+3}")
    for i in range(2, 8):
        a(f"v_add_f32 v{t0}, v{t0}, v{B+2*i}\nv_add_f32 v{t1}, v{t1}, v{B+2*i+1}")
    a(f"v_mul_f32 v{t0}, 0.125, v{t0}".replace("0.125", f2u(0.125)))
    for i in range(8):
        a(f"v_sub_f32 v{t2}, v{B+2*i}, v{t0}")
        a(f"v_mul_f32 v{t3}, v{t2}, v{t2}" if i == 0 else f"v_fmac_f32 v{t3}, v{t2}, v{t2}")
    a(f"v_fmac_f32 v{t1}, {f2u(128.0)}, v{t3}")
    a(f"v_mul_f32 v{t1}, {f2u(1/1024)}, v{t1}")
    bf16_round(a, t0, t1, t0, t1, t2)
    a(f"v_add_f32 v{t1}, {f2u(1e-5)}, v{t1}")
    a(f"v_cvt_pk_bf16_f32 v{t1}, v{t1}, v{t1}\nv_lshlrev_b32 v{t1}, 16, v{t1}")
    a(f"v_sqrt_f32 v{t1}, v{t1}\ns_nop 0")
    a(f"v_cvt_pk_bf16_f32 v{t1}, v{t1}, v{t1}\nv_lshlrev_b32 v{t1}, 16, v{t1}")
    a(f"v_rcp_f32 v{t1}, v{t1}")
    u0, u1 = B, B + 1
    for j in range(8):
        x0, x1 = X[2*j], X[2*j+1]
        a(f"v_sub_f32 v{x0}, v{x0}, v{t0}\nv_sub_f32 v{x1}, v{x1}, v{t0}")
        bf16_round(a, x0, x1, x0, x1, t2)
        a(f"v_mul_f32 v{x0}, v{x0}, v{t1}\nv_mul_f32 v{x1}, v{x1}, v{t1}")
        bf16_round(a, x0, x1, x0, x1, t2)
        unpack(a, u0, u1, sc[j])
        a(f"v_add_f32 v{u0}, 1.0, v{u0}\nv_add_f32 v{u1}, 1.0, v{u1}")
        bf16_round(a, u0, u1, u0, u1, t2)
        a(f"v_mul_f32 v{x0}, v{x0}, v{u0}\nv_mul_f32 v{x1}, v{x1}, v{u1}")
        bf16_round(a, x0, x1, x0, x1, t2)
        unpack(a, u0, u1, sh[j])
        a(f"v_add_f32 v{x0}, v{x0}, v{u0}\nv_add_f32 v{x1}, v{x1}, v{u1}")
        a(f"v_cvt_pk_bf16_f32 v{sh[j]}, v{x0}, v{x1}")

def row_prologue(a):
    a("""
    v_lshrrev_b32 v4, 6, v0
    v_and_b32 v1, 7, v0
    v_readfirstlane_b32 s14, v4
    v_bfe_u32 v2, v0, 3, 3
    v_lshl_add_u32 v2, v4, 4, v2
    v_lshlrev_b32 v2, 4, v2
    """)

def k_ln1(a, name, diag=False):
    a.begin_kernel(name)
    guard(a, 256)
    a(f"s_load_dwordx2 s[4:5], s[0:1], {KA['x']}")
    a(f"s_load_dwordx2 s[8:9], s[0:1], {KA['ws']}")
    row_prologue(a)
    a("""
    v_lshl_add_u32 v3, v1, 11, v2
    s_lshl_b32 s13, s2, 14
    v_lshlrev_b32 v5, 6, v1
    """)
    st = Stamps(a, diag, 1, vtmp=(70, 71))
    a("s_waitcnt lgkmcnt(0)")
    st.setup(14); st.stamp()
    a.srd(16, 4, 2048 * 2048)
    a.srd(20, 8, 12288, WS_MOD)
    a.srd(24, 8, 4 << 20, WS_H)
    a("buffer_load_dwordx4 v[8:11], v3, s[16:19], s13 offen")
    a("buffer_load_dwordx4 v[12:15], v3, s[16:19], s13 offen offset:128")
    a("buffer_load_dwordx4 v[16:19], v2, s[20:23], 0 offen")
    a("buffer_load_dwordx4 v[20:23], v2, s[20:23], 0 offen offset:128")
    a("buffer_load_dwordx4 v[24:27], v2, s[20:23], 0 offen offset:2048")
    a("buffer_load_dwordx4 v[28:31], v2, s[20:23], 0 offen offset:2176")
    a("""
    v_lshlrev_b32 v6, 4, v2
    v_lshl_add_u32 v6, v1, 4, v6
    s_lshr_b32 s15, s2, 1
    s_lshl_b32 s15, s15, 15
    s_and_b32 s12, s2, 1
    s_lshl_b32 s12, s12, 7
    s_add_u32 s15, s15, s12
    s_waitcnt vmcnt(4)
    """)
    X = list(range(32, 48))
    for j in range(8):
        unpack(a, X[2*j], X[2*j+1], 8 + j)
    a("s_waitcnt vmcnt(0)")
    ln_core(a, X, list(range(24, 32)), list(range(16, 24)), [48, 49, 50, 51, 52], 14, 0, 5)
    a("buffer_store_dwordx4 v[16:19], v6, s[24:27], s15 offen " + OPT["wt"])
    a("buffer_store_dwordx4 v[20:23], v6, s[24:27], s15 offen offset:2048 " + OPT["wt"])
    st.stamp(); st.flush()
    a("s_endpgm")
    a.end_kernel(name, 72, sgpr=102 if diag else 48)

def k_ln2(a, name, nsplit=4, diag=False):
    a.begin_kernel(name)
    guard(a, 256)
    a(f"s_load_dwordx2 s[4:5], s[0:1], {KA['x']}")
    a(f"s_load_dwordx2 s[6:7], s[0:1], {KA['wr']}")
    a(f"s_load_dwordx2 s[8:9], s[0:1], {KA['ws']}")
    a(f"s_load_dwordx2 s[10:11], s[0:1], {KA['out']}")
    row_prologue(a)
    a("""
    v_lshl_add_u32 v3, v1, 11, v2
    s_lshl_b32 s13, s2, 14
    v_lshlrev_b32 v5, 6, v1
    v_lshlrev_b32 v6, 4, v2
    v_lshl_add_u32 v6, v1, 4, v6
    s_lshr_b32 s15, s2, 1
    s_lshl_b32 s15, s15, 15
    s_and_b32 s12, s2, 1
    s_lshl_b32 s12, s12, 7
    s_add_u32 s15, s15, s12
    """)
    st = Stamps(a, diag, 4, vtmp=(126, 127))
    a("s_waitcnt lgkmcnt(0)")
    st.setup(14); st.stamp()
    a.srd(16, 4, 2048 * 2048)
    a.srd(20, 8, 12288, WS_MOD)
    a.srd(24, 8, nsplit << 22, WS_P)
    a.srd(28, 6, 2048)
    a.srd(32, 10, 2048 * 2048)
    a.srd(36, 8, 16 << 20, 0)
    PB = 72
    for s in range(nsplit):
        if s: a(f"s_add_u32 s15, s15, {1 << 22}")
        a(f"buffer_load_dwordx4 {R('v', PB+8*s)}, v6, s[24:27], s15 offen")
        a(f"buffer_load_dwordx4 {R('v', PB+8*s+4)}, v6, s[24:27], s15 offen offset:2048")
    a("buffer_load_dwordx4 v[8:11], v3, s[16:19], s13 offen")
    a("buffer_load_dwordx4 v[12:15], v3, s[16:19], s13 offen offset:128")
    a("s_movk_i32 s41, 4096\ns_movk_i32 s42, 8192")
    GA, SB, CB, GB, WR = 104, 16, 24, 112, 120 - 64
    def ld(dst, soff, off):
        a(f"buffer_load_dwordx4 {R('v', dst)}, v2, s[20:23], {soff} offen offset:{off}")
        a(f"buffer_load_dwordx4 {R('v', dst+4)}, v2, s[20:23], {soff} offen offset:{off+128}")
    ld(GA, "s41", 0); ld(SB, "s41", 2048); ld(CB, "s42", 0); ld(GB, "s42", 2048)
    X = list(range(32, 48))
    a(f"s_waitcnt vmcnt({2*nsplit - 2 + 10})")
    for j in range(8):
        unpack(a, X[2*j], X[2*j+1], PB + j)
    for s in range(1, nsplit):
        a(f"s_waitcnt vmcnt({2*(nsplit-1-s) + 10})")
        for j in range(8):
            unpack(a, 48, 49, PB + 8*s + j)
            a(f"v_add_f32 v{X[2*j]}, v{X[2*j]}, v48\nv_add_f32 v{X[2*j+1]}, v{X[2*j+1]}, v49")
    WR = PB + 8
    a(f"buffer_load_dwordx4 {R('v', WR)}, v2, s[28:31], 0 offen")
    a(f"buffer_load_dwordx4 {R('v', WR+4)}, v2, s[28:31], 0 offen offset:128")
    a("s_waitcnt vmcnt(8)")
    X1P = PB
    for j in range(8):
        x0, x1 = X[2*j], X[2*j+1]
        bf16_round(a, x0, x1, x0, x1, 50)
        unpack(a, 48, 49, GA + j)
        a(f"v_mul_f32 v{x0}, v{x0}, v48\nv_mul_f32 v{x1}, v{x1}, v49")
        bf16_round(a, x0, x1, x0, x1, 50)
        unpack(a, 48, 49, 8 + j)
        a(f"v_add_f32 v{x0}, v{x0}, v48\nv_add_f32 v{x1}, v{x1}, v49")
        a(f"v_cvt_pk_bf16_f32 v{X1P+j}, v{x0}, v{x1}")
        unpack(a, x0, x1, X1P + j)
    a(f"s_add_u32 s43, s13, {WS_X1}\ns_add_u32 s44, s13, {WS_H2}")
    a(f"buffer_store_dwordx4 {R('v', X1P)}, v3, s[36:39], s43 offen " + OPT["wt"])
    a(f"buffer_store_dwordx4 {R('v', X1P+4)}, v3, s[36:39], s43 offen offset:128 " + OPT["wt"])
    a("s_waitcnt vmcnt(2)")
    ln_core(a, X, list(range(CB, CB + 8)), list(range(SB, SB + 8)), [48, 49, 50, 51, 52], 14, 0, 5)
    a(f"buffer_store_dwordx4 {R('v', SB)}, v3, s[36:39], s44 offen " + OPT["wt"])
    a(f"buffer_store_dwordx4 {R('v', SB+4)}, v3, s[36:39], s44 offen offset:128 " + OPT["wt"])
    for j in range(8):
        x0, x1 = X[2*j], X[2*j+1]
        unpack(a, x0, x1, SB + j)
        unpack(a, 48, 49, WR + j)
        a(f"v_mul_f32 v52, v{x0}, v48\nv_mul_f32 v53, v{x1}, v49" if j == 0 else f"v_fmac_f32 v52, v{x0}, v48\nv_fmac_f32 v53, v{x1}, v49")
        unpack(a, 48, 49, GB + j)
        a(f"v_mul_f32 v{x0}, v{x0}, v48\nv_mul_f32 v{x1}, v{x1}, v49")
        bf16_round(a, x0, x1, x0, x1, 50)
        unpack(a, 48, 49, X1P + j)
        a(f"v_add_f32 v{x0}, v{x0}, v48\nv_add_f32 v{x1}, v{x1}, v49")
        a(f"v_cvt_pk_bf16_f32 v{GB+j}, v{x0}, v{x1}")
    a(f"buffer_store_dwordx4 {R('v', GB)}, v3, s[32:35], s13 offen " + OPT["wt"])
    a(f"buffer_store_dwordx4 {R('v', GB+4)}, v3, s[32:35], s13 offen offset:128 " + OPT["wt"])
    a("v_add_f32 v52, v52, v53")
    allreduce8(a, [52], [53])
    a("""
    s_lshl_b32 s40, s14, 2
    v_lshlrev_b32 v53, 5, v1
    v_add_u32 v54, s40, v53
    ds_write_b32 v54, v52 offset:512
    s_waitcnt lgkmcnt(0)
    s_barrier
    """)
    l = a.label("w0")
    a(f"s_cmp_eq_u32 s14, 0\ns_cbranch_scc1 {l}")
    st.stamp(); st.flush(); st.n -= 1 if diag else 0
    a(f"s_endpgm\n{l}:")
    a(f"""
    ds_read_b128 v[56:59], v53 offset:512
    ds_read_b128 v[60:63], v53 offset:528
    s_lshl_b32 s40, s2, 3
    v_add_u32 v54, s40, v1
    v_sub_u32 v55, 2047, v54
    v_lshlrev_b32 v54, 2, v54
    s_waitcnt lgkmcnt(0)
    v_add_f32 v56, v56, v57
    v_add_f32 v58, v58, v59
    v_add_f32 v60, v60, v61
    v_add_f32 v62, v62, v63
    v_add_f32 v56, v56, v58
    v_add_f32 v60, v60, v62
    v_add_f32 v56, v56, v60
    v_cvt_pk_bf16_f32 v56, v56, v56
    v_ashrrev_i32 v57, 31, v56
    v_or_b32 v57, 0x80000000, v57
    v_xor_b32 v56, v56, v57
    v_and_b32 v56, 0xffff0000, v56
    v_or_b32 v56, v56, v55
    s_mov_b32 s40, {WS_KEYS}
    buffer_store_dword v56, v54, s[36:39], s40 offen
    """)
    st.stamp(); st.flush()
    a("s_endpgm")
    a.end_kernel(name, 128, sgpr=102 if diag else 48)

def top2_scan(a, srd, K0, lane16):
    m1, m2, t, u = K0, K0 + 1, K0 + 2, K0 + 3
    a(f"v_max_u32 v4, v{K0}, v{K0+1}\nv_min_u32 v5, v{K0}, v{K0+1}")
    for i in range(2, 32):
        a(f"v_med3_u32 v5, v4, v5, v{K0+i}\nv_max_u32 v4, v4, v{K0+i}")
    for sh in (8, 4, 2, 1):
        a("s_nop 1")
        a(f"v_min_u32_dpp v6, v4, v4 row_ror:{sh} row_mask:0xf bank_mask:0xf")
        a(f"v_max_u32_dpp v7, v5, v5 row_ror:{sh} row_mask:0xf bank_mask:0xf")
        a(f"v_max_u32_dpp v4, v4, v4 row_ror:{sh} row_mask:0xf bank_mask:0xf")
        a(f"v_max_u32 v5, v6, v7")
    a("s_nop 1")
    a("v_readlane_b32 s50, v4, 0\nv_readlane_b32 s51, v5, 0")
    for ln in (16, 32, 48):
        a(f"v_readlane_b32 s52, v4, {ln}\nv_readlane_b32 s53, v5, {ln}\ns_nop 3")
        a("s_min_u32 s54, s50, s52\ns_max_u32 s51, s51, s53\ns_max_u32 s50, s50, s52\ns_max_u32 s51, s51, s54")

def k_moe(a, name, diag=False):
    a.begin_kernel(name)
    guard(a, 224)
    a(f"s_load_dwordx4 s[4:7], s[0:1], {KA['wg']}")
    a(f"s_load_dwordx2 s[8:9], s[0:1], {KA['wd']}")
    a(f"s_load_dwordx2 s[10:11], s[0:1], {KA['ws']}")
    a("""
    v_lshrrev_b32 v4, 6, v0
    v_and_b32 v1, 63, v0
    v_readfirstlane_b32 s14, v4
    s_and_b32 s12, s2, 7
    s_lshr_b32 s13, s2, 3
    s_lshr_b32 s15, s13, 2
    s_lshl_b32 s15, s15, 5
    s_lshl_b32 s12, s12, 2
    s_add_u32 s15, s15, s12
    s_and_b32 s13, s13, 3
    s_add_u32 s15, s15, s13
    v_lshlrev_b32 v2, 4, v1
    v_lshrrev_b32 v3, 1, v1
    v_mul_u32_u24 v3, 7168, v3
    v_and_b32 v5, 1, v1
    v_lshl_add_u32 v3, v5, 4, v3
    v_lshrrev_b32 v6, 5, v1
    v_and_b32 v7, 31, v1
    v_lshlrev_b32 v7, 4, v7
    v_lshl_add_u32 v8, v6, 11, v7
    """)
    st = Stamps(a, diag, 5, vtmp=(126, 127))
    a("s_waitcnt lgkmcnt(0)")
    st.setup(14); st.stamp()
    a.srd(16, 4, 1024 * 7168)
    a.srd(20, 6, 1024 * 7168)
    a.srd(24, 8, 3584 * 2048)
    a.srd(28, 10, 16 << 20, 0)
    a(f"s_mov_b32 s40, {WS_KEYS}\ns_mov_b32 s41, {WS_KEYS + 4096}")
    for i in range(8):
        a(f"buffer_load_dwordx4 {R('v', 16+4*i)}, v2, s[28:31], s{40 + i//4} offen offset:{(i%4)*1024}")
    a(f"s_mul_i32 s42, s14, 24576\ns_mul_i32 s43, s14, {256*7168}\ns_lshl_b32 s44, s15, 5\ns_add_u32 s43, s43, s44")
    for p in range(8):
        for m in range(2):
            a(f"s_add_u32 m0, s42, {m*8192 + p*1024}\ns_nop 0")
            a(f"buffer_load_dwordx4 v3, s[{16+4*m}:{19+4*m}], s43 offen lds")
        if p < 7: a(f"s_add_u32 s43, s43, {32*7168}")
    a("s_lshl_b32 s43, s15, 15\ns_lshl_b32 s44, s14, 9\ns_add_u32 s43, s43, s44")
    for p in range(8):
        a(f"s_add_u32 m0, s42, {16384 + p*1024}\ns_nop 0")
        a(f"buffer_load_dwordx4 v8, s[24:27], s43 offen lds")
        if p < 7: a(f"s_add_u32 s43, s43, 4096")
    a("s_waitcnt vmcnt(24)")
    top2_scan(a, 28, 16, 2)
    a(f"""
    s_and_b32 s52, s50, 0xffff
    s_and_b32 s53, s51, 0xffff
    s_sub_u32 s52, 2047, s52
    s_sub_u32 s53, 2047, s53
    s_lshl_b32 s52, s52, 11
    s_lshl_b32 s53, s53, 11
    v_and_b32 v5, 1, v1
    v_cmp_eq_u32 vcc, 1, v5
    v_mov_b32 v6, s52
    v_mov_b32 v7, s53
    v_cndmask_b32 v6, v6, v7, vcc
    v_and_b32 v7, 48, v1
    v_add_u32 v6, v6, v7
    s_lshl_b32 s44, s14, 9
    s_add_u32 s44, s44, {WS_H2}
    """)
    for ks in range(8):
        a(f"buffer_load_dwordx4 {R('v', 16+4*ks)}, v6, s[28:31], s44 offen offset:{ks*64}")
    l = a.label("nopub")
    a(f"s_or_b32 s45, s2, s14\ns_cmp_eq_u32 s45, 0\ns_cbranch_scc0 {l}")
    a(f"v_mov_b32 v10, s50\nv_mov_b32 v11, s51\nv_mov_b32 v9, 0\ns_mov_b32 s45, {WS_KEYS + 8192}\nbuffer_store_dwordx2 v[10:11], v9, s[28:31], s45 offen\ns_waitcnt vmcnt(0)")
    a(f"{l}:")
    a("""
    v_lshrrev_b32 v5, 4, v1
    v_lshlrev_b32 v5, 8, v5
    v_and_b32 v7, 15, v1
    v_lshl_add_u32 v5, v7, 3, v5
    v_add_u32 v5, s42, v5
    s_waitcnt vmcnt(16)
    """)
    for half in range(2):
        for ks in range(4 * half, 4 * half + 4):
            for m in range(2):
                for jj in range(2):
                    d = 48 + 8 * (ks % 4) + 4 * m + 2 * jj
                    a(f"ds_read_b64_tr_b16 v[{d}:{d+1}], v5 offset:{m*8192 + ks*1024 + jj*128}")
            if ks % 4 == 2:
                a("s_waitcnt lgkmcnt(8)")
        a("s_waitcnt vmcnt(0) lgkmcnt(0)")
        for ks in range(4 * half, 4 * half + 4):
            for m in range(2):
                c = "0" if ks == 0 else R('v', 80 + 4*m)
                a(f"v_mfma_f32_16x16x32_bf16 {R('v', 80+4*m)}, {R('v', 48 + 8*(ks%4) + 4*m)}, {R('v', 16+4*ks)}, {c}")
    a("s_lshl_b32 s45, s14, 11\nv_add_u32 v9, s45, v2\nv_add_u32 v9, 98304, v9\nv_add_u32 v10, 98304, v2\ns_nop 7")
    a("ds_write_b128 v9, v[80:83]\nds_write_b128 v9, v[84:87] offset:1024")
    a("""
    v_lshrrev_b32 v5, 2, v1
    v_lshlrev_b32 v5, 9, v5
    v_and_b32 v7, 3, v1
    v_lshl_add_u32 v5, v7, 3, v5
    v_add_u32 v5, s42, v5
    """)
    for nb in range(16):
        if nb == 12: a("s_waitcnt lgkmcnt(4)")
        a(f"ds_read_b64_tr_b16 v[{16+2*nb}:{17+2*nb}], v5 offset:{16384 + nb*32}")
    a("s_waitcnt lgkmcnt(0)\ns_barrier")
    for w in range(4):
        a(f"ds_read_b128 {R('v', 48+8*w)}, v10 offset:{w*2048}\nds_read_b128 {R('v', 52+8*w)}, v10 offset:{w*2048+1024}")
    a("s_waitcnt lgkmcnt(0)")
    for i in range(8):
        a(f"v_add_f32 v{48+i}, v{48+i}, v{56+i}\nv_add_f32 v{64+i}, v{64+i}, v{72+i}")
    for i in range(8):
        a(f"v_add_f32 v{48+i}, v{48+i}, v{64+i}")
    for j in range(4):
        bf16_round(a, 48 + 2*j, 49 + 2*j, 48 + 2*j, 49 + 2*j, 56)
    for i in range(4): a(f"v_mul_f32 v{56+i}, {f2u(-LOG2E)}, v{48+i}")
    for i in range(4): a(f"v_exp_f32 v{56+i}, v{56+i}")
    for i in range(4): a(f"v_add_f32 v{56+i}, 1.0, v{56+i}")
    for i in range(4): a(f"v_rcp_f32 v{56+i}, v{56+i}")
    for i in range(4): a(f"v_mul_f32 v{48+i}, v{48+i}, v{56+i}")
    for j in range(2):
        bf16_round(a, 48 + 2*j, 49 + 2*j, 48 + 2*j, 49 + 2*j, 56)
    for i in range(4): a(f"v_mul_f32 v{48+i}, v{48+i}, v{52+i}")
    a("v_cvt_pk_bf16_f32 v56, v48, v49\nv_cvt_pk_bf16_f32 v57, v50, v51")
    a("v_bfe_u32 v7, v1, 1, 3")
    for j in range(8):
        a(f"v_cmp_eq_u32 vcc, {j}, v7\ns_nop 1\nv_cndmask_b32 v{60+2*j}, 0, v56, vcc\nv_cndmask_b32 v{61+2*j}, 0, v57, vcc")
    a("s_nop 1")
    for h in range(2):
        for j in range(8):
            nb = 8 * h + j
            c = "0" if j == 0 else R('v', 80 + 4*h)
            a(f"v_mfma_f32_16x16x16_bf16 {R('v', 80+4*h)}, v[{16+2*nb}:{17+2*nb}], v[{60+2*j}:{61+2*j}], {c}")
    a(f"""
    v_and_b32 v5, 1, v1
    v_lshlrev_b32 v5, 12, v5
    v_lshl_add_u32 v5, v7, 6, v5
    v_and_b32 v6, 48, v1
    v_add_u32 v5, v5, v6
    s_lshl_b32 s45, s15, 13
    s_lshl_b32 s44, s14, 10
    s_add_u32 s45, s45, s44
    s_add_u32 s45, s45, {WS_YP}
    s_nop 1
    buffer_store_dwordx4 v[80:83], v5, s[28:31], s45 offen {OPT['wt']}
    buffer_store_dwordx4 v[84:87], v5, s[28:31], s45 offen offset:512 {OPT['wt']}
    """)
    st.stamp(); st.flush()
    a("s_endpgm")
    a.end_kernel(name, 128, sgpr=102 if diag else 64)

def k_fin(a, name, diag=False):
    a.begin_kernel(name)
    guard(a, 64)
    a(f"s_load_dwordx2 s[8:9], s[0:1], {KA['out']}")
    a(f"s_load_dwordx2 s[10:11], s[0:1], {KA['ws']}")
    a("""
    v_lshrrev_b32 v4, 6, v0
    v_and_b32 v1, 7, v0
    v_readfirstlane_b32 s14, v4
    v_lshrrev_b32 v2, 3, v0
    v_lshlrev_b32 v2, 13, v2
    v_lshl_add_u32 v2, v1, 4, v2
    """)
    st = Stamps(a, diag, 6, vtmp=(62, 63))
    a("s_waitcnt lgkmcnt(0)")
    st.setup(14); st.stamp()
    a(f"s_load_dwordx2 s[50:51], s[10:11], {WS_KEYS + 8192}")
    a.srd(28, 10, 16 << 20, 0)
    a.srd(32, 8, 2048 * 2048)
    a(f"s_lshl_b32 s40, s2, 7\ns_add_u32 s40, s40, {WS_YP}")
    for i in range(7):
        a(f"buffer_load_dwordx4 {R('v', 8+4*i)}, v2, s[28:31], s40 offen")
        if i < 6: a(f"s_add_u32 s40, s40, {32*8192}")
    a(f"""
    s_waitcnt lgkmcnt(0)
    s_cmp_lt_u32 s2, 32
    s_cselect_b32 s50, s50, s51
    s_and_b32 s52, s50, 0xffff
    s_sub_u32 s52, 2047, s52
    s_and_b32 s52, s52, 2047
    s_lshl_b32 s52, s52, 11
    s_and_b32 s53, s2, 31
    s_lshl_b32 s53, s53, 6
    s_add_u32 s52, s52, s53
    s_add_u32 s54, s52, {WS_H2}
    s_add_u32 s55, s52, {WS_X1}
    s_add_u32 s53, s53, {WS_MOD + 10240}
    v_lshlrev_b32 v3, 3, v1
    buffer_load_dwordx2 v[40:41], v3, s[28:31], s54 offen
    buffer_load_dwordx2 v[42:43], v3, s[28:31], s55 offen
    buffer_load_dwordx2 v[44:45], v3, s[28:31], s53 offen
    """)
    for i in range(1, 7):
        a(f"s_waitcnt vmcnt({6 - i + 3})")
        for j in range(4):
            a(f"v_add_f32 v{8+j}, v{8+j}, v{8+4*i+j}")
    allreduce8(a, [8, 9, 10, 11], [12, 13, 14, 15])
    a("""
    s_lshl_b32 s40, s14, 7
    v_lshlrev_b32 v5, 4, v1
    v_add_u32 v6, s40, v5
    ds_write_b128 v6, v[8:11]
    s_waitcnt lgkmcnt(0)
    s_barrier
    """)
    l = a.label("w0")
    a(f"s_cmp_eq_u32 s14, 0\ns_cbranch_scc1 {l}")
    st.stamp(); st.flush(); st.n -= 1 if diag else 0
    a(f"s_endpgm\n{l}:")
    for w in range(4):
        a(f"ds_read_b128 {R('v', 8+4*w)}, v5 offset:{128*w}")
    a(f"""
    s_and_b32 s56, s50, 0xffff0000
    s_ashr_i32 s57, s56, 31
    s_not_b32 s57, s57
    s_or_b32 s57, s57, 0x80000000
    s_xor_b32 s56, s56, s57
    s_and_b32 s56, s56, 0xffff0000
    v_mov_b32 v30, s56
    v_mul_f32 v30, {f2u(-LOG2E)}, v30
    v_exp_f32 v30, v30
    s_nop 0
    v_add_f32 v30, 1.0, v30
    v_rcp_f32 v30, v30
    s_nop 0
    v_cvt_pk_bf16_f32 v30, v30, v30
    v_lshlrev_b32 v30, 16, v30
    s_waitcnt vmcnt(0) lgkmcnt(0)
    """)
    for j in range(4):
        a(f"v_add_f32 v{8+j}, v{8+j}, v{12+j}\nv_add_f32 v{16+j}, v{16+j}, v{20+j}")
    for j in range(4):
        a(f"v_add_f32 v{8+j}, v{8+j}, v{16+j}")
    for j in range(2):
        x0, x1 = 8 + 2*j, 9 + 2*j
        bf16_round(a, x0, x1, x0, x1, 31)
        a(f"v_mul_f32 v{x0}, v{x0}, v30\nv_mul_f32 v{x1}, v{x1}, v30")
        bf16_round(a, x0, x1, x0, x1, 31)
        unpack(a, 32, 33, 40 + j)
        a(f"v_add_f32 v{x0}, v{x0}, v32\nv_add_f32 v{x1}, v{x1}, v33")
        bf16_round(a, x0, x1, x0, x1, 31)
        unpack(a, 32, 33, 44 + j)
        a(f"v_mul_f32 v{x0}, v{x0}, v32\nv_mul_f32 v{x1}, v{x1}, v33")
        bf16_round(a, x0, x1, x0, x1, 31)
        unpack(a, 32, 33, 42 + j)
        a(f"v_add_f32 v{x0}, v{x0}, v32\nv_add_f32 v{x1}, v{x1}, v33")
        a(f"v_cvt_pk_bf16_f32 v{34+j}, v{x0}, v{x1}")
    a("buffer_store_dwordx2 v[34:35], v3, s[32:35], s52 offen")
    st.stamp(); st.flush()
    a("s_endpgm")
    a.end_kernel(name, 64, sgpr=102 if diag else 64)
```

```python
import sys
from gen_common import *
import gen_small as S, gen_big as B

HEAD = open("adaLN_cond__mha_block_cached__moe_arch_mod__prompt.s.ref").read().split("\n")[:16]

EXTRA = []
def generate(diag=False, force_safe=False):
    a = Asm()
    launches = [("mod_kernel", 256 if S.OPT["pf1"] else 192, 512, 4096), ("ln1_kernel", 256, 512, 1024), ("attn_kernel", 256, 256, B.LDS_TOTAL),
                ("oproj_kernel", 256, 256, B.LDS_TOTAL), ("ln2_kernel", 256, 512, 1024), ("moe_kernel", 224, 256, 106496), ("fin_kernel", 64, 256, 512)]
    S.k_mod(a, "mod_kernel", diag)
    S.k_ln1(a, "ln1_kernel", diag)
    B.k_attn(a, "attn_kernel", diag, force_safe)
    B.k_oproj(a, "oproj_kernel", diag)
    S.k_ln2(a, "ln2_kernel", 4, diag)
    S.k_moe(a, "moe_kernel", diag)
    S.k_fin(a, "fin_kernel", diag)
    if EXTRA:
        a.begin_kernel("nop_kernel"); a("s_endpgm"); a.end_kernel("nop_kernel", 8, sgpr=16)
        for pos in sorted(EXTRA, reverse=True):
            launches.insert(pos, ("nop_kernel", 256, 64, 0))
    hdr = HEAD + [f"; @launch kernel={n} grid=({g},1,1) block=({b},1,1) lds={l}" for n, g, b, l in launches]
    return a.text(hdr)

if __name__ == "__main__":
    out = sys.argv[1]
    for arg in sys.argv[2:]:
        if "=" in arg:
            k, v = arg.split("=")
            v = int(v) if v.isdigit() and k != "extra" else v.replace("+", " ")
            if k == "extra": EXTRA.extend(int(c) for c in str(v))
            for M in (S, B):
                if k in M.OPT: M.OPT[k] = v
    open(out, "w").write(generate(diag="diag" in sys.argv, force_safe="safe" in sys.argv))
```

```python
from gen_common import *

PIECE = 1056
TILE = 16 * PIECE
KRING = 0
VRING = 4 * TILE
LDS_FLAG = 8 * TILE
LDS_TOTAL = 8 * TILE + 64

OPT = dict(wt="", pf=0, wqnt="", kvnt="")
S_PF = 48
sPF, vPF, vDUM = 64, 229, 230

def mf(d, A, B, c=None):
    return f"v_mfma_f32_16x16x32_bf16 {d}, {A}, {B}, {c if c is not None else d}"

def emit(a, mfmas, gaps):
    for g, m in enumerate(mfmas):
        a(m)
        for s in gaps.get(g, []):
            a(s)

S_W, S_B = 12, 16
S_K, S_V, S_O = 4, 8, 20
sWAVE, sKOFF, sVOFF, sWOFF, sBOFF, sCNT, sMW, sWP = 24, 25, 26, 27, 28, 29, 30, 31
vLANE16, vWOFF, vKV, vA, vKADDR, vBOFF = 1, 2, 3, 4, 5, 6
ACC = 16
AFR = [("v", 144 + 4*i) for i in range(4)]
BRING = [("a", 144 + 4*i) for i in range(28)] + [("v", 160 + 4*i) for i in range(4)]

class Gemm:
    def __init__(self, a, wstride, bq):
        self.a, self.ws, self.bq = a, wstride, bq
        self.fl = OPT["wqnt"] if wstride == 8192 else ""
    def acc(self, nb, qb): return R("v", ACC + 4 * (qb * 8 + nb))
    def bfrag(self, c, qb, ks):
        f, i = BRING[(c % 4) * 8 + qb * 2 + ks]; return R(f, i)
    def afrag(self, nb, ks):
        f, i = AFR[(nb % 2) * 2 + ks]; return f, i
    def a_reads(self, c, nb):
        out = []
        for ks in range(2):
            f, i = self.afrag(nb, ks)
            for jj in range(2):
                out.append(f"ds_read_b64_tr_b16 {R(f, i + 2*jj, 2)}, v{vA} offset:{(c % 4)*TILE + (2*ks + jj)*256 + nb*32}")
        return out
    def dma_pre(self, c, p):
        out = [f"s_add_u32 m0, s{sMW}, {VRING + (c % 4)*TILE + p*PIECE}"]
        return out
    def dma(self, c, p):
        return f"buffer_load_dwordx4 v{vWOFF}, s[{S_W}:{S_W+3}], s{sWOFF} offen {self.fl} lds"
    def dma_post(self, p):
        return f"s_add_u32 s{sWOFF}, s{sWOFF}, {self.ws if p < 3 else 61*self.ws}"
    def bload(self, c, i):
        qb, ks = i // 2, i % 2
        return f"buffer_load_dwordx4 {self.bfrag(c, qb, ks)}, v{vBOFF+qb}, s[{S_B}:{S_B+3}], s{sBOFF} offen offset:{ks*1024}"
    def prologue(self):
        a = self.a
        for c in range(4):
            for p in range(4 if c < 3 else 1):
                a(self.dma_pre(c, p)[0]); a("s_nop 0"); a(self.dma(c, p)); a(self.dma_post(p))
            if c < 3:
                for i in range(8): a(self.bload(c, i))
                a(f"s_add_u32 s{sBOFF}, s{sBOFF}, 2048")
    def start(self):
        a = self.a
        a("s_waitcnt vmcnt(25)\ns_barrier")
        for s in self.a_reads(0, 0): a(s)
        a("s_waitcnt lgkmcnt(0)")
    def chunk(self, c, first=False, vm=None, bar_wait="vmcnt(23)", last=False):
        a = self.a
        for nb in range(8):
            ms = []
            for qb in range(4):
                for ks in ((0, 1) if qb % 2 == 0 else (1, 0)):
                    f, i = self.afrag(nb, ks)
                    z = "0" if (first and len(ms) % 2 == 0) else None
                    ms.append(mf(self.acc(nb, qb), R(f, i), self.bfrag(c, qb, ks), z))
            gaps = {g: [] for g in range(8)}
            if not (last and nb == 7):
                rd = self.a_reads(c, nb + 1) if nb < 7 else self.a_reads(c + 1, 0)
                gaps[0] += rd[0:2]; gaps[1] += rd[2:4]
            if vm is None:
                ops = [(None, self.bload(c + 3, nb), f"s_add_u32 s{sBOFF}, s{sBOFF}, 2048" if nb == 7 else None)]
                if nb % 2 == 1:
                    cc, p = (c + 4, 0) if nb == 7 else (c + 3, (nb + 1) // 2)
                    ops.append((self.dma_pre(cc, p)[0], self.dma(cc, p), self.dma_post(p)))
            else:
                ops = vm.get(nb, [])
            for k, (pre, ins, post) in enumerate(ops):
                g = 3 + 2 * k
                if pre: gaps[g - 1].insert(0, pre)
                gaps[g].append(ins)
                if post: gaps[g + 1].append(post)
            if nb == 6 and bar_wait:
                gaps[7] += [f"s_waitcnt {bar_wait} lgkmcnt(0)", "s_barrier"]
            elif not (last and nb == 7):
                gaps[7].append("s_waitcnt lgkmcnt(0)")
            emit(a, ms, gaps)

def pack_pairs(a, dst, src, scale_pair=None):
    if scale_pair is not None:
        for i in range(0, 8, 2):
            a(f"v_pk_mul_f32 v[{src+i}:{src+i+1}], v[{src+i}:{src+i+1}], {scale_pair}")
    for i in range(4):
        a(f"v_cvt_pk_bf16_f32 v{dst+i}, v{src+2*i}, v{src+2*i+1}")

def shuffle(a, regs):
    a("s_nop 1")
    for sw in ("v_permlane32_swap_b32", "v_permlane16_swap_b32"):
        for d in regs:
            a(f"{sw} v{d}, v{d+2}\n{sw} v{d+1}, v{d+3}")
        if len(regs) < 2: a("s_nop 1")

def common_setup(a):
    a(f"""
    v_lshrrev_b32 v10, 6, v0
    v_and_b32 v11, 63, v0
    v_readfirstlane_b32 s{sWAVE}, v10
    v_lshlrev_b32 v{vLANE16}, 4, v11
    v_lshrrev_b32 v12, 4, v11
    v_and_b32 v13, 15, v11
    v_lshrrev_b32 v14, 2, v11
    v_mul_u32_u24 v{vA}, {PIECE}, v14
    v_and_b32 v14, 3, v11
    v_lshl_add_u32 v{vA}, v14, 3, v{vA}
    v_add_u32 v{vA}, {VRING}, v{vA}
    s_mul_i32 s{sMW}, s{sWAVE}, {4*PIECE}
    """)

QF = 16
SB_ = 80
MB = 96
PB_ = 112
KF = 176
VF = 208
ONES, IDX = 224, 228
OACC, LACC = 0, 128

class Attn:
    def __init__(self, a, safe):
        self.a, self.safe = a, safe
        self.pf = OPT["pf"] and not safe
    def pfload(self, T):
        return f"buffer_load_dword v{vDUM + T % 4}, v{vPF}, s[{S_PF + 4*(T % 4)}:{S_PF + 4*(T % 4) + 3}], s{sPF} offen"
    def kread(self, T, kb, ds):
        return f"ds_read_b128 {R('v', KF + 16*(kb % 2) + 4*ds)}, v{vKADDR} offset:{(T % 4)*TILE + kb*256 + ds*64}"
    def vreads(self, T, db, ks):
        return [f"ds_read_b64_tr_b16 {R('v', VF + 8*(db % 2) + 4*ks + 2*jj, 2)}, v{vA} offset:{(T % 4)*TILE + (2*ks + jj)*256 + db*32}" for jj in range(2)]
    def dma(self, kind, T, p):
        ring, srd, so = (KRING, S_K, sKOFF) if kind == "K" else (VRING, S_V, sVOFF)
        return (f"s_add_u32 m0, s{sMW}, {ring + (T % 4)*TILE + 32*p}",
                f"buffer_load_dwordx4 v{vKV}, s[{srd}:{srd+3}], s{so} offen offset:{p*1024} {OPT['kvnt']} lds",
                f"s_add_u32 s{so}, s{so}, 16384" if p == 3 else None)
    def qk(self, kb, qb):
        order = (0, 1, 2, 3) if qb % 2 == 0 else (3, 2, 1, 0)
        d = R("v", SB_ + 4*qb)
        return [mf(d, R("v", KF + 16*(kb % 2) + 4*ds), R("v", QF + 16*qb + 4*ds),
                   (R("v", MB + 4*qb) if self.safe else "0") if n == 0 else None) for n, ds in enumerate(order)]
    def pv(self, T, db, qbs):
        out = []
        for qb in qbs:
            for ks in ((0, 1) if qb % 2 == 0 else (1, 0)):
                out.append(mf(R("a", OACC + 4*(qb*8 + db)), R("v", VF + 8*(db % 2) + 4*ks), R("v", PB_ + 32*(T % 2) + 8*qb + 4*ks)))
        return out
    def exp(self, blk, i):
        r_ = SB_ + 4*(blk % 4) + i
        return f"v_exp_f32 v{r_}, v{r_}"
    def cvt(self, X, blk, h):
        kb, qb = blk // 4, blk % 4
        return f"v_cvt_pk_bf16_f32 v{PB_ + 32*(X % 2) + 8*qb + 2*kb + h}, v{SB_ + 4*qb + 2*h}, v{SB_ + 4*qb + 2*h + 1}"
    def smf(self, T, qb):
        return f"v_smfmac_f32_16x16x64_bf16 {R('a', LACC + 4*qb)}, {R('v', ONES)}, {R('v', PB_ + 32*(T % 2) + 8*qb, 8)}, v{IDX}"
    def kread_at(self, T, s):
        n = s + 5
        X, kb, ds = T + 1 + n // 16, (n % 16) // 4, n % 4
        return X, kb, ds
    def dma_ops(self, T):
        ops = {}
        for s in range(1, 16, 2):
            n = (s - 11) // 2
            st = T + 3 if n >= 0 else T + 2
            n %= 8
            ops[s] = ("K", st + 1, n) if n < 4 else ("V", st, n - 4)
        return ops
    def iteration(self, T, do_qk=True, do_pv=True, dma=True, tail=None):
        a = self.a
        dmas = self.dma_ops(T) if dma else {}
        for s in range(16):
            kb, qb = s // 4, s % 4
            db = s // 2
            full = do_qk and do_pv
            ms = (self.qk(kb, qb) if do_qk else []) + (self.pv(T, db, (2*(s % 2), 2*(s % 2) + 1)) if do_pv else [])
            E, C = [], []
            if s >= 1:
                if do_qk: E = [self.exp(s - 1, i) for i in range(4)]
            elif do_pv: E = [self.exp(15, i) for i in range(4)]
            if s >= 2:
                if do_qk: C = [self.cvt(T + 1, s - 2, h) for h in range(2)]
            elif do_pv: C = [self.cvt(T, 14 + s, h) for h in range(2)]
            KR, VR = [], []
            X, kkb, ds = self.kread_at(T, s)
            if do_qk and X <= 31: KR = [self.kread(X, kkb, ds)]
            n = s + 2
            if n < 16:
                if do_pv: VR = self.vreads(T, n // 2, n % 2)
            elif do_qk: VR = self.vreads(T + 1, 0, n % 2)
            D = self.dma(*dmas[s]) if s in dmas else None
            gaps = {g: [] for g in range(9)}
            if full:
                gaps[0] = [E[0]]; gaps[2] = [E[1]]; gaps[4] = [E[2]]; gaps[6] = [E[3]]
                gaps[1] = C
                gaps[3] = (["s_waitcnt lgkmcnt(1)"] if s % 2 == 0 else []) + VR
                gaps[5] = KR
                last = 7
                if s % 4 == 3:
                    ms.append(self.smf(T, s // 4)); last = 8
                if D:
                    gaps[6].insert(0, D[0]); gaps[7].append(D[1])
                    if D[2]: gaps[last].append(D[2])
                if s % 4 == 3: gaps[last].append(f"s_waitcnt lgkmcnt({len(KR) + len(VR)})")
                if s == 10: gaps[last] += [f"s_waitcnt vmcnt({9 if self.pf else 8})", "s_barrier"]
                if s == 12 and self.pf: gaps[7].append(self.pfload(T))
                if s == 14 and self.pf and T % 4 == 3: gaps[7].append(f"s_add_u32 s{sPF}, s{sPF}, {1 << 20}")
                if s == 15 and tail: gaps[last] += tail
            elif do_qk:
                gaps[0] = VR
                gaps[1] = C
                if D:
                    gaps[1] = [D[0]] + gaps[1]; gaps[2] = [D[1]] + ([D[2]] if D[2] else [])
                gaps[3] = KR + (E if E else ["s_nop 3"])
                if s % 4 == 3: gaps[3].append(f"s_waitcnt lgkmcnt({len(KR) + len(VR)})")
                if s == 10: gaps[3] += ["s_waitcnt vmcnt(8)", "s_barrier"]
                if s == 12 and self.pf: gaps[2] = [self.pfload(3)]
                if s == 15: gaps[3].append("s_nop 3")
            else:
                pre = E + C
                if s < 2: pre += ["s_nop 1"]
                if s % 2 == 0: pre += ["s_waitcnt lgkmcnt(0)"]
                for x in pre: a(x)
                gaps[0] = VR
                if s % 4 == 3: ms.append(self.smf(T, s // 4))
            emit(a, ms, gaps)
    def body(self):
        a = self.a
        for s in range(11, 16):
            X, kb, ds = self.kread_at(-2, s)
            a(self.kread(X, kb, ds))
        a("s_waitcnt lgkmcnt(1)")
        d = self.dma_ops
        self.dma_ops = lambda T: {s: o for s, o in d(T).items() if s >= 11}
        self.iteration(-1, do_pv=False)
        self.dma_ops = d
        loop, done = a.label("attn"), a.label("attn_done")
        a(f"s_mov_b32 s{sCNT}, 0")
        a(".p2align 3")
        a(f"{loop}:")
        for T in range(4):
            tail = None
            if T == 2: tail = [f"s_cmp_eq_u32 s{sCNT}, 7", f"s_cbranch_scc1 {done}"]
            if T == 3: tail = [f"s_add_u32 s{sCNT}, s{sCNT}, 1", f"s_branch {loop}"]
            self.iteration(T, tail=tail)
        a(f"{done}:")
        self.iteration(31, do_qk=False, dma=False)

def attn_epilogue(a, check):
    a("s_nop 7")
    T = 80
    for qb in range(4):
        a(f"v_accvgpr_read_b32 v{T+2*qb}, a{LACC+4*qb}\nv_accvgpr_read_b32 v{T+2*qb+1}, a{LACC+4*qb+1}")
    for qb in range(4):
        a(f"v_add_f32 v{T+2*qb}, v{T+2*qb}, v{T+2*qb+1}")
    if check:
        a(f"s_mov_b32 s42, {f2u(2.0**-24)}\ns_mov_b32 s43, {f2u(2.0**60)}\ns_mov_b64 s[40:41], 0")
        for qb in range(4):
            a(f"v_cmp_nle_f32 vcc, s42, v{T+2*qb}\ns_or_b64 s[40:41], s[40:41], vcc")
            a(f"v_cmp_nge_f32 vcc, s43, v{T+2*qb}\ns_or_b64 s[40:41], s[40:41], vcc")
        for i in range(4): a(f"v_mov_b32 v{KF+i}, 0")
    for qb in range(4):
        a(f"v_rcp_f32 v{T+2*qb}, v{T+2*qb}")
    for qb in range(4):
        a(f"v_mov_b32 v{T+2*qb+1}, v{T+2*qb}")
    n = 0
    for qb in range(4):
        for s in range(4):
            src = 96 + 8 * (n % 2); dst = 112 + 4 * n
            for i in range(8):
                a(f"v_accvgpr_read_b32 v{src+i}, a{OACC + 4*(qb*8 + 2*s) + i}")
            pack_pairs(a, dst, src, f"v[{T+2*qb}:{T+2*qb+1}]")
            a(f"buffer_store_dwordx4 {R('v', dst)}, v{vBOFF+qb}, s[{S_O}:{S_O+3}], 0 offen offset:{s*1024} {OPT['wt']}")
            if check and n:
                a(mf(R("v", KF + 4), R("v", KF), R("v", dst - 4), "0" if n == 1 else None))
            n += 1
    if check:
        a("s_nop 0")
        a(mf(R("v", KF + 4), R("v", KF), R("v", 112 + 60)))
        a(f"s_nop 7\nv_cmp_u_f32 vcc, v{KF+4}, v{KF+4}\ns_or_b64 s[40:41], s[40:41], vcc\ns_or_b32 s40, s40, s41")

def k_attn(a, name, diag=False, force_safe=False):
    a.begin_kernel(name)
    guard(a, 256)
    a(f"s_load_dwordx4 s[32:35], s[0:1], {KA['k']}")
    a(f"s_load_dwordx2 s[36:37], s[0:1], {KA['wq']}")
    a(f"s_load_dwordx2 s[38:39], s[0:1], {KA['ws']}")
    common_setup(a)
    a(f"""
    s_and_b32 s40, s2, 7
    s_lshl_b32 s40, s40, 2
    s_bfe_u32 s41, s2, 0x20003
    s_add_u32 s40, s40, s41
    s_lshr_b32 s41, s2, 5
    s_lshl_b32 s41, s41, 2
    s_add_u32 s41, s41, s{sWAVE}
    v_lshrrev_b32 v14, 1, v12
    v_lshlrev_b32 v14, 5, v14
    v_and_b32 v15, 1, v12
    v_lshl_add_u32 v14, v15, 2, v14
    v_lshl_add_u32 v14, v10, 3, v14
    v_lshlrev_b32 v14, 13, v14
    v_lshl_add_u32 v{vWOFF}, v13, 4, v14
    v_lshl_add_u32 v{vKV}, v10, 12, v{vLANE16}
    v_mul_u32_u24 v{vKADDR}, {PIECE}, v13
    v_lshl_add_u32 v{vKADDR}, v12, 4, v{vKADDR}
    s_mov_b32 s{sKOFF}, 0
    s_mov_b32 s{sVOFF}, 0
    s_mov_b32 s{sWOFF}, 0
    s_mov_b32 s{sBOFF}, 0
    s_lshl_b32 s42, s40, 19
    s_lshl_b32 s43, s40, 8
    s_sub_u32 s44, {8 << 20}, s43
    s_lshl_b32 s45, s41, 17
    s_add_u32 s45, s45, {WS_H}
    s_lshl_b32 s46, s41, 19
    s_lshl_b32 s47, s40, 12
    s_add_u32 s46, s46, s47
    s_add_u32 s46, s46, {WS_O}
    """)
    for qb in range(4):
        a(f"v_add_u32 v{vBOFF+qb}, {qb*32768}, v{vLANE16}")
    st = Stamps(a, diag, 2)
    a("s_waitcnt lgkmcnt(0)")
    st.setup(sWAVE); st.stamp()
    a.srd(S_W, 36, "s44", "s43")
    a.srd(S_B, 38, 1 << 17, "s45")
    g = Gemm(a, 8192, 32768)
    g.prologue()
    if OPT["pf"]:
        a(f"s_load_dwordx2 s[66:67], s[0:1], {KA['wo']}\ns_load_dwordx4 s[68:71], s[0:1], {KA['wg']}\ns_load_dwordx2 s[72:73], s[0:1], {KA['wd']}")
        a(f"s_lshl_b32 s{sPF}, s2, 2\ns_add_u32 s{sPF}, s{sPF}, s{sWAVE}\ns_lshl_b32 s{sPF}, s{sPF}, 10")
        a(f"v_mul_u32_u24 v{vPF}, {OPT['pf']}, v11\nv_mov_b32 v14, 0x7f000000\nv_cmp_gt_u32 vcc, {1024 // OPT['pf']}, v11\ns_nop 1\nv_cndmask_b32 v{vPF}, v14, v{vPF}, vcc")
        a("s_waitcnt lgkmcnt(0)")
        for i in range(4):
            a.srd(S_PF + 4*i, 66 + 2*i, (8 << 20) if i == 0 else (7 << 20))
    a.srd(S_K, 32, 1 << 19, "s42")
    a.srd(S_V, 34, 1 << 19, "s42")
    a.srd(S_O, 38, (1 << 19) - (31 << 12), "s46")
    for i in range(144):
        a(f"v_accvgpr_write_b32 a{i}, 0")
    for i in range(4):
        a(f"v_mov_b32 v{ONES+i}, 0x3f803f80")
    a(f"v_and_b32 v14, 1, v11\nv_mul_u32_u24 v14, 0xaaaa, v14\nv_add_u32 v14, 0x4444, v14\nv_lshl_add_u32 v{IDX}, v14, 16, v14")
    for i in range(128):
        a(f"v_mov_b32 v{ACC+i}, 0")
    g.start()
    st.stamp()
    loop = a.label("qproj")
    a(f"s_mov_b32 s{sCNT}, 0\n{loop}:")
    for c in range(4):
        g.chunk(c)
    a(f"s_add_u32 s{sCNT}, s{sCNT}, 1\ns_cmp_lt_u32 s{sCNT}, 3\ns_cbranch_scc1 {loop}")
    at = Attn(a, False)
    seq = [("K", 0, p) for p in range(4)]
    for T in range(2):
        seq += [("K", T + 1, p) for p in range(4)] + [("V", T, p) for p in range(4)]
    seq = [at.dma(*x) for x in seq]
    vm = {nb: [(None, g.bload(15, nb), None)] + ([(g.dma_pre(15, (nb+1)//2)[0], g.dma(15, (nb+1)//2), g.dma_post((nb+1)//2))] if nb in (1, 3, 5) else []) for nb in range(8)}
    g.chunk(12, vm=vm)
    g.chunk(13, vm={nb: [seq[nb]] for nb in range(8)}, bar_wait="vmcnt(19)")
    g.chunk(14, vm={nb: [seq[8 + nb]] for nb in range(8)}, bar_wait="vmcnt(15)")
    g.chunk(15, vm={nb: [seq[16 + nb]] for nb in range(4)}, bar_wait="vmcnt(16)", last=True)
    st.stamp()
    sc = LOG2E * 128 ** -0.5
    a(f"s_mov_b32 s42, {f2u(sc)}\ns_mov_b32 s43, s42\ns_nop 5")
    for n in range(16):
        pack_pairs(a, QF + 4*n, ACC + 8*n, "s[42:43]")
    shuffle(a, [QF + 4*n for n in range(16)])
    for qb in range(4):
        a(f"v_add_u32 v{vBOFF+qb}, {qb*131072}, v{vLANE16}")
    safe = a.label("safe")
    if force_safe:
        a(f"s_waitcnt vmcnt(0)\ns_barrier\ns_branch {safe}")
    st.stamp()
    at.body()
    st.stamp()
    attn_epilogue(a, True)
    a(f"""
    v_mov_b32 v14, s40
    s_lshl_b32 s41, s{sWAVE}, 2
    s_add_u32 s41, s41, {LDS_FLAG}
    v_mov_b32 v15, s41
    ds_write_b32 v15, v14
    v_mov_b32 v15, {LDS_FLAG}
    s_waitcnt lgkmcnt(0)
    s_barrier
    ds_read_b128 v[80:83], v15
    s_waitcnt lgkmcnt(0)
    v_or_b32 v80, v80, v81
    v_or3_b32 v80, v80, v82, v83
    s_nop 0
    v_readfirstlane_b32 s40, v80
    s_nop 3
    s_cmp_lg_u32 s40, 0
    s_cbranch_scc1 {safe}
    """)
    st.stamp(); st.flush()
    a("s_endpgm")
    a(f"{safe}:")
    a("s_waitcnt vmcnt(0) lgkmcnt(0)\ns_barrier")
    at = Attn(a, True)
    for i in range(4):
        a(f"v_mov_b32 v{MB+4*i}, 0xff800000")
    mloop = a.label("maxloop")
    a(f"s_mov_b32 s{sKOFF}, 0\ns_mov_b32 s{sVOFF}, 0\n{mloop}:")
    for p in range(4):
        pre, ins, post = at.dma("K", 0, p)
        a(pre); a("s_nop 0"); a(ins)
        if post: a(post)
    a("s_waitcnt vmcnt(0)\ns_barrier")
    fast = Attn(a, False)
    for kb in range(4):
        for ds in range(4): a(at.kread(0, kb, ds))
        a("s_waitcnt lgkmcnt(0)")
        for qb in range(4):
            for m in fast.qk(kb, qb): a(m)
        a("s_nop 7")
        for qb in range(4):
            a(f"v_max3_f32 v{MB+4*qb}, v{MB+4*qb}, v{SB_+4*qb}, v{SB_+4*qb+1}")
            a(f"v_max3_f32 v{MB+4*qb}, v{MB+4*qb}, v{SB_+4*qb+2}, v{SB_+4*qb+3}")
    a(f"s_barrier\ns_cmp_lt_u32 s{sKOFF}, {32*16384}\ns_cbranch_scc1 {mloop}")
    for sw in ("v_permlane16_swap_b32", "v_permlane32_swap_b32"):
        for qb in range(4): a(f"v_mov_b32 v{MB+4*qb+1}, v{MB+4*qb}")
        a("s_nop 1")
        for qb in range(4): a(f"{sw} v{MB+4*qb}, v{MB+4*qb+1}")
        a("s_nop 0")
        for qb in range(4): a(f"v_max_f32 v{MB+4*qb}, v{MB+4*qb}, v{MB+4*qb+1}")
    for qb in range(4):
        a(f"v_sub_f32 v{MB+4*qb}, 0, v{MB+4*qb}")
        for i in range(1, 4): a(f"v_mov_b32 v{MB+4*qb+i}, v{MB+4*qb}")
    for i in range(144):
        a(f"v_accvgpr_write_b32 a{i}, 0")
    a(f"s_mov_b32 s{sKOFF}, 0")
    for pre, ins, post in seq:
        a(pre); a("s_nop 0"); a(ins)
        if post: a(post)
    a("s_waitcnt vmcnt(16)\ns_barrier")
    at.body()
    attn_epilogue(a, False)
    a("s_endpgm")
    a.end_kernel(name, 256, 256, sgpr=102 if diag else 80)

def k_oproj(a, name, diag=False):
    a.begin_kernel(name)
    guard(a, 256)
    a(f"s_load_dwordx2 s[36:37], s[0:1], {KA['wo']}")
    a(f"s_load_dwordx2 s[38:39], s[0:1], {KA['ws']}")
    common_setup(a)
    a(f"""
    s_bfe_u32 s40, s2, 0x20001
    s_and_b32 s41, s2, 1
    s_lshl_b32 s41, s41, 2
    s_lshr_b32 s42, s2, 6
    s_add_u32 s41, s41, s42
    s_lshl_b32 s41, s41, 2
    s_add_u32 s41, s41, s{sWAVE}
    s_bfe_u32 s42, s2, 0x30003
    v_lshlrev_b32 v14, 4, v12
    v_lshl_add_u32 v14, v10, 2, v14
    v_lshlrev_b32 v14, 11, v14
    v_lshl_add_u32 v{vWOFF}, v13, 4, v14
    s_mov_b32 s{sWOFF}, 0
    s_mov_b32 s{sBOFF}, 0
    s_lshl_b32 s43, s40, 21
    s_lshl_b32 s44, s42, 8
    s_add_u32 s43, s43, s44
    s_sub_u32 s44, {8 << 20}, s43
    s_lshl_b32 s45, s41, 19
    s_lshl_b32 s46, s40, 15
    s_add_u32 s45, s45, s46
    s_add_u32 s45, s45, {WS_O}
    s_lshl_b32 s46, s40, 22
    s_lshl_b32 s47, s41, 17
    s_add_u32 s46, s46, s47
    s_lshl_b32 s47, s42, 12
    s_add_u32 s46, s46, s47
    s_add_u32 s46, s46, {WS_P}
    """)
    for qb in range(4):
        a(f"v_add_u32 v{vBOFF+qb}, {qb*131072}, v{vLANE16}")
    st = Stamps(a, diag, 3)
    a("s_waitcnt lgkmcnt(0)")
    st.setup(sWAVE); st.stamp()
    a.srd(S_W, 36, "s44", "s43")
    a.srd(S_B, 38, (1 << 19) - (3 << 15), "s45")
    g = Gemm(a, 2048, 131072)
    g.prologue()
    a.srd(S_O, 38, (1 << 17) - (7 << 12), "s46")
    for i in range(128):
        a(f"v_mov_b32 v{ACC+i}, 0")
    g.start()
    st.stamp()
    loop = a.label("oproj")
    a(f"s_mov_b32 s{sCNT}, 0\n{loop}:")
    for c in range(4):
        g.chunk(c)
    a(f"s_add_u32 s{sCNT}, s{sCNT}, 1\ns_cmp_lt_u32 s{sCNT}, 3\ns_cbranch_scc1 {loop}")
    vm = {nb: [(None, g.bload(15, nb), None)] + ([(g.dma_pre(15, (nb+1)//2)[0], g.dma(15, (nb+1)//2), g.dma_post((nb+1)//2))] if nb in (1, 3, 5) else []) for nb in range(8)}
    g.chunk(12, vm=vm)
    g.chunk(13, vm={}, bar_wait="vmcnt(12)")
    g.chunk(14, vm={}, bar_wait="vmcnt(0)")
    g.chunk(15, vm={}, bar_wait=None, last=True)
    st.stamp()
    for qb in range(4):
        a(f"v_add_u32 v{vBOFF+qb}, {qb*32768}, v{vLANE16}")
    a("s_nop 3")
    for qb in range(4):
        for s in range(4):
            n = qb * 4 + s
            pack_pairs(a, 160 + 4*n, ACC + 8*n)
        shuffle(a, [160 + 16*qb + 4*s for s in range(4)])
        for s in range(4):
            a(f"buffer_store_dwordx4 {R('v', 160 + 16*qb + 4*s)}, v{vBOFF+qb}, s[{S_O}:{S_O+3}], 0 offen offset:{s*1024} {OPT['wt']}")
    st.stamp(); st.flush()
    a("s_endpgm")
    a.end_kernel(name, 256, 256, sgpr=102 if diag else 64)
```

```python
from gen_common import *
OPT = dict(wt='', pf1=0, modnt='', xnt='')

def allreduce8(a, regs, tmps, op="v_add_f32"):
    a("s_nop 1")
    for r_ in regs:
        a(f"{op}_dpp v{r_}, v{r_}, v{r_} row_ror:8 row_mask:0xf bank_mask:0xf")
    for sw in ("v_permlane16_swap_b32", "v_permlane32_swap_b32"):
        for r_, t in zip(regs, tmps):
            a(f"v_mov_b32 v{t}, v{r_}")
        a("s_nop 1")
        for r_, t in zip(regs, tmps):
            a(f"{sw} v{r_}, v{t}")
        a("s_nop 0")
        for r_, t in zip(regs, tmps):
            a(f"{op} v{r_}, v{r_}, v{t}")

def k_mod(a, name, diag=False):
    a.begin_kernel(name)
    if OPT["pf1"]:
        guard(a, 256)
        l = a.label("go")
        a(f"s_cmp_lt_u32 s2, 192\ns_cbranch_scc1 {l}")
        a(f"s_load_dwordx2 s[4:5], s[0:1], {KA['wq']}\ns_load_dwordx2 s[6:7], s[0:1], {KA['x']}")
        a("s_sub_u32 s10, s2, 192\ns_lshl_b32 s10, s10, 16\nv_lshlrev_b32 v1, 7, v0\ns_waitcnt lgkmcnt(0)")
        a.srd(16, 4, 8 << 20); a.srd(20, 6, 4 << 20)
        if OPT["pf1"] & 1: a("buffer_load_dword v2, v1, s[20:23], s10 offen")
        if OPT["pf1"] & 2: a(f"buffer_load_dword v3, v1, s[16:19], s10 offen\ns_add_u32 s10, s10, {4 << 20}\nbuffer_load_dword v4, v1, s[16:19], s10 offen")
        a(f"s_waitcnt vmcnt(0)\ns_endpgm\n{l}:")
    else:
        guard(a, 192)
    a(f"s_load_dwordx4 s[4:7], s[0:1], {KA['c']}")
    a(f"s_load_dwordx2 s[8:9], s[0:1], {KA['ws']}")
    a("""
    s_and_b32 s10, s2, 7
    s_lshr_b32 s11, s2, 3
    s_lshr_b32 s12, s11, 1
    s_lshl_b32 s12, s12, 4
    s_lshl_b32 s10, s10, 1
    s_add_u32 s12, s12, s10
    s_and_b32 s11, s11, 1
    s_add_u32 s12, s12, s11
    s_lshl_b32 s13, s12, 6
    v_lshrrev_b32 v1, 2, v0
    v_and_b32 v2, 3, v0
    v_mul_u32_u24 v3, 98304, v1
    v_lshl_add_u32 v3, v2, 4, v3
    v_lshlrev_b32 v1, 4, v1
    v_lshrrev_b32 v60, 6, v0
    """)
    for i in range(8):
        a(f"s_add_u32 s{32+i}, s13, {i*12288}")
    a("v_readfirstlane_b32 s14, v60")
    st = Stamps(a, diag, 0, vtmp=(62, 63));
    a("s_waitcnt lgkmcnt(0)")
    st.setup(14); st.stamp()
    a.srd(16, 4, 2048)
    a.srd(20, 6, 1024 * 12288)
    a.srd(24, 8, 12288, WS_MOD)
    a("buffer_load_dwordx4 v[4:7], v1, s[16:19], 0 offen")
    for i in range(8):
        a(f"buffer_load_dwordx4 {R('v', 8+4*i)}, v3, s[20:23], s{32+i} offen {OPT['modnt']}")
    a("s_waitcnt vmcnt(8)")
    for j in range(4):
        unpack(a, 40 + 2*j, 41 + 2*j, 4 + j)
    for j in range(8):
        a(f"v_mul_f32 v{48+j}, {f2u(-LOG2E)}, v{40+j}")
    for j in range(8):
        a(f"v_exp_f32 v{48+j}, v{48+j}")
    for j in range(8):
        a(f"v_add_f32 v{48+j}, 1.0, v{48+j}")
    for j in range(8):
        a(f"v_rcp_f32 v{48+j}, v{48+j}")
    for j in range(8):
        a(f"v_mul_f32 v{40+j}, v{40+j}, v{48+j}")
    for j in range(4):
        bf16_round(a, 40 + 2*j, 41 + 2*j, 40 + 2*j, 41 + 2*j, 56)
    for i in range(8):
        a(f"s_waitcnt vmcnt({7-i})")
        for j in range(4):
            unpack(a, 56, 57, 8 + 4*i + j)
            if i == 0:
                a(f"v_mul_f32 v{48+2*j}, v40, v56\nv_mul_f32 v{49+2*j}, v40, v57")
            else:
                a(f"v_fmac_f32 v{48+2*j}, v{40+i}, v56\nv_fmac_f32 v{49+2*j}, v{40+i}, v57")
    a("s_nop 1")
    for sh in (8, 4):
        for j in range(8):
            a(f"v_add_f32_dpp v{48+j}, v{48+j}, v{48+j} row_ror:{sh} row_mask:0xf bank_mask:0xf")
    a("""
    v_lshrrev_b32 v1, 4, v0
    v_lshlrev_b32 v1, 7, v1
    v_lshl_add_u32 v1, v2, 5, v1
    v_and_b32 v3, 15, v0
    v_cmp_gt_u32 vcc, 4, v3
    s_and_saveexec_b64 s[28:29], vcc
    ds_write_b128 v1, v[48:51]
    ds_write_b128 v1, v[52:55] offset:16
    s_mov_b64 exec, s[28:29]
    s_waitcnt lgkmcnt(0)
    s_barrier
    """)
    l = a.label("w0")
    a(f"s_cmp_eq_u32 s14, 0\ns_cbranch_scc1 {l}")
    st.stamp(); st.flush(); st.n -= 1 if diag else 0
    a(f"s_endpgm\n{l}:")
    a("""
    v_and_b32 v1, 31, v0
    v_lshrrev_b32 v2, 5, v0
    v_lshlrev_b32 v2, 11, v2
    v_lshl_add_u32 v2, v1, 2, v2
    """)
    for i in range(0, 8, 2):
        a(f"ds_read2_b32 v[{8+i}:{9+i}], v2 offset0:{i*32} offset1:{i*32+32}")
    for i in range(8, 16):
        a(f"ds_read_b32 v{8+i}, v2 offset:{i*128}")
    a("s_waitcnt lgkmcnt(0)")
    for st_ in (8, 4, 2, 1):
        for i in range(st_):
            a(f"v_add_f32 v{8+i}, v{8+i}, v{8+i+st_}")
    a("""
    v_mov_b32 v9, v8
    s_nop 1
    v_permlane32_swap_b32 v8, v9
    s_nop 0
    v_add_f32 v8, v8, v9
    v_cvt_pk_bf16_f32 v8, v8, v8
    v_lshlrev_b32 v1, 1, v1
    buffer_store_short v8, v1, s[24:27], s13 offen
    """)
    st.stamp(); st.flush()
    a("s_endpgm")
    a.end_kernel(name, 64, sgpr=102 if diag else 48)

def ln_core(a, X, sc, sh, T, wave_sgpr, lds_off, vrow64):
    t0, t1, t2, t3 = T[0], T[1], T[2], T[3]
    a(f"v_add_f32 v{t0}, v{X[0]}, v{X[1]}\nv_add_f32 v{t1}, v{X[2]}, v{X[3]}")
    for i in range(4, 16, 2):
        a(f"v_add_f32 v{t0}, v{t0}, v{X[i]}\nv_add_f32 v{t1}, v{t1}, v{X[i+1]}")
    a(f"v_add_f32 v{t0}, v{t0}, v{t1}")
    allreduce8(a, [t0], [t2])
    a(f"v_mul_f32 v{t0}, {f2u(1/128)}, v{t0}")
    for i in range(16):
        a(f"v_sub_f32 v{t2}, v{X[i]}, v{t0}")
        a(f"v_mul_f32 v{t1}, v{t2}, v{t2}" if i == 0 else f"v_fmac_f32 v{t1}, v{t2}, v{t2}")
    allreduce8(a, [t1], [t2])
    assert t1 == t0 + 1 and t0 % 2 == 0
    a(f"s_lshl_b32 s40, s{wave_sgpr}, 3\nv_add_u32 v{t2}, s40, v{vrow64}")
    a(f"ds_write_b64 v{t2}, v[{t0}:{t1}]")
    a("s_waitcnt lgkmcnt(0)\ns_barrier")
    B = T[4]
    assert B % 2 == 0
    for i in range(4):
        a(f"ds_read_b128 {R('v', B+4*i)}, v{vrow64} offset:{16*i}")
    a("s_waitcnt lgkmcnt(0)")
    a(f"v_add_f32 v{t0}, v{B}, v{B+2}\nv_add_f32 v{t1}, v{B+1}, v{B+3}")
    for i in range(2, 8):
        a(f"v_add_f32 v{t0}, v{t0}, v{B+2*i}\nv_add_f32 v{t1}, v{t1}, v{B+2*i+1}")
    a(f"v_mul_f32 v{t0}, 0.125, v{t0}".replace("0.125", f2u(0.125)))
    for i in range(8):
        a(f"v_sub_f32 v{t2}, v{B+2*i}, v{t0}")
        a(f"v_mul_f32 v{t3}, v{t2}, v{t2}" if i == 0 else f"v_fmac_f32 v{t3}, v{t2}, v{t2}")
    a(f"v_fmac_f32 v{t1}, {f2u(128.0)}, v{t3}")
    a(f"v_mul_f32 v{t1}, {f2u(1/1024)}, v{t1}")
    bf16_round(a, t0, t1, t0, t1, t2)
    a(f"v_add_f32 v{t1}, {f2u(1e-5)}, v{t1}")
    a(f"v_cvt_pk_bf16_f32 v{t1}, v{t1}, v{t1}\nv_lshlrev_b32 v{t1}, 16, v{t1}")
    a(f"v_sqrt_f32 v{t1}, v{t1}\ns_nop 0")
    a(f"v_cvt_pk_bf16_f32 v{t1}, v{t1}, v{t1}\nv_lshlrev_b32 v{t1}, 16, v{t1}")
    a(f"v_rcp_f32 v{t1}, v{t1}")
    u0, u1 = B, B + 1
    for j in range(8):
        x0, x1 = X[2*j], X[2*j+1]
        a(f"v_sub_f32 v{x0}, v{x0}, v{t0}\nv_sub_f32 v{x1}, v{x1}, v{t0}")
        bf16_round(a, x0, x1, x0, x1, t2)
        a(f"v_mul_f32 v{x0}, v{x0}, v{t1}\nv_mul_f32 v{x1}, v{x1}, v{t1}")
        bf16_round(a, x0, x1, x0, x1, t2)
        unpack(a, u0, u1, sc[j])
        a(f"v_add_f32 v{u0}, 1.0, v{u0}\nv_add_f32 v{u1}, 1.0, v{u1}")
        bf16_round(a, u0, u1, u0, u1, t2)
        a(f"v_mul_f32 v{x0}, v{x0}, v{u0}\nv_mul_f32 v{x1}, v{x1}, v{u1}")
        bf16_round(a, x0, x1, x0, x1, t2)
        unpack(a, u0, u1, sh[j])
        a(f"v_add_f32 v{x0}, v{x0}, v{u0}\nv_add_f32 v{x1}, v{x1}, v{u1}")
        a(f"v_cvt_pk_bf16_f32 v{sh[j]}, v{x0}, v{x1}")

def row_prologue(a):
    a("""
    v_lshrrev_b32 v4, 6, v0
    v_and_b32 v1, 7, v0
    v_readfirstlane_b32 s14, v4
    v_bfe_u32 v2, v0, 3, 3
    v_lshl_add_u32 v2, v4, 4, v2
    v_lshlrev_b32 v2, 4, v2
    """)

def k_ln1(a, name, diag=False):
    a.begin_kernel(name)
    guard(a, 256)
    a(f"s_load_dwordx2 s[4:5], s[0:1], {KA['x']}")
    a(f"s_load_dwordx2 s[8:9], s[0:1], {KA['ws']}")
    row_prologue(a)
    a("""
    v_lshl_add_u32 v3, v1, 11, v2
    s_lshl_b32 s13, s2, 14
    v_lshlrev_b32 v5, 6, v1
    """)
    st = Stamps(a, diag, 1, vtmp=(70, 71))
    a("s_waitcnt lgkmcnt(0)")
    st.setup(14); st.stamp()
    a.srd(16, 4, 2048 * 2048)
    a.srd(20, 8, 12288, WS_MOD)
    a.srd(24, 8, 4 << 20, WS_H)
    a("buffer_load_dwordx4 v[8:11], v3, s[16:19], s13 offen")
    a("buffer_load_dwordx4 v[12:15], v3, s[16:19], s13 offen offset:128")
    a("buffer_load_dwordx4 v[16:19], v2, s[20:23], 0 offen")
    a("buffer_load_dwordx4 v[20:23], v2, s[20:23], 0 offen offset:128")
    a("buffer_load_dwordx4 v[24:27], v2, s[20:23], 0 offen offset:2048")
    a("buffer_load_dwordx4 v[28:31], v2, s[20:23], 0 offen offset:2176")
    a("""
    v_lshlrev_b32 v6, 4, v2
    v_lshl_add_u32 v6, v1, 4, v6
    s_lshr_b32 s15, s2, 1
    s_lshl_b32 s15, s15, 15
    s_and_b32 s12, s2, 1
    s_lshl_b32 s12, s12, 7
    s_add_u32 s15, s15, s12
    s_waitcnt vmcnt(4)
    """)
    X = list(range(32, 48))
    for j in range(8):
        unpack(a, X[2*j], X[2*j+1], 8 + j)
    a("s_waitcnt vmcnt(0)")
    ln_core(a, X, list(range(24, 32)), list(range(16, 24)), [48, 49, 50, 51, 52], 14, 0, 5)
    a("buffer_store_dwordx4 v[16:19], v6, s[24:27], s15 offen " + OPT["wt"])
    a("buffer_store_dwordx4 v[20:23], v6, s[24:27], s15 offen offset:2048 " + OPT["wt"])
    st.stamp(); st.flush()
    a("s_endpgm")
    a.end_kernel(name, 72, sgpr=102 if diag else 48)

def k_ln2(a, name, nsplit=4, diag=False):
    a.begin_kernel(name)
    guard(a, 256)
    a(f"s_load_dwordx2 s[4:5], s[0:1], {KA['x']}")
    a(f"s_load_dwordx2 s[6:7], s[0:1], {KA['wr']}")
    a(f"s_load_dwordx2 s[8:9], s[0:1], {KA['ws']}")
    a(f"s_load_dwordx2 s[10:11], s[0:1], {KA['out']}")
    row_prologue(a)
    a("""
    v_lshl_add_u32 v3, v1, 11, v2
    s_lshl_b32 s13, s2, 14
    v_lshlrev_b32 v5, 6, v1
    v_lshlrev_b32 v6, 4, v2
    v_lshl_add_u32 v6, v1, 4, v6
    s_lshr_b32 s15, s2, 1
    s_lshl_b32 s15, s15, 15
    s_and_b32 s12, s2, 1
    s_lshl_b32 s12, s12, 7
    s_add_u32 s15, s15, s12
    """)
    st = Stamps(a, diag, 4, vtmp=(126, 127))
    a("s_waitcnt lgkmcnt(0)")
    st.setup(14); st.stamp()
    a.srd(16, 4, 2048 * 2048)
    a.srd(20, 8, 12288, WS_MOD)
    a.srd(24, 8, nsplit << 22, WS_P)
    a.srd(28, 6, 2048)
    a.srd(32, 10, 2048 * 2048)
    a.srd(36, 8, 16 << 20, 0)
    PB = 72
    for s in range(nsplit):
        if s: a(f"s_add_u32 s15, s15, {1 << 22}")
        a(f"buffer_load_dwordx4 {R('v', PB+8*s)}, v6, s[24:27], s15 offen")
        a(f"buffer_load_dwordx4 {R('v', PB+8*s+4)}, v6, s[24:27], s15 offen offset:2048")
    a("buffer_load_dwordx4 v[8:11], v3, s[16:19], s13 offen")
    a("buffer_load_dwordx4 v[12:15], v3, s[16:19], s13 offen offset:128")
    a("s_movk_i32 s41, 4096\ns_movk_i32 s42, 8192")
    GA, SB, CB, GB, WR = 104, 16, 24, 112, 120 - 64
    def ld(dst, soff, off):
        a(f"buffer_load_dwordx4 {R('v', dst)}, v2, s[20:23], {soff} offen offset:{off}")
        a(f"buffer_load_dwordx4 {R('v', dst+4)}, v2, s[20:23], {soff} offen offset:{off+128}")
    ld(GA, "s41", 0); ld(SB, "s41", 2048); ld(CB, "s42", 0); ld(GB, "s42", 2048)
    X = list(range(32, 48))
    a(f"s_waitcnt vmcnt({2*nsplit - 2 + 10})")
    for j in range(8):
        unpack(a, X[2*j], X[2*j+1], PB + j)
    for s in range(1, nsplit):
        a(f"s_waitcnt vmcnt({2*(nsplit-1-s) + 10})")
        for j in range(8):
            unpack(a, 48, 49, PB + 8*s + j)
            a(f"v_add_f32 v{X[2*j]}, v{X[2*j]}, v48\nv_add_f32 v{X[2*j+1]}, v{X[2*j+1]}, v49")
    WR = PB + 8
    a(f"buffer_load_dwordx4 {R('v', WR)}, v2, s[28:31], 0 offen")
    a(f"buffer_load_dwordx4 {R('v', WR+4)}, v2, s[28:31], 0 offen offset:128")
    a("s_waitcnt vmcnt(8)")
    X1P = PB
    for j in range(8):
        x0, x1 = X[2*j], X[2*j+1]
        bf16_round(a, x0, x1, x0, x1, 50)
        unpack(a, 48, 49, GA + j)
        a(f"v_mul_f32 v{x0}, v{x0}, v48\nv_mul_f32 v{x1}, v{x1}, v49")
        bf16_round(a, x0, x1, x0, x1, 50)
        unpack(a, 48, 49, 8 + j)
        a(f"v_add_f32 v{x0}, v{x0}, v48\nv_add_f32 v{x1}, v{x1}, v49")
        a(f"v_cvt_pk_bf16_f32 v{X1P+j}, v{x0}, v{x1}")
        unpack(a, x0, x1, X1P + j)
    a(f"s_add_u32 s43, s13, {WS_X1}\ns_add_u32 s44, s13, {WS_H2}")
    a(f"buffer_store_dwordx4 {R('v', X1P)}, v3, s[36:39], s43 offen " + OPT["wt"])
    a(f"buffer_store_dwordx4 {R('v', X1P+4)}, v3, s[36:39], s43 offen offset:128 " + OPT["wt"])
    a("s_waitcnt vmcnt(2)")
    ln_core(a, X, list(range(CB, CB + 8)), list(range(SB, SB + 8)), [48, 49, 50, 51, 52], 14, 0, 5)
    a(f"buffer_store_dwordx4 {R('v', SB)}, v3, s[36:39], s44 offen " + OPT["wt"])
    a(f"buffer_store_dwordx4 {R('v', SB+4)}, v3, s[36:39], s44 offen offset:128 " + OPT["wt"])
    for j in range(8):
        x0, x1 = X[2*j], X[2*j+1]
        unpack(a, x0, x1, SB + j)
        unpack(a, 48, 49, WR + j)
        a(f"v_mul_f32 v52, v{x0}, v48\nv_mul_f32 v53, v{x1}, v49" if j == 0 else f"v_fmac_f32 v52, v{x0}, v48\nv_fmac_f32 v53, v{x1}, v49")
        unpack(a, 48, 49, GB + j)
        a(f"v_mul_f32 v{x0}, v{x0}, v48\nv_mul_f32 v{x1}, v{x1}, v49")
        bf16_round(a, x0, x1, x0, x1, 50)
        unpack(a, 48, 49, X1P + j)
        a(f"v_add_f32 v{x0}, v{x0}, v48\nv_add_f32 v{x1}, v{x1}, v49")
        a(f"v_cvt_pk_bf16_f32 v{GB+j}, v{x0}, v{x1}")
    a(f"buffer_store_dwordx4 {R('v', GB)}, v3, s[32:35], s13 offen " + OPT["wt"])
    a(f"buffer_store_dwordx4 {R('v', GB+4)}, v3, s[32:35], s13 offen offset:128 " + OPT["wt"])
    a("v_add_f32 v52, v52, v53")
    allreduce8(a, [52], [53])
    a("""
    s_lshl_b32 s40, s14, 2
    v_lshlrev_b32 v53, 5, v1
    v_add_u32 v54, s40, v53
    ds_write_b32 v54, v52 offset:512
    s_waitcnt lgkmcnt(0)
    s_barrier
    """)
    l = a.label("w0")
    a(f"s_cmp_eq_u32 s14, 0\ns_cbranch_scc1 {l}")
    st.stamp(); st.flush(); st.n -= 1 if diag else 0
    a(f"s_endpgm\n{l}:")
    a(f"""
    ds_read_b128 v[56:59], v53 offset:512
    ds_read_b128 v[60:63], v53 offset:528
    s_lshl_b32 s40, s2, 3
    v_add_u32 v54, s40, v1
    v_sub_u32 v55, 2047, v54
    v_lshlrev_b32 v54, 2, v54
    s_waitcnt lgkmcnt(0)
    v_add_f32 v56, v56, v57
    v_add_f32 v58, v58, v59
    v_add_f32 v60, v60, v61
    v_add_f32 v62, v62, v63
    v_add_f32 v56, v56, v58
    v_add_f32 v60, v60, v62
    v_add_f32 v56, v56, v60
    v_cvt_pk_bf16_f32 v56, v56, v56
    v_ashrrev_i32 v57, 31, v56
    v_or_b32 v57, 0x80000000, v57
    v_xor_b32 v56, v56, v57
    v_and_b32 v56, 0xffff0000, v56
    v_or_b32 v56, v56, v55
    s_mov_b32 s40, {WS_KEYS}
    buffer_store_dword v56, v54, s[36:39], s40 offen
    """)
    st.stamp(); st.flush()
    a("s_endpgm")
    a.end_kernel(name, 128, sgpr=102 if diag else 48)

def top2_scan(a, srd, K0, lane16):
    m1, m2, t, u = K0, K0 + 1, K0 + 2, K0 + 3
    a(f"v_max_u32 v4, v{K0}, v{K0+1}\nv_min_u32 v5, v{K0}, v{K0+1}")
    for i in range(2, 32):
        a(f"v_med3_u32 v5, v4, v5, v{K0+i}\nv_max_u32 v4, v4, v{K0+i}")
    for sh in (8, 4, 2, 1):
        a("s_nop 1")
        a(f"v_min_u32_dpp v6, v4, v4 row_ror:{sh} row_mask:0xf bank_mask:0xf")
        a(f"v_max_u32_dpp v7, v5, v5 row_ror:{sh} row_mask:0xf bank_mask:0xf")
        a(f"v_max_u32_dpp v4, v4, v4 row_ror:{sh} row_mask:0xf bank_mask:0xf")
        a(f"v_max_u32 v5, v6, v7")
    a("s_nop 1")
    a("v_readlane_b32 s50, v4, 0\nv_readlane_b32 s51, v5, 0")
    for ln in (16, 32, 48):
        a(f"v_readlane_b32 s52, v4, {ln}\nv_readlane_b32 s53, v5, {ln}\ns_nop 3")
        a("s_min_u32 s54, s50, s52\ns_max_u32 s51, s51, s53\ns_max_u32 s50, s50, s52\ns_max_u32 s51, s51, s54")

def k_moe(a, name, diag=False):
    a.begin_kernel(name)
    guard(a, 224)
    a(f"s_load_dwordx4 s[4:7], s[0:1], {KA['wg']}")
    a(f"s_load_dwordx2 s[8:9], s[0:1], {KA['wd']}")
    a(f"s_load_dwordx2 s[10:11], s[0:1], {KA['ws']}")
    a("""
    v_lshrrev_b32 v4, 6, v0
    v_and_b32 v1, 63, v0
    v_readfirstlane_b32 s14, v4
    s_and_b32 s12, s2, 7
    s_lshr_b32 s13, s2, 3
    s_lshr_b32 s15, s13, 2
    s_lshl_b32 s15, s15, 5
    s_lshl_b32 s12, s12, 2
    s_add_u32 s15, s15, s12
    s_and_b32 s13, s13, 3
    s_add_u32 s15, s15, s13
    v_lshlrev_b32 v2, 4, v1
    v_lshrrev_b32 v3, 1, v1
    v_mul_u32_u24 v3, 7168, v3
    v_and_b32 v5, 1, v1
    v_lshl_add_u32 v3, v5, 4, v3
    v_lshrrev_b32 v6, 5, v1
    v_and_b32 v7, 31, v1
    v_lshlrev_b32 v7, 4, v7
    v_lshl_add_u32 v8, v6, 11, v7
    """)
    st = Stamps(a, diag, 5, vtmp=(126, 127))
    a("s_waitcnt lgkmcnt(0)")
    st.setup(14); st.stamp()
    a.srd(16, 4, 1024 * 7168)
    a.srd(20, 6, 1024 * 7168)
    a.srd(24, 8, 3584 * 2048)
    a.srd(28, 10, 16 << 20, 0)
    a(f"s_mov_b32 s40, {WS_KEYS}\ns_mov_b32 s41, {WS_KEYS + 4096}")
    for i in range(8):
        a(f"buffer_load_dwordx4 {R('v', 16+4*i)}, v2, s[28:31], s{40 + i//4} offen offset:{(i%4)*1024}")
    a(f"s_mul_i32 s42, s14, 24576\ns_mul_i32 s43, s14, {256*7168}\ns_lshl_b32 s44, s15, 5\ns_add_u32 s43, s43, s44")
    for p in range(8):
        for m in range(2):
            a(f"s_add_u32 m0, s42, {m*8192 + p*1024}\ns_nop 0")
            a(f"buffer_load_dwordx4 v3, s[{16+4*m}:{19+4*m}], s43 offen lds")
        if p < 7: a(f"s_add_u32 s43, s43, {32*7168}")
    a("s_lshl_b32 s43, s15, 15\ns_lshl_b32 s44, s14, 9\ns_add_u32 s43, s43, s44")
    for p in range(8):
        a(f"s_add_u32 m0, s42, {16384 + p*1024}\ns_nop 0")
        a(f"buffer_load_dwordx4 v8, s[24:27], s43 offen lds")
        if p < 7: a(f"s_add_u32 s43, s43, 4096")
    a("s_waitcnt vmcnt(24)")
    top2_scan(a, 28, 16, 2)
    a(f"""
    s_and_b32 s52, s50, 0xffff
    s_and_b32 s53, s51, 0xffff
    s_sub_u32 s52, 2047, s52
    s_sub_u32 s53, 2047, s53
    s_lshl_b32 s52, s52, 11
    s_lshl_b32 s53, s53, 11
    v_and_b32 v5, 1, v1
    v_cmp_eq_u32 vcc, 1, v5
    v_mov_b32 v6, s52
    v_mov_b32 v7, s53
    v_cndmask_b32 v6, v6, v7, vcc
    v_and_b32 v7, 48, v1
    v_add_u32 v6, v6, v7
    s_lshl_b32 s44, s14, 9
    s_add_u32 s44, s44, {WS_H2}
    """)
    for ks in range(8):
        a(f"buffer_load_dwordx4 {R('v', 16+4*ks)}, v6, s[28:31], s44 offen offset:{ks*64}")
    l = a.label("nopub")
    a(f"s_or_b32 s45, s2, s14\ns_cmp_eq_u32 s45, 0\ns_cbranch_scc0 {l}")
    a(f"v_mov_b32 v10, s50\nv_mov_b32 v11, s51\nv_mov_b32 v9, 0\ns_mov_b32 s45, {WS_KEYS + 8192}\nbuffer_store_dwordx2 v[10:11], v9, s[28:31], s45 offen\ns_waitcnt vmcnt(0)")
    a(f"{l}:")
    a("""
    v_lshrrev_b32 v5, 4, v1
    v_lshlrev_b32 v5, 8, v5
    v_and_b32 v7, 15, v1
    v_lshl_add_u32 v5, v7, 3, v5
    v_add_u32 v5, s42, v5
    s_waitcnt vmcnt(16)
    """)
    for half in range(2):
        for ks in range(4 * half, 4 * half + 4):
            for m in range(2):
                for jj in range(2):
                    d = 48 + 8 * (ks % 4) + 4 * m + 2 * jj
                    a(f"ds_read_b64_tr_b16 v[{d}:{d+1}], v5 offset:{m*8192 + ks*1024 + jj*128}")
            if ks % 4 == 2:
                a("s_waitcnt lgkmcnt(8)")
        a("s_waitcnt vmcnt(0) lgkmcnt(0)")
        for ks in range(4 * half, 4 * half + 4):
            for m in range(2):
                c = "0" if ks == 0 else R('v', 80 + 4*m)
                a(f"v_mfma_f32_16x16x32_bf16 {R('v', 80+4*m)}, {R('v', 48 + 8*(ks%4) + 4*m)}, {R('v', 16+4*ks)}, {c}")
    a("s_lshl_b32 s45, s14, 11\nv_add_u32 v9, s45, v2\nv_add_u32 v9, 98304, v9\nv_add_u32 v10, 98304, v2\ns_nop 7")
    a("ds_write_b128 v9, v[80:83]\nds_write_b128 v9, v[84:87] offset:1024")
    a("""
    v_lshrrev_b32 v5, 2, v1
    v_lshlrev_b32 v5, 9, v5
    v_and_b32 v7, 3, v1
    v_lshl_add_u32 v5, v7, 3, v5
    v_add_u32 v5, s42, v5
    """)
    for nb in range(16):
        if nb == 12: a("s_waitcnt lgkmcnt(4)")
        a(f"ds_read_b64_tr_b16 v[{16+2*nb}:{17+2*nb}], v5 offset:{16384 + nb*32}")
    a("s_waitcnt lgkmcnt(0)\ns_barrier")
    for w in range(4):
        a(f"ds_read_b128 {R('v', 48+8*w)}, v10 offset:{w*2048}\nds_read_b128 {R('v', 52+8*w)}, v10 offset:{w*2048+1024}")
    a("s_waitcnt lgkmcnt(0)")
    for i in range(8):
        a(f"v_add_f32 v{48+i}, v{48+i}, v{56+i}\nv_add_f32 v{64+i}, v{64+i}, v{72+i}")
    for i in range(8):
        a(f"v_add_f32 v{48+i}, v{48+i}, v{64+i}")
    for j in range(4):
        bf16_round(a, 48 + 2*j, 49 + 2*j, 48 + 2*j, 49 + 2*j, 56)
    for i in range(4): a(f"v_mul_f32 v{56+i}, {f2u(-LOG2E)}, v{48+i}")
    for i in range(4): a(f"v_exp_f32 v{56+i}, v{56+i}")
    for i in range(4): a(f"v_add_f32 v{56+i}, 1.0, v{56+i}")
    for i in range(4): a(f"v_rcp_f32 v{56+i}, v{56+i}")
    for i in range(4): a(f"v_mul_f32 v{48+i}, v{48+i}, v{56+i}")
    for j in range(2):
        bf16_round(a, 48 + 2*j, 49 + 2*j, 48 + 2*j, 49 + 2*j, 56)
    for i in range(4): a(f"v_mul_f32 v{48+i}, v{48+i}, v{52+i}")
    a("v_cvt_pk_bf16_f32 v56, v48, v49\nv_cvt_pk_bf16_f32 v57, v50, v51")
    a("v_bfe_u32 v7, v1, 1, 3")
    for j in range(8):
        a(f"v_cmp_eq_u32 vcc, {j}, v7\ns_nop 1\nv_cndmask_b32 v{60+2*j}, 0, v56, vcc\nv_cndmask_b32 v{61+2*j}, 0, v57, vcc")
    a("s_nop 1")
    for h in range(2):
        for j in range(8):
            nb = 8 * h + j
            c = "0" if j == 0 else R('v', 80 + 4*h)
            a(f"v_mfma_f32_16x16x16_bf16 {R('v', 80+4*h)}, v[{16+2*nb}:{17+2*nb}], v[{60+2*j}:{61+2*j}], {c}")
    a(f"""
    v_and_b32 v5, 1, v1
    v_lshlrev_b32 v5, 12, v5
    v_lshl_add_u32 v5, v7, 6, v5
    v_and_b32 v6, 48, v1
    v_add_u32 v5, v5, v6
    s_lshl_b32 s45, s15, 13
    s_lshl_b32 s44, s14, 10
    s_add_u32 s45, s45, s44
    s_add_u32 s45, s45, {WS_YP}
    s_nop 1
    buffer_store_dwordx4 v[80:83], v5, s[28:31], s45 offen {OPT['wt']}
    buffer_store_dwordx4 v[84:87], v5, s[28:31], s45 offen offset:512 {OPT['wt']}
    """)
    st.stamp(); st.flush()
    a("s_endpgm")
    a.end_kernel(name, 128, sgpr=102 if diag else 64)

def k_fin(a, name, diag=False):
    a.begin_kernel(name)
    guard(a, 64)
    a(f"s_load_dwordx2 s[8:9], s[0:1], {KA['out']}")
    a(f"s_load_dwordx2 s[10:11], s[0:1], {KA['ws']}")
    a("""
    v_lshrrev_b32 v4, 6, v0
    v_and_b32 v1, 7, v0
    v_readfirstlane_b32 s14, v4
    v_lshrrev_b32 v2, 3, v0
    v_lshlrev_b32 v2, 13, v2
    v_lshl_add_u32 v2, v1, 4, v2
    """)
    st = Stamps(a, diag, 6, vtmp=(62, 63))
    a("s_waitcnt lgkmcnt(0)")
    st.setup(14); st.stamp()
    a(f"s_load_dwordx2 s[50:51], s[10:11], {WS_KEYS + 8192}")
    a.srd(28, 10, 16 << 20, 0)
    a.srd(32, 8, 2048 * 2048)
    a(f"s_lshl_b32 s40, s2, 7\ns_add_u32 s40, s40, {WS_YP}")
    for i in range(7):
        a(f"buffer_load_dwordx4 {R('v', 8+4*i)}, v2, s[28:31], s40 offen")
        if i < 6: a(f"s_add_u32 s40, s40, {32*8192}")
    a(f"""
    s_waitcnt lgkmcnt(0)
    s_cmp_lt_u32 s2, 32
    s_cselect_b32 s50, s50, s51
    s_and_b32 s52, s50, 0xffff
    s_sub_u32 s52, 2047, s52
    s_and_b32 s52, s52, 2047
    s_lshl_b32 s52, s52, 11
    s_and_b32 s53, s2, 31
    s_lshl_b32 s53, s53, 6
    s_add_u32 s52, s52, s53
    s_add_u32 s54, s52, {WS_H2}
    s_add_u32 s55, s52, {WS_X1}
    s_add_u32 s53, s53, {WS_MOD + 10240}
    v_lshlrev_b32 v3, 3, v1
    buffer_load_dwordx2 v[40:41], v3, s[28:31], s54 offen
    buffer_load_dwordx2 v[42:43], v3, s[28:31], s55 offen
    buffer_load_dwordx2 v[44:45], v3, s[28:31], s53 offen
    """)
    for i in range(1, 7):
        a(f"s_waitcnt vmcnt({6 - i + 3})")
        for j in range(4):
            a(f"v_add_f32 v{8+j}, v{8+j}, v{8+4*i+j}")
    allreduce8(a, [8, 9, 10, 11], [12, 13, 14, 15])
    a("""
    s_lshl_b32 s40, s14, 7
    v_lshlrev_b32 v5, 4, v1
    v_add_u32 v6, s40, v5
    ds_write_b128 v6, v[8:11]
    s_waitcnt lgkmcnt(0)
    s_barrier
    """)
    l = a.label("w0")
    a(f"s_cmp_eq_u32 s14, 0\ns_cbranch_scc1 {l}")
    st.stamp(); st.flush(); st.n -= 1 if diag else 0
    a(f"s_endpgm\n{l}:")
    for w in range(4):
        a(f"ds_read_b128 {R('v', 8+4*w)}, v5 offset:{128*w}")
    a(f"""
    s_and_b32 s56, s50, 0xffff0000
    s_ashr_i32 s57, s56, 31
    s_not_b32 s57, s57
    s_or_b32 s57, s57, 0x80000000
    s_xor_b32 s56, s56, s57
    s_and_b32 s56, s56, 0xffff0000
    v_mov_b32 v30, s56
    v_mul_f32 v30, {f2u(-LOG2E)}, v30
    v_exp_f32 v30, v30
    s_nop 0
    v_add_f32 v30, 1.0, v30
    v_rcp_f32 v30, v30
    s_nop 0
    v_cvt_pk_bf16_f32 v30, v30, v30
    v_lshlrev_b32 v30, 16, v30
    s_waitcnt vmcnt(0) lgkmcnt(0)
    """)
    for j in range(4):
        a(f"v_add_f32 v{8+j}, v{8+j}, v{12+j}\nv_add_f32 v{16+j}, v{16+j}, v{20+j}")
    for j in range(4):
        a(f"v_add_f32 v{8+j}, v{8+j}, v{16+j}")
    for j in range(2):
        x0, x1 = 8 + 2*j, 9 + 2*j
        bf16_round(a, x0, x1, x0, x1, 31)
        a(f"v_mul_f32 v{x0}, v{x0}, v30\nv_mul_f32 v{x1}, v{x1}, v30")
        bf16_round(a, x0, x1, x0, x1, 31)
        unpack(a, 32, 33, 40 + j)
        a(f"v_add_f32 v{x0}, v{x0}, v32\nv_add_f32 v{x1}, v{x1}, v33")
        bf16_round(a, x0, x1, x0, x1, 31)
        unpack(a, 32, 33, 44 + j)
        a(f"v_mul_f32 v{x0}, v{x0}, v32\nv_mul_f32 v{x1}, v{x1}, v33")
        bf16_round(a, x0, x1, x0, x1, 31)
        unpack(a, 32, 33, 42 + j)
        a(f"v_add_f32 v{x0}, v{x0}, v32\nv_add_f32 v{x1}, v{x1}, v33")
        a(f"v_cvt_pk_bf16_f32 v{34+j}, v{x0}, v{x1}")
    a("buffer_store_dwordx2 v[34:35], v3, s[32:35], s52 offen")
    st.stamp(); st.flush()
    a("s_endpgm")
    a.end_kernel(name, 64, sgpr=102 if diag else 64)
```

```python
from gen_common import *

PIECE = 1056
TILE = 16 * PIECE
KRING = 0
VRING = 4 * TILE
LDS_FLAG = 8 * TILE
LDS_TOTAL = 8 * TILE + 64

OPT = dict(olay=0, fuse3=0, amap=0, clr=0, wt="", pf=0, wqnt="", kvnt="")
S_PF = 48
sPF, vPF, vDUM = 64, 229, 230

def mf(d, A, B, c=None):
    return f"v_mfma_f32_16x16x32_bf16 {d}, {A}, {B}, {c if c is not None else d}"

def emit(a, mfmas, gaps):
    for g, m in enumerate(mfmas):
        a(m)
        for s in gaps.get(g, []):
            a(s)

S_W, S_B = 12, 16
S_K, S_V, S_O = 4, 8, 20
sWAVE, sKOFF, sVOFF, sWOFF, sBOFF, sCNT, sMW, sWP = 24, 25, 26, 27, 28, 29, 30, 31
vLANE16, vWOFF, vKV, vA, vKADDR, vBOFF = 1, 2, 3, 4, 5, 6
ACC = 16
AFR = [("v", 144 + 4*i) for i in range(4)]
BRING = [("a", 144 + 4*i) for i in range(28)] + [("v", 160 + 4*i) for i in range(4)]

class Gemm:
    def __init__(self, a, wstride, bq):
        self.a, self.ws, self.bq = a, wstride, bq
        self.fl = OPT["wqnt"] if wstride == 8192 else ""
    def acc(self, nb, qb): return R("v", ACC + 4 * (qb * 8 + nb))
    def bfrag(self, c, qb, ks):
        f, i = BRING[(c % 4) * 8 + qb * 2 + ks]; return R(f, i)
    def afrag(self, nb, ks):
        f, i = AFR[(nb % 2) * 2 + ks]; return f, i
    def a_reads(self, c, nb):
        out = []
        for ks in range(2):
            f, i = self.afrag(nb, ks)
            for jj in range(2):
                out.append(f"ds_read_b64_tr_b16 {R(f, i + 2*jj, 2)}, v{vA} offset:{(c % 4)*TILE + (2*ks + jj)*256 + nb*32}")
        return out
    def dma_pre(self, c, p):
        out = [f"s_add_u32 m0, s{sMW}, {VRING + (c % 4)*TILE + p*PIECE}"]
        return out
    def dma(self, c, p):
        return f"buffer_load_dwordx4 v{vWOFF}, s[{S_W}:{S_W+3}], s{sWOFF} offen {self.fl} lds"
    def dma_post(self, p):
        return f"s_add_u32 s{sWOFF}, s{sWOFF}, {self.ws if p < 3 else 61*self.ws}"
    def bload(self, c, i):
        qb, ks = i // 2, i % 2
        return f"buffer_load_dwordx4 {self.bfrag(c, qb, ks)}, v{vBOFF+qb}, s[{S_B}:{S_B+3}], s{sBOFF} offen offset:{ks*1024}"
    def prologue(self):
        a = self.a
        for c in range(4):
            for p in range(4 if c < 3 else 1):
                a(self.dma_pre(c, p)[0]); a("s_nop 0"); a(self.dma(c, p)); a(self.dma_post(p))
            if c < 3:
                for i in range(8): a(self.bload(c, i))
                a(f"s_add_u32 s{sBOFF}, s{sBOFF}, 2048")
    def start(self):
        a = self.a
        a("s_waitcnt vmcnt(25)\ns_barrier")
        for s in self.a_reads(0, 0): a(s)
        a("s_waitcnt lgkmcnt(0)")
    def chunk(self, c, first=False, vm=None, bar_wait="vmcnt(23)", last=False):
        a = self.a
        for nb in range(8):
            ms = []
            for qb in range(4):
                for ks in ((0, 1) if qb % 2 == 0 else (1, 0)):
                    f, i = self.afrag(nb, ks)
                    z = "0" if (first and len(ms) % 2 == 0) else None
                    ms.append(mf(self.acc(nb, qb), R(f, i), self.bfrag(c, qb, ks), z))
            gaps = {g: [] for g in range(8)}
            if not (last and nb == 7):
                rd = self.a_reads(c, nb + 1) if nb < 7 else self.a_reads(c + 1, 0)
                gaps[0] += rd[0:2]; gaps[1] += rd[2:4]
            if vm is None:
                ops = [(None, self.bload(c + 3, nb), f"s_add_u32 s{sBOFF}, s{sBOFF}, 2048" if nb == 7 else None)]
                if nb % 2 == 1:
                    cc, p = (c + 4, 0) if nb == 7 else (c + 3, (nb + 1) // 2)
                    ops.append((self.dma_pre(cc, p)[0], self.dma(cc, p), self.dma_post(p)))
            else:
                ops = vm.get(nb, [])
            for k, (pre, ins, post) in enumerate(ops):
                g = 3 + 2 * k
                if pre: gaps[g - 1].insert(0, pre)
                gaps[g].append(ins)
                if post: gaps[g + 1].append(post)
            if nb == 6 and bar_wait:
                gaps[7] += [f"s_waitcnt {bar_wait} lgkmcnt(0)", "s_barrier"]
            elif not (last and nb == 7):
                gaps[7].append("s_waitcnt lgkmcnt(0)")
            emit(a, ms, gaps)

def pack_pairs(a, dst, src, scale_pair=None):
    if scale_pair is not None:
        for i in range(0, 8, 2):
            a(f"v_pk_mul_f32 v[{src+i}:{src+i+1}], v[{src+i}:{src+i+1}], {scale_pair}")
    for i in range(4):
        a(f"v_cvt_pk_bf16_f32 v{dst+i}, v{src+2*i}, v{src+2*i+1}")

def shuffle(a, regs):
    a("s_nop 1")
    for sw in ("v_permlane32_swap_b32", "v_permlane16_swap_b32"):
        for d in regs:
            a(f"{sw} v{d}, v{d+2}\n{sw} v{d+1}, v{d+3}")
        if len(regs) < 2: a("s_nop 1")

def common_setup(a):
    a(f"""
    v_lshrrev_b32 v10, 6, v0
    v_and_b32 v11, 63, v0
    v_readfirstlane_b32 s{sWAVE}, v10
    v_lshlrev_b32 v{vLANE16}, 4, v11
    v_lshrrev_b32 v12, 4, v11
    v_and_b32 v13, 15, v11
    v_lshrrev_b32 v14, 2, v11
    v_mul_u32_u24 v{vA}, {PIECE}, v14
    v_and_b32 v14, 3, v11
    v_lshl_add_u32 v{vA}, v14, 3, v{vA}
    v_add_u32 v{vA}, {VRING}, v{vA}
    s_mul_i32 s{sMW}, s{sWAVE}, {4*PIECE}
    """)

QF = 16
SB_ = 80
MB = 96
PB_ = 112
KF = 176
VF = 208
ONES, IDX = 224, 228
OACC, LACC = 0, 128

class Attn:
    def __init__(self, a, safe):
        self.a, self.safe = a, safe
        self.pf = OPT["pf"] and not safe
        self.wpre = None
        if OPT["fuse3"]:
            import gen_op2 as O2
            o = O2.Op2(a)
            self.wpre = [o.dma(c, p) for c in range(4) for p in range(4)]
    def pfload(self, T):
        return f"buffer_load_dword v{vDUM + T % 4}, v{vPF}, s[{S_PF + 4*(T % 4)}:{S_PF + 4*(T % 4) + 3}], s{sPF} offen"
    def kread(self, T, kb, ds):
        return f"ds_read_b128 {R('v', KF + 16*(kb % 2) + 4*ds)}, v{vKADDR} offset:{(T % 4)*TILE + kb*256 + ds*64}"
    def vreads(self, T, db, ks):
        return [f"ds_read_b64_tr_b16 {R('v', VF + 8*(db % 2) + 4*ks + 2*jj, 2)}, v{vA} offset:{(T % 4)*TILE + (2*ks + jj)*256 + db*32}" for jj in range(2)]
    def dma(self, kind, T, p):
        ring, srd, so = (KRING, S_K, sKOFF) if kind == "K" else (VRING, S_V, sVOFF)
        return (f"s_add_u32 m0, s{sMW}, {ring + (T % 4)*TILE + 32*p}",
                f"buffer_load_dwordx4 v{vKV}, s[{srd}:{srd+3}], s{so} offen offset:{p*1024} {OPT['kvnt']} lds",
                f"s_add_u32 s{so}, s{so}, 16384" if p == 3 else None)
    def qk(self, kb, qb):
        order = (0, 1, 2, 3) if qb % 2 == 0 else (3, 2, 1, 0)
        d = R("v", SB_ + 4*qb)
        return [mf(d, R("v", KF + 16*(kb % 2) + 4*ds), R("v", QF + 16*qb + 4*ds),
                   (R("v", MB + 4*qb) if self.safe else "0") if n == 0 else None) for n, ds in enumerate(order)]
    def pv(self, T, db, qbs):
        out = []
        for qb in qbs:
            for ks in ((0, 1) if qb % 2 == 0 else (1, 0)):
                out.append(mf(R("a", OACC + 4*(qb*8 + db)), R("v", VF + 8*(db % 2) + 4*ks), R("v", PB_ + 32*(T % 2) + 8*qb + 4*ks)))
        return out
    def exp(self, blk, i):
        r_ = SB_ + 4*(blk % 4) + i
        return f"v_exp_f32 v{r_}, v{r_}"
    def cvt(self, X, blk, h):
        kb, qb = blk // 4, blk % 4
        return f"v_cvt_pk_bf16_f32 v{PB_ + 32*(X % 2) + 8*qb + 2*kb + h}, v{SB_ + 4*qb + 2*h}, v{SB_ + 4*qb + 2*h + 1}"
    def smf(self, T, qb):
        return f"v_smfmac_f32_16x16x64_bf16 {R('a', LACC + 4*qb)}, {R('v', ONES)}, {R('v', PB_ + 32*(T % 2) + 8*qb, 8)}, v{IDX}"
    def kread_at(self, T, s):
        n = s + 5
        X, kb, ds = T + 1 + n // 16, (n % 16) // 4, n % 4
        return X, kb, ds
    def dma_ops(self, T):
        ops = {}
        for s in range(1, 16, 2):
            n = (s - 11) // 2
            st = T + 3 if n >= 0 else T + 2
            n %= 8
            ops[s] = ("K", st + 1, n) if n < 4 else ("V", st, n - 4)
        return ops
    def iteration(self, T, do_qk=True, do_pv=True, dma=True, tail=None):
        a = self.a
        dmas = self.dma_ops(T) if dma else {}
        for s in range(16):
            kb, qb = s // 4, s % 4
            db = s // 2
            full = do_qk and do_pv
            ms = (self.qk(kb, qb) if do_qk else []) + (self.pv(T, db, (2*(s % 2), 2*(s % 2) + 1)) if do_pv else [])
            E, C = [], []
            if s >= 1:
                if do_qk: E = [self.exp(s - 1, i) for i in range(4)]
            elif do_pv: E = [self.exp(15, i) for i in range(4)]
            if s >= 2:
                if do_qk: C = [self.cvt(T + 1, s - 2, h) for h in range(2)]
            elif do_pv: C = [self.cvt(T, 14 + s, h) for h in range(2)]
            KR, VR = [], []
            X, kkb, ds = self.kread_at(T, s)
            if do_qk and X <= 31: KR = [self.kread(X, kkb, ds)]
            n = s + 2
            if n < 16:
                if do_pv: VR = self.vreads(T, n // 2, n % 2)
            elif do_qk: VR = self.vreads(T + 1, 0, n % 2)
            D = self.dma(*dmas[s]) if s in dmas else None
            gaps = {g: [] for g in range(9)}
            if full:
                gaps[0] = [E[0]]; gaps[2] = [E[1]]; gaps[4] = [E[2]]; gaps[6] = [E[3]]
                gaps[1] = C
                gaps[3] = (["s_waitcnt lgkmcnt(1)"] if s % 2 == 0 else []) + VR
                gaps[5] = KR
                last = 7
                if s % 4 == 3:
                    ms.append(self.smf(T, s // 4)); last = 8
                if D:
                    gaps[6].insert(0, D[0]); gaps[7].append(D[1])
                    if D[2]: gaps[last].append(D[2])
                if s % 4 == 3: gaps[last].append(f"s_waitcnt lgkmcnt({len(KR) + len(VR)})")
                if s == 10: gaps[last] += [f"s_waitcnt vmcnt({9 if self.pf else 8})", "s_barrier"]
                if s == 12 and self.pf: gaps[7].append(self.pfload(T))
                if s == 14 and self.pf and T % 4 == 3: gaps[7].append(f"s_add_u32 s{sPF}, s{sPF}, {1 << 20}")
                if s == 15 and tail: gaps[last] += tail
            elif do_qk:
                gaps[0] = VR
                gaps[1] = C
                if D:
                    gaps[1] = [D[0]] + gaps[1]; gaps[2] = [D[1]] + ([D[2]] if D[2] else [])
                gaps[3] = KR + (E if E else ["s_nop 3"])
                if s % 4 == 3: gaps[3].append(f"s_waitcnt lgkmcnt({len(KR) + len(VR)})")
                if s == 10: gaps[3] += [f"s_waitcnt vmcnt({36 if self.wpre and not self.safe else 8})", "s_barrier"]
                if s == 12 and self.pf: gaps[2] = [self.pfload(3)]
                if s == 15: gaps[3].append("s_nop 3")
            else:
                pre = E + C
                if s < 2: pre += ["s_nop 1"]
                if s % 2 == 0: pre += ["s_waitcnt lgkmcnt(0)"]
                if s == 0 and self.wpre: pre += ["s_barrier"]
                for x in pre: a(x)
                gaps[0] = VR
                if self.wpre:
                    op = self.wpre[s]
                    gaps[1] = [op[0]]; gaps[2] = [op[1]]; gaps[3] = [op[2]]
                if s % 4 == 3: ms.append(self.smf(T, s // 4))
            emit(a, ms, gaps)
    def body(self):
        a = self.a
        for s in range(11, 16):
            X, kb, ds = self.kread_at(-2, s)
            a(self.kread(X, kb, ds))
        a("s_waitcnt lgkmcnt(1)")
        d = self.dma_ops
        self.dma_ops = lambda T: {s: o for s, o in d(T).items() if s >= 11}
        self.iteration(-1, do_pv=False)
        self.dma_ops = d
        loop, done = a.label("attn"), a.label("attn_done")
        a(f"s_mov_b32 s{sCNT}, 0")
        a(".p2align 3")
        a(f"{loop}:")
        for T in range(4):
            tail = None
            if T == 2: tail = [f"s_cmp_eq_u32 s{sCNT}, 7", f"s_cbranch_scc1 {done}"]
            if T == 3: tail = [f"s_add_u32 s{sCNT}, s{sCNT}, 1", f"s_branch {loop}"]
            self.iteration(T, tail=tail)
        a(f"{done}:")
        self.iteration(31, do_qk=False, dma=False)

def attn_epilogue(a, check):
    a("s_nop 7")
    T = 80
    for qb in range(4):
        a(f"v_accvgpr_read_b32 v{T+2*qb}, a{LACC+4*qb}\nv_accvgpr_read_b32 v{T+2*qb+1}, a{LACC+4*qb+1}")
    for qb in range(4):
        a(f"v_add_f32 v{T+2*qb}, v{T+2*qb}, v{T+2*qb+1}")
    if check:
        a(f"s_mov_b32 s42, {f2u(2.0**-24)}\ns_mov_b32 s43, {f2u(2.0**60)}\ns_mov_b64 s[40:41], 0")
        for qb in range(4):
            a(f"v_cmp_nle_f32 vcc, s42, v{T+2*qb}\ns_or_b64 s[40:41], s[40:41], vcc")
            a(f"v_cmp_nge_f32 vcc, s43, v{T+2*qb}\ns_or_b64 s[40:41], s[40:41], vcc")
        for i in range(4): a(f"v_mov_b32 v{KF+i}, 0")
    for qb in range(4):
        a(f"v_rcp_f32 v{T+2*qb}, v{T+2*qb}")
    for qb in range(4):
        a(f"v_mov_b32 v{T+2*qb+1}, v{T+2*qb}")
    n = 0
    for qb in range(4):
        for s in range(4):
            src = 96 + 8 * (n % 2); dst = 112 + 4 * n
            for i in range(8):
                a(f"v_accvgpr_read_b32 v{src+i}, a{OACC + 4*(qb*8 + 2*s) + i}")
            pack_pairs(a, dst, src, f"v[{T+2*qb}:{T+2*qb+1}]")
            a(f"buffer_store_dwordx4 {R('v', dst)}, v{vBOFF+qb}, s[{S_O}:{S_O+3}], 0 offen offset:{s*1024} {OPT['wt']}")
            if check and n:
                a(mf(R("v", KF + 4), R("v", KF), R("v", dst - 4), "0" if n == 1 else None))
            n += 1
    if check:
        a("s_nop 0")
        a(mf(R("v", KF + 4), R("v", KF), R("v", 112 + 60)))
        a(f"s_nop 7\nv_cmp_u_f32 vcc, v{KF+4}, v{KF+4}\ns_or_b64 s[40:41], s[40:41], vcc\ns_or_b32 s40, s40, s41")

def k_attn(a, name, diag=False, force_safe=False):
    a.begin_kernel(name)
    guard(a, 256)
    a(f"s_load_dwordx4 s[32:35], s[0:1], {KA['k']}")
    a(f"s_load_dwordx2 s[36:37], s[0:1], {KA['wq']}")
    a(f"s_load_dwordx2 s[38:39], s[0:1], {KA['ws']}")
    common_setup(a)
    a(f"""
    """)
    if OPT["amap"] == 0:
        a("s_and_b32 s40, s2, 7\ns_lshl_b32 s40, s40, 2\ns_bfe_u32 s41, s2, 0x20003\ns_add_u32 s40, s40, s41\ns_lshr_b32 s41, s2, 5")
    elif OPT["amap"] == 1:
        a("s_bfe_u32 s40, s2, 0x20001\ns_lshl_b32 s40, s40, 3\ns_bfe_u32 s41, s2, 0x30003\ns_add_u32 s40, s40, s41\ns_and_b32 s41, s2, 1\ns_lshl_b32 s41, s41, 2\ns_lshr_b32 s42, s2, 6\ns_add_u32 s41, s41, s42")
    elif OPT["amap"] == 2:
        a("s_and_b32 s40, s2, 1\ns_lshl_b32 s40, s40, 4\ns_bfe_u32 s41, s2, 0x40003\ns_add_u32 s40, s40, s41\ns_bfe_u32 s41, s2, 0x20001\ns_lshl_b32 s41, s41, 1\ns_lshr_b32 s42, s2, 7\ns_add_u32 s41, s41, s42")
    a(f"""
    s_mov_b32 s74, s41
    s_mov_b32 s78, s40
    s_lshl_b32 s41, s41, 2
    s_add_u32 s41, s41, s{sWAVE}
    s_mov_b32 s79, s41
    v_lshrrev_b32 v14, 1, v12
    v_lshlrev_b32 v14, 5, v14
    v_and_b32 v15, 1, v12
    v_lshl_add_u32 v14, v15, 2, v14
    v_lshl_add_u32 v14, v10, 3, v14
    v_lshlrev_b32 v14, 13, v14
    v_lshl_add_u32 v{vWOFF}, v13, 4, v14
    v_lshl_add_u32 v{vKV}, v10, 12, v{vLANE16}
    v_mul_u32_u24 v{vKADDR}, {PIECE}, v13
    v_lshl_add_u32 v{vKADDR}, v12, 4, v{vKADDR}
    s_mov_b32 s{sKOFF}, 0
    s_mov_b32 s{sVOFF}, 0
    s_mov_b32 s{sWOFF}, 0
    s_mov_b32 s{sBOFF}, 0
    s_lshl_b32 s42, s40, 19
    s_lshl_b32 s43, s40, 8
    s_sub_u32 s44, {8 << 20}, s43
    s_lshl_b32 s45, s41, 17
    s_add_u32 s45, s45, {WS_H}
    s_lshl_b32 s46, s41, {14 if OPT["olay"] else 19}
    s_lshl_b32 s47, s40, {19 if OPT["olay"] else 12}
    s_add_u32 s46, s46, s47
    s_add_u32 s46, s46, {WS_O}
    """)
    for qb in range(4):
        a(f"v_add_u32 v{vBOFF+qb}, {qb*32768}, v{vLANE16}")
    st = Stamps(a, diag, 2)
    a("s_waitcnt lgkmcnt(0)")
    st.setup(sWAVE); st.stamp()
    a.srd(S_W, 36, "s44", "s43")
    a.srd(S_B, 38, 1 << 17, "s45")
    g = Gemm(a, 8192, 32768)
    g.prologue()
    if OPT["pf"]:
        a(f"s_load_dwordx2 s[66:67], s[0:1], {KA['wo']}\ns_load_dwordx4 s[68:71], s[0:1], {KA['wg']}\ns_load_dwordx2 s[72:73], s[0:1], {KA['wd']}")
        a(f"s_lshl_b32 s{sPF}, s2, 2\ns_add_u32 s{sPF}, s{sPF}, s{sWAVE}\ns_lshl_b32 s{sPF}, s{sPF}, 10")
        a(f"v_mul_u32_u24 v{vPF}, {OPT['pf']}, v11\nv_mov_b32 v14, 0x7f000000\nv_cmp_gt_u32 vcc, {1024 // OPT['pf']}, v11\ns_nop 1\nv_cndmask_b32 v{vPF}, v14, v{vPF}, vcc")
        a("s_waitcnt lgkmcnt(0)")
        for i in range(4):
            a.srd(S_PF + 4*i, 66 + 2*i, (8 << 20) if i == 0 else (7 << 20))
    if OPT["clr"]:
        a.srd(S_K, 38, 12 << 20)
        a(f"""
        s_lshl_b32 s47, s74, 5
        s_add_u32 s47, s47, s40
        s_lshl_b32 s65, s47, 11
        s_lshl_b32 s47, s47, 10
        s_add_u32 s65, s65, {WS_ST}
        s_add_u32 s47, s47, {WS_CH - 2048}
        s_cmp_lt_u32 s{sWAVE}, 2
        s_cselect_b32 s47, s65, s47
        s_cmp_eq_u32 s{sWAVE}, 3
        s_cselect_b32 s65, {WS_CB - WS_CH - 1024}, 0
        s_add_u32 s47, s47, s65
        v_lshlrev_b32 v14, 4, v0
        v_mov_b32 v232, -1
        v_mov_b32 v233, -1
        v_mov_b32 v234, -1
        v_mov_b32 v235, -1
        buffer_store_dwordx4 v[232:235], v14, s[{S_K}:{S_K+3}], s47 offen sc1
        s_lshl_b32 s47, s74, 5
        s_add_u32 s47, s47, s40
        s_lshl_b32 s47, s47, 14
        s_add_u32 s47, s47, {WS_EX}
        """)
        for i in range(4):
            a(f"buffer_store_dwordx4 v[232:235], v{vKV}, s[{S_K}:{S_K+3}], s47 offen offset:{i*1024} sc1")
    a.srd(S_K, 32, 1 << 19, "s42")
    a.srd(S_V, 34, 1 << 19, "s42")
    a.srd(S_O, 38, 16384 if OPT["olay"] else (1 << 19) - (31 << 12), "s46")
    for i in range(144):
        a(f"v_accvgpr_write_b32 a{i}, 0")
    for i in range(4):
        a(f"v_mov_b32 v{ONES+i}, 0x3f803f80")
    a(f"v_and_b32 v14, 1, v11\nv_mul_u32_u24 v14, 0xaaaa, v14\nv_add_u32 v14, 0x4444, v14\nv_lshl_add_u32 v{IDX}, v14, 16, v14")
    for i in range(128):
        a(f"v_mov_b32 v{ACC+i}, 0")
    g.start()
    st.stamp()
    loop = a.label("qproj")
    a(f"s_mov_b32 s{sCNT}, 0\n{loop}:")
    for c in range(4):
        g.chunk(c)
    a(f"s_add_u32 s{sCNT}, s{sCNT}, 1\ns_cmp_lt_u32 s{sCNT}, 3\ns_cbranch_scc1 {loop}")
    at = Attn(a, False)
    seq = [("K", 0, p) for p in range(4)]
    for T in range(2):
        seq += [("K", T + 1, p) for p in range(4)] + [("V", T, p) for p in range(4)]
    seq = [at.dma(*x) for x in seq]
    vm = {nb: [(None, g.bload(15, nb), None)] + ([(g.dma_pre(15, (nb+1)//2)[0], g.dma(15, (nb+1)//2), g.dma_post((nb+1)//2))] if nb in (1, 3, 5) else []) for nb in range(8)}
    g.chunk(12, vm=vm)
    g.chunk(13, vm={nb: [seq[nb]] for nb in range(8)}, bar_wait="vmcnt(19)")
    g.chunk(14, vm={nb: [seq[8 + nb]] for nb in range(8)}, bar_wait="vmcnt(15)")
    g.chunk(15, vm={nb: [seq[16 + nb]] for nb in range(4)}, bar_wait="vmcnt(16)", last=True)
    st.stamp()
    sc = LOG2E * 128 ** -0.5
    a(f"s_mov_b32 s42, {f2u(sc)}\ns_mov_b32 s43, s42\ns_nop 5")
    for n in range(16):
        pack_pairs(a, QF + 4*n, ACC + 8*n, "s[42:43]")
    shuffle(a, [QF + 4*n for n in range(16)])
    for qb in range(4):
        a(f"v_add_u32 v{vBOFF+qb}, {qb*(4096 if OPT['olay'] else 131072)}, v{vLANE16}")
    if OPT["fuse3"]:
        import gen_op2 as O2
        O2.ids(a); O2.setup_w(a, 66); O2.early_consts(a)
    safe = a.label("safe")
    if force_safe:
        a(f"s_waitcnt vmcnt(0)\ns_barrier\ns_branch {safe}")
    st.stamp()
    at.body()
    st.stamp()
    attn_epilogue(a, True)
    a(f"""
    v_mov_b32 v14, s40
    s_lshl_b32 s41, s{sWAVE}, 2
    s_add_u32 s41, s41, {LDS_FLAG}
    v_mov_b32 v15, s41
    ds_write_b32 v15, v14
    v_mov_b32 v15, {LDS_FLAG}
    s_waitcnt lgkmcnt(0)
    s_barrier
    ds_read_b128 v[80:83], v15
    s_waitcnt lgkmcnt(0)
    v_or_b32 v80, v80, v81
    v_or3_b32 v80, v80, v82, v83
    s_nop 0
    v_readfirstlane_b32 s40, v80
    s_nop 3
    s_cmp_lg_u32 s40, 0
    s_cbranch_scc1 {safe}
    """)
    cont = a.label("cont")
    if OPT["fuse3"]:
        a(f"{cont}:")
        st.stamp()
        O2.after_attention(a, st, 78, 79)
        st.stamp(); st.flush()
    else:
        st.stamp(); st.flush()
    a("s_endpgm")
    a(f"{safe}:")
    a("s_waitcnt vmcnt(0) lgkmcnt(0)\ns_barrier")
    at = Attn(a, True)
    for i in range(4):
        a(f"v_mov_b32 v{MB+4*i}, 0xff800000")
    mloop = a.label("maxloop")
    a(f"s_mov_b32 s{sKOFF}, 0\ns_mov_b32 s{sVOFF}, 0\ns_mov_b32 s{sWOFF}, 0\n{mloop}:")
    for p in range(4):
        pre, ins, post = at.dma("K", 0, p)
        a(pre); a("s_nop 0"); a(ins)
        if post: a(post)
    a("s_waitcnt vmcnt(0)\ns_barrier")
    fast = Attn(a, False)
    for kb in range(4):
        for ds in range(4): a(at.kread(0, kb, ds))
        a("s_waitcnt lgkmcnt(0)")
        for qb in range(4):
            for m in fast.qk(kb, qb): a(m)
        a("s_nop 7")
        for qb in range(4):
            a(f"v_max3_f32 v{MB+4*qb}, v{MB+4*qb}, v{SB_+4*qb}, v{SB_+4*qb+1}")
            a(f"v_max3_f32 v{MB+4*qb}, v{MB+4*qb}, v{SB_+4*qb+2}, v{SB_+4*qb+3}")
    a(f"s_barrier\ns_cmp_lt_u32 s{sKOFF}, {32*16384}\ns_cbranch_scc1 {mloop}")
    for sw in ("v_permlane16_swap_b32", "v_permlane32_swap_b32"):
        for qb in range(4): a(f"v_mov_b32 v{MB+4*qb+1}, v{MB+4*qb}")
        a("s_nop 1")
        for qb in range(4): a(f"{sw} v{MB+4*qb}, v{MB+4*qb+1}")
        a("s_nop 0")
        for qb in range(4): a(f"v_max_f32 v{MB+4*qb}, v{MB+4*qb}, v{MB+4*qb+1}")
    for qb in range(4):
        a(f"v_sub_f32 v{MB+4*qb}, 0, v{MB+4*qb}")
        for i in range(1, 4): a(f"v_mov_b32 v{MB+4*qb+i}, v{MB+4*qb}")
    for i in range(144):
        a(f"v_accvgpr_write_b32 a{i}, 0")
    a(f"s_mov_b32 s{sKOFF}, 0")
    for pre, ins, post in seq:
        a(pre); a("s_nop 0"); a(ins)
        if post: a(post)
    a("s_waitcnt vmcnt(16)\ns_barrier")
    at.body()
    attn_epilogue(a, False)
    a(f"s_barrier\ns_branch {cont}" if OPT["fuse3"] else "s_endpgm")
    a.end_kernel(name, 256, 256, sgpr=102 if diag else 80)

def k_oproj(a, name, diag=False):
    a.begin_kernel(name)
    guard(a, 256)
    a(f"s_load_dwordx2 s[36:37], s[0:1], {KA['wo']}")
    a(f"s_load_dwordx2 s[38:39], s[0:1], {KA['ws']}")
    common_setup(a)
    a(f"""
    s_bfe_u32 s40, s2, 0x20001
    s_and_b32 s41, s2, 1
    s_lshl_b32 s41, s41, 2
    s_lshr_b32 s42, s2, 6
    s_add_u32 s41, s41, s42
    s_lshl_b32 s41, s41, 2
    s_add_u32 s41, s41, s{sWAVE}
    s_bfe_u32 s42, s2, 0x30003
    v_lshlrev_b32 v14, 4, v12
    v_lshl_add_u32 v14, v10, 2, v14
    v_lshlrev_b32 v14, 11, v14
    v_lshl_add_u32 v{vWOFF}, v13, 4, v14
    s_mov_b32 s{sWOFF}, 0
    s_mov_b32 s{sBOFF}, 0
    s_lshl_b32 s43, s40, 21
    s_lshl_b32 s44, s42, 8
    s_add_u32 s43, s43, s44
    s_sub_u32 s44, {8 << 20}, s43
    s_lshl_b32 s45, s41, 19
    s_lshl_b32 s46, s40, 15
    s_add_u32 s45, s45, s46
    s_add_u32 s45, s45, {WS_O}
    s_lshl_b32 s46, s40, 22
    s_lshl_b32 s47, s41, 17
    s_add_u32 s46, s46, s47
    s_lshl_b32 s47, s42, 12
    s_add_u32 s46, s46, s47
    s_add_u32 s46, s46, {WS_P}
    """)
    for qb in range(4):
        a(f"v_add_u32 v{vBOFF+qb}, {qb*131072}, v{vLANE16}")
    st = Stamps(a, diag, 3)
    a("s_waitcnt lgkmcnt(0)")
    st.setup(sWAVE); st.stamp()
    a.srd(S_W, 36, "s44", "s43")
    a.srd(S_B, 38, (1 << 19) - (3 << 15), "s45")
    g = Gemm(a, 2048, 131072)
    g.prologue()
    a.srd(S_O, 38, (1 << 17) - (7 << 12), "s46")
    for i in range(128):
        a(f"v_mov_b32 v{ACC+i}, 0")
    g.start()
    st.stamp()
    loop = a.label("oproj")
    a(f"s_mov_b32 s{sCNT}, 0\n{loop}:")
    for c in range(4):
        g.chunk(c)
    a(f"s_add_u32 s{sCNT}, s{sCNT}, 1\ns_cmp_lt_u32 s{sCNT}, 3\ns_cbranch_scc1 {loop}")
    vm = {nb: [(None, g.bload(15, nb), None)] + ([(g.dma_pre(15, (nb+1)//2)[0], g.dma(15, (nb+1)//2), g.dma_post((nb+1)//2))] if nb in (1, 3, 5) else []) for nb in range(8)}
    g.chunk(12, vm=vm)
    g.chunk(13, vm={}, bar_wait="vmcnt(12)")
    g.chunk(14, vm={}, bar_wait="vmcnt(0)")
    g.chunk(15, vm={}, bar_wait=None, last=True)
    st.stamp()
    for qb in range(4):
        a(f"v_add_u32 v{vBOFF+qb}, {qb*32768}, v{vLANE16}")
    a("s_nop 3")
    for qb in range(4):
        for s in range(4):
            n = qb * 4 + s
            pack_pairs(a, 160 + 4*n, ACC + 8*n)
        shuffle(a, [160 + 16*qb + 4*s for s in range(4)])
        for s in range(4):
            a(f"buffer_store_dwordx4 {R('v', 160 + 16*qb + 4*s)}, v{vBOFF+qb}, s[{S_O}:{S_O+3}], 0 offen offset:{s*1024} {OPT['wt']}")
    st.stamp(); st.flush()
    a("s_endpgm")
    a.end_kernel(name, 256, 256, sgpr=102 if diag else 64)
```

```python
from asmlib import Asm

KA = dict(x=0, k=8, v=16, wq=24, wo=32, bx=40, wr=48, wg=56, wu=64, wd=72, c=80, wmod=88, out=96, dbg=104, ws=112)
WS_MOD = 0x0
WS_KEYS = 0x8000
WS_YP = 0x100000
WS_H = 0x400000
WS_H2 = 0x800000
WS_X1 = 0xC00000
WS_O = 0x1000000
WS_P = 0x2000000
WS_TS = 0x4000000
LOG2E = 1.4426950408889634

def f2u(x):
    import struct
    return "0x%08x" % struct.unpack("<I", struct.pack("<f", x))[0]

def R(f, i, n=4):
    return f"{f}[{i}:{i+n-1}]" if n > 1 else f"{f}{i}"

def guard(a, nwg):
    l = a.label("go")
    a(f"s_cmp_lt_u32 s2, {nwg}\ns_cbranch_scc1 {l}\ns_endpgm\n{l}:")

class Stamps:
    def __init__(self, a, enabled, kid, sbase=80, vtmp=(254, 255)):
        self.a, self.on, self.kid, self.s, self.v, self.n = a, enabled, kid, sbase, vtmp, 0
    def setup(self, wave_sgpr):
        if not self.on: return
        a, s = self.a, self.s
        a(f"s_load_dwordx2 s[{s}:{s+1}], s[0:1], {KA['ws']}\ns_waitcnt lgkmcnt(0)")
        a.srd(s + 4, s, 1 << 22, WS_TS + self.kid * (1 << 20))
        a(f"s_lshl_b32 s{s+8}, s2, 4\ns_add_u32 s{s+8}, s{s+8}, s{wave_sgpr}\ns_lshl_b32 s{s+8}, s{s+8}, 7")
    def stamp(self):
        if not self.on: return
        a, s, v = self.a, self.s, self.v
        if self.n == 0: a(f"v_mov_b32 v{v[0]}, -1")
        a(f"s_memrealtime s[{s}:{s+1}]\ns_memtime s[{s+2}:{s+3}]\ns_waitcnt lgkmcnt(0)")
        a(f"v_writelane_b32 v{v[0]}, s{s}, {2*self.n}\nv_writelane_b32 v{v[0]}, s{s+2}, {2*self.n+1}")
        self.n += 1
    def flush(self):
        if not self.on: return
        a, s, v = self.a, self.s, self.v
        a(f"v_and_b32 v{v[1]}, 63, v0\nv_lshlrev_b32 v{v[1]}, 2, v{v[1]}\ns_mov_b32 exec_hi, 0")
        a(f"buffer_store_dword v{v[0]}, v{v[1]}, s[{s+4}:{s+7}], s{s+8} offen\ns_mov_b64 exec, -1")

def bf16_round(a, dst_lo, dst_hi, src_lo, src_hi, tmp):
    a(f"v_cvt_pk_bf16_f32 v{tmp}, v{src_lo}, v{src_hi}")
    a(f"v_lshlrev_b32 v{dst_lo}, 16, v{tmp}")
    a(f"v_and_b32 v{dst_hi}, 0xffff0000, v{tmp}")

def unpack(a, lo, hi, src):
    a(f"v_lshlrev_b32 v{lo}, 16, v{src}")
    a(f"v_and_b32 v{hi}, 0xffff0000, v{src}")

WS_ST = 0x300000
WS_F3 = 0xC000
WS_TOP = 0xB000
WS_KEY2 = 0xA000
WS_CH = 0x380000
WS_CB = 0x3C0000

WS_EX = 0x800000

class VM:
    def __init__(self): self.ops = []
    def add(self, tag): self.ops.append(tag)
    def count(self, *tags):
        last = max((i for i, t in enumerate(self.ops) if t in tags), default=-1)
        n = len(self.ops) - 1 - last
        return min(n, 63)
```

```python
from gen_common import *
from gen_big import PIECE, TILE, mf, emit
import gen_big as B

OPT = dict(exp1=1, olay=0, bsame=0, wsame=0, loop=1, barp=2, prew=1, slp=0, skew=4, map=1, vg=[1, 5], rg=[0, 2, 4, 6], wt="sc1", bfl="sc1", spin=1 << 16)

S_W, S_B, S_X, S_L, S_OUT, S_WR = 12, 16, 4, 8, 20, 32
sWAVE, sWOFF, sMW, sNT, sG, sT0, sT1, sT2, sSPIN = 24, 27, 30, 75, 76, 40, 41, 42, 43
vL16, vWOFF, vB0, vB1, vX0, vC = 1, 2, 6, 7, 8, 9
vAS, vAK = (3, 4), (5, 15)
sKH, sMW2, sBO, sCNT = 77, 31, 28, 29
ACC, AF, XF, GA, C1, SBv, GBv, WP, T = 16, 48, 80, 112, 128, 144, 160, 176, 192
CST = 200
BR = 0
SENT = 216

def pk(op, d, x, y, z=None, mods=""):
    r2 = lambda r: r if isinstance(r, str) else f"v[{r}:{r+1}]"
    return f"v_pk_{op}_f32 {r2(d)}, {r2(x)}, {r2(y)}" + (f", {r2(z)}" if z is not None else "") + (" " + mods if mods else "")

def red_g(a, regs, tmps, op="v_add_f32"):
    for sw in ("v_permlane16_swap_b32", "v_permlane32_swap_b32"):
        for r_, t in zip(regs, tmps): a(f"v_mov_b32 v{t}, v{r_}")
        if len(regs) < 3: a(f"s_nop {2 - len(regs)}")
        for r_, t in zip(regs, tmps): a(f"{sw} v{r_}, v{t}")
        for r_, t in zip(regs, tmps): a(f"{op} v{r_}, v{r_}, v{t}")

def ids(a):
    a(f"s_bfe_u32 s{sKH}, s2, 0x10002\ns_xor_b32 s{sKH}, s{sKH}, 1\ns_bfe_u32 s{sT0}, s2, 0x10001\ns_lshr_b32 s{sT1}, s2, 5\ns_lshl_b32 s{sT1}, s{sT1}, 1\ns_add_u32 s{sG}, s{sT0}, s{sT1}")
    a(f"s_and_b32 s{sT0}, s2, 1\ns_lshl_b32 s{sT0}, s{sT0}, 2\ns_bfe_u32 s{sT1}, s2, 0x20003\ns_add_u32 s{sNT}, s{sT0}, s{sT1}")
    a(f"s_lshl_b32 s{sG}, s{sG}, 2\ns_add_u32 s{sG}, s{sG}, s{sWAVE}\ns_lshl_b32 s{sNT}, s{sNT}, 1\ns_add_u32 s{sNT}, s{sNT}, s{sKH}")

def setup_w(a, wo):
    a(f"""
    v_lshlrev_b32 v14, 4, v12
    v_lshl_add_u32 v14, v10, 2, v14
    v_lshlrev_b32 v14, 11, v14
    v_lshl_add_u32 v{vWOFF}, v13, 4, v14
    s_mov_b32 s{sWOFF}, 0
    s_add_u32 s{sMW2}, s{sMW}, {4*TILE}
    s_lshr_b32 s{sT0}, s{sNT}, 1
    s_lshl_b32 s{sT0}, s{sT0}, 8
    s_lshl_b32 s{sT1}, s{sKH}, 22
    s_add_u32 s{sT0}, s{sT0}, s{sT1}
    """)
    a.srd(S_W, wo, (4 << 20) - 1792, f"s{sT0}")

def setup_rest(a, fused=False):
    a(f"""
    v_lshrrev_b32 v14, 2, v11
    v_mul_u32_u24 v{vAK[0]}, {PIECE}, v14
    v_and_b32 v14, 3, v11
    v_lshl_add_u32 v{vAK[0]}, v14, 3, v{vAK[0]}
    s_lshl_b32 s{sT0}, s{sKH}, 7
    s_xor_b32 s{sT1}, s{sT0}, 128
    v_add_u32 v{vAS[0]}, s{sT1}, v{vAK[0]}
    v_add_u32 v{vAK[0]}, s{sT0}, v{vAK[0]}
    v_add_u32 v{vAS[1]}, {4*TILE}, v{vAS[0]}
    v_add_u32 v{vAK[1]}, {4*TILE}, v{vAK[0]}
    v_mov_b32 v{vB0}, v{vL16}
    v_add_u32 v{vB1}, {4096 if OPT['olay'] else 131072}, v{vL16}
    v_lshlrev_b32 v{vC}, 3, v12
    v_lshl_add_u32 v{vX0}, v13, 11, v{vC}
    s_mov_b32 s{sBO}, 0
    """)
    a.lines.append(f"    s_nop 0")
    a(f"s_lshl_b32 s{sT1}, s{sG}, {13 if OPT['olay'] else 18}\ns_lshl_b32 s{sT0}, s{sKH}, {23 if OPT['olay'] else 16}\ns_add_u32 s{sT1}, s{sT1}, s{sT0}\ns_add_u32 s{sT1}, s{sT1}, {WS_O}")
    a.srd(S_B, 38, (15 << 19) + 8192 if OPT["olay"] else (1 << 18) - 65536, f"s{sT1}")
    a.srd(S_L, 38, 12 << 20)
    a(f"s_lshl_b32 s{sT0}, s{sNT}, 7\ns_lshl_b32 s{sT1}, s{sG}, 16\ns_add_u32 s{sT1}, s{sT1}, s{sT0}")
    a("s_waitcnt lgkmcnt(0)")
    a.srd(S_OUT, 46, 65536 - 1920, f"s{sT1}")
    if not fused:
        a.srd(S_X, 44, 65536 - 1920, f"s{sT1}")
        a.srd(S_WR, 48, 128, f"s{sT0}")

def load_ptrs(a):
    a(f"s_load_dwordx2 s[44:45], s[0:1], {KA['x']}\ns_load_dwordx2 s[46:47], s[0:1], {KA['out']}\ns_load_dwordx2 s[48:49], s[0:1], {KA['wr']}")

class Op2:
    def __init__(self, a):
        self.a, self.vm, self.db, self.body = a, VM(), 3, 0
    def dma(self, c, p):
        base = sMW if (c // 4) % 2 == self.body % 2 else sMW2
        return (f"s_add_u32 m0, s{base}, {(c % 4)*TILE + p*PIECE}",
                f"buffer_load_dwordx4 v{vWOFF}, s[{S_W}:{S_W+3}], s{sWOFF} offen lds",
                f"s_add_u32 s{sWOFF}, s{sWOFF}, {2048 if p < 3 else 61*2048}", ("W", c))
    def bfrag(self, c, qb, ks): return R("a", BR + 16*(c % 4) + 8*qb + 4*ks)
    def bload(self, c, i):
        qb, ks = i // 2, i % 2
        return (None, f"buffer_load_dwordx4 {self.bfrag(c, qb, ks)}, v{vB0+qb}, s[{S_B}:{S_B+3}], s{sBO} offen offset:{ks*1024} {OPT['bfl']}",
                f"s_add_u32 s{sBO}, s{sBO}, {(1 << 19) - 2048 if OPT['olay'] and c % 2 else 2048}" if i == 3 else None, ("B", c))
    def acc(self, s, j, qb):
        return R("v", (SENT if s < 2 else ACC) + 16*qb + 4*(2*(s % 2) + j))
    def issue(self, op):
        a = self.a
        if op[0]: a(op[0]); a("s_nop 0")
        a(op[1]); self.vm.add(op[3])
        if op[2]: a(op[2])
    def areads(self, c, s, buf):
        out = []
        base = (vAS if s < 2 else vAK)[0 if c // 4 == self.body else 1]
        for j in range(2):
            for ks in range(2):
                for jj in range(2):
                    out.append(f"ds_read_b64_tr_b16 {R('v', AF + 16*buf + 8*j + 4*ks + 2*jj, 2)}, v{base} offset:{(c % 4)*TILE + (2*ks + jj)*256 + (2*(s % 2) + j)*32}")
        return out
    def prefill(self, c0=0, c1=8):
        for c in range(c0, c1):
            for p in range(4): self.issue(self.dma(c, p))
    def consts(self, vx, vc, sx=S_X, sl=S_L, swr=S_WR):
        a = self.a
        a(f"s_lshl_b32 s{sT0}, s{sNT}, 7\ns_add_u32 s{sT0}, s{sT0}, {WS_MOD + 4096}\ns_add_u32 s{sT1}, s{sT0}, 4096\ns_mov_b32 s{sT2}, 32768")
        P = CST
        for qb in range(2):
            for nb in range(4):
                a(f"buffer_load_dwordx2 {R('a', P + 8*qb + 2*nb, 2)}, v{vx}, s[{sx}:{sx+3}], {'s%d' % sT2 if qb else 0} offen offset:{nb*32}"); self.vm.add("C")
        for j, (so, off) in enumerate(((sT0, 0), (sT1, 0), (sT0, 2048), (sT1, 2048))):
            for nb in range(4):
                a(f"buffer_load_dwordx2 {R('a', P + 16 + 8*j + 2*nb, 2)}, v{vc}, s[{sl}:{sl+3}], s{so} offen offset:{off + nb*32} sc1"); self.vm.add("C")
        for nb in range(4):
            a(f"buffer_load_dwordx2 {R('a', P + 48 + 2*nb, 2)}, v{vc}, s[{swr}:{swr+3}], 0 offen offset:{nb*32}"); self.vm.add("C")
    def expand(self):
        self.expand1(); self.expand2()
    def expand1(self):
        a = self.a
        for i in range(56):
            a(f"v_accvgpr_read_b32 v{XF + 2*i + 1}, a{CST + i}")
        for i in range(56):
            unpack(a, XF + 2*i, XF + 2*i + 1, XF + 2*i + 1)
    def expand2(self, T=T + 16):
        a = self.a
        for i in range(0, 16, 2):
            a(pk("add", C1 + i, C1 + i, "1.0", mods="op_sel_hi:[1,0]"))
            bf16_round(a, C1 + i, C1 + i + 1, C1 + i, C1 + i + 1, T)
        for i in range(0, 16, 2):
            a(pk("mul", T + 2, SBv + i, WP + i) if i == 0 else pk("fma", T + 2, SBv + i, WP + i, T + 2))
            a(pk("mul", WP + i, WP + i, C1 + i))
            if i == 2: a(pk("add", T + 4, WP, WP + 2))
            elif i > 2: a(pk("add", T + 4, T + 4, WP + i))
        a(f"v_add_f32 v{T+2}, v{T+2}, v{T+3}\nv_add_f32 v{T+4}, v{T+4}, v{T+5}")
        a(f"v_and_b32 v{T}, 1, v0\nv_cmp_eq_u32 vcc, 1, v{T}\ns_nop 1\nv_cndmask_b32 v14, v{T+4}, v{T+2}, vcc")
        red_g(a, [14], [T])
    def start(self, late=None, mid=None):
        a = self.a
        for c in range(self.db):
            for i in range(4): self.issue(self.bload(c, i))
        self.late = [(c, p) for c in range(*late) for p in range(4)] if late else []
        if mid: mid()
        a(f"s_waitcnt vmcnt({self.vm.count(('W', 0), ('W', 1))})\ns_barrier")
        for s in self.areads(0, 0, 0): a(s)
        a(f"s_waitcnt vmcnt({self.vm.count(('B', 0))}) lgkmcnt(0)")
    def send(self):
        out = [f"s_lshl_b32 s{sT0}, s{sG}, 16", f"s_xor_b32 s{sT1}, s{sNT}, 1", f"s_lshl_b32 s{sT1}, s{sT1}, 12", f"s_add_u32 s{sT0}, s{sT0}, s{sT1}", f"s_add_u32 s{sT0}, s{sT0}, {WS_EX}"]
        for n in (0, 2, 1, 3):
            for i in range(4): out.append(f"v_cvt_pk_bf16_f32 v{T + 4*n + i}, v{SENT + 8*n + 2*i}, v{SENT + 8*n + 2*i + 1}")
            out.append(f"buffer_store_dwordx4 {R('v', T + 4*n)}, v{vL16}, s[{S_L}:{S_L+3}], s{sT0} offen offset:{n*1024} sc1")
        return out
    def main(self):
        real = self.a
        sk, barp = OPT["skew"], OPT["barp"]
        order = [(c, s) for c in range(32 - sk) for s in range(4)]
        order += [(c, s) for c in range(32 - sk, 32) for s in range(2)] + [(c, s) for c in range(32 - sk, 32) for s in range(2, 4)]
        bq = [(c, i) for c in range(self.db, 32) for i in range(4)]
        visible, waitedB, sendq = set(range(barp)), {0}, None
        bodies = []
        RG, VG = OPT["rg"], OPT["vg"]
        for n, (c, s) in enumerate(order):
            if n % 16 == 0:
                a = Asm(); bodies.append(a); self.body = n // 16
            buf = n % 2
            ms = []
            for j in range(2):
                for qb in range(2):
                    for k, ks in enumerate((0, 1) if qb == 0 else (1, 0)):
                        ms.append(mf(self.acc(s, j, qb), R("v", AF + 16*buf + 8*j + 4*ks), self.bfrag(c, qb, ks), "0" if c == 0 and k == 0 else None))
            gaps = {g: [] for g in range(8)}
            nxt = order[n + 1] if n + 1 < len(order) else None
            if self.late and len(self.late) > 32 - (n + 1 + 4*(7 - barp)):
                op = self.dma(*self.late.pop(0)); a(op[0]); a("s_nop 0"); a(op[1]); a(op[2]); self.vm.add(op[3])
            for g in range(8):
                if g == RG[0] and nxt and nxt[0] not in visible:
                    newv = [cc for cc in range(nxt[0], nxt[0] + (barp if n < 112 else 4)) if cc < 32]
                    lw = max(i for i, t in enumerate(self.vm.ops) if t[0] == "W" and t[1] in newv); lb = max(i for i, t in enumerate(self.vm.ops) if t[0] == "B" and t[1] in waitedB)
                    if lw > lb: gaps[g].append(f"s_waitcnt vmcnt({self.vm.count(*[('W', cc) for cc in newv])})")
                    gaps[g].append("s_barrier")
                    visible |= set(newv)
                if g == 3 and n > 0: gaps[g].append(f"s_waitcnt lgkmcnt({2*len([x for x in RG if x < 3]) if nxt else 0})")
                if g in RG and nxt:
                    k = RG.index(g)
                    gaps[g] += self.areads(nxt[0], nxt[1], 1 - buf)[2*k:2*k + 2]
                if g in VG:
                    op = None
                    first = VG.index(g) == 0
                    wn = n + 1 + 4*(7 - barp)
                    if first and bq: op = self.bload(*bq.pop(0))
                    elif not first and self.late: op = self.dma(*self.late.pop(0))
                    elif not first and n < 112 and wn >= 32: op = self.dma(wn // 4, wn % 4)
                    elif not first and n >= 112 and bq: op = self.bload(*bq.pop(0))
                    if op:
                        if op[0]: gaps[max(g - 1, 0)].insert(0, op[0])
                        gaps[g].append(op[1]); self.vm.add(op[3])
                        if op[2]: gaps[g + 1].insert(0, op[2])
                if sendq and g not in RG and not any(x.startswith("buffer") for x in gaps[g]):
                    while sendq and len([x for x in gaps[g] if x.startswith("v_")]) < 2:
                        x = sendq[0]
                        if x.startswith("buffer") and any(y.startswith("v_") for y in gaps[g]): break
                        gaps[g].append(sendq.pop(0))
                        if x.startswith("buffer"): self.vm.add("S"); break
            if nxt and nxt[0] not in waitedB:
                gaps[7].insert(0, f"s_waitcnt vmcnt({self.vm.count(('B', nxt[0]))}) lgkmcnt(4)"); waitedB.add(nxt[0])
            elif nxt: gaps[7].insert(0, "s_waitcnt lgkmcnt(4)")
            if n % 16 == 15 and nxt:
                gaps[7] += [f"v_swap_b32 v{vAS[0]}, v{vAS[1]}", f"v_swap_b32 v{vAK[0]}, v{vAK[1]}"]
                gaps[6] += [f"s_mov_b32 s{sT0}, s{sMW}"]
                gaps[7] += [f"s_mov_b32 s{sMW}, s{sMW2}", f"s_mov_b32 s{sMW2}, s{sT0}"]
            emit(a, ms, gaps)
            if (c, s) == (31, 1): sendq = self.send()
        assert not bq
        a = real
        def norm(x, y):
            out = []
            assert len(x) == len(y), (len(x), len(y))
            for p_, q_ in zip(x, y):
                if p_ != q_:
                    import re
                    np_, nq_ = (int(re.search(r"vmcnt\((\d+)\)", z).group(1)) for z in (p_, q_))
                    p_ = p_ if np_ < nq_ else q_
                out.append(p_)
            return out
        body = bodies[1].lines
        for b in range(2, 7): body = norm(body, bodies[b].lines)
        a.lines += bodies[0].lines
        if OPT["loop"]:
            l = a.label("oploop")
            a(f"s_mov_b32 s{sCNT}, 0\n{l}:")
            a.lines += body
            if OPT["bsame"]: a(f"s_sub_u32 s{sBO}, s{sBO}, 8192")
            if OPT["wsame"]: a(f"s_sub_u32 s{sWOFF}, s{sWOFF}, {256*2048}")
            a(f"s_add_u32 s{sCNT}, s{sCNT}, 1\ns_cmp_lt_u32 s{sCNT}, 6\ns_cbranch_scc1 {l}")
        else:
            for b in range(1, 7): a.lines += bodies[b].lines
        a.lines += bodies[7].lines
        for x in sendq: a(x)
    def poll(self, regs, nreg, loads, name, prew=True):
        a = self.a
        poll, ok = a.label("poll"), a.label("got" + name)
        if OPT["prew"] and prew: a("s_waitcnt vmcnt(0)")
        a(f"s_mov_b32 s{sSPIN}, 0\n{poll}:")
        for l in loads: a(l)
        a("s_waitcnt vmcnt(0)")
        t = T + 22
        if nreg == 1: t = regs
        else:
            a(f"v_max3_u32 v{t}, v{regs}, v{regs+1}, v{regs+2}" if nreg > 2 else f"v_max_u32 v{t}, v{regs}, v{regs+1}")
            for i in range(3, nreg - 1, 2): a(f"v_max3_u32 v{t}, v{t}, v{regs+i}, v{regs+i+1}")
            if nreg > 2: a(f"v_max_u32 v{t}, v{t}, v{regs+nreg-1}")
        a(f"v_cmp_eq_u32 vcc, -1, v{t}\ns_add_u32 s{sSPIN}, s{sSPIN}, 1\ns_cbranch_vccz {ok}")
        if OPT["slp"]: a(f"s_sleep {OPT['slp']}")
        a(f"s_cmp_lt_u32 s{sSPIN}, {OPT['spin']}\ns_cbranch_scc1 {poll}\n{ok}:")
    def recv(self):
        a = self.a
        Q = T + 24
        a(f"s_lshl_b32 s{sT0}, s{sG}, 16\ns_lshl_b32 s{sT1}, s{sNT}, 12\ns_add_u32 s{sT0}, s{sT0}, s{sT1}\ns_add_u32 s{sT0}, s{sT0}, {WS_EX}")
        self.poll(Q, 16, [f"buffer_load_dwordx4 {R('v', Q + 4*n)}, v{vL16}, s[{S_L}:{S_L+3}], s{sT0} offen offset:{n*1024} sc1" for n in range(4)], "ex")
        for i in range(16):
            unpack(a, T + 2*(i % 2), T + 2*(i % 2) + 1, Q + i)
            a(pk("add", ACC + 2*i, ACC + 2*i, T + 2*(i % 2)))

    def epilogue(self, st=None):
        a = self.a
        t = T
        for qb in range(2):
            for i in range(0, 16, 2):
                a(pk("fma", XF + 16*qb + i, ACC + 16*qb + i, GA + i, XF + 16*qb + i))
        S, D, M = t, t + 4, t + 8
        for i in range(0, 16, 2):
            for qb in range(2):
                x = XF + 16*qb + i
                if i == 2: a(pk("add", S + 2*qb, x - 2, x))
                elif i > 2: a(pk("add", S + 2*qb, S + 2*qb, x))
                a(pk("mul", D + 2*qb, x, WP + i) if i == 0 else pk("fma", D + 2*qb, x, WP + i, D + 2*qb))
        for r_ in (S, S + 2, D, D + 2): a(f"v_add_f32 v{r_}, v{r_}, v{r_+1}")
        red_g(a, [S, S + 2, D, D + 2], [S + 1, S + 3, D + 1, D + 3])
        for qb in range(2):
            a(f"v_mul_f32 v{S+2*qb}, {f2u(-1/64)}, v{S+2*qb}")
        for i in range(0, 16, 2):
            for qb in range(2):
                a(pk("add", t + 12 + 2*qb, XF + 16*qb + i, S + 2*qb, mods="op_sel_hi:[1,0]"))
            for qb in range(2):
                a(pk("mul", M + 2*qb, t + 12 + 2*qb, t + 12 + 2*qb) if i == 0 else pk("fma", M + 2*qb, t + 12 + 2*qb, t + 12 + 2*qb, M + 2*qb))
        for r_ in (M, M + 2): a(f"v_add_f32 v{r_}, v{r_}, v{r_+1}")
        red_g(a, [M, M + 2], [M + 1, M + 3])
        G = t + 16
        a(f"v_and_b32 v{G+4}, 16, v0\nv_cmp_ne_u32 vcc, 0, v{G+4}\nv_and_b32 v{G+4}, 31, v0\nv_lshlrev_b32 v{G+4}, 4, v{G+4}")
        a(f"v_cndmask_b32 v{G}, v{S}, v{S+2}, vcc\nv_cndmask_b32 v{G+1}, v{M}, v{M+2}, vcc\nv_cndmask_b32 v{G+2}, v{D}, v{D+2}, vcc")
        a(f"v_mov_b32 v{G+3}, v14")
        a(f"s_lshl_b32 s{sT0}, s{sG}, 13\ns_add_u32 s{sT0}, s{sT0}, {WS_ST}\ns_lshl_b32 s{sT1}, s{sNT}, 9\ns_add_u32 s{sT1}, s{sT1}, s{sT0}\ns_add_u32 s{sT2}, s{sT0}, 4096")
        a(f"buffer_store_dwordx4 {R('v', G)}, v{G+4}, s[{S_L}:{S_L+3}], s{sT1} offen sc1")
        Q = t + 24
        a(f"v_lshlrev_b32 v{G+5}, 9, v12\nv_lshl_add_u32 v{G+5}, v13, 4, v{G+5}\ns_mov_b32 s{sSPIN}, 0")
        self.poll(Q, 32, [f"buffer_load_dwordx4 {R('v', Q + 4*j)}, v{G+5}, s[{S_L}:{S_L+3}], s{sT0 if j < 4 else sT2} offen offset:{((j >> 1) & 1)*2048 + (j & 1)*256} sc1" for j in range(8)], "st")
        if st: st.stamp()
        Z = t
        for qb in range(2):
            for h in range(2):
                a(pk("add", Z + 4*qb + 2*h, Q + 4*qb + 2*h, Q + 8 + 4*qb + 2*h))
                a(pk("add", t + 8 + 4*qb + 2*h, Q + 16 + 4*qb + 2*h, Q + 24 + 4*qb + 2*h))
        for i in range(0, 8, 2): a(pk("add", Z + i, Z + i, t + 8 + i))
        red_g(a, [Z + i for i in range(7)], [t + 8 + i for i in range(7)])
        for qb in range(2): a(f"v_mul_f32 v{Z+4*qb}, {f2u(1/16)}, v{Z+4*qb}")
        for j in range(8):
            qb = j & 1
            a(f"v_sub_f32 v{t+10+qb}, v{Q+4*j}, v{Z+4*qb}")
            a(f"v_mul_f32 v{t+8+qb}, v{t+10+qb}, v{t+10+qb}" if j < 2 else f"v_fmac_f32 v{t+8+qb}, v{t+10+qb}, v{t+10+qb}")
        red_g(a, [t + 8, t + 9], [t + 10, t + 11])
        a(f"v_mov_b32_dpp v{t+12}, v{Z+3} quad_perm:[0,0,2,2] row_mask:0xf bank_mask:0xf")
        a(f"v_mov_b32_dpp v{t+13}, v{Z+3} quad_perm:[1,1,3,3] row_mask:0xf bank_mask:0xf")
        for qb in range(2):
            a(f"v_fmac_f32 v{Z+4*qb+1}, {f2u(64.0)}, v{t+8+qb}\nv_mul_f32 v{Z+4*qb+1}, {f2u(1/1024)}, v{Z+4*qb+1}")
        for qb in range(2): bf16_round(a, Z + 4*qb, Z + 4*qb + 1, Z + 4*qb, Z + 4*qb + 1, t + 10)
        a(f"v_add_f32 v{Z+1}, {f2u(1e-5)}, v{Z+1}\nv_add_f32 v{Z+5}, {f2u(1e-5)}, v{Z+5}")
        bf16_round(a, Z + 1, Z + 5, Z + 1, Z + 5, t + 10)
        a(f"v_sqrt_f32 v{Z+1}, v{Z+1}\nv_sqrt_f32 v{Z+5}, v{Z+5}\ns_nop 0")
        bf16_round(a, Z + 1, Z + 5, Z + 1, Z + 5, t + 10)
        a(f"v_rcp_f32 v{Z+1}, v{Z+1}\nv_rcp_f32 v{Z+5}, v{Z+5}")
        K0 = t + 14
        for qb in range(2): a(f"v_fmac_f32 v{Z+4*qb+2}, v{Z+4*qb}, v{t+12}")
        for qb in range(2): a(f"v_fma_f32 v{Z+4*qb+2}, v{Z+4*qb+2}, v{Z+4*qb+1}, v{t+13}")
        bf16_round(a, K0, K0 + 1, Z + 2, Z + 6, t + 10)
        a(f"s_lshl_b32 s{sT0}, s{sG}, 5\ns_sub_u32 s{sT0}, 2047, s{sT0}\nv_sub_u32 v{t+10}, s{sT0}, v13\nv_subrev_u32 v{t+11}, 16, v{t+10}")
        for qb in range(2):
            a(f"v_ashrrev_i32 v{t+8}, 31, v{K0+qb}\nv_or_b32 v{t+8}, 0x80000000, v{t+8}\nv_xor_b32 v{K0+qb}, v{K0+qb}, v{t+8}\nv_and_b32 v{K0+qb}, 0xffff0000, v{K0+qb}\nv_or_b32 v{K0+qb}, v{K0+qb}, v{t+10+qb}")
        m1, m2 = t + 16, t + 17
        a(f"v_max_u32 v{m1}, v{K0}, v{K0+1}\nv_min_u32 v{m2}, v{K0}, v{K0+1}")
        for sh in (8, 4, 2, 1):
            a("s_nop 1")
            a(f"v_min_u32_dpp v{t+8}, v{m1}, v{m1} row_ror:{sh} row_mask:0xf bank_mask:0xf")
            a(f"v_max_u32_dpp v{t+9}, v{m2}, v{m2} row_ror:{sh} row_mask:0xf bank_mask:0xf")
            a(f"v_max_u32_dpp v{m1}, v{m1}, v{m1} row_ror:{sh} row_mask:0xf bank_mask:0xf")
            a(f"v_max_u32 v{m2}, v{t+8}, v{t+9}")
        nok = a.label("nokeys")
        a(f"s_cmp_lg_u32 s{sNT}, 0\ns_cbranch_scc1 {nok}")
        a(f"s_lshl_b32 s{sT0}, s{sG}, 3\ns_add_u32 s{sT0}, s{sT0}, {WS_KEY2}\nv_mov_b32 v{t+8}, 0\nbuffer_store_dwordx2 v[{m1}:{m2}], v{t+8}, s[{S_L}:{S_L+3}], s{sT0} offen sc1")
        a(f"{nok}:")
        CO = t + 18
        a(f"v_mov_b32 v{t+8}, 0x7f000000\nv_lshlrev_b32 v{t+9}, 4, v12\nv_add_u32 v{t+10}, 2048, v{t+9}")
        for qb in range(2):
            a(f"v_cmp_eq_u32 vcc, v{K0+qb}, v{m1}\nv_cmp_eq_u32 s[50:51], v{K0+qb}, v{m2}\ns_nop 0")
            a(f"v_cndmask_b32 v{CO+qb}, v{t+8}, v{t+9}, vcc\nv_cndmask_b32 v{CO+qb}, v{CO+qb}, v{t+10}, s[50:51]")
        for qb in range(2): a(f"v_mul_f32 v{Z+4*qb}, v{Z+4*qb}, v{Z+4*qb+1}")
        H = ACC
        HP, OP = t + 24, t + 40
        for qb in range(2):
            for i in range(0, 16, 2):
                a(pk("fma", H + 16*qb + i, XF + 16*qb + i, Z + 4*qb, Z + 4*qb, mods="op_sel:[0,1,0] op_sel_hi:[1,1,0]"))
            for i in range(0, 16, 2):
                a(pk("fma", H + 16*qb + i, H + 16*qb + i, C1 + i, SBv + i))
            for i in range(0, 16, 2):
                a(f"v_cvt_pk_bf16_f32 v{HP + 8*qb + i//2}, v{H + 16*qb + i}, v{H + 16*qb + i + 1}")
        B.shuffle(a, [HP + 4*n for n in range(4)])
        a(f"s_lshl_b32 s{sT0}, s{sG}, 12\ns_lshl_b32 s{sT1}, s{sNT}, 7\ns_add_u32 s{sT0}, s{sT0}, s{sT1}\ns_add_u32 s{sT1}, s{sT0}, {WS_CB}\ns_add_u32 s{sT0}, s{sT0}, {WS_CH}")
        for n in range(4):
            a(f"buffer_store_dwordx4 {R('v', HP + 4*n)}, v{CO + n//2}, s[{S_L}:{S_L+3}], s{sT0} offen offset:{(n % 2)*64} sc1")
        for qb in range(2):
            for i in range(0, 16, 2):
                a(pk("fma", H + 16*qb + i, H + 16*qb + i, GBv + i, XF + 16*qb + i))
            for i in range(0, 16, 2):
                a(f"v_cvt_pk_bf16_f32 v{OP + 8*qb + i//2}, v{H + 16*qb + i}, v{H + 16*qb + i + 1}")
        B.shuffle(a, [OP + 4*n for n in range(4)])
        a(f"v_add_u32 v{vX0}, v{vX0}, v{vC}\ns_mov_b32 s{sT2}, 32768")
        for n in range(4):
            a(f"buffer_store_dwordx4 {R('v', OP + 4*n)}, v{vX0}, s[{S_OUT}:{S_OUT+3}], {'s%d' % sT2 if n//2 else 0} offen offset:{(n % 2)*64} {OPT['wt']}")
        self.base_store = [f"buffer_store_dwordx4 {R('v', OP + 4*n)}, v{CO + n//2}, s[{S_L}:{S_L+3}], s{sT1} offen offset:{(n % 2)*64} sc1" for n in range(4)]

def k_op2(a, name, diag=False):
    a.begin_kernel(name)
    guard(a, 256)
    a(f"s_load_dwordx2 s[36:37], s[0:1], {KA['wo']}\ns_load_dwordx2 s[38:39], s[0:1], {KA['ws']}")
    load_ptrs(a)
    B.common_setup(a)
    ids(a)
    st = Stamps(a, diag, 3)
    a("s_waitcnt lgkmcnt(0)")
    st.setup(sWAVE); st.stamp()
    setup_w(a, 36); setup_rest(a)
    o = Op2(a)
    o.consts(vX0, vC)
    o.prefill()
    a("s_waitcnt vmcnt(32)")
    o.start()
    st.stamp()
    o.main()
    st.stamp()
    o.expand()
    o.recv()
    st.stamp()
    o.epilogue(st)
    for s in o.base_store: a(s)
    st.stamp(); st.flush()
    a("s_endpgm")
    a.end_kernel(name, 256, 256, sgpr=102 if diag else 80)

def early_consts(a):
    a(f"s_load_dwordx2 s[68:69], s[0:1], {KA['x']}\ns_load_dwordx2 s[70:71], s[0:1], {KA['wr']}")
    a(f"v_lshlrev_b32 v15, 3, v12\nv_lshl_add_u32 v14, v13, 11, v15")
    a.srd(16, 38, 12 << 20)
    a(f"s_lshl_b32 s{sT0}, s{sNT}, 7\ns_lshl_b32 s{sT1}, s{sG}, 16\ns_add_u32 s{sT1}, s{sT1}, s{sT0}")
    a("s_waitcnt lgkmcnt(0)")
    a.srd(44, 68, 65536 - 1920, f"s{sT1}")
    a.srd(32, 70, 128, f"s{sT0}")
    Op2(a).consts(14, 15, 44, 16, 32)

def after_attention(a, st, sHEAD, sG64):
    o = Op2(a)
    for c in range(4):
        for p in range(4): o.vm.add(("W", c))
    a(f"s_lshr_b32 s{sT2}, s{sG}, 1\ns_lshl_b32 s{sT2}, s{sT2}, 7\ns_lshl_b32 s{sT1}, s{sKH}, 6\ns_add_u32 s{sT2}, s{sT2}, s{sT1}\ns_add_u32 s52, s{sT2}, {WS_F3}\nv_lshlrev_b32 v19, 2, v13")
    a(f"buffer_load_dword v18, v19, s[16:19], s52 offen sc1")
    a(f"s_load_dwordx2 s[46:47], s[0:1], {KA['out']}")
    a(f"s_lshl_b32 s{sT0}, s{sG64}, 7\ns_lshl_b32 s{sT1}, s{sHEAD}, 2\ns_add_u32 s{sT0}, s{sT0}, s{sT1}\ns_add_u32 s53, s{sT0}, {WS_F3}")
    a(f"v_mov_b32 v16, 0\nv_lshlrev_b32 v17, 24, v11")
    setup_rest(a, fused=True)
    if OPT["exp1"]: o.expand1()
    a("s_waitcnt vmcnt(1)")
    a(f"buffer_store_dword v16, v17, s[{S_L}:{S_L+3}], s53 offen sc1")
    st.stamp()
    if not OPT["exp1"]: o.expand1()
    ok = a.label("gotf3early")
    a(f"s_waitcnt vmcnt(1)\nv_cmp_eq_u32 vcc, -1, v18\ns_nop 0\ns_cbranch_vccz {ok}")
    o.poll(18, 1, [f"buffer_load_dword v18, v19, s[{S_L}:{S_L+3}], s52 offen sc1"], "f3", prew=False)
    a(f"{ok}:")
    o.start(late=(4, 8), mid=o.expand2)
    st.stamp()
    o.main()
    st.stamp()
    o.recv()
    st.stamp()
    o.epilogue(st)
    for s in o.base_store: a(s)
    return o
```

```python
from gen_common import *
OPT = dict(clr1=0, v2=0, wt='', pf1=0, modnt='', xnt='')

def allreduce8(a, regs, tmps, op="v_add_f32"):
    a("s_nop 1")
    for r_ in regs:
        a(f"{op}_dpp v{r_}, v{r_}, v{r_} row_ror:8 row_mask:0xf bank_mask:0xf")
    for sw in ("v_permlane16_swap_b32", "v_permlane32_swap_b32"):
        for r_, t in zip(regs, tmps):
            a(f"v_mov_b32 v{t}, v{r_}")
        a("s_nop 1")
        for r_, t in zip(regs, tmps):
            a(f"{sw} v{r_}, v{t}")
        a("s_nop 0")
        for r_, t in zip(regs, tmps):
            a(f"{op} v{r_}, v{r_}, v{t}")

def k_mod(a, name, diag=False):
    a.begin_kernel(name)
    if OPT["pf1"]:
        guard(a, 256)
        l = a.label("go")
        a(f"s_cmp_lt_u32 s2, 192\ns_cbranch_scc1 {l}")
        a(f"s_load_dwordx2 s[4:5], s[0:1], {KA['wq']}\ns_load_dwordx2 s[6:7], s[0:1], {KA['x']}")
        a("s_sub_u32 s10, s2, 192\ns_lshl_b32 s10, s10, 16\nv_lshlrev_b32 v1, 7, v0\ns_waitcnt lgkmcnt(0)")
        a.srd(16, 4, 8 << 20); a.srd(20, 6, 4 << 20)
        if OPT["pf1"] & 1: a("buffer_load_dword v2, v1, s[20:23], s10 offen")
        if OPT["pf1"] & 2: a(f"buffer_load_dword v3, v1, s[16:19], s10 offen\ns_add_u32 s10, s10, {4 << 20}\nbuffer_load_dword v4, v1, s[16:19], s10 offen")
        a(f"s_waitcnt vmcnt(0)\ns_endpgm\n{l}:")
    else:
        guard(a, 192)
    a(f"s_load_dwordx4 s[4:7], s[0:1], {KA['c']}")
    a(f"s_load_dwordx2 s[8:9], s[0:1], {KA['ws']}")
    a("""
    s_and_b32 s10, s2, 7
    s_lshr_b32 s11, s2, 3
    s_lshr_b32 s12, s11, 1
    s_lshl_b32 s12, s12, 4
    s_lshl_b32 s10, s10, 1
    s_add_u32 s12, s12, s10
    s_and_b32 s11, s11, 1
    s_add_u32 s12, s12, s11
    s_lshl_b32 s13, s12, 6
    v_lshrrev_b32 v1, 2, v0
    v_and_b32 v2, 3, v0
    v_mul_u32_u24 v3, 98304, v1
    v_lshl_add_u32 v3, v2, 4, v3
    v_lshlrev_b32 v1, 4, v1
    v_lshrrev_b32 v60, 6, v0
    """)
    for i in range(8):
        a(f"s_add_u32 s{32+i}, s13, {i*12288}")
    a("v_readfirstlane_b32 s14, v60")
    st = Stamps(a, diag, 0, vtmp=(62, 63));
    a("s_waitcnt lgkmcnt(0)")
    st.setup(14); st.stamp()
    a.srd(16, 4, 2048)
    a.srd(20, 6, 1024 * 12288)
    a.srd(24, 8, 12288, WS_MOD)
    a("buffer_load_dwordx4 v[4:7], v1, s[16:19], 0 offen")
    for i in range(8):
        a(f"buffer_load_dwordx4 {R('v', 8+4*i)}, v3, s[20:23], s{32+i} offen {OPT['modnt']}")
    a("s_waitcnt vmcnt(8)")
    for j in range(4):
        unpack(a, 40 + 2*j, 41 + 2*j, 4 + j)
    for j in range(8):
        a(f"v_mul_f32 v{48+j}, {f2u(-LOG2E)}, v{40+j}")
    for j in range(8):
        a(f"v_exp_f32 v{48+j}, v{48+j}")
    for j in range(8):
        a(f"v_add_f32 v{48+j}, 1.0, v{48+j}")
    for j in range(8):
        a(f"v_rcp_f32 v{48+j}, v{48+j}")
    for j in range(8):
        a(f"v_mul_f32 v{40+j}, v{40+j}, v{48+j}")
    for j in range(4):
        bf16_round(a, 40 + 2*j, 41 + 2*j, 40 + 2*j, 41 + 2*j, 56)
    for i in range(8):
        a(f"s_waitcnt vmcnt({7-i})")
        for j in range(4):
            unpack(a, 56, 57, 8 + 4*i + j)
            if i == 0:
                a(f"v_mul_f32 v{48+2*j}, v40, v56\nv_mul_f32 v{49+2*j}, v40, v57")
            else:
                a(f"v_fmac_f32 v{48+2*j}, v{40+i}, v56\nv_fmac_f32 v{49+2*j}, v{40+i}, v57")
    a("s_nop 1")
    for sh in (8, 4):
        for j in range(8):
            a(f"v_add_f32_dpp v{48+j}, v{48+j}, v{48+j} row_ror:{sh} row_mask:0xf bank_mask:0xf")
    a("""
    v_lshrrev_b32 v1, 4, v0
    v_lshlrev_b32 v1, 7, v1
    v_lshl_add_u32 v1, v2, 5, v1
    v_and_b32 v3, 15, v0
    v_cmp_gt_u32 vcc, 4, v3
    s_and_saveexec_b64 s[28:29], vcc
    ds_write_b128 v1, v[48:51]
    ds_write_b128 v1, v[52:55] offset:16
    s_mov_b64 exec, s[28:29]
    s_waitcnt lgkmcnt(0)
    s_barrier
    """)
    l = a.label("w0")
    a(f"s_cmp_eq_u32 s14, 0\ns_cbranch_scc1 {l}")
    st.stamp(); st.flush(); st.n -= 1 if diag else 0
    a(f"s_endpgm\n{l}:")
    a("""
    v_and_b32 v1, 31, v0
    v_lshrrev_b32 v2, 5, v0
    v_lshlrev_b32 v2, 11, v2
    v_lshl_add_u32 v2, v1, 2, v2
    """)
    for i in range(0, 8, 2):
        a(f"ds_read2_b32 v[{8+i}:{9+i}], v2 offset0:{i*32} offset1:{i*32+32}")
    for i in range(8, 16):
        a(f"ds_read_b32 v{8+i}, v2 offset:{i*128}")
    a("s_waitcnt lgkmcnt(0)")
    for st_ in (8, 4, 2, 1):
        for i in range(st_):
            a(f"v_add_f32 v{8+i}, v{8+i}, v{8+i+st_}")
    a("""
    v_mov_b32 v9, v8
    s_nop 1
    v_permlane32_swap_b32 v8, v9
    s_nop 0
    v_add_f32 v8, v8, v9
    v_cvt_pk_bf16_f32 v8, v8, v8
    v_lshlrev_b32 v1, 1, v1
    buffer_store_short v8, v1, s[24:27], s13 offen
    """)
    st.stamp(); st.flush()
    a("s_endpgm")
    a.end_kernel(name, 64, sgpr=102 if diag else 48)

def ln_core(a, X, sc, sh, T, wave_sgpr, lds_off, vrow64):
    t0, t1, t2, t3 = T[0], T[1], T[2], T[3]
    a(f"v_add_f32 v{t0}, v{X[0]}, v{X[1]}\nv_add_f32 v{t1}, v{X[2]}, v{X[3]}")
    for i in range(4, 16, 2):
        a(f"v_add_f32 v{t0}, v{t0}, v{X[i]}\nv_add_f32 v{t1}, v{t1}, v{X[i+1]}")
    a(f"v_add_f32 v{t0}, v{t0}, v{t1}")
    allreduce8(a, [t0], [t2])
    a(f"v_mul_f32 v{t0}, {f2u(1/128)}, v{t0}")
    for i in range(16):
        a(f"v_sub_f32 v{t2}, v{X[i]}, v{t0}")
        a(f"v_mul_f32 v{t1}, v{t2}, v{t2}" if i == 0 else f"v_fmac_f32 v{t1}, v{t2}, v{t2}")
    allreduce8(a, [t1], [t2])
    assert t1 == t0 + 1 and t0 % 2 == 0
    a(f"s_lshl_b32 s40, s{wave_sgpr}, 3\nv_add_u32 v{t2}, s40, v{vrow64}")
    a(f"ds_write_b64 v{t2}, v[{t0}:{t1}]")
    a("s_waitcnt lgkmcnt(0)\ns_barrier")
    B = T[4]
    assert B % 2 == 0
    for i in range(4):
        a(f"ds_read_b128 {R('v', B+4*i)}, v{vrow64} offset:{16*i}")
    a("s_waitcnt lgkmcnt(0)")
    a(f"v_add_f32 v{t0}, v{B}, v{B+2}\nv_add_f32 v{t1}, v{B+1}, v{B+3}")
    for i in range(2, 8):
        a(f"v_add_f32 v{t0}, v{t0}, v{B+2*i}\nv_add_f32 v{t1}, v{t1}, v{B+2*i+1}")
    a(f"v_mul_f32 v{t0}, 0.125, v{t0}".replace("0.125", f2u(0.125)))
    for i in range(8):
        a(f"v_sub_f32 v{t2}, v{B+2*i}, v{t0}")
        a(f"v_mul_f32 v{t3}, v{t2}, v{t2}" if i == 0 else f"v_fmac_f32 v{t3}, v{t2}, v{t2}")
    a(f"v_fmac_f32 v{t1}, {f2u(128.0)}, v{t3}")
    a(f"v_mul_f32 v{t1}, {f2u(1/1024)}, v{t1}")
    bf16_round(a, t0, t1, t0, t1, t2)
    a(f"v_add_f32 v{t1}, {f2u(1e-5)}, v{t1}")
    a(f"v_cvt_pk_bf16_f32 v{t1}, v{t1}, v{t1}\nv_lshlrev_b32 v{t1}, 16, v{t1}")
    a(f"v_sqrt_f32 v{t1}, v{t1}\ns_nop 0")
    a(f"v_cvt_pk_bf16_f32 v{t1}, v{t1}, v{t1}\nv_lshlrev_b32 v{t1}, 16, v{t1}")
    a(f"v_rcp_f32 v{t1}, v{t1}")
    u0, u1 = B, B + 1
    for j in range(8):
        x0, x1 = X[2*j], X[2*j+1]
        a(f"v_sub_f32 v{x0}, v{x0}, v{t0}\nv_sub_f32 v{x1}, v{x1}, v{t0}")
        bf16_round(a, x0, x1, x0, x1, t2)
        a(f"v_mul_f32 v{x0}, v{x0}, v{t1}\nv_mul_f32 v{x1}, v{x1}, v{t1}")
        bf16_round(a, x0, x1, x0, x1, t2)
        unpack(a, u0, u1, sc[j])
        a(f"v_add_f32 v{u0}, 1.0, v{u0}\nv_add_f32 v{u1}, 1.0, v{u1}")
        bf16_round(a, u0, u1, u0, u1, t2)
        a(f"v_mul_f32 v{x0}, v{x0}, v{u0}\nv_mul_f32 v{x1}, v{x1}, v{u1}")
        bf16_round(a, x0, x1, x0, x1, t2)
        unpack(a, u0, u1, sh[j])
        a(f"v_add_f32 v{x0}, v{x0}, v{u0}\nv_add_f32 v{x1}, v{x1}, v{u1}")
        a(f"v_cvt_pk_bf16_f32 v{sh[j]}, v{x0}, v{x1}")

def row_prologue(a):
    a("""
    v_lshrrev_b32 v4, 6, v0
    v_and_b32 v1, 7, v0
    v_readfirstlane_b32 s14, v4
    v_bfe_u32 v2, v0, 3, 3
    v_lshl_add_u32 v2, v4, 4, v2
    v_lshlrev_b32 v2, 4, v2
    """)

def k_ln1(a, name, diag=False):
    a.begin_kernel(name)
    guard(a, 256)
    a(f"s_load_dwordx2 s[4:5], s[0:1], {KA['x']}")
    a(f"s_load_dwordx2 s[8:9], s[0:1], {KA['ws']}")
    row_prologue(a)
    a("""
    v_lshl_add_u32 v3, v1, 11, v2
    s_lshl_b32 s13, s2, 14
    v_lshlrev_b32 v5, 6, v1
    """)
    st = Stamps(a, diag, 1, vtmp=(70, 71))
    a("s_waitcnt lgkmcnt(0)")
    st.setup(14); st.stamp()
    a.srd(16, 4, 2048 * 2048)
    a.srd(20, 8, 12288, WS_MOD)
    a.srd(24, 8, 4 << 20, WS_H)
    a("buffer_load_dwordx4 v[8:11], v3, s[16:19], s13 offen")
    a("buffer_load_dwordx4 v[12:15], v3, s[16:19], s13 offen offset:128")
    a("buffer_load_dwordx4 v[16:19], v2, s[20:23], 0 offen")
    a("buffer_load_dwordx4 v[20:23], v2, s[20:23], 0 offen offset:128")
    a("buffer_load_dwordx4 v[24:27], v2, s[20:23], 0 offen offset:2048")
    a("buffer_load_dwordx4 v[28:31], v2, s[20:23], 0 offen offset:2176")
    if OPT["clr1"]:
        a.srd(28, 8, 12 << 20)
        a(f"""
        v_mov_b32 v60, -1
        v_mov_b32 v61, -1
        v_mov_b32 v62, -1
        v_mov_b32 v63, -1
        v_lshlrev_b32 v64, 4, v0
        s_lshl_b32 s32, s2, 14
        s_add_u32 s32, s32, {WS_EX}
        s_add_u32 s33, s32, 8192
        buffer_store_dwordx4 v[60:63], v64, s[28:31], s32 offen sc1
        buffer_store_dwordx4 v[60:63], v64, s[28:31], s33 offen sc1
        s_lshl_b32 s32, s2, 11
        s_add_u32 s32, s32, {WS_ST}
        s_lshl_b32 s33, s2, 10
        s_add_u32 s34, s33, {WS_CH - 2048}
        s_cmp_eq_u32 s14, 2
        s_cselect_b32 s32, s34, s32
        s_add_u32 s34, s33, {WS_CB - 3072}
        s_cmp_eq_u32 s14, 3
        s_cselect_b32 s32, s34, s32
        s_lshl_b32 s33, s2, 4
        s_add_u32 s34, s33, {WS_F3 - 4096}
        s_cmp_eq_u32 s14, 4
        s_cselect_b32 s32, s34, s32
        v_mov_b32 v65, 0x7f000000
        v_cmp_ge_u32 vcc, 256, v0
        s_nop 1
        v_cndmask_b32 v64, v65, v64, vcc
        buffer_store_dwordx4 v[60:63], v64, s[28:31], s32 offen sc1
        """)
    a("""
    v_lshlrev_b32 v6, 4, v2
    v_lshl_add_u32 v6, v1, 4, v6
    s_lshr_b32 s15, s2, 1
    s_lshl_b32 s15, s15, 15
    s_and_b32 s12, s2, 1
    s_lshl_b32 s12, s12, 7
    s_add_u32 s15, s15, s12
    """)
    a(f"s_waitcnt vmcnt({7 if OPT['clr1'] else 4})")
    X = list(range(32, 48))
    for j in range(8):
        unpack(a, X[2*j], X[2*j+1], 8 + j)
    a(f"s_waitcnt vmcnt({3 if OPT['clr1'] else 0})")
    ln_core(a, X, list(range(24, 32)), list(range(16, 24)), [48, 49, 50, 51, 52], 14, 0, 5)
    a("buffer_store_dwordx4 v[16:19], v6, s[24:27], s15 offen " + OPT["wt"])
    a("buffer_store_dwordx4 v[20:23], v6, s[24:27], s15 offen offset:2048 " + OPT["wt"])
    st.stamp(); st.flush()
    a("s_endpgm")
    a.end_kernel(name, 72, sgpr=102 if diag else 48)

def k_ln2(a, name, nsplit=4, diag=False):
    a.begin_kernel(name)
    guard(a, 256)
    a(f"s_load_dwordx2 s[4:5], s[0:1], {KA['x']}")
    a(f"s_load_dwordx2 s[6:7], s[0:1], {KA['wr']}")
    a(f"s_load_dwordx2 s[8:9], s[0:1], {KA['ws']}")
    a(f"s_load_dwordx2 s[10:11], s[0:1], {KA['out']}")
    row_prologue(a)
    a("""
    v_lshl_add_u32 v3, v1, 11, v2
    s_lshl_b32 s13, s2, 14
    v_lshlrev_b32 v5, 6, v1
    v_lshlrev_b32 v6, 4, v2
    v_lshl_add_u32 v6, v1, 4, v6
    s_lshr_b32 s15, s2, 1
    s_lshl_b32 s15, s15, 15
    s_and_b32 s12, s2, 1
    s_lshl_b32 s12, s12, 7
    s_add_u32 s15, s15, s12
    """)
    st = Stamps(a, diag, 4, vtmp=(126, 127))
    a("s_waitcnt lgkmcnt(0)")
    st.setup(14); st.stamp()
    a.srd(16, 4, 2048 * 2048)
    a.srd(20, 8, 12288, WS_MOD)
    a.srd(24, 8, nsplit << 22, WS_P)
    a.srd(28, 6, 2048)
    a.srd(32, 10, 2048 * 2048)
    a.srd(36, 8, 16 << 20, 0)
    PB = 72
    for s in range(nsplit):
        if s: a(f"s_add_u32 s15, s15, {1 << 22}")
        a(f"buffer_load_dwordx4 {R('v', PB+8*s)}, v6, s[24:27], s15 offen")
        a(f"buffer_load_dwordx4 {R('v', PB+8*s+4)}, v6, s[24:27], s15 offen offset:2048")
    a("buffer_load_dwordx4 v[8:11], v3, s[16:19], s13 offen")
    a("buffer_load_dwordx4 v[12:15], v3, s[16:19], s13 offen offset:128")
    a("s_movk_i32 s41, 4096\ns_movk_i32 s42, 8192")
    GA, SB, CB, GB, WR = 104, 16, 24, 112, 120 - 64
    def ld(dst, soff, off):
        a(f"buffer_load_dwordx4 {R('v', dst)}, v2, s[20:23], {soff} offen offset:{off}")
        a(f"buffer_load_dwordx4 {R('v', dst+4)}, v2, s[20:23], {soff} offen offset:{off+128}")
    ld(GA, "s41", 0); ld(SB, "s41", 2048); ld(CB, "s42", 0); ld(GB, "s42", 2048)
    X = list(range(32, 48))
    a(f"s_waitcnt vmcnt({2*nsplit - 2 + 10})")
    for j in range(8):
        unpack(a, X[2*j], X[2*j+1], PB + j)
    for s in range(1, nsplit):
        a(f"s_waitcnt vmcnt({2*(nsplit-1-s) + 10})")
        for j in range(8):
            unpack(a, 48, 49, PB + 8*s + j)
            a(f"v_add_f32 v{X[2*j]}, v{X[2*j]}, v48\nv_add_f32 v{X[2*j+1]}, v{X[2*j+1]}, v49")
    WR = PB + 8
    a(f"buffer_load_dwordx4 {R('v', WR)}, v2, s[28:31], 0 offen")
    a(f"buffer_load_dwordx4 {R('v', WR+4)}, v2, s[28:31], 0 offen offset:128")
    a("s_waitcnt vmcnt(8)")
    X1P = PB
    for j in range(8):
        x0, x1 = X[2*j], X[2*j+1]
        bf16_round(a, x0, x1, x0, x1, 50)
        unpack(a, 48, 49, GA + j)
        a(f"v_mul_f32 v{x0}, v{x0}, v48\nv_mul_f32 v{x1}, v{x1}, v49")
        bf16_round(a, x0, x1, x0, x1, 50)
        unpack(a, 48, 49, 8 + j)
        a(f"v_add_f32 v{x0}, v{x0}, v48\nv_add_f32 v{x1}, v{x1}, v49")
        a(f"v_cvt_pk_bf16_f32 v{X1P+j}, v{x0}, v{x1}")
        unpack(a, x0, x1, X1P + j)
    a(f"s_add_u32 s43, s13, {WS_X1}\ns_add_u32 s44, s13, {WS_H2}")
    a(f"buffer_store_dwordx4 {R('v', X1P)}, v3, s[36:39], s43 offen " + OPT["wt"])
    a(f"buffer_store_dwordx4 {R('v', X1P+4)}, v3, s[36:39], s43 offen offset:128 " + OPT["wt"])
    a("s_waitcnt vmcnt(2)")
    ln_core(a, X, list(range(CB, CB + 8)), list(range(SB, SB + 8)), [48, 49, 50, 51, 52], 14, 0, 5)
    a(f"buffer_store_dwordx4 {R('v', SB)}, v3, s[36:39], s44 offen " + OPT["wt"])
    a(f"buffer_store_dwordx4 {R('v', SB+4)}, v3, s[36:39], s44 offen offset:128 " + OPT["wt"])
    for j in range(8):
        x0, x1 = X[2*j], X[2*j+1]
        unpack(a, x0, x1, SB + j)
        unpack(a, 48, 49, WR + j)
        a(f"v_mul_f32 v52, v{x0}, v48\nv_mul_f32 v53, v{x1}, v49" if j == 0 else f"v_fmac_f32 v52, v{x0}, v48\nv_fmac_f32 v53, v{x1}, v49")
        unpack(a, 48, 49, GB + j)
        a(f"v_mul_f32 v{x0}, v{x0}, v48\nv_mul_f32 v{x1}, v{x1}, v49")
        bf16_round(a, x0, x1, x0, x1, 50)
        unpack(a, 48, 49, X1P + j)
        a(f"v_add_f32 v{x0}, v{x0}, v48\nv_add_f32 v{x1}, v{x1}, v49")
        a(f"v_cvt_pk_bf16_f32 v{GB+j}, v{x0}, v{x1}")
    a(f"buffer_store_dwordx4 {R('v', GB)}, v3, s[32:35], s13 offen " + OPT["wt"])
    a(f"buffer_store_dwordx4 {R('v', GB+4)}, v3, s[32:35], s13 offen offset:128 " + OPT["wt"])
    a("v_add_f32 v52, v52, v53")
    allreduce8(a, [52], [53])
    a("""
    s_lshl_b32 s40, s14, 2
    v_lshlrev_b32 v53, 5, v1
    v_add_u32 v54, s40, v53
    ds_write_b32 v54, v52 offset:512
    s_waitcnt lgkmcnt(0)
    s_barrier
    """)
    l = a.label("w0")
    a(f"s_cmp_eq_u32 s14, 0\ns_cbranch_scc1 {l}")
    st.stamp(); st.flush(); st.n -= 1 if diag else 0
    a(f"s_endpgm\n{l}:")
    a(f"""
    ds_read_b128 v[56:59], v53 offset:512
    ds_read_b128 v[60:63], v53 offset:528
    s_lshl_b32 s40, s2, 3
    v_add_u32 v54, s40, v1
    v_sub_u32 v55, 2047, v54
    v_lshlrev_b32 v54, 2, v54
    s_waitcnt lgkmcnt(0)
    v_add_f32 v56, v56, v57
    v_add_f32 v58, v58, v59
    v_add_f32 v60, v60, v61
    v_add_f32 v62, v62, v63
    v_add_f32 v56, v56, v58
    v_add_f32 v60, v60, v62
    v_add_f32 v56, v56, v60
    v_cvt_pk_bf16_f32 v56, v56, v56
    v_ashrrev_i32 v57, 31, v56
    v_or_b32 v57, 0x80000000, v57
    v_xor_b32 v56, v56, v57
    v_and_b32 v56, 0xffff0000, v56
    v_or_b32 v56, v56, v55
    s_mov_b32 s40, {WS_KEYS}
    buffer_store_dword v56, v54, s[36:39], s40 offen
    """)
    st.stamp(); st.flush()
    a("s_endpgm")
    a.end_kernel(name, 128, sgpr=102 if diag else 48)

def top2_scan(a, srd, K0, lane16):
    m1, m2, t, u = K0, K0 + 1, K0 + 2, K0 + 3
    if not OPT["v2"]:
        a(f"v_max_u32 v4, v{K0}, v{K0+1}\nv_min_u32 v5, v{K0}, v{K0+1}")
        for i in range(2, 32):
            a(f"v_med3_u32 v5, v4, v5, v{K0+i}\nv_max_u32 v4, v4, v{K0+i}")
    for sh in (8, 4, 2, 1):
        a("s_nop 1")
        a(f"v_min_u32_dpp v6, v4, v4 row_ror:{sh} row_mask:0xf bank_mask:0xf")
        a(f"v_max_u32_dpp v7, v5, v5 row_ror:{sh} row_mask:0xf bank_mask:0xf")
        a(f"v_max_u32_dpp v4, v4, v4 row_ror:{sh} row_mask:0xf bank_mask:0xf")
        a(f"v_max_u32 v5, v6, v7")
    a("s_nop 1")
    a("v_readlane_b32 s50, v4, 0\nv_readlane_b32 s51, v5, 0")
    for ln in (16, 32, 48):
        a(f"v_readlane_b32 s52, v4, {ln}\nv_readlane_b32 s53, v5, {ln}\ns_nop 3")
        a("s_min_u32 s54, s50, s52\ns_max_u32 s51, s51, s53\ns_max_u32 s50, s50, s52\ns_max_u32 s51, s51, s54")

def k_moe(a, name, diag=False):
    a.begin_kernel(name)
    guard(a, 224)
    a(f"s_load_dwordx4 s[4:7], s[0:1], {KA['wg']}")
    a(f"s_load_dwordx2 s[8:9], s[0:1], {KA['wd']}")
    a(f"s_load_dwordx2 s[10:11], s[0:1], {KA['ws']}")
    a("""
    v_lshrrev_b32 v4, 6, v0
    v_and_b32 v1, 63, v0
    v_readfirstlane_b32 s14, v4
    s_and_b32 s12, s2, 7
    s_lshr_b32 s13, s2, 3
    s_lshr_b32 s15, s13, 2
    s_lshl_b32 s15, s15, 5
    s_lshl_b32 s12, s12, 2
    s_add_u32 s15, s15, s12
    s_and_b32 s13, s13, 3
    s_add_u32 s15, s15, s13
    v_lshlrev_b32 v2, 4, v1
    v_lshrrev_b32 v3, 1, v1
    v_mul_u32_u24 v3, 7168, v3
    v_and_b32 v5, 1, v1
    v_lshl_add_u32 v3, v5, 4, v3
    v_lshrrev_b32 v6, 5, v1
    v_and_b32 v7, 31, v1
    v_lshlrev_b32 v7, 4, v7
    v_lshl_add_u32 v8, v6, 11, v7
    """)
    st = Stamps(a, diag, 5, vtmp=(126, 127))
    a("s_waitcnt lgkmcnt(0)")
    st.setup(14); st.stamp()
    a.srd(16, 4, 1024 * 7168)
    a.srd(20, 6, 1024 * 7168)
    a.srd(24, 8, 3584 * 2048)
    a.srd(28, 10, 16 << 20, 0)
    if OPT["v2"]:
        a(f"s_mov_b32 s40, {WS_KEY2}\nv_lshlrev_b32 v9, 3, v1\nbuffer_load_dwordx2 v[4:5], v9, s[28:31], s40 offen")
    else:
        a(f"s_mov_b32 s40, {WS_KEYS}\ns_mov_b32 s41, {WS_KEYS + 4096}")
        for i in range(8):
            a(f"buffer_load_dwordx4 {R('v', 16+4*i)}, v2, s[28:31], s{40 + i//4} offen offset:{(i%4)*1024}")
    a(f"s_mul_i32 s42, s14, 24576\ns_mul_i32 s43, s14, {256*7168}\ns_lshl_b32 s44, s15, 5\ns_add_u32 s43, s43, s44")
    for p in range(8):
        for m in range(2):
            a(f"s_add_u32 m0, s42, {m*8192 + p*1024}\ns_nop 0")
            a(f"buffer_load_dwordx4 v3, s[{16+4*m}:{19+4*m}], s43 offen lds")
        if p < 7: a(f"s_add_u32 s43, s43, {32*7168}")
    a("s_lshl_b32 s43, s15, 15\ns_lshl_b32 s44, s14, 9\ns_add_u32 s43, s43, s44")
    for p in range(8):
        a(f"s_add_u32 m0, s42, {16384 + p*1024}\ns_nop 0")
        a(f"buffer_load_dwordx4 v8, s[24:27], s43 offen lds")
        if p < 7: a(f"s_add_u32 s43, s43, 4096")
    a("s_waitcnt vmcnt(24)")
    top2_scan(a, 28, 16, 2)
    a(f"""
    s_and_b32 s52, s50, 0xffff
    s_and_b32 s53, s51, 0xffff
    s_sub_u32 s52, 2047, s52
    s_sub_u32 s53, 2047, s53
    """)
    if OPT["v2"]:
        a("s_lshr_b32 s52, s52, 5\ns_lshr_b32 s53, s53, 5\ns_cmp_eq_u32 s52, s53\ns_cselect_b32 s54, 1, 0\ns_lshl_b32 s52, s52, 1\ns_lshl_b32 s53, s53, 1\ns_add_u32 s53, s53, s54")
    a(f"""
    s_lshl_b32 s52, s52, 11
    s_lshl_b32 s53, s53, 11
    v_and_b32 v5, 1, v1
    v_cmp_eq_u32 vcc, 1, v5
    v_mov_b32 v6, s52
    v_mov_b32 v7, s53
    v_cndmask_b32 v6, v6, v7, vcc
    v_and_b32 v7, 48, v1
    v_add_u32 v6, v6, v7
    s_lshl_b32 s44, s14, 9
    s_add_u32 s44, s44, {WS_CH if OPT["v2"] else WS_H2}
    """)
    for ks in range(8):
        a(f"buffer_load_dwordx4 {R('v', 16+4*ks)}, v6, s[28:31], s44 offen offset:{ks*64}")
    l = a.label("nopub")
    a(f"s_or_b32 s45, s2, s14\ns_cmp_eq_u32 s45, 0\ns_cbranch_scc0 {l}")
    a(f"v_mov_b32 v10, s50\nv_mov_b32 v11, s51\nv_mov_b32 v9, 0\ns_mov_b32 s45, {WS_TOP}\nbuffer_store_dwordx2 v[10:11], v9, s[28:31], s45 offen\ns_waitcnt vmcnt(0)")
    a(f"{l}:")
    a("""
    v_lshrrev_b32 v5, 4, v1
    v_lshlrev_b32 v5, 8, v5
    v_and_b32 v7, 15, v1
    v_lshl_add_u32 v5, v7, 3, v5
    v_add_u32 v5, s42, v5
    s_waitcnt vmcnt(16)
    """)
    for half in range(2):
        for ks in range(4 * half, 4 * half + 4):
            for m in range(2):
                for jj in range(2):
                    d = 48 + 8 * (ks % 4) + 4 * m + 2 * jj
                    a(f"ds_read_b64_tr_b16 v[{d}:{d+1}], v5 offset:{m*8192 + ks*1024 + jj*128}")
            if ks % 4 == 2:
                a("s_waitcnt lgkmcnt(8)")
        a("s_waitcnt vmcnt(0) lgkmcnt(0)")
        for ks in range(4 * half, 4 * half + 4):
            for m in range(2):
                c = "0" if ks == 0 else R('v', 80 + 4*m)
                a(f"v_mfma_f32_16x16x32_bf16 {R('v', 80+4*m)}, {R('v', 48 + 8*(ks%4) + 4*m)}, {R('v', 16+4*ks)}, {c}")
    a("s_lshl_b32 s45, s14, 11\nv_add_u32 v9, s45, v2\nv_add_u32 v9, 98304, v9\nv_add_u32 v10, 98304, v2\ns_nop 7")
    a("ds_write_b128 v9, v[80:83]\nds_write_b128 v9, v[84:87] offset:1024")
    a("""
    v_lshrrev_b32 v5, 2, v1
    v_lshlrev_b32 v5, 9, v5
    v_and_b32 v7, 3, v1
    v_lshl_add_u32 v5, v7, 3, v5
    v_add_u32 v5, s42, v5
    """)
    for nb in range(16):
        if nb == 12: a("s_waitcnt lgkmcnt(4)")
        a(f"ds_read_b64_tr_b16 v[{16+2*nb}:{17+2*nb}], v5 offset:{16384 + nb*32}")
    a("s_waitcnt lgkmcnt(0)\ns_barrier")
    for w in range(4):
        a(f"ds_read_b128 {R('v', 48+8*w)}, v10 offset:{w*2048}\nds_read_b128 {R('v', 52+8*w)}, v10 offset:{w*2048+1024}")
    a("s_waitcnt lgkmcnt(0)")
    for i in range(8):
        a(f"v_add_f32 v{48+i}, v{48+i}, v{56+i}\nv_add_f32 v{64+i}, v{64+i}, v{72+i}")
    for i in range(8):
        a(f"v_add_f32 v{48+i}, v{48+i}, v{64+i}")
    for j in range(4):
        bf16_round(a, 48 + 2*j, 49 + 2*j, 48 + 2*j, 49 + 2*j, 56)
    for i in range(4): a(f"v_mul_f32 v{56+i}, {f2u(-LOG2E)}, v{48+i}")
    for i in range(4): a(f"v_exp_f32 v{56+i}, v{56+i}")
    for i in range(4): a(f"v_add_f32 v{56+i}, 1.0, v{56+i}")
    for i in range(4): a(f"v_rcp_f32 v{56+i}, v{56+i}")
    for i in range(4): a(f"v_mul_f32 v{48+i}, v{48+i}, v{56+i}")
    for j in range(2):
        bf16_round(a, 48 + 2*j, 49 + 2*j, 48 + 2*j, 49 + 2*j, 56)
    for i in range(4): a(f"v_mul_f32 v{48+i}, v{48+i}, v{52+i}")
    a("v_cvt_pk_bf16_f32 v56, v48, v49\nv_cvt_pk_bf16_f32 v57, v50, v51")
    a("v_bfe_u32 v7, v1, 1, 3")
    for j in range(8):
        a(f"v_cmp_eq_u32 vcc, {j}, v7\ns_nop 1\nv_cndmask_b32 v{60+2*j}, 0, v56, vcc\nv_cndmask_b32 v{61+2*j}, 0, v57, vcc")
    a("s_nop 1")
    for h in range(2):
        for j in range(8):
            nb = 8 * h + j
            c = "0" if j == 0 else R('v', 80 + 4*h)
            a(f"v_mfma_f32_16x16x16_bf16 {R('v', 80+4*h)}, v[{16+2*nb}:{17+2*nb}], v[{60+2*j}:{61+2*j}], {c}")
    a(f"""
    v_and_b32 v5, 1, v1
    v_lshlrev_b32 v5, 12, v5
    v_lshl_add_u32 v5, v7, 6, v5
    v_and_b32 v6, 48, v1
    v_add_u32 v5, v5, v6
    s_lshl_b32 s45, s15, 13
    s_lshl_b32 s44, s14, 10
    s_add_u32 s45, s45, s44
    s_add_u32 s45, s45, {WS_YP}
    s_nop 1
    buffer_store_dwordx4 v[80:83], v5, s[28:31], s45 offen {OPT['wt']}
    buffer_store_dwordx4 v[84:87], v5, s[28:31], s45 offen offset:512 {OPT['wt']}
    """)
    st.stamp(); st.flush()
    a("s_endpgm")
    a.end_kernel(name, 128, sgpr=102 if diag else 64)

def k_fin(a, name, diag=False):
    a.begin_kernel(name)
    guard(a, 64)
    a(f"s_load_dwordx2 s[8:9], s[0:1], {KA['out']}")
    a(f"s_load_dwordx2 s[10:11], s[0:1], {KA['ws']}")
    a("""
    v_lshrrev_b32 v4, 6, v0
    v_and_b32 v1, 7, v0
    v_readfirstlane_b32 s14, v4
    v_lshrrev_b32 v2, 3, v0
    v_lshlrev_b32 v2, 13, v2
    v_lshl_add_u32 v2, v1, 4, v2
    """)
    st = Stamps(a, diag, 6, vtmp=(62, 63))
    a("s_waitcnt lgkmcnt(0)")
    st.setup(14); st.stamp()
    a(f"s_load_dwordx2 s[50:51], s[10:11], {WS_TOP}")
    a.srd(28, 10, 16 << 20, 0)
    a.srd(32, 8, 2048 * 2048)
    a(f"s_lshl_b32 s40, s2, 7\ns_add_u32 s40, s40, {WS_YP}")
    for i in range(7):
        a(f"buffer_load_dwordx4 {R('v', 8+4*i)}, v2, s[28:31], s40 offen")
        if i < 6: a(f"s_add_u32 s40, s40, {32*8192}")
    a(f"""
    s_waitcnt lgkmcnt(0)
    s_xor_b32 s58, s50, s51
    s_and_b32 s58, s58, 0x7e0
    s_cselect_b32 s58, 0, 2048
    s_cmp_lt_u32 s2, 32
    s_cselect_b32 s58, 0, s58
    s_cselect_b32 s50, s50, s51
    s_and_b32 s52, s50, 0xffff
    s_sub_u32 s52, 2047, s52
    s_and_b32 s52, s52, 2047
    s_lshl_b32 s52, s52, 11
    s_and_b32 s53, s2, 31
    s_lshl_b32 s53, s53, 6
    s_add_u32 s52, s52, s53
    s_add_u32 s54, s52, {WS_H2}
    s_add_u32 s55, s52, {WS_X1}
    """)
    if OPT["v2"]:
        a(f"s_lshr_b32 s55, s52, 16\ns_lshl_b32 s55, s55, 12\ns_add_u32 s55, s55, s58\ns_add_u32 s55, s55, s53\ns_add_u32 s55, s55, {WS_CB}")
    a(f"""
    s_add_u32 s53, s53, {WS_MOD + 10240}
    v_lshlrev_b32 v3, 3, v1
    buffer_load_dwordx2 v[40:41], v3, s[28:31], s54 offen
    buffer_load_dwordx2 v[42:43], v3, s[28:31], s55 offen
    buffer_load_dwordx2 v[44:45], v3, s[28:31], s53 offen
    """)
    for i in range(1, 7):
        a(f"s_waitcnt vmcnt({6 - i + 3})")
        for j in range(4):
            a(f"v_add_f32 v{8+j}, v{8+j}, v{8+4*i+j}")
    allreduce8(a, [8, 9, 10, 11], [12, 13, 14, 15])
    a("""
    s_lshl_b32 s40, s14, 7
    v_lshlrev_b32 v5, 4, v1
    v_add_u32 v6, s40, v5
    ds_write_b128 v6, v[8:11]
    s_waitcnt lgkmcnt(0)
    s_barrier
    """)
    l = a.label("w0")
    a(f"s_cmp_eq_u32 s14, 0\ns_cbranch_scc1 {l}")
    st.stamp(); st.flush(); st.n -= 1 if diag else 0
    a(f"s_endpgm\n{l}:")
    for w in range(4):
        a(f"ds_read_b128 {R('v', 8+4*w)}, v5 offset:{128*w}")
    a(f"""
    s_and_b32 s56, s50, 0xffff0000
    s_ashr_i32 s57, s56, 31
    s_not_b32 s57, s57
    s_or_b32 s57, s57, 0x80000000
    s_xor_b32 s56, s56, s57
    s_and_b32 s56, s56, 0xffff0000
    v_mov_b32 v30, s56
    v_mul_f32 v30, {f2u(-LOG2E)}, v30
    v_exp_f32 v30, v30
    s_nop 0
    v_add_f32 v30, 1.0, v30
    v_rcp_f32 v30, v30
    s_nop 0
    v_cvt_pk_bf16_f32 v30, v30, v30
    v_lshlrev_b32 v30, 16, v30
    s_waitcnt vmcnt(0) lgkmcnt(0)
    """)
    for j in range(4):
        a(f"v_add_f32 v{8+j}, v{8+j}, v{12+j}\nv_add_f32 v{16+j}, v{16+j}, v{20+j}")
    for j in range(4):
        a(f"v_add_f32 v{8+j}, v{8+j}, v{16+j}")
    for j in range(2):
        x0, x1 = 8 + 2*j, 9 + 2*j
        bf16_round(a, x0, x1, x0, x1, 31)
        a(f"v_mul_f32 v{x0}, v{x0}, v30\nv_mul_f32 v{x1}, v{x1}, v30")
        bf16_round(a, x0, x1, x0, x1, 31)
        if not OPT["v2"]:
            unpack(a, 32, 33, 40 + j)
            a(f"v_add_f32 v{x0}, v{x0}, v32\nv_add_f32 v{x1}, v{x1}, v33")
            bf16_round(a, x0, x1, x0, x1, 31)
        unpack(a, 32, 33, 44 + j)
        a(f"v_mul_f32 v{x0}, v{x0}, v32\nv_mul_f32 v{x1}, v{x1}, v33")
        if not OPT["v2"]: bf16_round(a, x0, x1, x0, x1, 31)
        unpack(a, 32, 33, 42 + j)
        a(f"v_add_f32 v{x0}, v{x0}, v32\nv_add_f32 v{x1}, v{x1}, v33")
        a(f"v_cvt_pk_bf16_f32 v{34+j}, v{x0}, v{x1}")
    a("buffer_store_dwordx2 v[34:35], v3, s[32:35], s52 offen")
    st.stamp(); st.flush()
    a("s_endpgm")
    a.end_kernel(name, 64, sgpr=102 if diag else 64)
```

```python
import sys
from gen_common import *
import gen_small as S, gen_big as B, gen_op2 as O2

HEAD = open("adaLN_cond__mha_block_cached__moe_arch_mod__prompt.s.ref").read().split("\n")[:16]

EXTRA = []
def generate(diag=False, force_safe=False):
    a = Asm()
    launches = [("mod_kernel", 256 if S.OPT["pf1"] else 192, 512, 4096), ("ln1_kernel", 256, 512, 1024), ("attn_kernel", 256, 256, B.LDS_TOTAL),
                ("oproj_kernel", 256, 256, B.LDS_TOTAL), ("ln2_kernel", 256, 512, 1024), ("moe_kernel", 224, 256, 106496), ("fin_kernel", 64, 256, 512)]
    S.k_mod(a, "mod_kernel", diag)
    S.k_ln1(a, "ln1_kernel", diag)
    B.k_attn(a, "attn_kernel", diag, force_safe)
    if S.OPT["v2"]:
        launches = [l for l in launches if l[0] != "ln2_kernel"]
        if B.OPT["fuse3"]: launches = [l for l in launches if l[0] != "oproj_kernel"]
        else: O2.k_op2(a, "oproj_kernel", diag)
    else:
        B.k_oproj(a, "oproj_kernel", diag)
        S.k_ln2(a, "ln2_kernel", 4, diag)
    S.k_moe(a, "moe_kernel", diag)
    S.k_fin(a, "fin_kernel", diag)
    if EXTRA:
        a.begin_kernel("nop_kernel"); a("s_endpgm"); a.end_kernel("nop_kernel", 8, sgpr=16)
        for pos in sorted(EXTRA, reverse=True):
            launches.insert(pos, ("nop_kernel", 256, 64, 0))
    hdr = HEAD + [f"; @launch kernel={n} grid=({g},1,1) block=({b},1,1) lds={l}" for n, g, b, l in launches]
    return a.text(hdr)

if __name__ == "__main__":
    out = sys.argv[1]
    for arg in sys.argv[2:]:
        if "=" in arg:
            k, v = arg.split("=")
            v = int(v) if v.isdigit() and k != "extra" else v.replace("+", " ")
            if k in ("vg", "rg"): v = [int(c) for c in arg.split("=")[1]]
            if k == "extra": EXTRA.extend(int(c) for c in str(v))
            for M in (S, B, O2):
                if k in M.OPT: M.OPT[k] = v
    open(out, "w").write(generate(diag="diag" in sys.argv, force_safe="safe" in sys.argv))
```

```python
from common import *
from front import *

ACC = 16
AFR = [144 + 4*i for i in range(4)]
BRING = [("v", 160 + 4*i) for i in range(16)] + [("v", 232 + 4*i) for i in range(4)] + [("a", 144 + 4*i) for i in range(12)]
CST = 200

class QProj:
    def __init__(self, a): self.a = a
    def setup(self):
        a = self.a
        a(f"""
        v_lshrrev_b32 v{vA}, 2, v{vLANE}
        v_mul_u32_u24 v{vA}, {PIECE}, v{vA}
        v_and_b32 v{vKV}, 3, v{vLANE}
        v_lshl_add_u32 v{vA}, v{vKV}, 3, v{vA}
        v_add_u32 v{vA}, {VRING}, v{vA}
        v_lshrrev_b32 v{vWOFF}, 1, v{vG}
        v_lshlrev_b32 v{vWOFF}, 5, v{vWOFF}
        v_and_b32 v{vKV}, 1, v{vG}
        v_lshl_add_u32 v{vWOFF}, v{vKV}, 2, v{vWOFF}
        v_lshl_add_u32 v{vWOFF}, v10, 3, v{vWOFF}
        v_lshlrev_b32 v{vWOFF}, 13, v{vWOFF}
        v_lshl_add_u32 v{vWOFF}, v{vQ}, 4, v{vWOFF}
        s_lshl_b32 s{sT0}, s{sHEAD}, 8
        s_mov_b32 s{sWOFF}, 0
        """)
        a.srd(S_W, PTR["wq"], (8 << 20) - 31*256, f"s{sT0}")
    def acc(self, nb, qb): return R("v", ACC + 4*(qb*8 + nb))
    def bfrag(self, c, qb, ks):
        f, i = BRING[(c % 4)*8 + qb*2 + ks]; return R(f, i)
    def a_reads(self, c, nb):
        return [f"ds_read_b64_tr_b16 {R('v', AFR[(nb % 2)*2 + ks] + 2*jj, 2)}, v{vA} offset:{(c % 4)*TILE + (2*ks + jj)*256 + nb*32}" for ks in range(2) for jj in range(2)]
    def dma(self, c, p):
        return (f"s_add_u32 m0, s{sMW}, {VRING + (c % 4)*TILE + p*PIECE}", f"buffer_load_dwordx4 v{vWOFF}, {S4(S_W)}, s{sWOFF} offen lds",
                f"s_add_u32 s{sWOFF}, s{sWOFF}, {8192 if p < 3 else 61*8192}", ("W", c))
    def bload(self, c, i):
        qb, ks = i // 2, i % 2
        return (None, f"buffer_load_dwordx4 {self.bfrag(c, qb, ks)}, v{vBOFF+qb}, {S4(S_B)}, s{sBOFF} offen offset:{ks*1024} sc1",
                f"s_add_u32 s{sBOFF}, s{sBOFF}, 2048" if i == 7 else None, ("B", c))
    def issue(self, op, vm):
        a = self.a
        if op[0]: a(op[0]); a("s_nop 0")
        a(op[1]); vm.add(op[3])
        if op[2]: a(op[2])
    def w_prologue(self, vm):
        for c in range(4):
            for p in range(4 if c < 3 else 1): self.issue(self.dma(c, p), vm)
    def steady(self, c, nb):
        ops = [self.bload(c + 3, nb)] if c + 3 < 16 else []
        if nb % 2 == 1:
            cc, p = (c + 4, 0) if nb == 7 else (c + 3, (nb + 1)//2)
            if cc < 16: ops.append(self.dma(cc, p))
        return ops
    def chunk(self, a, c, vm, extra=None, need=None):
        last = c == 15
        for nb in range(8):
            ms = [mf(self.acc(nb, qb), R("v", AFR[(nb % 2)*2 + ks]), self.bfrag(c, qb, ks)) for qb in range(4) for ks in ((0, 1) if qb % 2 == 0 else (1, 0))]
            gaps = {g: [] for g in range(8)}
            if not (last and nb == 7):
                rd = self.a_reads(c, nb + 1) if nb < 7 else self.a_reads(c + 1, 0)
                gaps[0] += rd[0:2]; gaps[1] += rd[2:4]
            ops = self.steady(c, nb)
            while extra and len(ops) < 2: ops.append(extra.pop(0))
            for k, op in enumerate(ops):
                g = 3 + 2*k
                if op[0]: gaps[g - 1].insert(0, op[0])
                gaps[g].append(op[1]); vm.add(op[3])
                if op[2]: gaps[g + 1].append(op[2])
            if nb == 6: gaps[7] += [f"s_waitcnt vmcnt({vm.count(*(need or [('W', c + 1), ('B', c + 1)]))}) lgkmcnt(0)", "s_barrier"]
            elif not (last and nb == 7): gaps[7].append("s_waitcnt lgkmcnt(0)")
            emit(a, ms, gaps)
    def run(self, tail_ops, st):
        a = self.a
        for qb in range(4): a(f"v_add_u32 v{vBOFF+qb}, {qb*32768}, v{vL16}")
        a(f"s_lshl_b32 s{sT0}, s{sG64}, 17\ns_add_u32 s{sT0}, s{sT0}, {WS_H}\ns_mov_b32 s{sBOFF}, 0")
        a.srd(S_B, PTR["ws"], 1 << 17, f"s{sT0}")
        vm = VM()
        vm.add(("W", 0))
        for c in range(3):
            for i in range(8): self.issue(self.bload(c, i), vm)
            if c == 0: self.between()
            for p in range(4 if c < 2 else 1): self.issue(self.dma(c + 1, p), vm)
        a("s_barrier")
        for s in self.a_reads(0, 0): a(s)
        a(f"s_waitcnt vmcnt({vm.count(('B', 0))}) lgkmcnt(0)")
        st()
        bodies = []
        for b in range(3):
            t = Asm()
            for c in range(4*b, 4*b + 4): self.chunk(t, c, vm)
            bodies.append(t.lines)
        l = a.label("qproj")
        a(f"s_mov_b32 s{sCNT}, 0\n{l}:")
        a.lines += strictest(bodies)
        a(f"s_add_u32 s{sCNT}, s{sCNT}, 1\ns_cmp_lt_u32 s{sCNT}, 3\ns_cbranch_scc1 {l}")
        self.chunk(a, 12, vm)
        self.chunk(a, 13, vm, tail_ops)
        self.chunk(a, 14, vm, tail_ops)
        self.chunk(a, 15, vm, tail_ops, need=[("K", 0)])
        assert not tail_ops
        return vm

def strictest(bodies):
    import re
    out = list(bodies[0])
    for o in bodies[1:]:
        assert len(o) == len(out), (len(o), len(out))
        for i, (p, q) in enumerate(zip(out, o)):
            if p != q:
                np_, nq = (int(re.search(r"vmcnt\((\d+)\)", z).group(1)) for z in (p, q))
                assert re.sub(r"vmcnt\(\d+\)", "", p) == re.sub(r"vmcnt\(\d+\)", "", q)
                out[i] = p if np_ < nq else q
    return out

QF, SB_, MB, PB_, KF, VF, ONES, IDX = 16, 80, 96, 112, 176, 208, 224, 228
OACC, LACC = 0, 128
TA, TB, NEG, DUM = 96, 100, 104, 108
sGA, sST, sWT, sR1 = sT0, sT1, sT2, sT3

class Attn:
    def __init__(self, a, safe, wpre=None):
        self.a, self.safe, self.wpre = a, safe, wpre
    def kread(self, T, kb, ds):
        return f"ds_read_b128 {R('v', KF + 16*(kb % 2) + 4*ds)}, v{vKADDR} offset:{(T % 4)*TILE + kb*256 + ds*64}"
    def vreads(self, T, db, ks):
        return [f"ds_read_b64_tr_b16 {R('v', VF + 8*(db % 2) + 4*ks + 2*jj, 2)}, v{vA} offset:{(T % 4)*TILE + (2*ks + jj)*256 + db*32}" for jj in range(2)]
    def dma(self, kind, T, p):
        ring, srd, so = (KRING, S_K, sKOFF) if kind == "K" else (VRING, S_V, sVOFF)
        return (f"s_add_u32 m0, s{sMW}, {ring + (T % 4)*TILE + 32*p}", f"buffer_load_dwordx4 v{vKV}, {S4(srd)}, s{so} offen offset:{p*1024} lds",
                f"s_add_u32 s{so}, s{so}, 16384" if p == 3 else None, (kind, T))
    def first_dmas(self):
        seq = [("K", 0, p) for p in range(4)]
        for T in range(2): seq += [("K", T + 1, p) for p in range(4)] + [("V", T, p) for p in range(4)]
        return [self.dma(*x) for x in seq]
    def qk(self, kb, qb):
        order = (0, 1, 2, 3) if qb % 2 == 0 else (3, 2, 1, 0)
        return [mf(R("v", SB_ + 4*qb), R("v", KF + 16*(kb % 2) + 4*ds), R("v", QF + 16*qb + 4*ds),
                   (R("v", MB + 4*qb) if self.safe else "0") if n == 0 else None) for n, ds in enumerate(order)]
    def pv(self, T, db, qbs):
        return [mf(R("a", OACC + 4*(qb*8 + db)), R("v", VF + 8*(db % 2) + 4*ks), R("v", PB_ + 32*(T % 2) + 8*qb + 4*ks))
                for qb in qbs for ks in ((0, 1) if qb % 2 == 0 else (1, 0))]
    def exp(self, blk, i):
        r_ = SB_ + 4*(blk % 4) + i
        return f"v_exp_f32 v{r_}, v{r_}"
    def cvt(self, X, blk, h):
        kb, qb = blk // 4, blk % 4
        return f"v_cvt_pk_bf16_f32 v{PB_ + 32*(X % 2) + 8*qb + 2*kb + h}, v{SB_ + 4*qb + 2*h}, v{SB_ + 4*qb + 2*h + 1}"
    def smf(self, T, qb):
        return f"v_smfmac_f32_16x16x64_bf16 {R('a', LACC + 4*qb)}, {R('v', ONES)}, {R('v', PB_ + 32*(T % 2) + 8*qb, 8)}, v{IDX}"
    def kread_at(self, T, s):
        n = s + 5
        return T + 1 + n // 16, (n % 16) // 4, n % 4
    def dma_ops(self, T, lo=0):
        ops = {}
        for s in range(1, 16, 2):
            n = (s - 11) // 2
            st = T + 3 if n >= 0 else T + 2
            n %= 8
            if s >= lo: ops[s] = ("K", st + 1, n) if n < 4 else ("V", st, n - 4)
        return ops
    def extras(self, T):
        if self.safe: return {}
        stB = f"buffer_store_dwordx4 {R('v', TB)}, v{vL16}, {S4(S_STG)}, s{sST} offen offset:1024"
        return [{12: (f"buffer_load_dwordx4 {R('v', TA)}, v{vGA}, {S4(S_WG)}, s{sGA} offen", None),
                 14: (f"buffer_load_dword v{DUM}, v{vTO}, {S4(S_W)}, s{sWT} offen", f"s_add_u32 s{sWT}, s{sWT}, 16384")},
                {12: (f"buffer_load_dwordx4 {R('v', TB)}, v{vGA}, {S4(S_WU)}, s{sGA} offen", f"s_add_u32 s{sGA}, s{sGA}, {32*7168}"),
                 14: (f"buffer_load_dword v{DUM+1}, v{vTD}, {S4(S_WD)}, s{sR1} offen", None)},
                {12: (f"buffer_store_dwordx4 {R('v', TA)}, v{vL16}, {S4(S_STG)}, s{sST} offen", None)},
                {12: (stB, f"s_add_u32 s{sST}, s{sST}, 2048"),
                 14: (f"buffer_store_dwordx4 {R('v', NEG)}, v{vCL}, {S4(S_L)}, s{sR1} offen sc1", f"s_add_u32 s{sR1}, s{sR1}, 1024")}][T % 4]
    def iteration(self, T, do_qk=True, do_pv=True, tail=None, barwait=8):
        a = self.a
        full = do_qk and do_pv
        dmas = self.dma_ops(T, 0 if full else 11) if do_qk else {}
        ex = self.extras(T) if full else {}
        for s in range(16):
            kb, qb, db = s // 4, s % 4, s // 2
            ms = (self.qk(kb, qb) if do_qk else []) + (self.pv(T, db, (2*(s % 2), 2*(s % 2) + 1)) if do_pv else [])
            E, C = [], []
            if s >= 1:
                if do_qk: E = [self.exp(s - 1, i) for i in range(4)]
            elif do_pv: E = [self.exp(15, i) for i in range(4)]
            if s >= 2:
                if do_qk: C = [self.cvt(T + 1, s - 2, h) for h in range(2)]
            elif do_pv: C = [self.cvt(T, 14 + s, h) for h in range(2)]
            KR = [self.kread(*self.kread_at(T, s))] if do_qk else []
            VR, n = [], s + 2
            if n < 16:
                if do_pv: VR = self.vreads(T, n // 2, n % 2)
            elif do_qk: VR = self.vreads(T + 1, 0, n % 2)
            D = self.dma(*dmas[s]) if s in dmas else None
            gaps = {g: [] for g in range(9)}
            if full:
                gaps[0] = [E[0]]; gaps[1] = [E[1]]; gaps[4] = [E[2]]; gaps[5] = [E[3]]
                gaps[2] = C
                gaps[3] = (["s_waitcnt lgkmcnt(1)"] if s % 2 == 0 else []) + VR
                gaps[6] = list(KR)
                last = 7
                if s % 4 == 3: ms.append(self.smf(T, s // 4)); last = 8
                if D:
                    gaps[6].insert(0, D[0]); gaps[7].append(D[1])
                    if D[2]: gaps[last].append(D[2])
                if s in ex: gaps[7].append(ex[s][0])
                if s - 1 in ex and ex[s - 1][1]: gaps[0].insert(0, ex[s - 1][1])
                if s % 4 == 3: gaps[last].append(f"s_waitcnt lgkmcnt({len(KR) + len(VR)})")
                if s == 10: gaps[last] += [f"s_waitcnt vmcnt({barwait})", "s_barrier"]
                if s == 15 and tail: gaps[last] += tail
            elif do_qk:
                gaps[0] = VR; gaps[1] = C
                if D: gaps[1] = [D[0]] + gaps[1]; gaps[2] = [D[1]] + ([D[2]] if D[2] else [])
                gaps[3] = KR + (E if E else ["s_nop 3"])
                if s % 4 == 3: gaps[3].append(f"s_waitcnt lgkmcnt({len(KR) + len(VR)})")
                if s == 10: gaps[3] += [f"s_waitcnt vmcnt({barwait})", "s_barrier"]
                if s == 15: gaps[3].append("s_nop 3")
            else:
                pre = E + C
                if s < 2: pre += ["s_nop 1"]
                if s % 2 == 0: pre += ["s_waitcnt lgkmcnt(0)"]
                if s == 0:
                    pre += ["s_barrier"]
                    if not self.safe: pre += ["s_waitcnt vmcnt(4)", self.extras(3)[12][0]]
                for x in pre: a(x)
                gaps[0] = VR
                op = self.wpre[s]
                gaps[1] = [op[0]]; gaps[2] = [op[1]]; gaps[3] = [op[2]]
                if s % 4 == 3: ms.append(self.smf(T, s // 4))
            emit(a, ms, gaps)
    def body(self, first_wait):
        a = self.a
        for s in range(11, 16): a(self.kread(*self.kread_at(-2, s)))
        a("s_waitcnt lgkmcnt(1)")
        self.iteration(-1, do_pv=False, barwait=first_wait)
        loop, done = a.label("attn"), a.label("attn_done")
        a(f"s_mov_b32 s{sCNT}, 0\n.p2align 3\n{loop}:")
        for T in range(4):
            tail = None
            if T == 2: tail = [f"s_cmp_eq_u32 s{sCNT}, 7", f"s_cbranch_scc1 {done}"]
            if T == 3: tail = [f"s_add_u32 s{sCNT}, s{sCNT}, 1", f"s_branch {loop}"]
            self.iteration(T, tail=tail, barwait=8 + (len(self.extras(T - 1)) if T else 0))
        a(f"{done}:")
        self.iteration(31, do_qk=False)

def epilogue(a, check):
    T = 80
    a("s_nop 7")
    for qb in range(4): a(f"v_accvgpr_read_b32 v{T+2*qb}, a{LACC+4*qb}\nv_accvgpr_read_b32 v{T+2*qb+1}, a{LACC+4*qb+1}")
    for qb in range(4): a(f"v_add_f32 v{T+2*qb}, v{T+2*qb}, v{T+2*qb+1}")
    if check:
        a(f"s_mov_b32 s{sT0}, {f2u(2.0**-24)}\ns_mov_b32 s{sT1}, {f2u(2.0**60)}\ns_mov_b64 s[50:51], {-1 if OPT['safe'] else 0}")
        for qb in range(4):
            a(f"v_cmp_nle_f32 vcc, s{sT0}, v{T+2*qb}\ns_or_b64 s[50:51], s[50:51], vcc")
            a(f"v_cmp_nge_f32 vcc, s{sT1}, v{T+2*qb}\ns_or_b64 s[50:51], s[50:51], vcc")
        for i in range(4): a(f"v_mov_b32 v{KF+i}, 0")
    for qb in range(4): a(f"v_rcp_f32 v{T+2*qb}, v{T+2*qb}")
    n = 0
    for qb in range(4):
        for s in range(4):
            src = 184 + 8*(n % 2); dst = 112 + 4*n
            for i in range(8): a(f"v_accvgpr_read_b32 v{src+i}, a{OACC + 4*(qb*8 + 2*s) + i}")
            for i in range(0, 8, 2): a(pk("mul", src + i, src + i, T + 2*qb, mods="op_sel_hi:[1,0]"))
            for i in range(4): a(f"v_cvt_pk_bf16_f32 v{dst+i}, v{src+2*i}, v{src+2*i+1}")
            a(f"buffer_store_dwordx4 {R('v', dst)}, v{vBOFF+qb}, {S4(S_O)}, 0 offen offset:{s*1024} sc1")
            if check and n: a(mf(R("v", KF + 4), R("v", KF), R("v", dst - 4), "0" if n == 1 else None))
            n += 1
    if check:
        a("s_nop 0"); a(mf(R("v", KF + 4), R("v", KF), R("v", 112 + 60)))
        a(f"s_nop 7\nv_cmp_u_f32 vcc, v{KF+4}, v{KF+4}\ns_or_b64 s[50:51], s[50:51], vcc\ns_or_b32 s50, s50, s51")

def verdict(a, safe):
    a(f"""
    v_mov_b32 v14, s50
    s_lshl_b32 s51, s{sWAVE}, 2
    s_add_u32 s51, s51, {LDS_FLAG}
    v_mov_b32 v15, s51
    ds_write_b32 v15, v14
    v_mov_b32 v15, {LDS_FLAG}
    s_waitcnt lgkmcnt(0)
    s_barrier
    ds_read_b128 v[80:83], v15
    s_waitcnt lgkmcnt(0)
    v_or_b32 v80, v80, v81
    v_or3_b32 v80, v80, v82, v83
    s_nop 0
    v_readfirstlane_b32 s50, v80
    s_nop 3
    s_cmp_lg_u32 s50, 0
    s_cbranch_scc1 {safe}
    """)

def safe_path(a, wpre, cont):
    a("s_waitcnt vmcnt(0) lgkmcnt(0)\ns_barrier")
    at, fast = Attn(a, True, wpre), Attn(a, False)
    for i in range(4): a(f"v_mov_b32 v{MB+4*i}, 0xff800000")
    mloop = a.label("maxloop")
    a(f"s_mov_b32 s{sKOFF}, 0\ns_mov_b32 s{sVOFF}, 0\ns_mov_b32 s{sWOFF}, 0\n{mloop}:")
    def issue(op):
        a(op[0]); a("s_nop 0"); a(op[1])
        if op[2]: a(op[2])
    for p in range(4): issue(at.dma("K", 0, p))
    a("s_waitcnt vmcnt(0)\ns_barrier")
    for kb in range(4):
        for ds in range(4): a(at.kread(0, kb, ds))
        a("s_waitcnt lgkmcnt(0)")
        for qb in range(4):
            for m in fast.qk(kb, qb): a(m)
        a("s_nop 7")
        for qb in range(4):
            a(f"v_max3_f32 v{MB+4*qb}, v{MB+4*qb}, v{SB_+4*qb}, v{SB_+4*qb+1}\nv_max3_f32 v{MB+4*qb}, v{MB+4*qb}, v{SB_+4*qb+2}, v{SB_+4*qb+3}")
    a(f"s_barrier\ns_cmp_lt_u32 s{sKOFF}, {32*16384}\ns_cbranch_scc1 {mloop}")
    swap_red(a, [MB + 4*qb for qb in range(4)], [MB + 4*qb + 1 for qb in range(4)], "v_max_f32")
    for qb in range(4):
        a(f"v_sub_f32 v{MB+4*qb}, 0, v{MB+4*qb}")
        for i in range(1, 4): a(f"v_mov_b32 v{MB+4*qb+i}, v{MB+4*qb}")
    for i in range(144): a(f"v_accvgpr_write_b32 a{i}, 0")
    a(f"s_mov_b32 s{sKOFF}, 0")
    for op in at.first_dmas(): issue(op)
    a("s_waitcnt vmcnt(16)\ns_barrier")
    at.body(8)
    epilogue(a, False)
    a(f"s_barrier\ns_branch {cont}")
```

```python
from common import *
from front import *
from attn import CST, strictest

S_OUT = S_O
vB0, vX0, vC = 6, 8, 9
vAS, vAK = (3, 4), (5, 15)
ACC, AF, XF, GA, C1, SBv, GBv, WP, T = 16, 48, 80, 112, 128, 144, 160, 176, 192
SENT, BR = 216, 0
sHO = 67
LDS_DN, LDS_RED = 4*TILE, 4*TILE + 32768

def const_ops():
    ops = []
    for qb in range(2):
        for nb in range(4):
            ops.append(f"buffer_load_dwordx2 {R('a', CST + 8*qb + 2*nb, 2)}, v14, {S4(S_WG)}, {'s%d' % sT2 if qb else 0} offen offset:{nb*32}")
    for j, (so, off) in enumerate(((sT0, 0), (sT1, 0), (sT0, 2048), (sT1, 2048))):
        for nb in range(4):
            ops.append(f"buffer_load_dwordx2 {R('a', CST + 16 + 8*j + 2*nb, 2)}, v15, {S4(S_L)}, s{so} offen offset:{off + nb*32} sc1")
    for nb in range(4):
        ops.append(f"buffer_load_dwordx2 {R('a', CST + 48 + 2*nb, 2)}, v15, {S4(S_WU)}, 0 offen offset:{nb*32}")
    return [(None, o, None, "C") for o in ops]

def const_setup(a):
    a(f"v_lshlrev_b32 v15, 3, v{vG}\nv_lshl_add_u32 v14, v{vQ}, 11, v15")
    a(f"s_lshl_b32 s{sT0}, s{sNT}, 7\ns_lshl_b32 s{sT1}, s{sG}, 16\ns_add_u32 s{sT1}, s{sT1}, s{sT0}")
    a.srd(S_WG, PTR["x"], 65536 - 1920, f"s{sT1}")
    a.srd(S_WU, PTR["wr"], 128, f"s{sT0}")
    a(f"s_add_u32 s{sT0}, s{sT0}, {WS_MOD + 4096}\ns_add_u32 s{sT1}, s{sT0}, 4096\ns_mov_b32 s{sT2}, 32768")

def setup_w(a):
    a(f"""
    v_lshlrev_b32 v14, 4, v{vG}
    v_lshl_add_u32 v14, v10, 2, v14
    v_lshlrev_b32 v14, 11, v14
    v_lshl_add_u32 v{vWOFF}, v{vQ}, 4, v14
    s_mov_b32 s{sWOFF}, 0
    s_lshr_b32 s{sT0}, s{sNT}, 1
    s_lshl_b32 s{sT0}, s{sT0}, 8
    s_lshl_b32 s{sT1}, s{sKH}, 22
    s_add_u32 s{sT0}, s{sT0}, s{sT1}
    """)
    a.srd(S_W, PTR["wo"], (4 << 20) - 1792, f"s{sT0}")

class OProj:
    def __init__(self, a): self.a, self.vm, self.db, self.body = a, VM(), 3, 0
    def dma(self, c, p):
        base = sMW if (c // 4) % 2 == self.body % 2 else sMW2
        return (f"s_add_u32 m0, s{base}, {(c % 4)*TILE + p*PIECE}", f"buffer_load_dwordx4 v{vWOFF}, {S4(S_W)}, s{sWOFF} offen lds",
                f"s_add_u32 s{sWOFF}, s{sWOFF}, {2048 if p < 3 else 61*2048}", ("W", c))
    def bfrag(self, c, qb, ks): return R("a", BR + 16*(c % 4) + 8*qb + 4*ks)
    def bload(self, c, i):
        qb, ks = i // 2, i % 2
        return (None, f"buffer_load_dwordx4 {self.bfrag(c, qb, ks)}, v{vB0+qb}, {S4(S_B)}, s{sBOFF} offen offset:{ks*1024} sc1",
                f"s_add_u32 s{sBOFF}, s{sBOFF}, {(1 << 19) - 2048 if c % 2 else 2048}" if i == 3 else None, ("B", c))
    def acc(self, s, j, qb): return R("v", (SENT if s < 2 else ACC) + 16*qb + 4*(2*(s % 2) + j))
    def issue(self, op, a=None):
        a = a or self.a
        if op[0]: a(op[0]); a("s_nop 0")
        a(op[1]); self.vm.add(op[3])
        if op[2]: a(op[2])
    def areads(self, c, s, buf):
        base = (vAS if s < 2 else vAK)[0 if c // 4 == self.body else 1]
        return [f"ds_read_b64_tr_b16 {R('v', AF + 16*buf + 8*j + 4*ks + 2*jj, 2)}, v{base} offset:{(c % 4)*TILE + (2*ks + jj)*256 + (2*(s % 2) + j)*32}"
                for j in range(2) for ks in range(2) for jj in range(2)]
    def expand1(self):
        a = self.a
        for i in range(56): a(f"v_accvgpr_read_b32 v{XF + 2*i + 1}, a{CST + i}")
        for i in range(56): unpack(a, XF + 2*i, XF + 2*i + 1, XF + 2*i + 1)
    def expand2(self):
        a = self.a
        for i in range(0, 16, 2):
            a(pk("add", C1 + i, C1 + i, "1.0", mods="op_sel_hi:[1,0]")); rnd(a, C1 + i, C1 + i + 1)
        for i in range(0, 16, 2):
            a(pk("mul", T + 2, SBv + i, WP + i) if i == 0 else pk("fma", T + 2, SBv + i, WP + i, T + 2))
            a(pk("mul", WP + i, WP + i, C1 + i))
            if i == 2: a(pk("add", T + 4, WP, WP + 2))
            elif i > 2: a(pk("add", T + 4, T + 4, WP + i))
        a(f"v_and_b32 v{T}, 1, v0\nv_cmp_eq_u32 vcc, 1, v{T}\nv_add_f32 v{T+2}, v{T+2}, v{T+3}\nv_add_f32 v{T+4}, v{T+4}, v{T+5}\nv_cndmask_b32 v14, v{T+4}, v{T+2}, vcc")
        swap_red(a, [14], [T])
    def send(self):
        out = [f"s_xor_b32 s{sT0}, s{sHO}, 32768", f"s_lshl_b32 s{sT1}, s{sWAVE}, 12", f"s_add_u32 s{sT0}, s{sT0}, s{sT1}"]
        for n in (0, 2, 1, 3):
            for i in range(4): out.append(f"v_cvt_pk_bf16_f32 v{T + 4*n + i}, v{SENT + 8*n + 2*i}, v{SENT + 8*n + 2*i + 1}")
            out.append(f"buffer_store_dwordx4 {R('v', T + 4*n)}, v{vL16}, {S4(S_L)}, s{sT0} offen offset:{HO_EX + n*1024} sc1")
        return out
    def moe_dma(self, i):
        return (f"s_add_u32 m0, s{sT3}, {(i // 4)*4096}" if i % 4 == 0 else None,
                f"buffer_load_dwordx4 v{vL16}, {S4(S_STG)}, s{sT2} offen offset:{(i % 4)*1024} lds",
                f"s_add_u32 s{sT2}, s{sT2}, 4096" if i % 4 == 3 else None, "G")
    def main(self, late):
        real = self.a
        sk, barp, RG, VG = OPT["skew"], OPT["barp"], OPT["rg"], OPT["vg"]
        order = [(c, s) for c in range(32 - sk) for s in range(4)]
        order += [(c, s) for c in range(32 - sk, 32) for s in range(2)] + [(c, s) for c in range(32 - sk, 32) for s in range(2, 4)]
        bq = [(c, i) for c in range(self.db, 32) for i in range(4)]
        visible, waitedB, sendq, moeq, bodies = set(range(barp)), {0}, None, None, []
        for n, (c, s) in enumerate(order):
            if n % 16 == 0: a = Asm(); bodies.append(a); self.body = n // 16
            buf = n % 2
            ms = [mf(self.acc(s, j, qb), R("v", AF + 16*buf + 8*j + 4*ks), self.bfrag(c, qb, ks), "0" if c == 0 and k == 0 else None)
                  for j in range(2) for qb in range(2) for k, ks in enumerate((0, 1) if qb == 0 else (1, 0))]
            gaps = {g: [] for g in range(8)}
            nxt = order[n + 1] if n + 1 < len(order) else None
            wn = n + 1 + 4*(7 - barp)
            if late and len(late) > 32 - wn: self.issue(self.dma(*late.pop(0)), a)
            if n == 112: gaps[0] += [f"s_lshl_b32 s{sT3}, s{sWAVE}, 14", f"s_mov_b32 s{sT2}, 0"]
            for g in range(8):
                if g == RG[0] and nxt and nxt[0] not in visible:
                    newv = [cc for cc in range(nxt[0], nxt[0] + (barp if n < 112 else 8))]
                    lw = max(i for i, t in enumerate(self.vm.ops) if t[0] == "W" and t[1] in newv); lb = max(i for i, t in enumerate(self.vm.ops) if t[0] == "B" and t[1] in waitedB)
                    if lw > lb: gaps[g].append(f"s_waitcnt vmcnt({self.vm.count(*[('W', cc) for cc in newv])})")
                    gaps[g].append("s_barrier")
                    visible |= set(newv)
                    if n >= 112: moeq = [self.moe_dma(i) for i in range(16)]
                if g == 3 and n > 0: gaps[g].append(f"s_waitcnt lgkmcnt({2*len([x for x in RG if x < 3]) if nxt else 0})")
                if g in RG and nxt:
                    k = RG.index(g)
                    gaps[g] += self.areads(nxt[0], nxt[1], 1 - buf)[2*k:2*k + 2]
                if g in VG:
                    op, first = None, VG.index(g) == 0
                    if first and bq: op = self.bload(*bq.pop(0))
                    elif not first and late: op = self.dma(*late.pop(0))
                    elif not first and n < 112 and wn >= 32: op = self.dma(wn // 4, wn % 4)
                    elif not first and n >= 112 and bq: op = self.bload(*bq.pop(0))
                    elif moeq and not sendq: op = moeq.pop(0)
                    if op:
                        if op[0]: gaps[g - 1].insert(0, op[0])
                        gaps[g].append(op[1]); self.vm.add(op[3])
                        if op[2]: gaps[g + 1].insert(0, op[2])
                if sendq and g not in RG and not any(x.startswith("buffer") for x in gaps[g]):
                    while sendq and len([x for x in gaps[g] if x.startswith("v_")]) < 2:
                        x = sendq[0]
                        if x.startswith("buffer") and any(y.startswith("v_") for y in gaps[g]): break
                        gaps[g].append(sendq.pop(0))
                        if x.startswith("buffer"): self.vm.add("S"); break
            if nxt and nxt[0] not in waitedB:
                gaps[7].insert(0, f"s_waitcnt vmcnt({self.vm.count(('B', nxt[0]))}) lgkmcnt(4)"); waitedB.add(nxt[0])
            elif nxt: gaps[7].insert(0, "s_waitcnt lgkmcnt(4)")
            if n % 16 == 15 and nxt:
                gaps[6] += [f"s_mov_b32 s{sT0}, s{sMW}"]
                gaps[7] += [f"v_swap_b32 v{vAS[0]}, v{vAS[1]}", f"v_swap_b32 v{vAK[0]}, v{vAK[1]}", f"s_mov_b32 s{sMW}, s{sMW2}", f"s_mov_b32 s{sMW2}, s{sT0}"]
            emit(a, ms, gaps)
            if (c, s) == (31, 1): sendq = self.send()
        assert not bq and not late
        a = real
        a.lines += bodies[0].lines
        l = a.label("oploop")
        a(f"s_mov_b32 s{sCNT}, 0\n{l}:")
        a.lines += strictest([b.lines for b in bodies[1:7]])
        a(f"s_add_u32 s{sCNT}, s{sCNT}, 1\ns_cmp_lt_u32 s{sCNT}, 6\ns_cbranch_scc1 {l}")
        a.lines += bodies[7].lines
        for x in sendq: a(x)
        for op in moeq: self.issue(op)

def oproj(a, st):
    o = OProj(a)
    for c in range(4): o.vm.add(("W", c))
    f3 = f"buffer_load_dword v18, v19, {S4(S_L)}, s{sT3} offen sc1"
    a(f"""
    s_lshr_b32 s{sT2}, s{sG}, 1
    s_lshl_b32 s{sT2}, s{sT2}, {5+FS}
    s_lshl_b32 s{sT1}, s{sKH}, {4+FS}
    s_add_u32 s{sT2}, s{sT2}, s{sT1}
    s_add_u32 s{sT3}, s{sT2}, {WS_F3}
    v_lshlrev_b32 v19, {FS}, v{vQ}
    {f3}
    s_lshl_b32 s{sT0}, s{sG64}, {5+FS}
    s_lshl_b32 s{sT1}, s{sHEAD}, {FS}
    s_add_u32 s{sT0}, s{sT0}, s{sT1}
    s_add_u32 s{sT2}, s{sT0}, {WS_F3}
    v_mov_b32 v16, s{sNONCE}
    v_lshlrev_b32 v17, 24, v{vLANE}
    s_lshl_b32 s{sT0}, s{sKH}, 7
    s_xor_b32 s{sT1}, s{sT0}, 128
    v_add_u32 v{vAK[1]}, s{sT0}, v{vA}
    v_add_u32 v{vAS[1]}, s{sT1}, v{vA}
    v_subrev_u32 v{vAS[0]}, {4*TILE}, v{vAS[1]}
    v_subrev_u32 v{vAK[0]}, {4*TILE}, v{vAK[1]}
    v_lshlrev_b32 v{vC}, 4, v{vG}
    v_lshl_add_u32 v{vX0}, v{vQ}, 11, v{vC}
    s_mov_b32 s{sBOFF}, 0
    s_lshl_b32 s{sHO}, s{sU}, 15
    s_add_u32 s{sHO}, s{sHO}, {WS_HO}
    s_lshl_b32 s{sT1}, s{sG}, 13
    s_lshl_b32 s{sT0}, s{sKH}, 23
    s_add_u32 s{sT1}, s{sT1}, s{sT0}
    s_add_u32 s{sT1}, s{sT1}, {WS_O}
    """)
    assert vAS[1] == vA
    a.lines.append(f"    s_nop 0")
    a.srd(S_B, PTR["ws"], (15 << 19) + 8192, f"s{sT1}")
    a(f"s_lshl_b32 s{sT0}, s{sNT}, 7\ns_lshl_b32 s{sT1}, s{sG}, 16\ns_add_u32 s{sT1}, s{sT1}, s{sT0}")
    a.srd(S_OUT, PTR["out"], 65536 - 1920, f"s{sT1}")
    a(f"s_waitcnt vmcnt(1)\nbuffer_store_dword v16, v17, {S4(S_L)}, s{sT2} offen sc1")
    st()
    o.expand1()
    poll(a, [f3], bad_tags([18], None), "f3", first="s_waitcnt vmcnt(1)")
    for c in range(o.db):
        for i in range(4): o.issue(o.bload(c, i))
    o.expand2()
    a("s_barrier")
    for s in o.areads(0, 0, 0): a(s)
    a(f"s_waitcnt vmcnt({o.vm.count(('B', 0))}) lgkmcnt(0)")
    st()
    o.main([(c, p) for c in range(4, 8) for p in range(4)])
    st()
    t, Q = T, T + 24
    a(f"s_lshl_b32 s{sT1}, s{sWAVE}, 12\ns_add_u32 s{sT0}, s{sHO}, s{sT1}\ns_barrier")
    poll(a, [f"buffer_load_dwordx4 {R('v', Q + 4*n)}, v{vL16}, {S4(S_L)}, s{sT0} offen offset:{HO_EX + n*1024} sc1" for n in range(4)],
         bad_sentinel(list(range(Q, Q + 16)), t + 22), "ex")
    a(f"v_lshrrev_b32 v{t}, 5, v{vLANE}\nv_and_b32 v{t+1}, 31, v{vLANE}\nv_lshlrev_b32 v{t+1}, 4, v{t+1}\nv_lshl_add_u32 v{t+4}, v{t}, 11, v{t+1}")
    a(f"s_lshl_b32 s{sT0}, s{sWAVE}, 9\ns_lshl_b32 s{sT1}, s{sWAVE}, 13")
    for p in range(8):
        a(f"s_add_u32 m0, s{sT1}, {LDS_DN + p*1024}")
        for i in (2*p, 2*p + 1):
            unpack(a, t + 2*(i % 2), t + 2*(i % 2) + 1, Q + i); a(pk("add", ACC + 2*i, ACC + 2*i, t + 2*(i % 2)))
        a(f"buffer_load_dwordx4 v{t+4}, {S4(S_WD)}, s{sT0} offen lds")
        if p < 7: a(f"s_add_u32 s{sT0}, s{sT0}, 4096")
    st()
    for qb in range(2):
        for i in range(0, 16, 2): a(pk("fma", XF + 16*qb + i, ACC + 16*qb + i, GA + i, XF + 16*qb + i))
    S, D, M = t, t + 4, t + 8
    for i in range(0, 16, 2):
        for qb in range(2):
            x = XF + 16*qb + i
            if i == 2: a(pk("add", S + 2*qb, x - 2, x))
            elif i > 2: a(pk("add", S + 2*qb, S + 2*qb, x))
            a(pk("mul", D + 2*qb, x, WP + i) if i == 0 else pk("fma", D + 2*qb, x, WP + i, D + 2*qb))
    for r_ in (S, S + 2, D, D + 2): a(f"v_add_f32 v{r_}, v{r_}, v{r_+1}")
    swap_red(a, [S, S + 2, D, D + 2], [S + 1, S + 3, D + 1, D + 3])
    for qb in range(2): a(f"v_mul_f32 v{S+2*qb}, {f2u(-1/64)}, v{S+2*qb}")
    for i in range(0, 16, 2):
        for qb in range(2): a(pk("add", t + 12 + 2*qb, XF + 16*qb + i, S + 2*qb, mods="op_sel_hi:[1,0]"))
        for qb in range(2): a(pk("mul", M + 2*qb, t + 12 + 2*qb, t + 12 + 2*qb) if i == 0 else pk("fma", M + 2*qb, t + 12 + 2*qb, t + 12 + 2*qb, M + 2*qb))
    for r_ in (M, M + 2): a(f"v_add_f32 v{r_}, v{r_}, v{r_+1}")
    swap_red(a, [M, M + 2], [M + 1, M + 3])
    G = t + 16
    a(f"""
    v_and_b32 v{G+4}, 16, v0
    v_cmp_ne_u32 vcc, 0, v{G+4}
    v_lshrrev_b32 v{G+4}, 5, v{vLANE}
    v_lshl_add_u32 v{G+4}, v{G+4}, 24, v{vL16}
    v_cndmask_b32 v{G}, v{S}, v{S+2}, vcc
    v_cndmask_b32 v{G+1}, v{M}, v{M+2}, vcc
    v_cndmask_b32 v{G+2}, v{D}, v{D+2}, vcc
    v_mov_b32 v{G+3}, v14
    s_lshl_b32 s{sT0}, s{sWAVE}, 9
    s_add_u32 s{sT0}, s{sT0}, {HO_ST}
    s_add_u32 s{sT1}, s{sT0}, s{sHO}
    buffer_store_dwordx4 {R('v', G)}, v{G+4}, {S4(S_L)}, s{sT1} offen sc1
    s_and_b32 s{sT1}, s{sHO}, {0xffffffff ^ (15 << 15)}
    s_add_u32 s{sT0}, s{sT0}, s{sT1}
    s_add_u32 s{sT1}, s{sT0}, {4 << 15}
    s_add_u32 s{sT2}, s{sT0}, {8 << 15}
    s_add_u32 s{sT3}, s{sT0}, {12 << 15}
    v_lshlrev_b32 v{G+5}, 15, v{vG}
    v_lshl_add_u32 v{G+5}, v{vQ}, 4, v{G+5}
    s_waitcnt vmcnt(0)
    """)
    poll(a, [f"buffer_load_dwordx4 {R('v', Q + 4*j)}, v{G+5}, {S4(S_L)}, s{sT0 + (j >> 1)} offen offset:{(j & 1)*256} sc1" for j in range(8)],
         bad_sentinel(list(range(Q, Q + 32)), t + 22), "st")
    st()
    Z = t
    for qb in range(2):
        for h in range(2):
            a(pk("add", Z + 4*qb + 2*h, Q + 4*qb + 2*h, Q + 8 + 4*qb + 2*h)); a(pk("add", t + 8 + 4*qb + 2*h, Q + 16 + 4*qb + 2*h, Q + 24 + 4*qb + 2*h))
    for i in range(0, 8, 2): a(pk("add", Z + i, Z + i, t + 8 + i))
    swap_red(a, [Z + i for i in range(7)], [t + 8 + i for i in range(7)])
    for qb in range(2): a(f"v_mul_f32 v{Z+4*qb}, {f2u(1/16)}, v{Z+4*qb}")
    for j in range(8):
        qb = j & 1
        a(f"v_sub_f32 v{t+10+qb}, v{Q+4*j}, v{Z+4*qb}")
        a(f"v_mul_f32 v{t+8+qb}, v{t+10+qb}, v{t+10+qb}" if j < 2 else f"v_fmac_f32 v{t+8+qb}, v{t+10+qb}, v{t+10+qb}")
    swap_red(a, [t + 8, t + 9], [t + 10, t + 11])
    a(f"v_mov_b32_dpp v{t+12}, v{Z+3} quad_perm:[0,0,2,2] row_mask:0xf bank_mask:0xf\nv_mov_b32_dpp v{t+13}, v{Z+3} quad_perm:[1,1,3,3] row_mask:0xf bank_mask:0xf")
    for qb in range(2): a(f"v_fmac_f32 v{Z+4*qb+1}, {f2u(64.0)}, v{t+8+qb}\nv_mul_f32 v{Z+4*qb+1}, {f2u(1/1024)}, v{Z+4*qb+1}")
    for qb in range(2): rnd(a, Z + 4*qb, Z + 4*qb + 1)
    a(f"v_add_f32 v{Z+1}, {f2u(1e-5)}, v{Z+1}\nv_add_f32 v{Z+5}, {f2u(1e-5)}, v{Z+5}")
    rnd(a, Z + 1, Z + 5)
    a(f"v_sqrt_f32 v{Z+1}, v{Z+1}\nv_sqrt_f32 v{Z+5}, v{Z+5}\ns_nop 0")
    rnd(a, Z + 1, Z + 5)
    a(f"v_rcp_f32 v{Z+1}, v{Z+1}\nv_rcp_f32 v{Z+5}, v{Z+5}")
    K0 = t + 14
    for qb in range(2): a(f"v_fmac_f32 v{Z+4*qb+2}, v{Z+4*qb}, v{t+12}")
    for qb in range(2): a(f"v_fma_f32 v{Z+4*qb+2}, v{Z+4*qb+2}, v{Z+4*qb+1}, v{t+13}")
    rnd(a, K0, K0 + 1, Z + 2, Z + 6)
    a(f"s_lshl_b32 s{sT0}, s{sG}, 5\ns_sub_u32 s{sT0}, 2047, s{sT0}\nv_sub_u32 v{t+10}, s{sT0}, v{vQ}\nv_subrev_u32 v{t+11}, 16, v{t+10}")
    for qb in range(2):
        a(f"v_ashrrev_i32 v{t+8}, 31, v{K0+qb}\nv_or_b32 v{t+8}, 0x80000000, v{t+8}\nv_xor_b32 v{K0+qb}, v{K0+qb}, v{t+8}\nv_and_b32 v{K0+qb}, 0xffff0000, v{K0+qb}\nv_or_b32 v{K0+qb}, v{K0+qb}, v{t+10+qb}")
    m1, m2 = t + 16, t + 18
    a(f"v_max_u32 v{m1}, v{K0}, v{K0+1}\nv_min_u32 v{m2}, v{K0}, v{K0+1}\nv_mov_b32 v{m1+1}, s{sNONCE}\nv_mov_b32 v{m2+1}, s{sNONCE}")
    top2_row(a, m1, m2, t + 8)
    a(f"s_lshl_b32 s{sT0}, s{sG}, {FS}\ns_add_u32 s{sT0}, s{sT0}, {WS_KEY}\nv_or_b32 v{t+8}, s{sNT}, v{vLANE}\nv_lshlrev_b32 v{t+8}, 24, v{t+8}")
    a(f"buffer_store_dwordx4 {R('v', m1)}, v{t+8}, {S4(S_L)}, s{sT0} offen sc1")
    CO = t + 20
    a(f"v_mov_b32 v{t+8}, 0x7f000000\nv_add_u32 v{t+10}, 128, v{vC}")
    for qb in range(2):
        a(f"v_cmp_eq_u32 vcc, v{K0+qb}, v{m1}\nv_cmp_eq_u32 s[50:51], v{K0+qb}, v{m2}\ns_nop 0")
        a(f"v_cndmask_b32 v{CO+qb}, v{t+8}, v{vC}, vcc\nv_cndmask_b32 v{CO+qb}, v{CO+qb}, v{t+10}, s[50:51]")
    for qb in range(2): a(f"v_mul_f32 v{Z+4*qb}, v{Z+4*qb}, v{Z+4*qb+1}")
    H, HP, OP = ACC, t + 24, t + 40
    for qb in range(2):
        for i in range(0, 16, 2): a(pk("fma", H + 16*qb + i, XF + 16*qb + i, Z + 4*qb, Z + 4*qb, mods="op_sel:[0,1,0] op_sel_hi:[1,1,0]"))
        for i in range(0, 16, 2): a(pk("fma", H + 16*qb + i, H + 16*qb + i, C1 + i, SBv + i))
        for i in range(0, 16, 2): a(f"v_cvt_pk_bf16_f32 v{HP + 8*qb + i//2}, v{H + 16*qb + i}, v{H + 16*qb + i + 1}")
    shuffle(a, [HP + 4*n for n in range(4)])
    a(f"s_lshl_b32 s{sT0}, s{sWAVE}, 8\ns_add_u32 s{sT0}, s{sT0}, s{sHO}\ns_add_u32 s{sT3}, s{sT0}, {HO_CH}")
    for n in range(4): a(f"buffer_store_dwordx4 {R('v', HP + 4*n)}, v{CO + n//2}, {S4(S_L)}, s{sT3} offen offset:{(n % 2)*64} sc1")
    for qb in range(2):
        for i in range(0, 16, 2): a(pk("fma", H + 16*qb + i, H + 16*qb + i, GBv + i, XF + 16*qb + i))
        for i in range(0, 16, 2): a(f"v_cvt_pk_bf16_f32 v{OP + 8*qb + i//2}, v{H + 16*qb + i}, v{H + 16*qb + i + 1}")
    shuffle(a, [OP + 4*n for n in range(4)])
    a(f"s_mov_b32 s{sT2}, 32768")
    for n in range(4): a(f"buffer_store_dwordx4 {R('v', OP + 4*n)}, v{vX0}, {S4(S_OUT)}, {'s%d' % sT2 if n//2 else 0} offen offset:{(n % 2)*64} sc1")
    return [f"buffer_store_dwordx4 {R('v', OP + 4*n)}, v{CO + n//2}, {S4(S_L)}, s{sT3} offen offset:{HO_CB - HO_CH + (n % 2)*64} sc1" for n in range(4)]

def moe(a, st, base_store):
    GU, DN, BF, K = 16, 80, 112, 144
    sK1, sK2 = 63, 64
    end = a.label("end")
    keys = f"buffer_load_dwordx4 {R('v', K)}, v14, {S4(S_L)}, s{sT1} offen sc1"
    a(f"s_mov_b32 s{sT1}, {WS_KEY}\nv_lshlrev_b32 v14, {FS}, v{vLANE}")
    a(f"v_lshlrev_b32 v2, 8, v{vG}\nv_lshl_add_u32 v2, v{vQ}, 3, v2\nv_lshl_add_u32 v2, v10, 14, v2")
    a(f"v_lshrrev_b32 v3, 2, v{vLANE}\nv_lshlrev_b32 v3, 9, v3\nv_and_b32 v4, 3, v{vLANE}\nv_lshl_add_u32 v3, v4, 3, v3\nv_lshl_add_u32 v3, v10, 13, v3\nv_add_u32 v3, {LDS_DN}, v3")
    a.lines.append("    s_nop 0    ; REBASE v255=0")
    n = 0
    for ks in range(8):
        for m in range(2):
            for jj in range(2):
                if n >= 12 and n % 4 == 0: a("s_waitcnt lgkmcnt(8)")
                a(f"ds_read_b64_tr_b16 {R('v', GU + 8*ks + 4*m + 2*jj, 2)}, v2 offset:{ks*2048 + m*1024 + jj*128}"); n += 1
    for nb in range(16):
        if n % 4 == 0: a("s_waitcnt lgkmcnt(8)")
        a(f"ds_read_b64_tr_b16 {R('v', DN + 2*nb, 2)}, v3 offset:{nb*32}"); n += 1
    a("s_waitcnt vmcnt(0)")
    a(keys)
    for s in base_store: a(s)
    st()
    a(f"s_cmp_ge_u32 s2, 224\ns_cbranch_scc1 {end}")
    poll(a, [keys], bad_tags([K + 1, K + 3], K + 4), "keys", first="s_waitcnt vmcnt(4)")
    st()
    top2_row(a, K, K + 2, K + 4)
    a(f"s_nop 1\nv_readlane_b32 s{sK1}, v{K}, 0\nv_readlane_b32 s{sK2}, v{K+2}, 0")
    for ln in (16, 32, 48):
        a(f"v_readlane_b32 s{sT0}, v{K}, {ln}\nv_readlane_b32 s{sT1}, v{K+2}, {ln}\ns_nop 3")
        a(f"s_min_u32 s{sT2}, s{sK1}, s{sT0}\ns_max_u32 s{sK2}, s{sK2}, s{sT1}\ns_max_u32 s{sK1}, s{sK1}, s{sT0}\ns_max_u32 s{sK2}, s{sK2}, s{sT2}")
    sC1, sC2 = 65, 66
    a(f"s_xor_b32 s{sT2}, s{sK1}, s{sK2}\ns_and_b32 s{sT2}, s{sT2}, 0x7e0\ns_cselect_b32 s{sT2}, 0, 128")
    for k, c in ((sK1, sC1), (sK2, sC2)):
        a(f"s_not_b32 s{sT0}, s{k}\ns_bfe_u32 s{sT1}, s{sT0}, 0x40007\ns_lshl_b32 s{sT1}, s{sT1}, 19\ns_bfe_u32 s{sT0}, s{sT0}, 0x20005\ns_lshl_b32 s{sT0}, s{sT0}, 8\ns_add_u32 s{c}, s{sT0}, s{sT1}")
    a(f"""
    s_add_u32 s{sC2}, s{sC2}, s{sT2}
    v_and_b32 v5, 1, v{vLANE}
    v_cmp_eq_u32 vcc, 1, v5
    v_mov_b32 v6, s{sC1}
    v_mov_b32 v7, s{sC2}
    v_cndmask_b32 v6, v6, v7, vcc
    v_add_u32 v6, v6, v{vC}
    s_lshl_b32 s{sT0}, s{sWAVE}, 17
    s_add_u32 s{sT0}, s{sT0}, {WS_HO + HO_CH}
    s_add_u32 s{sT1}, s{sT0}, {1 << 15}
    s_add_u32 s{sT2}, s{sT0}, {2 << 15}
    s_add_u32 s{sT3}, s{sT0}, {3 << 15}
    """)
    poll(a, [f"buffer_load_dwordx4 {R('v', BF + 4*ks)}, v6, {S4(S_L)}, s{sT0 + ks//2} offen offset:{(ks % 2)*64} sc1" for ks in range(8)],
         bad_sentinel(list(range(BF, BF + 32)), K + 4), "rows")
    st()
    Y = 152
    a("s_waitcnt lgkmcnt(0)")
    for m in range(2):
        for ks in range(8): a(mf(R("v", Y + 4*m), R("v", GU + 8*ks + 4*m), R("v", BF + 4*ks), "0" if ks == 0 else None))
    a(f"v_lshl_add_u32 v2, v10, 11, v{vL16}\nv_add_u32 v2, {LDS_RED}, v2\nv_add_u32 v3, {LDS_RED}, v{vL16}\nv_bfe_u32 v7, v{vLANE}, 1, 3\ns_nop 3")
    a(f"ds_write_b128 v2, {R('v', Y)}\nds_write_b128 v2, {R('v', Y+4)} offset:1024\ns_waitcnt lgkmcnt(0)\ns_barrier")
    P = 160
    for w in range(4): a(f"ds_read_b128 {R('v', P+8*w)}, v3 offset:{w*2048}\nds_read_b128 {R('v', P+4+8*w)}, v3 offset:{w*2048+1024}")
    a(f"""
    v_lshlrev_b32 v5, 12, v5
    v_lshl_add_u32 v5, v7, 6, v5
    v_add_u32 v5, v5, v{vC}
    s_lshl_b32 s{sT0}, s{sWAVE}, 10
    s_add_u32 s{sT0}, s{sT0}, s{sHO}
    s_add_u32 s{sT0}, s{sT0}, {HO_YP}
    """)
    for j in range(8): a(f"v_cmp_eq_u32 s[{8+2*j}:{9+2*j}], {j}, v7")
    a("s_waitcnt lgkmcnt(0)")
    for i in range(0, 8, 2): a(pk("add", P + i, P + i, P + 8 + i)); a(pk("add", P + 16 + i, P + 16 + i, P + 24 + i))
    for i in range(0, 8, 2): a(pk("add", P + i, P + i, P + 16 + i))
    for i in range(0, 8, 2): rnd(a, P + i, P + i + 1)
    E = P + 8
    for i in range(4): a(f"v_mul_f32 v{E+i}, {f2u(-LOG2E)}, v{P+i}")
    for i in range(4): a(f"v_exp_f32 v{E+i}, v{E+i}")
    for i in range(4): a(f"v_add_f32 v{E+i}, 1.0, v{E+i}")
    for i in range(4): a(f"v_rcp_f32 v{E+i}, v{E+i}")
    for i in range(4): a(f"v_mul_f32 v{P+i}, v{P+i}, v{E+i}")
    for i in (0, 2): rnd(a, P + i, P + i + 1)
    for i in (0, 2): a(pk("mul", P + i, P + i, P + 4 + i))
    a(f"v_cvt_pk_bf16_f32 v{E}, v{P}, v{P+1}\nv_cvt_pk_bf16_f32 v{E+1}, v{P+2}, v{P+3}")
    for j in range(8): a(f"v_cndmask_b32 v{BF+2*j}, 0, v{E}, s[{8+2*j}:{9+2*j}]\nv_cndmask_b32 v{BF+2*j+1}, 0, v{E+1}, s[{8+2*j}:{9+2*j}]")
    for h in range(2):
        for j in range(8):
            a(f"v_mfma_f32_16x16x16_bf16 {R('v', Y+4*h)}, {R('v', DN + 2*(8*h + j), 2)}, {R('v', BF + 2*j, 2)}, {'0' if j == 0 else R('v', Y+4*h)}")
    a(f"buffer_store_dwordx4 {R('v', Y)}, v5, {S4(S_L)}, s{sT0} offen sc1\ns_nop 6\nbuffer_store_dwordx4 {R('v', Y+4)}, v5, {S4(S_L)}, s{sT0} offen offset:512 sc1")
    st()
    a(f"s_cmp_ge_u32 s2, 64\ns_cbranch_scc1 {end}")
    a(f"""
    s_cmp_lt_u32 s2, 32
    s_cselect_b32 s{sK1}, s{sK1}, s{sK2}
    s_cselect_b32 s{sC1}, s{sC1}, s{sC2}
    s_bfe_u32 s{sT0}, s2, 0x40001
    s_lshl_b32 s{sT0}, s{sT0}, 15
    s_add_u32 s{sC1}, s{sC1}, s{sT0}
    s_and_b32 s{sT0}, s2, 1
    s_lshl_b32 s{sT0}, s{sT0}, 6
    s_add_u32 s{sC1}, s{sC1}, s{sT0}
    s_add_u32 s{sC1}, s{sC1}, {WS_HO + HO_CB}
    s_and_b32 s{sT1}, s2, 31
    s_lshl_b32 s{sT1}, s{sT1}, 6
    s_add_u32 s{sC2}, s{sT1}, {WS_MOD + 10240}
    s_not_b32 s{sT0}, s{sK1}
    s_and_b32 s{sT0}, s{sT0}, 2047
    s_lshl_b32 s{sT0}, s{sT0}, 11
    s_add_u32 s{sT0}, s{sT0}, s{sT1}
    v_and_b32 v2, 7, v0
    v_lshlrev_b32 v3, 3, v2
    v_lshlrev_b32 v4, 4, v2
    v_lshrrev_b32 v5, 3, v0
    v_lshl_add_u32 v5, v5, 15, v4
    """)
    a.srd(S_OUT, PTR["out"], 4 << 20)
    a(f"s_mov_b32 s{sK2}, s{sT0}\ns_lshl_b32 s8, s2, 7\ns_add_u32 s8, s8, {WS_HO + HO_YP}")
    for i in range(1, 7): a(f"s_add_u32 s{8+i}, s8, {i << 20}")
    a(f"""
    s_and_b32 s{sT0}, s{sK1}, 0xffff0000
    s_ashr_i32 s{sT1}, s{sT0}, 31
    s_not_b32 s{sT1}, s{sT1}
    s_or_b32 s{sT1}, s{sT1}, 0x80000000
    s_xor_b32 s{sT0}, s{sT0}, s{sT1}
    s_and_b32 s{sT0}, s{sT0}, 0xffff0000
    v_mov_b32 v60, s{sT0}
    v_mul_f32 v60, {f2u(-LOG2E)}, v60
    v_exp_f32 v60, v60
    buffer_load_dwordx2 v[48:49], v3, {S4(S_L)}, s{sC2} offen sc1
    v_add_f32 v60, 1.0, v60
    v_rcp_f32 v60, v60
    s_nop 0
    v_cvt_pk_bf16_f32 v60, v60, v60
    v_lshlrev_b32 v60, 16, v60
    s_waitcnt vmcnt(0)
    """)
    poll(a, [f"buffer_load_dwordx4 {R('v', 16 + 4*i)}, v5, {S4(S_L)}, s{8+i} offen sc1" for i in range(7)] + [f"buffer_load_dwordx2 v[44:45], v3, {S4(S_L)}, s{sC1} offen sc1"],
         bad_sentinel(list(range(16, 46)), 50), "y")
    st()
    for i in range(1, 7):
        a(pk("add", 16, 16, 16 + 4*i)); a(pk("add", 18, 18, 18 + 4*i))
    red8(a, [16, 17, 18, 19], [20, 21, 22, 23])
    a(f"v_lshl_add_u32 v6, v10, 7, v4\nds_write_b128 v6, v[16:19]\ns_waitcnt lgkmcnt(0)\ns_barrier\ns_cmp_lg_u32 s{sWAVE}, 0\ns_cbranch_scc1 {end}")
    for w in range(4): a(f"ds_read_b128 {R('v', 16+4*w)}, v4 offset:{128*w}")
    a(f"v_lshrrev_b32 v6, 3, v{vLANE}\nv_lshl_add_u32 v3, v6, 24, v3\ns_waitcnt lgkmcnt(0)")
    for j in (0, 2):
        a(pk("add", 16 + j, 16 + j, 20 + j)); a(pk("add", 24 + j, 24 + j, 28 + j)); a(pk("add", 16 + j, 16 + j, 24 + j))
        rnd(a, 16 + j, 17 + j)
        a(pk("mul", 16 + j, 16 + j, 60, mods="op_sel_hi:[1,0]")); rnd(a, 16 + j, 17 + j)
        unpack(a, 52, 53, 48 + j//2); unpack(a, 54, 55, 44 + j//2)
        a(pk("fma", 16 + j, 16 + j, 52, 54))
        a(f"v_cvt_pk_bf16_f32 v{56 + j//2}, v{16+j}, v{17+j}")
    a(f"buffer_store_dwordx2 v[56:57], v3, {S4(S_OUT)}, s{sK2} offen sc1")
    st()
    a(f"{end}:")
```

```python
import struct
from asmlib import Asm

NAME = "adaLN_cond__mha_block_cached__moe_arch_mod__prompt_kernel"
P0 = 68
PTR = {n: P0 + 2*i for i, n in enumerate("x k v wq wo bx wr wg wu wd c wmod out dbg ws".split())}

WS_MOD = 0x0
WS_MODG = 0x4000
WS_NONCE = 0xB000
FS = 7
WS_F1 = 0x10000
WS_F2 = 0x20000
WS_F3 = 0x40000
WS_KEY = 0x18000
WS_H = 0x400000
WS_HO = 0x800000
HO_EX, HO_YP, HO_ST, HO_CH, HO_CB = 0, 16384, 24576, 26624, 27648
WS_O = 0x1000000
WS_STG = 0x2000000
WS_TS = 0x4000000
LOG2E = 1.4426950408889634

PIECE = 1056
TILE = 16 * PIECE
KRING, VRING = 0, 4 * TILE
LDS_FLAG = 8 * TILE
LDS_TOTAL = 8 * TILE + 64

OPT = dict(diag=0, safe=0, spin=1 << 16, skew=4, barp=2, rg=[1, 2, 4, 5], vg=[3, 6], mlead=2, mslice=44, mlag=4)

def f2u(x): return "0x%08x" % struct.unpack("<I", struct.pack("<f", x))[0]
def R(f, i, n=4): return f"{f}[{i}:{i+n-1}]" if n > 1 else f"{f}{i}"
def S4(i): return f"s[{i}:{i+3}]"
def mf(d, A, B, c=None): return f"v_mfma_f32_16x16x32_bf16 {d}, {A}, {B}, {c if c is not None else d}"
def pk(op, d, x, y, z=None, mods=""):
    r2 = lambda r: r if isinstance(r, str) else f"v[{r}:{r+1}]"
    return f"v_pk_{op}_f32 {r2(d)}, {r2(x)}, {r2(y)}" + (f", {r2(z)}" if z is not None else "") + (" " + mods if mods else "")
def emit(a, mfmas, gaps):
    for g, m in enumerate(mfmas):
        a(m)
        for s in gaps.get(g, []): a(s)
def unpack(a, lo, hi, src):
    a(f"v_lshlrev_b32 v{lo}, 16, v{src}\nv_and_b32 v{hi}, 0xffff0000, v{src}")
def rnd(a, lo, hi, slo=None, shi=None):
    a(f"v_cvt_pk_bf16_f32 v{hi}, v{lo if slo is None else slo}, v{hi if shi is None else shi}")
    unpack(a, lo, hi, hi)
def swap_red(a, regs, tmps, op="v_add_f32"):
    for sw in ("v_permlane16_swap_b32", "v_permlane32_swap_b32"):
        for r_, t in zip(regs, tmps): a(f"v_mov_b32 v{t}, v{r_}")
        if len(regs) < 3: a(f"s_nop {2 - len(regs)}")
        for r_, t in zip(regs, tmps): a(f"{sw} v{r_}, v{t}")
        for r_, t in zip(regs, tmps): a(f"{op} v{r_}, v{r_}, v{t}")
def red8(a, regs, tmps):
    a("s_nop 1")
    for r_ in regs: a(f"v_add_f32_dpp v{r_}, v{r_}, v{r_} row_ror:8 row_mask:0xf bank_mask:0xf")
    swap_red(a, regs, tmps)
def shuffle(a, regs):
    a("s_nop 1")
    for sw in ("v_permlane32_swap_b32", "v_permlane16_swap_b32"):
        for d in regs: a(f"{sw} v{d}, v{d+2}\n{sw} v{d+1}, v{d+3}")
def top2_row(a, m1, m2, t):
    for sh in (8, 4, 2, 1):
        a("s_nop 1")
        a(f"v_min_u32_dpp v{t}, v{m1}, v{m1} row_ror:{sh} row_mask:0xf bank_mask:0xf")
        a(f"v_max_u32_dpp v{t+1}, v{m2}, v{m2} row_ror:{sh} row_mask:0xf bank_mask:0xf")
        a(f"v_max_u32_dpp v{m1}, v{m1}, v{m1} row_ror:{sh} row_mask:0xf bank_mask:0xf")
        a(f"v_max_u32 v{m2}, v{t}, v{t+1}")

class VM:
    def __init__(self): self.ops = []
    def add(self, tag): self.ops.append(tag)
    def count(self, *tags):
        last = max((i for i, t in enumerate(self.ops) if t in tags), default=-1)
        return min(len(self.ops) - 1 - last, 63)

sWAVE, sHEAD, sQB, sG64, sU, sG, sNT, sKH, sSL, sNONCE, sMW, sMW2 = 3, 52, 53, 54, 55, 56, 57, 58, 59, 60, 61, 62
sT0, sT1, sT2, sT3, sSPIN, sCNT = 44, 45, 46, 47, 48, 49
S_L = 4
vL16, vLANE, vG, vQ = 1, 11, 12, 13

def poll(a, loads, bad, name, first=None):
    lp, ok, ck = a.label("poll"), a.label("got" + name), a.label("chk")
    a(f"s_mov_b32 s{sSPIN}, 0")
    if first: a(f"{first}\ns_branch {ck}")
    a(f"{lp}:")
    for l in loads: a(l)
    a("s_waitcnt vmcnt(0)")
    if first: a(f"{ck}:")
    for l in bad: a(l)
    a(f"s_add_u32 s{sSPIN}, s{sSPIN}, 1\ns_cbranch_vccz {ok}")
    a(f"s_cmp_lt_u32 s{sSPIN}, {OPT['spin']}\ns_cbranch_scc1 {lp}\n{ok}:")
def bad_sentinel(regs, t):
    out = []
    if len(regs) == 1: t = regs[0]
    else:
        out.append(f"v_max_u32 v{t}, v{regs[0]}, v{regs[1]}")
        for i in range(2, len(regs), 2): out.append(f"v_max3_u32 v{t}, v{t}, v{regs[i]}, v{regs[i+1]}")
    return out + [f"v_cmp_eq_u32 vcc, -1, v{t}"]
def bad_tags(regs, t):
    if len(regs) == 1: return [f"v_cmp_ne_u32 vcc, s{sNONCE}, v{regs[0]}"]
    out = [f"v_xor_b32 v{t}, s{sNONCE}, v{regs[0]}"]
    for r_ in regs[1:]: out += [f"v_xor_b32 v{t+1}, s{sNONCE}, v{r_}", f"v_or_b32 v{t}, v{t}, v{t+1}"]
    return out + [f"v_cmp_ne_u32 vcc, 0, v{t}"]

class Stamps:
    def __init__(self, a): self.a, self.n = a, 0
    def __call__(self):
        if not OPT["diag"]: return
        a = self.a
        if self.n == 0: a("v_mov_b32 v255, -1")
        a("s_memrealtime s[98:99]\ns_memtime s[100:101]\ns_waitcnt lgkmcnt(0)")
        a(f"v_writelane_b32 v255, s98, {2*self.n}\nv_writelane_b32 v255, s100, {2*self.n+1}")
        self.n += 1
    def flush(self):
        if not OPT["diag"]: return
        a = self.a
        a.srd(8, PTR["ws"], 1 << 20, WS_TS)
        a(f"s_lshl_b32 s98, s2, 2\ns_add_u32 s98, s98, s{sWAVE}\ns_lshl_b32 s98, s98, 8\nv_lshlrev_b32 v254, 2, v{vLANE}")
        a("buffer_store_dword v255, v254, s[8:11], s98 offen")
```

```python
from common import *

S_W, S_B, S_K, S_V, S_O, S_WG, S_WU, S_WD, S_STG = 8, 12, 16, 20, 24, 28, 32, 36, 40
sKOFF, sVOFF, sWOFF, sBOFF = 63, 64, 65, 66
vWOFF, vKV, vA, vKADDR, vBOFF = 2, 3, 4, 5, 6
vGA, vTO, vTD, vCL = 248, 249, 250, 251

def ids(a):
    a(f"s_load_dwordx16 s[{P0}:{P0+15}], s[0:1], 0\ns_load_dwordx8 s[{P0+16}:{P0+23}], s[0:1], 64\ns_load_dwordx4 s[{P0+24}:{P0+27}], s[0:1], 96\ns_load_dwordx2 s[{P0+28}:{P0+29}], s[0:1], 112")
    a(f"""
    v_lshrrev_b32 v10, 6, v0
    v_and_b32 v{vLANE}, 63, v0
    v_readfirstlane_b32 s{sWAVE}, v10
    v_lshlrev_b32 v{vL16}, 4, v{vLANE}
    v_lshrrev_b32 v{vG}, 4, v{vLANE}
    v_and_b32 v{vQ}, 15, v{vLANE}
    s_and_b32 s{sT0}, s2, 7
    s_bfe_u32 s{sT1}, s2, 0x20003
    s_lshl_b32 s{sHEAD}, s{sT0}, 2
    s_add_u32 s{sHEAD}, s{sHEAD}, s{sT1}
    s_lshr_b32 s{sQB}, s2, 5
    s_lshl_b32 s{sG64}, s{sQB}, 2
    s_add_u32 s{sG64}, s{sG64}, s{sWAVE}
    s_lshl_b32 s{sSL}, s{sQB}, 5
    s_add_u32 s{sSL}, s{sSL}, s{sHEAD}
    s_mul_i32 s{sMW}, s{sWAVE}, {4*PIECE}
    s_add_u32 s{sMW2}, s{sMW}, {4*TILE}
    s_bfe_u32 s{sKH}, s2, 0x10002
    s_xor_b32 s{sKH}, s{sKH}, 1
    s_and_b32 s{sNT}, s2, 1
    s_lshl_b32 s{sNT}, s{sNT}, 2
    s_add_u32 s{sNT}, s{sNT}, s{sT1}
    s_lshl_b32 s{sNT}, s{sNT}, 1
    s_add_u32 s{sNT}, s{sNT}, s{sKH}
    s_bfe_u32 s{sT0}, s2, 0x10001
    s_lshl_b32 s{sG}, s{sQB}, 1
    s_add_u32 s{sG}, s{sG}, s{sT0}
    s_lshl_b32 s{sU}, s{sG}, 4
    s_add_u32 s{sU}, s{sU}, s{sNT}
    s_lshl_b32 s{sG}, s{sG}, 2
    s_add_u32 s{sG}, s{sG}, s{sWAVE}
    """)

def front(a, g, st):
    S_X, S_C, S_M, S_D = S_K, S_V, S_O, S_WG
    XP, CP, WD, SV, AC, X, T = 16, 32, 144, 40, 56, 64, 96
    vXO, vMO, vROW, vZ = 14, 15, 208, 209
    sCG = 67
    a(f"""
    v_and_b32 v{vROW}, 7, v0
    v_lshrrev_b32 v{T}, 3, v{vLANE}
    v_lshl_add_u32 v{T}, v10, 5, v{T}
    v_lshlrev_b32 v{T}, 4, v{T}
    v_lshl_add_u32 v{vXO}, v{vROW}, 11, v{T}
    v_lshrrev_b32 v{T+1}, 2, v0
    v_and_b32 v{T+2}, 3, v0
    v_mul_u32_u24 v{vMO}, {16*12288}, v{T+1}
    v_lshl_add_u32 v{vMO}, v{T+2}, 4, v{vMO}
    v_lshlrev_b32 v{T+1}, 5, v{T+1}
    v_mov_b32 v{vZ}, 0
    s_lshr_b32 s{sT0}, s2, 4
    s_lshl_b32 s{sT0}, s{sT0}, 4
    s_and_b32 s{sT1}, s2, 7
    s_lshl_b32 s{sT1}, s{sT1}, 1
    s_add_u32 s{sT0}, s{sT0}, s{sT1}
    s_bfe_u32 s{sT1}, s2, 0x10003
    s_add_u32 s{sCG}, s{sT0}, s{sT1}
    s_lshl_b32 s{sT2}, s{sSL}, 14
    s_waitcnt lgkmcnt(0)
    """)
    st()
    a.srd(S_L, PTR["ws"], 16 << 20)
    a.srd(S_D, PTR["dbg"], 256)
    l = a.label("nononce")
    a(f"s_or_b32 s{sT0}, s2, s{sWAVE}\ns_cbranch_scc1 {l}")
    a(f"""
    s_load_dword s{sT0}, s[{PTR['ws']}:{PTR['ws']+1}], {WS_NONCE}
    v_lshlrev_b32 v{T+4}, 24, v{vLANE}
    s_waitcnt lgkmcnt(0)
    s_mul_i32 s{sT0}, s{sT0}, 0x9e3779b1
    s_add_u32 s{sT0}, s{sT0}, 0x7f4a7c15
    s_cmp_eq_u32 s{sT0}, 0
    s_cselect_b32 s{sT0}, 0x7f4a7c15, s{sT0}
    v_mov_b32 v{T+3}, s{sT0}
    s_mov_b32 s{sT1}, {WS_NONCE}
    buffer_store_dword v{T+3}, v{T+4}, {S4(S_D)}, 0 offen sc1
    buffer_store_dword v{T+3}, v{T+4}, {S4(S_L)}, s{sT1} offen sc1
    {l}:
    """)
    a.srd(S_X, PTR["x"], 16384, f"s{sT2}")
    a.srd(S_C, PTR["c"], 2048)
    g.setup()
    l = a.label("gemvsrc")
    a.srd(S_M, PTR["wmod"], 1024*12288)
    a(f"s_lshl_b32 s{sT2}, s{sCG}, 6\ns_mov_b32 s{sT3}, 12288\ns_cmp_lt_u32 s2, 192\ns_cbranch_scc1 {l}")
    a(f"""
    s_mov_b32 s{S_M}, s{S_W}
    s_mov_b32 s{S_M+1}, s{S_W+1}
    s_mov_b32 s{S_M+2}, s{S_W+2}
    s_sub_u32 s{sT2}, s{sG64}, 24
    s_lshl_b32 s{sT2}, s{sT2}, 20
    s_mov_b32 s{sT3}, 65536
    v_lshrrev_b32 v{vMO}, 3, v{vLANE}
    v_lshlrev_b32 v{vMO}, 13, v{vMO}
    v_and_b32 v{T+2}, 7, v{vLANE}
    v_lshl_add_u32 v{vMO}, v{T+2}, 5, v{vMO}
    {l}:
    """)
    vm = VM()
    for i in range(4):
        a(f"buffer_load_dwordx4 {R('v', XP + 4*i)}, v{vXO}, {S4(S_X)}, 0 offen offset:{128*i}"); vm.add("X")
    for i in range(2):
        a(f"buffer_load_dwordx4 {R('v', CP + 4*i)}, v{T+1}, {S4(S_C)}, 0 offen offset:{16*i}"); vm.add("C")
    NV, U, E = 210, T + 4, 112
    nload = f"buffer_load_dword v{NV}, v{vZ}, {S4(S_D)}, 0 offen sc1"
    w = Asm()
    for i in range(144): w(f"v_accvgpr_write_b32 a{i}, 0")
    w("WAIT C")
    for i in range(8): unpack(w, SV + 2*i, SV + 2*i + 1, CP + i)
    for i in range(16): w(f"v_mul_f32 v{E+i}, {f2u(-LOG2E)}, v{SV+i}")
    for i in range(16): w(f"v_exp_f32 v{E+i}, v{E+i}")
    for i in range(0, 16, 2): w(pk("add", E + i, E + i, "1.0", mods="op_sel_hi:[1,0]"))
    for i in range(16): w(f"v_rcp_f32 v{E+i}, v{E+i}")
    for i in range(0, 16, 2): w(pk("mul", SV + i, SV + i, E + i))
    for i in range(0, 16, 2): rnd(w, SV + i, SV + i + 1)
    for i in range(16): unpack(w, X + 2*i, X + 2*i + 1, XP + i)
    w(pk("add", T, X, X + 2))
    for i in range(4, 32, 2): w(pk("add", T, T, X + i))
    w(f"v_add_f32 v{T}, v{T}, v{T+1}")
    red8(w, [T], [T + 1])
    w(f"v_mul_f32 v{T}, {f2u(-1/256)}, v{T}")
    for i in range(0, 32, 2):
        w(pk("add", T + 4, X + i, T, mods="op_sel_hi:[1,0]"))
        w(pk("mul", T + 2, T + 4, T + 4) if i == 0 else pk("fma", T + 2, T + 4, T + 4, T + 2))
    w(f"v_add_f32 v{T+1}, v{T+2}, v{T+3}")
    red8(w, [T + 1], [T + 2])
    w(f"v_lshlrev_b32 v{T+3}, 5, v{vROW}\nv_lshl_add_u32 v{T+2}, v10, 3, v{T+3}\nds_write_b64 v{T+2}, v[{T}:{T+1}]")
    for i in range(16):
        w(f"WAIT M{i}")
        sel = "op_sel:[0,1,0] op_sel_hi:[1,1,1]" if i % 2 else "op_sel_hi:[1,0,1]"
        for j in range(4):
            unpack(w, U + 2*(j % 2), U + 2*(j % 2) + 1, WD + 4*i + j)
            if i == 0: w(pk("mul", AC + 2*j, U + 2*(j % 2), SV, mods="op_sel_hi:[1,0]"))
            else: w(pk("fma", AC + 2*j, U + 2*(j % 2), SV + i - i % 2, AC + 2*j, mods=sel))
    side = [x.strip() for x in w.lines]
    def drain(n, issued):
        while side and n > 0:
            x = side[0]
            if x.startswith("WAIT"):
                tag = x.split()[1]
                if tag[0] == "M" and int(tag[1:]) > issued - OPT["mlag"]: return
                x = f"s_waitcnt vmcnt({vm.count(tag)})"
            a(x); side.pop(0); n -= 1
    for i in range(16):
        a(f"buffer_load_dwordx4 {R('v', WD + 4*i)}, v{vMO}, {S4(S_M)}, s{sT2} offen"); vm.add(f"M{i}")
        if i < 15: a(f"s_add_u32 s{sT2}, s{sT2}, s{sT3}")
        if i >= OPT["mlead"] and i < 15: drain(OPT["mslice"], i)
    a(nload); vm.add("N")
    drain(10000, 100)
    st()
    a("s_nop 1")
    for sh in (8, 4):
        for j in range(8): a(f"v_add_f32_dpp v{AC+j}, v{AC+j}, v{AC+j} row_ror:{sh} row_mask:0xf bank_mask:0xf")
    a(f"""
    v_lshrrev_b32 v{U}, 4, v0
    v_lshlrev_b32 v{U}, 7, v{U}
    v_and_b32 v{U+1}, 3, v0
    v_lshl_add_u32 v{U}, v{U+1}, 5, v{U}
    ds_write_b128 v{U}, {R('v', AC)} offset:1024
    ds_write_b128 v{U}, {R('v', AC+4)} offset:1040
    s_waitcnt lgkmcnt(0)
    s_barrier
    ds_read_b128 {R('v', E)}, v{T+3}
    ds_read_b128 {R('v', E+4)}, v{T+3} offset:16
    """)
    poll(a, [nload], [f"v_cmp_eq_u32 vcc, 0, v{NV}"], "nonce", first=f"s_waitcnt vmcnt({vm.count('N')})")
    a(f"v_readfirstlane_b32 s{sNONCE}, v{NV}")
    nop = a.label("nopub")
    a(f"s_cmp_ge_u32 s2, 192\ns_cbranch_scc1 {nop}\ns_cmp_lg_u32 s{sWAVE}, 0\ns_cbranch_scc1 {nop}")
    a(f"v_lshlrev_b32 v{U}, 9, v{vG}\nv_lshl_add_u32 v{U}, v{vQ}, 3, v{U}")
    for i in range(4): a(f"ds_read_b64 v[{AC+2*i}:{AC+2*i+1}], v{U} offset:{1024 + 128*i}")
    a(f"s_sub_u32 s{sT0}, s{sCG}, 32\ns_cmp_lt_u32 s{sT0}, 32\ns_cselect_b32 s{sT0}, 1.0, 0\ns_mov_b32 s{sT1}, s{sT0}")
    a(f"v_lshlrev_b32 v{U+2}, 24, v{vG}\nv_lshl_add_u32 v{U+3}, v{vQ}, 2, v{U+2}\nv_lshl_add_u32 v{U+2}, v{vQ}, 3, v{U+2}\ns_waitcnt lgkmcnt(0)")
    a(pk("add", AC, AC, AC + 2)); a(pk("add", AC + 4, AC + 4, AC + 6)); a(pk("add", AC, AC, AC + 4))
    swap_red(a, [AC, AC + 1], [AC + 2, AC + 3])
    a(f"v_cvt_pk_bf16_f32 v{AC+4}, v{AC}, v{AC+1}")
    unpack(a, AC, AC + 1, AC + 4)
    a(pk("add", AC, AC, f"s[{sT0}:{sT1}]"))
    a(f"""
    v_cvt_pk_bf16_f32 v{AC+2}, v{AC}, v{AC+1}
    v_mov_b32 v{AC+3}, s{sNONCE}
    s_lshl_b32 s{sT0}, s{sCG}, 7
    s_add_u32 s{sT0}, s{sT0}, {WS_MODG}
    s_lshl_b32 s{sT1}, s{sCG}, 6
    s_lshl_b32 s{sT2}, s{sCG}, {FS}
    s_add_u32 s{sT2}, s{sT2}, {WS_F1}
    buffer_store_dwordx2 v[{AC+2}:{AC+3}], v{U+2}, {S4(S_L)}, s{sT0} offen sc1
    buffer_store_dword v{AC+4}, v{U+3}, {S4(S_L)}, s{sT1} offen sc1
    {nop}:
    """)
    st()
    for p in range(4): g.issue(g.dma(0, p), vm)
    a("s_waitcnt lgkmcnt(0)")
    a(pk("add", T, E, E + 2)); a(pk("add", T + 2, E + 4, E + 6)); a(pk("add", T, T, T + 2))
    a(f"v_mul_f32 v{T}, {f2u(0.25)}, v{T}")
    for i in range(4):
        a(f"v_sub_f32 v{T+2}, v{E+2*i}, v{T}")
        a(f"v_mul_f32 v{T+3}, v{T+2}, v{T+2}" if i == 0 else f"v_fmac_f32 v{T+3}, v{T+2}, v{T+2}")
    a(f"v_fmac_f32 v{T+1}, {f2u(256.0)}, v{T+3}\nv_mul_f32 v{T+1}, {f2u(1/1024)}, v{T+1}")
    rnd(a, T, T + 1)
    a(f"""
    v_add_f32 v{T+1}, {f2u(1e-5)}, v{T+1}
    v_cvt_pk_bf16_f32 v{T+1}, v{T+1}, v{T+1}
    v_lshlrev_b32 v{T+1}, 16, v{T+1}
    v_sqrt_f32 v{T+1}, v{T+1}
    s_nop 0
    v_cvt_pk_bf16_f32 v{T+1}, v{T+1}, v{T+1}
    v_lshlrev_b32 v{T+1}, 16, v{T+1}
    v_rcp_f32 v{T+1}, v{T+1}
    s_nop 0
    """)
    for i in range(0, 32, 2):
        a(pk("add", X + i, X + i, T, mods="op_sel_hi:[1,0]")); rnd(a, X + i, X + i + 1)
        a(pk("mul", X + i, X + i, T, mods="op_sel:[0,1] op_sel_hi:[1,1]")); rnd(a, X + i, X + i + 1)
    G = XP
    a(f"s_lshl_b32 s{sT0}, s{sWAVE}, 10\ns_add_u32 s{sT0}, s{sT0}, {WS_MODG}\ns_add_u32 s{sT1}, s{sT0}, 4096")
    poll(a, [f"buffer_load_dwordx4 {R('v', G)}, v{vL16}, {S4(S_L)}, s{sT0} offen sc1", f"buffer_load_dwordx4 {R('v', G+4)}, v{vL16}, {S4(S_L)}, s{sT1} offen sc1"],
         bad_tags([G + 1, G + 3, G + 5, G + 7], U), "mod")
    st()
    a(f"""
    v_lshlrev_b32 v{U}, 3, v{vLANE}
    v_lshl_add_u32 v{U}, v10, 10, v{U}
    v_add_u32 v{U}, 4096, v{U}
    ds_write2_b32 v{U}, v{G}, v{G+2} offset0:0 offset1:1
    ds_write2_b32 v{U}, v{G+4}, v{G+6} offset0:128 offset1:129
    v_lshrrev_b32 v{U}, 3, v{vLANE}
    v_lshlrev_b32 v{U}, 4, v{U}
    v_lshl_add_u32 v{U}, v10, 10, v{U}
    s_waitcnt lgkmcnt(0)
    """)
    SH, SC = 144, 160
    for i in range(4):
        a(f"ds_read_b128 {R('v', SC + 4*i)}, v{U} offset:{4096 + 512 + 128*i}\nds_read_b128 {R('v', SH + 4*i)}, v{U} offset:{4096 + 128*i}")
    nof = a.label("nof1")
    a(f"v_mov_b32 v{NV}, s{sNONCE}\nv_lshlrev_b32 v211, 24, v{vLANE}")
    a(f"s_cmp_ge_u32 s2, 192\ns_cbranch_scc1 {nof}\ns_cmp_lg_u32 s{sWAVE}, 0\ns_cbranch_scc1 {nof}")
    a(f"buffer_store_dword v{NV}, v211, {S4(S_L)}, s{sT2} offen sc1\n{nof}:")
    a(f"""
    v_lshrrev_b32 v{U+1}, 3, v{vLANE}
    v_lshl_add_u32 v{U+1}, v10, 5, v{U+1}
    v_lshlrev_b32 v{U+1}, 8, v{U+1}
    v_lshl_add_u32 v{U+1}, v{vROW}, 4, v{U+1}
    s_lshr_b32 s{sT0}, s{sSL}, 1
    s_lshl_b32 s{sT0}, s{sT0}, 15
    s_and_b32 s{sT1}, s{sSL}, 1
    s_lshl_b32 s{sT1}, s{sT1}, 7
    s_add_u32 s{sT0}, s{sT0}, s{sT1}
    s_add_u32 s{sT0}, s{sT0}, {WS_H}
    s_add_u32 s{sT1}, s{sT0}, 4096
    """)
    for i in range(4):
        a(f"s_waitcnt lgkmcnt({6 - 2*i})")
        for j in range(4*i, 4*i + 4):
            unpack(a, U + 2, U + 3, SC + j); a(pk("mul", X + 2*j, X + 2*j, U + 2)); rnd(a, X + 2*j, X + 2*j + 1)
            unpack(a, U + 2, U + 3, SH + j); a(pk("add", X + 2*j, X + 2*j, U + 2))
            a(f"v_cvt_pk_bf16_f32 v{SH+j}, v{X+2*j}, v{X+2*j+1}")
        a(f"buffer_store_dwordx4 {R('v', SH + 4*i)}, v{U+1}, {S4(S_L)}, s{sT0 if i < 2 else sT1} offen offset:{2048*(i % 2)} sc1")
    a(f"""
    s_lshl_b32 s{sT0}, s{sSL}, 2
    s_add_u32 s{sT0}, s{sT0}, s{sWAVE}
    s_lshl_b32 s{sT0}, s{sT0}, {FS}
    s_add_u32 s{sT0}, s{sT0}, {WS_F2}
    s_lshl_b32 s{sT1}, s{sG64}, {5+FS}
    s_add_u32 s{sT1}, s{sT1}, {WS_F2}
    v_lshl_add_u32 v212, v{vLANE}, {FS}, s{sT1}
    s_lshl_b32 s{sT1}, s{sNT}, {1+FS}
    s_add_u32 s{sT1}, s{sT1}, {WS_F1 + (64 << FS)}
    v_bfe_u32 v213, v{vLANE}, 1, 2
    v_lshlrev_b32 v213, {5+FS}, v213
    v_and_b32 v214, 1, v{vLANE}
    v_lshl_add_u32 v213, v214, {FS}, v213
    v_add_u32 v213, s{sT1}, v213
    v_cmp_gt_u32 vcc, 32, v{vLANE}
    """)
    for i in range(64): a(f"v_mov_b32 v{16+i}, 0")
    a(f"v_cndmask_b32 v212, v213, v212, vcc\ns_waitcnt vmcnt(0)")
    a(f"buffer_store_dword v{NV}, v211, {S4(S_L)}, s{sT0} offen sc1")
    for i in range(64, 128): a(f"v_mov_b32 v{16+i}, 0")
    st()
    a("s_waitcnt vmcnt(0)")
    poll(a, [f"buffer_load_dword v213, v212, {S4(S_L)}, 0 offen sc1"], bad_tags([213], None), "h")
    st()
```

```python
import sys
from common import *
from front import *
import attn as A, back as K

HEAD = open("adaLN_cond__mha_block_cached__moe_arch_mod__prompt.s.ref").read().split("\n")[:18]

def generate():
    a = Asm()
    a.begin_kernel(NAME)
    l = a.label("go")
    a(f"s_cmp_lt_u32 s2, 256\ns_cbranch_scc1 {l}\ns_endpgm\n{l}:")
    st = Stamps(a)
    ids(a)
    g = A.QProj(a)
    front(a, g, st)
    wpre = [K.OProj(a).dma(c, p) for c in range(4) for p in range(4)]
    at = A.Attn(a, False, wpre)
    def between():
        a(f"""
        v_lshl_add_u32 v{vKV}, v10, 12, v{vL16}
        v_mul_u32_u24 v{vKADDR}, {PIECE}, v{vQ}
        v_lshl_add_u32 v{vKADDR}, v{vG}, 4, v{vKADDR}
        s_mov_b32 s{sKOFF}, 0
        s_mov_b32 s{sVOFF}, 0
        s_lshl_b32 s{sT0}, s{sHEAD}, 19
        s_lshl_b32 s{sT1}, s{sG64}, 14
        s_add_u32 s{sT1}, s{sT1}, s{sT0}
        s_add_u32 s{sT1}, s{sT1}, {WS_O}
        """)
        a.srd(S_K, PTR["k"], 1 << 19, f"s{sT0}"); a.srd(S_V, PTR["v"], 1 << 19, f"s{sT0}"); a.srd(S_O, PTR["ws"], 16384, f"s{sT1}")
        for i in range(4): a(f"v_mov_b32 v{A.ONES+i}, 0x3f803f80")
        a(f"v_and_b32 v14, 1, v{vLANE}\nv_mul_u32_u24 v15, 0xaaaa, v14\nv_add_u32 v15, 0x4444, v15\nv_lshl_add_u32 v{A.IDX}, v15, 16, v15")
        a(f"""
        v_lshrrev_b32 v15, 1, v{vLANE}
        v_mul_u32_u24 v{vGA}, 7168, v15
        v_lshl_add_u32 v{vGA}, v14, 4, v{vGA}
        v_lshlrev_b32 v{vTO}, 11, v15
        v_lshl_add_u32 v{vTO}, v14, 7, v{vTO}
        v_lshl_add_u32 v{vTO}, v{vG}, 24, v{vTO}
        v_lshlrev_b32 v{vTD}, 7, v{vLANE}
        v_lshl_add_u32 v{vTD}, v10, 13, v{vTD}
        v_lshrrev_b32 v15, 3, v{vLANE}
        v_lshl_add_u32 v{vTD}, v15, 24, v{vTD}
        s_lshl_b32 s{sT0}, s{sU}, 15
        s_mul_i32 s{sT1}, s{sWAVE}, 7168
        s_add_u32 s{sT0}, s{sT0}, s{sT1}
        s_add_u32 s{sT0}, s{sT0}, {WS_HO}
        v_add_u32 v{vCL}, s{sT0}, v{vL16}
        s_lshl_b32 s{sT0}, s2, 2
        s_add_u32 s{sT0}, s{sT0}, s{sWAVE}
        s_lshl_b32 s{sT0}, s{sT0}, 14
        s_add_u32 s{sT0}, s{sT0}, {WS_STG}
        s_min_u32 s{sT1}, s{sSL}, 223
        s_lshl_b32 s{sT1}, s{sT1}, 15
        s_cmp_lt_u32 s2, 224
        s_cselect_b32 s{sT2}, 32768, 0
        """)
        a.srd(S_STG, PTR["ws"], 16384, f"s{sT0}"); a.srd(S_WD, PTR["wd"], f"s{sT2}", f"s{sT1}")
        K.const_setup(a)
    g.between = between
    kv, cs = at.first_dmas(), K.const_ops()
    tail = []
    while kv or cs:
        if kv: tail.append(kv.pop(0))
        if cs: tail.append(cs.pop(0))
    vm = g.run(tail, st)
    st()
    a(f"s_mov_b32 s50, {f2u(LOG2E * 128 ** -0.5)}\ns_mov_b32 s51, s50")
    K.setup_w(a)
    a(f"s_cmp_lt_u32 s2, 224\ns_cselect_b32 s{sT2}, {1024*7168}, 0")
    a.srd(S_WG, PTR["wg"], f"s{sT2}"); a.srd(S_WU, PTR["wu"], f"s{sT2}")
    a(f"s_mul_i32 s{A.sGA}, s{sWAVE}, {256*7168}\ns_lshl_b32 s{A.sST}, s{sSL}, 5\ns_add_u32 s{A.sGA}, s{A.sGA}, s{A.sST}\ns_mov_b32 s{A.sST}, 0\ns_lshl_b32 s{A.sWT}, s{sG64}, 17\ns_mov_b32 s{A.sR1}, 0")
    for n in range(16):
        for i in range(0, 8, 2): a(pk("mul", A.ACC + 8*n + i, A.ACC + 8*n + i, "s[50:51]"))
        for i in range(4): a(f"v_cvt_pk_bf16_f32 v{A.QF + 4*n + i}, v{A.ACC + 8*n + 2*i}, v{A.ACC + 8*n + 2*i + 1}")
    shuffle(a, [A.QF + 4*n for n in range(16)])
    for qb in range(4): a(f"v_add_u32 v{vBOFF+qb}, {qb*4096}, v{vL16}")
    for i in range(4): a(f"v_mov_b32 v{A.NEG+i}, -1")
    st()
    at.body(vm.count(("K", 1), ("V", 0)))
    st()
    A.epilogue(a, True)
    safe, cont = a.label("safe"), a.label("cont")
    A.verdict(a, safe)
    a(f"{cont}:")
    st()
    base = K.oproj(a, st)
    K.moe(a, st, base)
    st.flush()
    a("s_endpgm")
    a(f"{safe}:")
    A.safe_path(a, wpre, cont)
    a.end_kernel(NAME, 256, 256, sgpr=102)
    return a.text(HEAD + [f"; @launch grid=(256,1,1) block=(256,1,1) lds={LDS_TOTAL}"])

if __name__ == "__main__":
    for arg in sys.argv[2:]:
        k, v = arg.split("=")
        assert k in OPT, k
        OPT[k] = [int(c) for c in v] if isinstance(OPT[k], list) else int(v)
    open(sys.argv[1], "w").write(generate())
```

```python
from common import *
from front import *

ACC = 16
AFR = [144 + 4*i for i in range(4)]
BRING = [("v", 160 + 4*i) for i in range(16)] + [("v", 232 + 4*i) for i in range(4)] + [("a", 144 + 4*i) for i in range(12)]

vQT, sQT, vF1, vKT = 252, 67, 229, 254

class QProj:
    def __init__(self, a): self.a = a
    def setup(self):
        a = self.a
        a(f"""
        v_lshrrev_b32 v{vA}, 2, v{vLANE}
        v_mul_u32_u24 v{vA}, {PIECE}, v{vA}
        v_and_b32 v{vKV}, 3, v{vLANE}
        v_lshl_add_u32 v{vA}, v{vKV}, 3, v{vA}
        v_add_u32 v{vA}, {VRING}, v{vA}
        v_lshrrev_b32 v{vWOFF}, 1, v{vG}
        v_lshlrev_b32 v{vWOFF}, 5, v{vWOFF}
        v_and_b32 v{vKV}, 1, v{vG}
        v_lshl_add_u32 v{vWOFF}, v{vKV}, 2, v{vWOFF}
        v_lshl_add_u32 v{vWOFF}, v10, 3, v{vWOFF}
        v_lshlrev_b32 v{vWOFF}, 13, v{vWOFF}
        v_lshl_add_u32 v{vWOFF}, v{vQ}, 4, v{vWOFF}
        s_lshl_b32 s{sT0}, s{sHEAD}, 8
        s_mov_b32 s{sWOFF}, 0
        """)
        a.srd(S_W, PTR["wq"], (8 << 20) - 31*256, f"s{sT0}")
        a(f"""
        v_lshrrev_b32 v{vQT}, 1, v{vQ}
        v_lshlrev_b32 v{vQT}, 13, v{vQT}
        v_and_b32 v{vKV}, 1, v{vQ}
        v_lshl_add_u32 v{vQT}, v{vKV}, 7, v{vQT}
        v_lshl_add_u32 v{vQT}, v{vG}, 24, v{vQT}
        s_lshl_b32 s{sQT}, s{sG64}, 16
        """)
    def touch(self):
        return (None, f"buffer_load_dword v253, v{vQT}, {S4(S_W)}, s{sQT} offen", f"s_add_u32 s{sQT}, s{sQT}, {256*8192}", "T")
    def setup_b(self):
        a = self.a
        a(f"""
        s_lshl_b32 s{sT1}, s{sNT}, {1+FS}
        s_add_u32 s{sT1}, s{sT1}, {WS_F1 + (64 << FS)}
        v_bfe_u32 v{vF1}, v{vLANE}, 1, 2
        v_lshlrev_b32 v{vF1}, {5+FS}, v{vF1}
        v_and_b32 v14, 1, v{vLANE}
        v_lshl_add_u32 v{vF1}, v14, {FS}, v{vF1}
        v_add_u32 v{vF1}, s{sT1}, v{vF1}
        v_and_b32 v{vKT}, 3, v{vLANE}
        v_lshlrev_b32 v{vKT}, 7, v{vKT}
        s_lshl_b32 s{sT3}, s{sG64}, 9
        """)
        for qb in range(4): a(f"v_add_u32 v{vBOFF+qb}, {qb*32768}, v{vL16}")
        a(f"s_lshl_b32 s{sT0}, s{sG64}, 17\ns_add_u32 s{sT0}, s{sT0}, {WS_H}\ns_mov_b32 s{sBOFF}, 0")
        a.srd(S_B, PTR["ws"], 1 << 17, f"s{sT0}")
    def acc(self, nb, qb): return R("v", ACC + 4*(qb*8 + nb))
    def bfrag(self, c, qb, ks):
        f, i = BRING[(c % 4)*8 + qb*2 + ks]; return R(f, i)
    def a_reads(self, c, nb):
        return [f"ds_read_b64_tr_b16 {R('v', AFR[(nb % 2)*2 + ks] + 2*jj, 2)}, v{vA} offset:{(c % 4)*TILE + (2*ks + jj)*256 + nb*32}" for ks in range(2) for jj in range(2)]
    def dma(self, c, p):
        return (f"s_add_u32 m0, s{sMW}, {VRING + (c % 4)*TILE + p*PIECE}", f"buffer_load_dwordx4 v{vWOFF}, {S4(S_W)}, s{sWOFF} offen lds",
                f"s_add_u32 s{sWOFF}, s{sWOFF}, {8192 if p < 3 else 61*8192}", ("W", c))
    def bload(self, c, i):
        qb, ks = i // 2, i % 2
        return (None, f"buffer_load_dwordx4 {self.bfrag(c, qb, ks)}, v{vBOFF+qb}, {S4(S_B)}, s{sBOFF} offen offset:{ks*1024} sc1",
                f"s_add_u32 s{sBOFF}, s{sBOFF}, 2048" if i == 7 else None, ("B", c))
    def issue(self, op, vm):
        a = self.a
        if op[0]: a(op[0]); a("s_nop 0")
        a(op[1]); vm.add(op[3])
        if op[2]: a(op[2])
    def w_prologue(self, vm):
        for c in range(4):
            for p in range(4 if c < 3 else 1): self.issue(self.dma(c, p), vm)
    def steady(self, c, nb):
        ops = [self.bload(c + OPT['qdb'], nb)] if c + OPT['qdb'] < 16 else []
        if nb % 2 == 1:
            cc, p = (c + 4, 0) if nb == 7 else (c + 3, (nb + 1)//2)
            if cc < 16: ops.append(self.dma(cc, p))
        if OPT["qtouch"] and c < 12 and c % 4 == 0 and nb == 0: ops.append(self.touch())
        if OPT["kvt"] and c < 12 and c % 4 == 2 and nb in (0, 2):
            ops.append((None, f"buffer_load_dword v{230 + nb//2}, v{vKT}, {S4(S_K if nb == 0 else S_V)}, s{sT3} offen", f"s_add_u32 s{sT3}, s{sT3}, 16384" if nb else None, "T"))
        return ops
    def chunk(self, a, c, vm, extra=None, need=None):
        last = c == 15
        for nb in range(8):
            ms = [mf(self.acc(nb, qb), R("v", AFR[(nb % 2)*2 + ks]), self.bfrag(c, qb, ks)) for qb in range(4) for ks in ((0, 1) if qb % 2 == 0 else (1, 0))]
            gaps = {g: [] for g in range(8)}
            if not (last and nb == 7):
                rd = self.a_reads(c, nb + 1) if nb < 7 else self.a_reads(c + 1, 0)
                gaps[0] += rd[0:2]; gaps[1] += rd[2:4]
            ops = self.steady(c, nb)
            while extra and len(ops) < 2: ops.append(extra.pop(0))
            for k, op in enumerate(ops):
                g = 3 + 2*k
                if op[0]: gaps[g - 1].insert(0, op[0])
                gaps[g].append(op[1]); vm.add(op[3])
                if op[2]: gaps[g + 1].append(op[2])
            if nb == 6: gaps[7] += [f"s_waitcnt vmcnt({vm.count(*(need or [('W', c + 1), ('B', c + 1)]))}) lgkmcnt(0)", "s_barrier"]
            elif not (last and nb == 7): gaps[7].append("s_waitcnt lgkmcnt(0)")
            emit(a, ms, gaps)
    def run(self, tail_ops, st):
        a = self.a
        vm = VM()
        for c in range(4): vm.add(("W", c))
        for c in range(OPT["qdb"]):
            for i in range(8): self.issue(self.bload(c, i), vm)
            if c == 0:
                a("s_waitcnt lgkmcnt(0)\ns_barrier")
                self.after_b()
                for s in self.a_reads(0, 0): a(s)
            while self.wrest and (self.wrest[0][0] <= c + 1 or c == OPT["qdb"] - 1): self.issue(self.dma(*self.wrest.pop(0)), vm)
        a(f"s_waitcnt vmcnt({vm.count(('B', 0))}) lgkmcnt(0)")
        st()
        bodies = []
        for b in range(3):
            t = Asm()
            for c in range(4*b, 4*b + 4): self.chunk(t, c, vm)
            bodies.append(t.lines)
        l = a.label("qproj")
        a(f"s_mov_b32 s{sCNT}, 0\n{l}:")
        st.dyn(sCNT, 5)
        a.lines += strictest(bodies)
        a(f"s_add_u32 s{sCNT}, s{sCNT}, 1\ns_cmp_lt_u32 s{sCNT}, 3\ns_cbranch_scc1 {l}")
        st.dyn(sCNT, 5)
        f1 = f"buffer_load_dword v253, v{vF1}, {S4(S_L)}, 0 offen sc1"
        self.chunk(a, 12, vm, [(None, f1, None, "F")], need=[("W", 13), ("B", 13), "F"])
        slow, back = a.label("slowf1"), a.label("backf1")
        a(f"v_cmp_ne_u32 vcc, s{sNONCE}, v253\ns_cbranch_vccnz {slow}\n{back}:\nv_lshlrev_b32 v253, 2, v{vLANE}")
        def outofline():
            a(f"{slow}:")
            poll(a, [f1], bad_tags([253], None), "f1")
            a(f"s_branch {back}")
        self.outofline = outofline
        if OPT['diag'] == 5: a(f's_add_u32 s{sCNT}, s{sCNT}, 1'); st.dyn(sCNT, 5)
        self.chunk(a, 13, vm, tail_ops)
        if OPT['diag'] == 5: a(f's_add_u32 s{sCNT}, s{sCNT}, 1'); st.dyn(sCNT, 5)
        self.chunk(a, 14, vm, tail_ops)
        if OPT['diag'] == 5: a(f's_add_u32 s{sCNT}, s{sCNT}, 1'); st.dyn(sCNT, 5)
        self.chunk(a, 15, vm, tail_ops, need=[("K", 0)])
        for op in tail_ops: self.issue(op, vm)
        return vm

def strictest(bodies):
    import re
    out = list(bodies[0])
    for o in bodies[1:]:
        assert len(o) == len(out), (len(o), len(out))
        for i, (p, q) in enumerate(zip(out, o)):
            if p != q:
                np_, nq = (int(re.search(r"vmcnt\((\d+)\)", z).group(1)) for z in (p, q))
                assert re.sub(r"vmcnt\(\d+\)", "", p) == re.sub(r"vmcnt\(\d+\)", "", q)
                out[i] = p if np_ < nq else q
    return out

QF, SB_, MB, PB_, KF, VF, ONES, IDX = 16, 80, 96, 112, 176, 208, 224, 228
OACC, LACC = 0, 128
TA, TB, NEG, DUM = 96, 100, 104, 108
sGA, sST, sWT, sR1 = sT0, sT1, sT2, sT3
vPW = 111
vDN = 110

class Attn:
    def __init__(self, a, safe, wpre=None):
        self.a, self.safe, self.wpre = a, safe, wpre
    def kread(self, T, kb, ds):
        return f"ds_read_b128 {R('v', KF + 16*(kb % 2) + 4*ds)}, v{vKADDR} offset:{(T % 4)*TILE + kb*256 + ds*64}"
    def vreads(self, T, db, ks):
        return [f"ds_read_b64_tr_b16 {R('v', VF + 8*(db % 2) + 4*ks + 2*jj, 2)}, v{vA} offset:{(T % 4)*TILE + (2*ks + jj)*256 + db*32}" for jj in range(2)]
    def dma(self, kind, T, p):
        ring, srd, so = (KRING, S_K, sKOFF) if kind == "K" else (VRING, S_V, sVOFF)
        return (f"s_add_u32 m0, s{sMW}, {ring + (T % 4)*TILE + 32*p}", f"buffer_load_dwordx4 v{vKV}, {S4(srd)}, s{so} offen offset:{p*1024} lds",
                f"s_add_u32 s{so}, s{so}, 16384" if p == 3 else None, (kind, T))
    def first_dmas(self):
        seq = [("K", 0, p) for p in range(4)]
        for T in range(2): seq += [("K", T + 1, p) for p in range(4)] + [("V", T, p) for p in range(4)]
        return [self.dma(*x) for x in seq]
    def qk(self, kb, qb):
        order = (0, 1, 2, 3) if qb % 2 == 0 else (3, 2, 1, 0)
        return [mf(R("v", SB_ + 4*qb), R("v", KF + 16*(kb % 2) + 4*ds), R("v", QF + 16*qb + 4*ds),
                   (R("v", MB + 4*qb) if self.safe else "0") if n == 0 else None) for n, ds in enumerate(order)]
    def pv(self, T, db, qbs):
        return [mf(R("a", OACC + 4*(qb*8 + db)), R("v", VF + 8*(db % 2) + 4*ks), R("v", PB_ + 32*(T % 2) + 8*qb + 4*ks))
                for qb in qbs for ks in ((0, 1) if qb % 2 == 0 else (1, 0))]
    def exp(self, blk, i):
        r_ = SB_ + 4*(blk % 4) + i
        return f"v_exp_f32 v{r_}, v{r_}"
    def cvt(self, X, blk, h):
        kb, qb = blk // 4, blk % 4
        return f"v_cvt_pk_bf16_f32 v{PB_ + 32*(X % 2) + 8*qb + 2*kb + h}, v{SB_ + 4*qb + 2*h}, v{SB_ + 4*qb + 2*h + 1}"
    def smf(self, T, qb):
        return f"v_smfmac_f32_16x16x64_bf16 {R('a', LACC + 4*qb)}, {R('v', ONES)}, {R('v', PB_ + 32*(T % 2) + 8*qb, 8)}, v{IDX}"
    def kread_at(self, T, s):
        n = s + 5
        return T + 1 + n // 16, (n % 16) // 4, n % 4
    def dma_ops(self, T, lo=0):
        ops = {}
        for s in range(1, 16, 2):
            n = (s - 11) // 2
            st = T + 3 if n >= 0 else T + 2
            n %= 8
            if s >= lo: ops[s] = ("K", st + 1, n) if n < 4 else ("V", st, n - 4)
        return ops
    def extras(self, T):
        if self.safe: return {}
        stB = f"buffer_store_dwordx4 {R('v', TB)}, v{vL16}, {S4(S_STG)}, s{sST} offen offset:1024"
        full = [{12: (f"buffer_load_dwordx4 {R('v', TA)}, v{vGA}, {S4(S_WG)}, s{sGA} offen", None),
                 14: (f"buffer_load_dword v{DUM}, v{vTO}, {S4(S_W)}, s{sWT} offen", f"s_add_u32 s{sWT}, s{sWT}, 16384")},
                {12: (f"buffer_load_dwordx4 {R('v', TB)}, v{vGA}, {S4(S_WU)}, s{sGA} offen", f"s_add_u32 s{sGA}, s{sGA}, {32*7168}"),
                 14: (f"buffer_load_dword v{DUM+1}, v{vTD}, {S4(S_WD)}, s{sR1} offen", None)},
                {12: (f"buffer_store_dwordx4 {R('v', TA)}, v{vL16}, {S4(S_STG)}, s{sST} offen", None),
                 14: ("global_load_dword v232, v[230:231], off", None)},
                {12: (stB, f"s_add_u32 s{sST}, s{sST}, 2048"),
                 14: (f"buffer_store_dwordx4 {R('v', NEG)}, v{vCL}, {S4(S_L)}, s{sR1} offen sc1", f"s_add_u32 s{sR1}, s{sR1}, 1024")}][T % 4]
        off = OPT["exoff"]
        kind = [{12: 1, 14: 4}, {12: 1, 14: 4}, {12: 2, 14: 16}, {12: 2, 14: 8}][T % 4]
        if not OPT['ctch'] & 4: off |= 16
        return {s: v for s, v in full.items() if not kind[s] & off}
    def iteration(self, T, do_qk=True, do_pv=True, tail=None, barwait=8, plan=None):
        a = self.a
        full = do_qk and do_pv
        dmas = self.dma_ops(T, 0 if full else 11) if do_qk else {}
        ex = self.extras(T) if full and not plan else {}
        for s in range(16):
            kb, qb, db = s // 4, s % 4, s // 2
            ms = (self.qk(kb, qb) if do_qk else []) + (self.pv(T, db, (2*(s % 2), 2*(s % 2) + 1)) if do_pv else [])
            E, C = [], []
            if s >= 1:
                if do_qk: E = [self.exp(s - 1, i) for i in range(4)]
            elif do_pv: E = [self.exp(15, i) for i in range(4)]
            if s >= 2:
                if do_qk: C = [self.cvt(T + 1, s - 2, h) for h in range(2)]
            elif do_pv: C = [self.cvt(T, 14 + s, h) for h in range(2)]
            KR = [self.kread(*self.kread_at(T, s))] if do_qk and not (plan and self.kread_at(T, s)[0] > 31) else []
            VR, n = [], s + 2
            if n < 16:
                if do_pv: VR = self.vreads(T, n // 2, n % 2)
            elif do_qk: VR = self.vreads(T + 1, 0, n % 2)
            D = self.dma(*dmas[s]) if s in dmas else None
            if plan:
                if D is None or D[3][1] > 31: D = plan[1](T, s)
                if D: plan[0].add(D[3])
                if s == 10: barwait = plan[0].count(("K", T + 2), ("V", T + 1))
            gaps = {g: [] for g in range(9)}
            if full:
                pt = OPT["pat"]
                assert pt[6] <= pt[7] <= pt[8] and pt[8] >= 3
                prevk = 0 if plan and s > 0 and self.kread_at(T, s - 1)[0] > 31 else 1
                if s % 2 == 0: gaps[3].append(f"s_waitcnt lgkmcnt({prevk + sum(g < 3 for g in pt[6:8])})")
                for x, g in zip(VR + KR, pt[6:9]): gaps[g].append(x)
                for x, g in zip(C + E, pt[4:6] + pt[0:4]): gaps[g].append(x)
                last = 7
                if s % 4 == 3: ms.append(self.smf(T, s // 4)); last = 8
                if D:
                    if D[0]: gaps[6].insert(0, D[0])
                    gaps[7].append(D[1])
                    if D[2]: gaps[last].append(D[2])
                if s in ex: gaps[7].append(ex[s][0])
                if s - 1 in ex and ex[s - 1][1]: gaps[0].insert(0, ex[s - 1][1])
                if s % 4 == 3: gaps[last].append(f"s_waitcnt lgkmcnt({len(KR) + len(VR)})")
                if s == 10: gaps[last] += [f"s_waitcnt vmcnt({barwait})", "s_barrier"]
                if s == 15 and tail: gaps[last] += tail
            elif do_qk:
                gaps[0] = VR; gaps[1] = C
                if D: gaps[1] = [D[0]] + gaps[1]; gaps[2] = [D[1]] + ([D[2]] if D[2] else [])
                gaps[3] = KR + (E if E else ["s_nop 3"])
                if s % 4 == 3: gaps[3].append(f"s_waitcnt lgkmcnt({len(KR) + len(VR)})")
                if s == 10: gaps[3] += [f"s_waitcnt vmcnt({barwait})", "s_barrier"]
                if s == 15: gaps[3].append("s_nop 3")
            else:
                pre = E + C
                if s < 2: pre += ["s_nop 1"]
                if s % 2 == 0: pre += ["s_waitcnt lgkmcnt(0)"]
                for x in pre: a(x)
                gaps[0] = VR
                if s % 4 == 3: ms.append(self.smf(T, s // 4))
            emit(a, ms, gaps)
    def body(self, first_wait, st=None):
        a = self.a
        for s in range(11, 16): a(self.kread(*self.kread_at(-2, s)))
        a("s_waitcnt lgkmcnt(1)")
        self.iteration(-1, do_pv=False, barwait=first_wait)
        if st: st()
        loop, done = a.label("attn"), a.label("attn_done")
        a(f"s_mov_b32 s{sCNT}, 0\n.p2align 3\n{loop}:")
        if st: st.dyn(sCNT)
        for T in range(4):
            tail = None
            if self.safe:
                if T == 2: tail = [f"s_cmp_eq_u32 s{sCNT}, 7", f"s_cbranch_scc1 {done}"]
                if T == 3: tail = [f"s_add_u32 s{sCNT}, s{sCNT}, 1", f"s_branch {loop}"]
            elif T == 3: tail = [f"s_add_u32 s{sCNT}, s{sCNT}, 1", f"s_cmp_lt_u32 s{sCNT}, 7", f"s_cbranch_scc1 {loop}"]
            self.iteration(T, tail=tail, barwait=8 + (len(self.extras(T - 1)) if T else 0))
        a(f"{done}:")
        if self.safe:
            self.iteration(31, do_qk=False)
            return
        a("L_code_mid:")
        vm = VM()
        for t in [("K", 30), ("V", 29), ("K", 31), "X", ("K", 31), "X", ("K", 31)]: vm.add(t)
        ex = [self.extras(0), self.extras(1)]
        q = [(None, ex[0][12][0].replace(R("v", TA), R("a", MW + 56)), None, "G"), (None, ex[1][12][0].replace(R("v", TB), R("a", MW + 60)), None, "G"),
             (None, ex[0][14][0], None, "T")]
        pw = [(None, f"buffer_store_dwordx4 {R('v', NEG)}, v{vPW}, {S4(S_L)}, 0 offen sc1", None, "X")] if OPT["prew"] & 1 else []
        for p in range(8):
            q.append((f"s_mov_b32 s{sR1}, {p*4096}", f"buffer_load_dwordx4 {R('a', MW + 64 + 4*p)}, v{vDN}, {S4(S_WD)}, s{sR1} offen", None, "G"))
        for i in range(14):
            q.append((f"s_mov_b32 s{sST}, {(i // 4)*4096}" if i % 4 == 0 else None, f"buffer_load_dwordx4 {R('a', MW + 4*i)}, v{vL16}, {S4(S_STG)}, s{sST} offen offset:{(i % 4)*1024}", None, "G"))
        wq = list(self.wpre)
        def plan(T, s):
            if s == 10: return pw.pop(0) if pw else None
            if s % 2 == 1 and (s >= 11 or s == 1): return wq.pop(0)
            return q.pop(0) if q else None
        for T in (28, 29, 30): self.iteration(T, plan=(vm, plan))
        assert not q
        if st: st()
        self.final(wq)
    def final(self, wq):
        a, T = self.a, 31
        L, Z, CK, SRC = 96, 104, 108, 176
        DST = [112 + 4*i for i in range(8)] + [192 + 4*i for i in range(4)] + [232 + 4*i for i in range(4)]
        for i in range(4): a(self.exp(15, i))
        for h in range(2): a(self.cvt(T, 14, h))
        a(self.smf(T, 0))
        for h in range(2): a(self.cvt(T, 15, h))
        a(self.smf(T, 1))
        for i in range(2): a(f"v_mov_b32 v{Z+i}, 0")
        a(self.smf(T, 2))
        for i in range(2, 4): a(f"v_mov_b32 v{Z+i}, 0")
        a("s_waitcnt lgkmcnt(0)\ns_barrier")
        a(self.smf(T, 3))
        fill = ["s_nop 0"] * 4
        for qb in range(4): fill += [f"v_accvgpr_read_b32 v{L+2*qb}, a{LACC+4*qb}", f"v_accvgpr_read_b32 v{L+2*qb+1}, a{LACC+4*qb+1}"]
        for qb in range(4): fill += [f"v_add_f32 v{L+2*qb}, v{L+2*qb}, v{L+2*qb+1}"]
        fill += [f"s_mov_b32 s{sT0}, {f2u(2.0**-24)}", f"s_mov_b32 s{sT1}, {f2u(2.0**60)}", f"s_mov_b64 s[50:51], {-1 if OPT['safe'] else 0}"]
        for qb in range(4):
            fill += [f"v_cmp_nle_f32 vcc, s{sT0}, v{L+2*qb}", "s_or_b64 s[50:51], s[50:51], vcc", f"v_cmp_nge_f32 vcc, s{sT1}, v{L+2*qb}", "s_or_b64 s[50:51], s[50:51], vcc"]
        for qb in range(4): fill += [f"v_rcp_f32 v{L+2*qb}, v{L+2*qb}"]
        nfr = [0]
        def frag(sg, qb, packed):
            n = nfr[0]; nfr[0] += 1
            src, dst = SRC + 8*(n % 2), DST[n]
            out = [f"v_accvgpr_read_b32 v{src+i}, a{OACC + 4*(qb*8 + 2*sg) + i}" for i in range(8)]
            if n: out.insert(4, mf(R("v", CK), R("v", Z), R("v", DST[n - 1]), "0" if n == 1 else None))
            if packed: out += [pk("mul", src + i, src + i, L + 2*qb, mods="op_sel_hi:[1,0]") for i in range(0, 8, 2)]
            else: out += [f"v_mul_f32 v{src+i}, v{src+i}, v{L+2*qb}" for i in range(8)]
            out += [f"v_cvt_pk_bf16_f32 v{dst+i}, v{src+2*i}, v{src+2*i+1}" for i in range(4)]
            return out + [f"buffer_store_dwordx4 {R('v', dst)}, v{vBOFF+qb}, {S4(S_O)}, 0 offen offset:{sg*1024} sc1"]
        for db in range(8):
            if db % 2 == 0 and db:
                assert not fill
                for qb in range(4): fill += frag(db // 2 - 1, qb, False)
            ms = self.pv(T, db, range(4))
            left = 16 - 8*(db % 2)
            for g, m in enumerate(ms):
                a(m)
                if g < 2 and db < 7:
                    for x in self.vreads(T, db + 1, g): a(x)
                if g in (2, 4, 6) and wq and db < 4:
                    op = wq.pop(0); a(op[0]); a("s_nop 0"); a(op[1]); a(op[2])
                if not (db % 2 == 0 and g < 2):
                    k = -(-len(fill) // (left - g))
                    for x in fill[:k]: a(x)
                    del fill[:k]
            if db < 7: a("s_waitcnt lgkmcnt(0)")
        assert not wq and not fill
        a("s_nop 1")
        for qb in range(4):
            for x in frag(3, qb, True): a(x)
        a("s_nop 0"); a(mf(R("v", CK), R("v", Z), R("v", DST[15])))
        a(f"s_nop 7\nv_cmp_u_f32 vcc, v{CK}, v{CK}\ns_or_b64 s[50:51], s[50:51], vcc\ns_or_b32 s50, s50, s51")

def epilogue(a, check):
    T = 80
    a("s_nop 7")
    for qb in range(4): a(f"v_accvgpr_read_b32 v{T+2*qb}, a{LACC+4*qb}\nv_accvgpr_read_b32 v{T+2*qb+1}, a{LACC+4*qb+1}")
    for qb in range(4): a(f"v_add_f32 v{T+2*qb}, v{T+2*qb}, v{T+2*qb+1}")
    if check:
        a(f"s_mov_b32 s{sT0}, {f2u(2.0**-24)}\ns_mov_b32 s{sT1}, {f2u(2.0**60)}\ns_mov_b64 s[50:51], {-1 if OPT['safe'] else 0}")
        for qb in range(4):
            a(f"v_cmp_nle_f32 vcc, s{sT0}, v{T+2*qb}\ns_or_b64 s[50:51], s[50:51], vcc")
            a(f"v_cmp_nge_f32 vcc, s{sT1}, v{T+2*qb}\ns_or_b64 s[50:51], s[50:51], vcc")
        for i in range(4): a(f"v_mov_b32 v{KF+i}, 0")
    for qb in range(4): a(f"v_rcp_f32 v{T+2*qb}, v{T+2*qb}")
    n = 0
    for qb in range(4):
        for s in range(4):
            src = 184 + 8*(n % 2); dst = 112 + 4*n
            for i in range(8): a(f"v_accvgpr_read_b32 v{src+i}, a{OACC + 4*(qb*8 + 2*s) + i}")
            for i in range(0, 8, 2): a(pk("mul", src + i, src + i, T + 2*qb, mods="op_sel_hi:[1,0]"))
            for i in range(4): a(f"v_cvt_pk_bf16_f32 v{dst+i}, v{src+2*i}, v{src+2*i+1}")
            a(f"buffer_store_dwordx4 {R('v', dst)}, v{vBOFF+qb}, {S4(S_O)}, 0 offen offset:{s*1024} sc1")
            if check and n: a(mf(R("v", KF + 4), R("v", KF), R("v", dst - 4), "0" if n == 1 else None))
            n += 1
    if check:
        a("s_nop 0"); a(mf(R("v", KF + 4), R("v", KF), R("v", 112 + 60)))
        a(f"s_nop 7\nv_cmp_u_f32 vcc, v{KF+4}, v{KF+4}\ns_or_b64 s[50:51], s[50:51], vcc\ns_or_b32 s50, s50, s51")

def verdict(a, safe):
    a(f"""
    v_mov_b32 v14, s50
    s_lshl_b32 s51, s{sWAVE}, 2
    s_add_u32 s51, s51, {LDS_FLAG}
    v_mov_b32 v15, s51
    ds_write_b32 v15, v14
    v_mov_b32 v15, {LDS_FLAG}
    s_waitcnt lgkmcnt(0)
    s_barrier
    ds_read_b128 v[80:83], v15
    s_waitcnt lgkmcnt(0)
    v_or_b32 v80, v80, v81
    v_or3_b32 v80, v80, v82, v83
    s_nop 0
    v_readfirstlane_b32 s50, v80
    s_nop 3
    s_cmp_lg_u32 s50, 0
    s_cbranch_scc1 {safe}
    """)

def safe_path(a, wpre, cont):
    a("s_waitcnt vmcnt(0) lgkmcnt(0)\ns_barrier")
    at, fast = Attn(a, True, wpre), Attn(a, False)
    for i in range(4): a(f"v_mov_b32 v{MB+4*i}, 0xff800000")
    mloop = a.label("maxloop")
    a(f"s_mov_b32 s{sKOFF}, 0\ns_mov_b32 s{sVOFF}, 0\ns_mov_b32 s{sWOFF}, 0\n{mloop}:")
    def issue(op):
        a(op[0]); a("s_nop 0"); a(op[1])
        if op[2]: a(op[2])
    for p in range(4): issue(at.dma("K", 0, p))
    a("s_waitcnt vmcnt(0)\ns_barrier")
    for kb in range(4):
        for ds in range(4): a(at.kread(0, kb, ds))
        a("s_waitcnt lgkmcnt(0)")
        for qb in range(4):
            for m in fast.qk(kb, qb): a(m)
        a("s_nop 7")
        for qb in range(4):
            a(f"v_max3_f32 v{MB+4*qb}, v{MB+4*qb}, v{SB_+4*qb}, v{SB_+4*qb+1}\nv_max3_f32 v{MB+4*qb}, v{MB+4*qb}, v{SB_+4*qb+2}, v{SB_+4*qb+3}")
    a(f"s_barrier\ns_cmp_lt_u32 s{sKOFF}, {32*16384}\ns_cbranch_scc1 {mloop}")
    swap_red(a, [MB + 4*qb for qb in range(4)], [MB + 4*qb + 1 for qb in range(4)], "v_max_f32")
    for qb in range(4):
        a(f"v_sub_f32 v{MB+4*qb}, 0, v{MB+4*qb}")
        for i in range(1, 4): a(f"v_mov_b32 v{MB+4*qb+i}, v{MB+4*qb}")
    for i in range(144): a(f"v_accvgpr_write_b32 a{i}, 0")
    a(f"s_mov_b32 s{sKOFF}, 0")
    for op in at.first_dmas(): issue(op)
    a("s_waitcnt vmcnt(16)\ns_barrier")
    at.body(8)
    a("s_waitcnt vmcnt(0)\ns_barrier")
    for op in wpre: issue(op)
    epilogue(a, False)
    a(f"s_branch {cont}")
```

```python
from common import *
from front import *
from attn import strictest

S_OUT = S_O
vB0, vX0, vC = 6, 8, 9
vAS, vAK = (3, 4), (5, 15)
ACC, AF, XF, GA, C1, SBv, GBv, WP, T = 16, 48, 80, 112, 128, 144, 160, 176, 192
SENT, BR = 216, 0
sHO = 67
LDS_DN, LDS_RED = 4*TILE, 4*TILE + 32768

def const_ops():
    ops = []
    for p in range(4):
        ops.append((f"s_add_u32 m0, s{sT0}, {p*PIECE}", f"buffer_load_dwordx4 v14, {S4(S_WG)}, s{sT2} offen lds", f"s_add_u32 s{sT2}, s{sT2}, 16384", "C"))
    for e in range(2):
        ops.append((f"s_add_u32 m0, s{sT0}, {4*PIECE + 1024*e}", f"buffer_load_dwordx4 v15, {S4(S_L)}, s{sT1} offen sc1 lds", f"s_add_u32 s{sT1}, s{sT1}, 16384", "C"))
    ops.append((f"s_add_u32 m0, s{sT0}, {4*PIECE + 2048}", f"buffer_load_dword v{vL4}, {S4(S_WU)}, 0 offen lds", None, "C"))
    return ops

vL4 = 253
def const_setup(a):
    a(f"v_lshrrev_b32 v15, 3, v{vLANE}\nv_and_b32 v14, 7, v{vLANE}\nv_lshlrev_b32 v14, 4, v14\nv_lshl_add_u32 v14, v15, 11, v14")
    a(f"v_lshlrev_b32 v15, 12, v{vG}\nv_lshl_add_u32 v15, v{vQ}, 4, v15")
    a(f"s_lshl_b32 s{sT0}, s{sNT}, 7\ns_lshl_b32 s{sT1}, s{sG}, 16\ns_add_u32 s{sT1}, s{sT1}, s{sT0}")
    a.srd(S_WG, PTR["x"], 65536 - 1920, f"s{sT1}")
    a.srd(S_WU, PTR["wr"], 128, f"s{sT0}")
    a(f"s_lshl_b32 s{sT1}, s{sNT}, 8\ns_add_u32 s{sT1}, s{sT1}, {WS_MODP}\ns_mul_i32 s{sT0}, s{sWAVE}, {CSTW}\ns_add_u32 s{sT0}, s{sT0}, {LDS_CST}\ns_mov_b32 s{sT2}, 0")

def setup_w(a):
    a(f"""
    v_lshlrev_b32 v14, 4, v{vG}
    v_lshl_add_u32 v14, v10, 2, v14
    v_lshlrev_b32 v14, 11, v14
    v_lshl_add_u32 v{vWOFF}, v{vQ}, 4, v14
    s_mov_b32 s{sWOFF}, 0
    s_lshr_b32 s{sT0}, s{sNT}, 1
    s_lshl_b32 s{sT0}, s{sT0}, 8
    s_lshl_b32 s{sT1}, s{sKH}, 22
    s_add_u32 s{sT0}, s{sT0}, s{sT1}
    """)
    a.srd(S_W, PTR["wo"], (4 << 20) - 1792, f"s{sT0}")

class OProj:
    def __init__(self, a): self.a, self.vm, self.db, self.body = a, VM(), 3, 0
    def dma(self, c, p):
        base = sMW if (c // 4) % 2 == self.body % 2 else sMW2
        return (f"s_add_u32 m0, s{base}, {(c % 4)*TILE + p*PIECE}", f"buffer_load_dwordx4 v{vWOFF}, {S4(S_W)}, s{sWOFF} offen lds",
                f"s_add_u32 s{sWOFF}, s{sWOFF}, {2048 if p < 3 else 61*2048}", ("W", c))
    def bfrag(self, c, qb, ks): return R("a", BR + 16*(c % 4) + 8*qb + 4*ks)
    def bload(self, c, i):
        qb, ks = i // 2, i % 2
        return (None, f"buffer_load_dwordx4 {self.bfrag(c, qb, ks)}, v{vB0+qb}, {S4(S_B)}, s{sBOFF} offen offset:{ks*1024} sc1",
                f"s_add_u32 s{sBOFF}, s{sBOFF}, {(1 << 19) - 2048 if c % 2 else 2048}" if i == 3 else None, ("B", c))
    def acc(self, s, j, qb): return R("v", (SENT if s < 2 else ACC) + 16*qb + 4*(2*(s % 2) + j))
    def issue(self, op, a=None):
        a = a or self.a
        if op[0]: a(op[0]); a("s_nop 0")
        a(op[1]); self.vm.add(op[3])
        if op[2]: a(op[2])
    def areads(self, c, s, buf):
        base = (vAS if s < 2 else vAK)[0 if c // 4 == self.body else 1]
        return [f"ds_read_b64_tr_b16 {R('v', AF + 16*buf + 8*j + 4*ks + 2*jj, 2)}, v{base} offset:{(c % 4)*TILE + (2*ks + jj)*256 + (2*(s % 2) + j)*32}"
                for j in range(2) for ks in range(2) for jj in range(2)]
    def expand1(self):
        a = self.a
        a(f"""
        s_mul_i32 s{sT0}, s{sWAVE}, {CSTW}
        s_add_u32 s{sT0}, s{sT0}, {LDS_CST}
        v_lshl_add_u32 v21, v{vG}, 3, s{sT0}
        v_lshrrev_b32 v20, 3, v{vQ}
        v_mul_u32_u24 v20, {PIECE - 1024}, v20
        v_lshl_add_u32 v20, v{vQ}, 7, v20
        v_add_u32 v20, v20, v21
        """)
        a(f"""
        v_add_u32 v22, s{sT0}, v{vL16}
        ds_read_b128 v[24:27], v22 offset:{4*PIECE}
        ds_read_b128 v[28:31], v22 offset:{4*PIECE + 1024}
        """)
        rd = [(XF + 16*qb + 4*nb, 20, 2*qb*PIECE + nb*32) for qb in range(2) for nb in range(4)] + [(WP + 4*nb, 21, 4*PIECE + 2048 + nb*32) for nb in range(4)]
        for d, v, off in rd: a(f"ds_read_b64 v[{d+2}:{d+3}], v{v} offset:{off}")
        a(f"v_cmp_eq_u32 vcc, 2, v{vG}\nv_lshl_add_u32 v21, v{vG}, 4, s{sT0}\nv_mov_b32 v33, 0\nv_cndmask_b32 v32, 0, 1.0, vcc\ns_waitcnt lgkmcnt(12)")
        for j in (24, 26):
            a(pk("add", j, j, j + 4)); rnd(a, j, j + 1); a(pk("add", j, j, 32, mods="op_sel_hi:[1,0]")); rnd(a, j, j + 1)
        a(f"ds_write_b128 v22, v[24:27] offset:{4*PIECE}\ns_waitcnt lgkmcnt(0)")
        for j, dst in enumerate((GA, SBv, C1, GBv)):
            if j == 3: a("s_waitcnt lgkmcnt(8)")
            for nb in range(4): a(f"ds_read_b128 {R('v', dst + 4*nb)}, v21 offset:{4*PIECE + j*256 + nb*64}")
        for d, v, off in rd: unpack(a, d, d + 1, d + 2); unpack(a, d + 2, d + 3, d + 3)
    def expand2(self):
        a = self.a
        a("s_waitcnt lgkmcnt(0)")
        for i in range(0, 16, 2):
            a(pk("mul", T + 2, SBv + i, WP + i) if i == 0 else pk("fma", T + 2, SBv + i, WP + i, T + 2))
            a(pk("mul", WP + i, WP + i, C1 + i))
            if i == 2: a(pk("add", T + 4, WP, WP + 2))
            elif i > 2: a(pk("add", T + 4, T + 4, WP + i))
        a(f"v_and_b32 v{T}, 1, v0\nv_cmp_eq_u32 vcc, 1, v{T}\nv_add_f32 v{T+2}, v{T+2}, v{T+3}\nv_add_f32 v{T+4}, v{T+4}, v{T+5}\nv_cndmask_b32 v14, v{T+4}, v{T+2}, vcc")
        swap_red(a, [14], [T])
    def send(self):
        out = [f"s_xor_b32 s{sT0}, s{sHO}, 32768", f"s_lshl_b32 s{sT1}, s{sWAVE}, 12", f"s_add_u32 s{sT0}, s{sT0}, s{sT1}"]
        for n in (0, 2, 1, 3):
            for i in range(4): out.append(f"v_cvt_pk_bf16_f32 v{T + 4*n + i}, v{SENT + 8*n + 2*i}, v{SENT + 8*n + 2*i + 1}")
            out.append(f"buffer_store_dwordx4 {R('v', T + 4*n)}, v{vL16}, {S4(S_L)}, s{sT0} offen offset:{HO_EX + n*1024} sc1")
        return out
    def main(self, late, st):
        real = self.a
        sk, barp, RG, VG = OPT["skew"], OPT["barp"], OPT["rg"], OPT["vg"]
        order = [(c, s) for c in range(32 - sk) for s in range(4)]
        order += [(c, s) for c in range(32 - sk, 32) for s in range(2)] + [(c, s) for c in range(32 - sk, 32) for s in range(2, 4)]
        bq = [(c, i) for c in range(self.db, 32) for i in range(4)]
        visible, waitedB, sendq, moeq, bodies = set(range(barp)), {0}, None, None, []
        for n, (c, s) in enumerate(order):
            if n % 16 == 0: a = Asm(); bodies.append(a); self.body = n // 16
            buf = n % 2
            ms = [mf(self.acc(s, j, qb), R("v", AF + 16*buf + 8*j + 4*ks), self.bfrag(c, qb, ks), "0" if c == 0 and k == 0 else None)
                  for j in range(2) for qb in range(2) for k, ks in enumerate((0, 1) if qb == 0 else (1, 0))]
            gaps = {g: [] for g in range(8)}
            nxt = order[n + 1] if n + 1 < len(order) else None
            wn = n + 1 + 4*(7 - barp)
            if late and len(late) > 32 - wn: self.issue(self.dma(*late.pop(0)), a)
            for g in range(8):
                if g == RG[0] and nxt and nxt[0] not in visible:
                    newv = [cc for cc in range(nxt[0], nxt[0] + (barp if n < 112 else 8))]
                    lw = max(i for i, t in enumerate(self.vm.ops) if t[0] == "W" and t[1] in newv); lb = max(i for i, t in enumerate(self.vm.ops) if t[0] == "B" and t[1] in waitedB)
                    if lw > lb: gaps[g].append(f"s_waitcnt vmcnt({self.vm.count(*[('W', cc) for cc in newv])})")
                    gaps[g].append("s_barrier")
                    visible |= set(newv)
                if g == 3 and n > 0: gaps[g].append(f"s_waitcnt lgkmcnt({2*len([x for x in RG if x < 3]) if nxt else 0})")
                if g in RG and nxt:
                    k = RG.index(g)
                    if not (OPT["halftr"] & 1 and k >= 2): gaps[g] += self.areads(nxt[0], nxt[1], 1 - buf)[2*k:2*k + 2]
                if g in VG:
                    op, first = None, VG.index(g) == 0
                    if first and bq: op = self.bload(*bq.pop(0))
                    elif not first and late: op = self.dma(*late.pop(0))
                    elif not first and n < 112 and wn >= 32:
                        op = self.dma(wn // 4, wn % 4)
                        if OPT["halftr"] & 2 and wn % 2: op = (op[0], "s_nop 0", op[2], op[3])
                    elif not first and n >= 112 and bq: op = self.bload(*bq.pop(0))
                    if op:
                        if op[0]: gaps[g - 1].insert(0, op[0])
                        gaps[g].append(op[1]); self.vm.add(op[3])
                        if op[2]: gaps[g + 1].insert(0, op[2])
                if sendq and g not in RG and not any(x.startswith("buffer") for x in gaps[g]):
                    while sendq and len([x for x in gaps[g] if x.startswith("v_")]) < 2:
                        x = sendq[0]
                        if x.startswith("buffer") and any(y.startswith("v_") for y in gaps[g]): break
                        gaps[g].append(sendq.pop(0))
                        if x.startswith("buffer"): self.vm.add("S"); break
            if nxt and nxt[0] not in waitedB:
                gaps[7].insert(0, f"s_waitcnt vmcnt({self.vm.count(('B', nxt[0]))}) lgkmcnt(4)"); waitedB.add(nxt[0])
            elif nxt: gaps[7].insert(0, "s_waitcnt lgkmcnt(4)")
            if n % 16 == 15 and nxt:
                gaps[6] += [f"s_mov_b32 s{sT0}, s{sMW}"]
                gaps[7] += [f"v_swap_b32 v{vAS[0]}, v{vAS[1]}", f"v_swap_b32 v{vAK[0]}, v{vAK[1]}", f"s_mov_b32 s{sMW}, s{sMW2}", f"s_mov_b32 s{sMW2}, s{sT0}"]
            emit(a, ms, gaps)
            if (c, s) == (31, 1): sendq = self.send()
        assert not bq and not late
        a = real
        a.lines += bodies[0].lines
        l = a.label("oploop")
        a(f"s_mov_b32 s{sCNT}, 0\n{l}:")
        st.dyn(sCNT, 4)
        a.lines += strictest([b.lines for b in bodies[1:7]])
        a(f"s_add_u32 s{sCNT}, s{sCNT}, 1\ns_cmp_lt_u32 s{sCNT}, 6\ns_cbranch_scc1 {l}")
        st.dyn(sCNT, 4)
        if OPT["ctch"] & 2:
            a(f"global_load_dword v250, v[248:249], off")
        a.lines += bodies[7].lines
        a("L_code_tail:")
        for x in sendq: a(x)

def oproj(a, st):
    o = OProj(a)
    for c in range(OPT['nw']): o.vm.add(("W", c))
    f3 = f"buffer_load_dword v18, v19, {S4(S_L)}, s{sT3} offen sc1"
    a(f"""
    s_lshr_b32 s{sT2}, s{sG}, 1
    s_lshl_b32 s{sT2}, s{sT2}, {5+FS}
    s_lshl_b32 s{sT1}, s{sKH}, {4+FS}
    s_add_u32 s{sT2}, s{sT2}, s{sT1}
    s_add_u32 s{sT3}, s{sT2}, {WS_F3}
    v_lshlrev_b32 v19, {FS}, v{vQ}
    {f3}
    s_lshl_b32 s{sT0}, s{sG64}, {5+FS}
    s_lshl_b32 s{sT1}, s{sHEAD}, {FS}
    s_add_u32 s{sT0}, s{sT0}, s{sT1}
    s_add_u32 s{sT2}, s{sT0}, {WS_F3}
    v_mov_b32 v16, s{sNONCE}
    v_lshrrev_b32 v17, {5 if OPT["full"] else 0}, v{vLANE}
    v_lshlrev_b32 v17, 24, v17
    v_lshl_add_u32 v17, v{vLANE}, 2, v17
    s_lshl_b32 s{sT0}, s{sKH}, 7
    s_xor_b32 s{sT1}, s{sT0}, 128
    v_add_u32 v{vAK[1]}, s{sT0}, v{vA}
    v_add_u32 v{vAS[1]}, s{sT1}, v{vA}
    v_subrev_u32 v{vAS[0]}, {4*TILE}, v{vAS[1]}
    v_subrev_u32 v{vAK[0]}, {4*TILE}, v{vAK[1]}
    v_lshlrev_b32 v{vC}, 4, v{vG}
    v_lshl_add_u32 v{vX0}, v{vQ}, 11, v{vC}
    s_mov_b32 s{sBOFF}, 0
    s_lshl_b32 s{sHO}, s{sU}, 15
    s_add_u32 s{sHO}, s{sHO}, {WS_HO}
    s_lshl_b32 s{sT1}, s{sG}, 13
    s_lshl_b32 s{sT0}, s{sKH}, 23
    s_add_u32 s{sT1}, s{sT1}, s{sT0}
    s_add_u32 s{sT1}, s{sT1}, {WS_O}
    """)
    assert vAS[1] == vA
    a.lines.append(f"    s_nop 0")
    a.srd(S_B, PTR["ws"], (15 << 19) + 8192, f"s{sT1}")
    a(f"s_lshl_b32 s{sT0}, s{sNT}, 7\ns_lshl_b32 s{sT1}, s{sG}, 16\ns_add_u32 s{sT1}, s{sT1}, s{sT0}")
    a.srd(S_OUT, PTR["out"], 65536 - 1920, f"s{sT1}")
    a(f"s_waitcnt vmcnt(1)\nbuffer_store_dword v16, v17, {S4(S_L)}, s{sT2} offen sc1")
    st()
    o.expand1()
    poll(a, [f3], bad_tags([18], None), "f3", first="s_waitcnt vmcnt(1)")
    for c in range(o.db):
        for i in range(4): o.issue(o.bload(c, i))
    o.expand2()
    if OPT["ctch"] & 2: code_touch(a, "L_code_tail", "L_code_hi", 248, None)
    a("s_barrier")
    for s in o.areads(0, 0, 0): a(s)
    a(f"s_waitcnt vmcnt({o.vm.count(('B', 0))}) lgkmcnt(0)")
    st()
    o.main([(c, p) for c in range(OPT['nw'], 8) for p in range(4)], st)
    st()
    t, Q = T, T + 24
    a(f"s_lshl_b32 s{sT1}, s{sWAVE}, 12\ns_add_u32 s{sT0}, s{sHO}, s{sT1}")
    exl = [f"buffer_load_dwordx4 {R('v', Q + 4*n)}, v{vL16}, {S4(S_L)}, s{sT0} offen offset:{HO_EX + n*1024} sc1" for n in range(4)]
    def gu_writes():
        for i in range(16):
            if i == 12: a("s_waitcnt lgkmcnt(8)")
            a(f"ds_write_b128 v2, {R('a', MW + 4*i)} offset:{i*1024}")
    a(f"v_lshl_add_u32 v2, v10, 14, v{vL16}")
    if OPT["exw"]:
        for l in exl: a(l)
        gu_writes()
    poll(a, exl, bad_sentinel(list(range(Q, Q + 16)), t + 22), "ex", first="s_waitcnt vmcnt(0)" if OPT["exw"] else None)
    for i in range(16):
        unpack(a, t + 2*(i % 2), t + 2*(i % 2) + 1, Q + i); a(pk("add", ACC + 2*i, ACC + 2*i, t + 2*(i % 2)))
    st()
    for qb in range(2):
        for i in range(0, 16, 2): a(pk("fma", XF + 16*qb + i, ACC + 16*qb + i, GA + i, XF + 16*qb + i))
    S, D, M = t, t + 4, t + 8
    for i in range(0, 16, 2):
        for qb in range(2):
            x = XF + 16*qb + i
            if i == 2: a(pk("add", S + 2*qb, x - 2, x))
            elif i > 2: a(pk("add", S + 2*qb, S + 2*qb, x))
            a(pk("mul", D + 2*qb, x, WP + i) if i == 0 else pk("fma", D + 2*qb, x, WP + i, D + 2*qb))
    for r_ in (S, S + 2, D, D + 2): a(f"v_add_f32 v{r_}, v{r_}, v{r_+1}")
    swap_red(a, [S, S + 2, D, D + 2], [S + 1, S + 3, D + 1, D + 3])
    for qb in range(2): a(f"v_mul_f32 v{S+2*qb}, {f2u(-1/64)}, v{S+2*qb}")
    for i in range(0, 16, 2):
        for qb in range(2): a(pk("add", t + 12 + 2*qb, XF + 16*qb + i, S + 2*qb, mods="op_sel_hi:[1,0]"))
        for qb in range(2): a(pk("mul", M + 2*qb, t + 12 + 2*qb, t + 12 + 2*qb) if i == 0 else pk("fma", M + 2*qb, t + 12 + 2*qb, t + 12 + 2*qb, M + 2*qb))
    for r_ in (M, M + 2): a(f"v_add_f32 v{r_}, v{r_}, v{r_+1}")
    swap_red(a, [M, M + 2], [M + 1, M + 3])
    G = t + 16
    a(f"""
    v_and_b32 v{G+4}, 16, v0
    v_cmp_ne_u32 vcc, 0, v{G+4}
    v_lshrrev_b32 v{G+4}, 5, v{vLANE}
    v_lshl_add_u32 v{G+4}, v{G+4}, 24, v{vL16}
    v_cndmask_b32 v{G}, v{S}, v{S+2}, vcc
    v_cndmask_b32 v{G+1}, v{M}, v{M+2}, vcc
    v_cndmask_b32 v{G+2}, v{D}, v{D+2}, vcc
    v_mov_b32 v{G+3}, v14
    s_lshl_b32 s{sT0}, s{sWAVE}, 9
    s_add_u32 s{sT0}, s{sT0}, {HO_ST}
    s_add_u32 s{sT1}, s{sT0}, s{sHO}
    buffer_store_dwordx4 {R('v', G)}, v{G+4}, {S4(S_L)}, s{sT1} offen sc1
    s_and_b32 s{sT1}, s{sHO}, {0xffffffff ^ (15 << 15)}
    s_add_u32 s{sT0}, s{sT0}, s{sT1}
    s_add_u32 s{sT1}, s{sT0}, {4 << 15}
    s_add_u32 s{sT2}, s{sT0}, {8 << 15}
    s_add_u32 s{sT3}, s{sT0}, {12 << 15}
    v_lshlrev_b32 v{G+5}, 15, v{vG}
    v_lshl_add_u32 v{G+5}, v{vQ}, 4, v{G+5}
    v_lshlrev_b32 v3, 8, v{vG}
    v_lshl_add_u32 v3, v{vQ}, 3, v3
    v_lshl_add_u32 v3, v10, 14, v3
    """)
    a.lines.append("    s_nop 0    ; REBASE v255=0")
    if not OPT["exw"]: gu_writes()
    stl = [f"buffer_load_dwordx4 {R('v', Q + 4*j)}, v{G+5}, {S4(S_L)}, s{sT0 + (j >> 1)} offen offset:{(j & 1)*256} sc1" for j in range(8)]
    a("s_waitcnt vmcnt(0)")
    for l in stl: a(l)
    a("s_waitcnt lgkmcnt(0)")
    n = 0
    for ks in range(8):
        for m in range(2):
            for jj in range(2):
                if n >= 12 and n % 4 == 0: a("s_waitcnt lgkmcnt(8)")
                a(f"ds_read_b64_tr_b16 {R('a', MW + 8*ks + 4*m + 2*jj, 2)}, v3 offset:{ks*2048 + m*1024 + jj*128}"); n += 1
    poll(a, stl, bad_sentinel(list(range(Q, Q + 32)), t + 22), "st", first="s_waitcnt vmcnt(0)")
    st()
    Z = t
    for qb in range(2):
        for h in range(2):
            a(pk("add", Z + 4*qb + 2*h, Q + 4*qb + 2*h, Q + 8 + 4*qb + 2*h)); a(pk("add", t + 8 + 4*qb + 2*h, Q + 16 + 4*qb + 2*h, Q + 24 + 4*qb + 2*h))
    for i in range(0, 8, 2): a(pk("add", Z + i, Z + i, t + 8 + i))
    swap_red(a, [Z + i for i in range(7)], [t + 8 + i for i in range(7)])
    for qb in range(2): a(f"v_mul_f32 v{Z+4*qb}, {f2u(1/16)}, v{Z+4*qb}")
    for j in range(8):
        qb = j & 1
        a(f"v_sub_f32 v{t+10+qb}, v{Q+4*j}, v{Z+4*qb}")
        a(f"v_mul_f32 v{t+8+qb}, v{t+10+qb}, v{t+10+qb}" if j < 2 else f"v_fmac_f32 v{t+8+qb}, v{t+10+qb}, v{t+10+qb}")
    swap_red(a, [t + 8, t + 9], [t + 10, t + 11])
    a(f"v_mov_b32_dpp v{t+12}, v{Z+3} quad_perm:[0,0,2,2] row_mask:0xf bank_mask:0xf\nv_mov_b32_dpp v{t+13}, v{Z+3} quad_perm:[1,1,3,3] row_mask:0xf bank_mask:0xf")
    for qb in range(2): a(f"v_fmac_f32 v{Z+4*qb+1}, {f2u(64.0)}, v{t+8+qb}\nv_mul_f32 v{Z+4*qb+1}, {f2u(1/1024)}, v{Z+4*qb+1}")
    for qb in range(2): rnd(a, Z + 4*qb, Z + 4*qb + 1)
    a(f"v_add_f32 v{Z+1}, {f2u(1e-5)}, v{Z+1}\nv_add_f32 v{Z+5}, {f2u(1e-5)}, v{Z+5}")
    rnd(a, Z + 1, Z + 5)
    a(f"v_sqrt_f32 v{Z+1}, v{Z+1}\nv_sqrt_f32 v{Z+5}, v{Z+5}\ns_nop 0")
    rnd(a, Z + 1, Z + 5)
    a(f"v_rcp_f32 v{Z+1}, v{Z+1}\nv_rcp_f32 v{Z+5}, v{Z+5}")
    K0 = t + 14
    for qb in range(2): a(f"v_fmac_f32 v{Z+4*qb+2}, v{Z+4*qb}, v{t+12}")
    for qb in range(2): a(f"v_fma_f32 v{Z+4*qb+2}, v{Z+4*qb+2}, v{Z+4*qb+1}, v{t+13}")
    rnd(a, K0, K0 + 1, Z + 2, Z + 6)
    a(f"s_lshl_b32 s{sT0}, s{sG}, 5\ns_sub_u32 s{sT0}, 2047, s{sT0}\nv_sub_u32 v{t+10}, s{sT0}, v{vQ}\nv_subrev_u32 v{t+11}, 16, v{t+10}")
    for qb in range(2):
        a(f"v_ashrrev_i32 v{t+8}, 31, v{K0+qb}\nv_or_b32 v{t+8}, 0x80000000, v{t+8}\nv_xor_b32 v{K0+qb}, v{K0+qb}, v{t+8}\nv_and_b32 v{K0+qb}, 0xffff0000, v{K0+qb}\nv_or_b32 v{K0+qb}, v{K0+qb}, v{t+10+qb}")
    m1, m2 = t + 16, t + 18
    a(f"v_max_u32 v{m1}, v{K0}, v{K0+1}\nv_min_u32 v{m2}, v{K0}, v{K0+1}\nv_mov_b32 v{m1+1}, s{sNONCE}\nv_mov_b32 v{m2+1}, s{sNONCE}")
    top2_row(a, m1, m2, t + 8)
    a(f"s_lshl_b32 s{sT0}, s{sG}, {FS}\ns_add_u32 s{sT0}, s{sT0}, {WS_KEY}\nv_lshrrev_b32 v{t+8}, {3 if OPT['full'] else 0}, v{vLANE}\nv_or_b32 v{t+8}, s{sNT}, v{t+8}\nv_lshl_add_u32 v{t+8}, v{t+8}, 24, v{vL16}")
    a(f"buffer_store_dwordx4 {R('v', m1)}, v{t+8}, {S4(S_L)}, s{sT0} offen sc1")
    CO = t + 20
    a(f"v_mov_b32 v{t+8}, 0x7f000000\nv_add_u32 v{t+10}, 128, v{vC}")
    for qb in range(2):
        a(f"v_cmp_eq_u32 vcc, v{K0+qb}, v{m1}\nv_cmp_eq_u32 s[50:51], v{K0+qb}, v{m2}\ns_nop 0")
        a(f"v_cndmask_b32 v{CO+qb}, v{t+8}, v{vC}, vcc\nv_cndmask_b32 v{CO+qb}, v{CO+qb}, v{t+10}, s[50:51]")
    for qb in range(2): a(f"v_mul_f32 v{Z+4*qb}, v{Z+4*qb}, v{Z+4*qb+1}")
    H, HP, OP = ACC, t + 24, t + 40
    for qb in range(2):
        for i in range(0, 16, 2): a(pk("fma", H + 16*qb + i, XF + 16*qb + i, Z + 4*qb, Z + 4*qb, mods="op_sel:[0,1,0] op_sel_hi:[1,1,0]"))
        for i in range(0, 16, 2): a(pk("fma", H + 16*qb + i, H + 16*qb + i, C1 + i, SBv + i))
        for i in range(0, 16, 2): a(f"v_cvt_pk_bf16_f32 v{HP + 8*qb + i//2}, v{H + 16*qb + i}, v{H + 16*qb + i + 1}")
    shuffle(a, [HP + 4*n for n in range(4)])
    a(f"s_lshl_b32 s{sT0}, s{sWAVE}, 8\ns_add_u32 s{sT0}, s{sT0}, s{sHO}\ns_add_u32 s{sT3}, s{sT0}, {HO_CH}")
    for n in range(4): a(f"buffer_store_dwordx4 {R('v', HP + 4*n)}, v{CO + n//2}, {S4(S_L)}, s{sT3} offen offset:{(n % 2)*64} sc1")
    K = 144
    keys = f"buffer_load_dwordx4 {R('v', K)}, v14, {S4(S_L)}, s{sT1} offen sc1"
    a(f"s_lshl_b32 s{sT1}, s{sWAVE}, {4+FS}\ns_add_u32 s{sT1}, s{sT1}, {WS_KEY}\nv_lshlrev_b32 v14, {FS}, v{vQ}\ns_mov_b32 s{sMW}, s{sT3}\ns_mov_b32 s{sMW2}, 32768")
    for qb in range(2):
        for i in range(0, 16, 2): a(pk("fma", H + 16*qb + i, H + 16*qb + i, GBv + i, XF + 16*qb + i))
        for i in range(0, 16, 2): a(f"v_cvt_pk_bf16_f32 v{OP + 8*qb + i//2}, v{H + 16*qb + i}, v{H + 16*qb + i + 1}")
    shuffle(a, [OP + 4*n for n in range(4)])
    outs = [f"buffer_store_dwordx4 {R('v', OP + 4*n)}, v{CO + n//2}, {S4(S_OUT)}, {'s%d' % sMW2 if n//2 else 0} offen offset:{(n % 2)*64} {OPT['ofl']*'sc1'}" for n in range(4)]
    base = [f"buffer_store_dwordx4 {R('v', OP + 4*n)}, v{CO + n//2}, {S4(S_L)}, s{sMW} offen offset:{HO_CB - HO_CH + (n % 2)*64} sc1" for n in range(4)]
    return keys, outs, base

def moe(a, st, keys, outs, base):
    BF, K = 112, 144
    sK1, sK2 = 63, 64
    end, go, only = a.label("end"), a.label("dofin"), a.label("onlyout")
    for s in base: a(s)
    st()
    a("s_waitcnt lgkmcnt(0)")
    for p in range(8): a(f"ds_write_b128 v2, {R('a', MW + 64 + 4*p)} offset:{p*1024}")
    a(keys)
    a(f"v_lshrrev_b32 v3, 2, v{vLANE}\nv_lshlrev_b32 v3, 9, v3\nv_and_b32 v4, 3, v{vLANE}\nv_lshl_add_u32 v3, v4, 3, v3\nv_lshl_add_u32 v3, v10, 14, v3\ns_waitcnt lgkmcnt(0)")
    for nb in range(16):
        if nb == 12: a("s_waitcnt lgkmcnt(8)")
        a(f"ds_read_b64_tr_b16 {R('a', MW + 64 + 2*nb, 2)}, v3 offset:{nb*32}")
    poll(a, [keys], bad_tags([K + 1, K + 3], K + 4), "keys", first="s_waitcnt vmcnt(0)")
    st()
    top2_row(a, K, K + 2, K + 4)
    a(f"v_lshlrev_b32 v2, 4, v10\nv_add_u32 v2, {LDS_FLAG}, v2\nv_add_u32 v3, {LDS_FLAG}, v{vC}\nds_write_b128 v2, {R('v', K)}\ns_waitcnt lgkmcnt(0)\ns_barrier\nds_read_b128 {R('v', K)}, v3\ns_waitcnt lgkmcnt(0)")
    a(f"v_readlane_b32 s{sK1}, v{K}, 0\nv_readlane_b32 s{sK2}, v{K+2}, 0")
    for ln in (16, 32, 48):
        a(f"v_readlane_b32 s{sT0}, v{K}, {ln}\nv_readlane_b32 s{sT1}, v{K+2}, {ln}\ns_nop 3")
        a(f"s_min_u32 s{sT2}, s{sK1}, s{sT0}\ns_max_u32 s{sK2}, s{sK2}, s{sT1}\ns_max_u32 s{sK1}, s{sK1}, s{sT0}\ns_max_u32 s{sK2}, s{sK2}, s{sT2}")
    K0, CO = T + 14, T + 20
    def mask():
        a("v_mov_b32 v4, 0x7f000000")
        for qb in range(2):
            a(f"v_cmp_eq_u32 vcc, s{sK1}, v{K0+qb}\nv_cmp_eq_u32 s[50:51], s{sK2}, v{K0+qb}\ns_or_b64 vcc, vcc, s[50:51]\ns_nop 0\nv_cndmask_b32 v{CO+qb}, v{vX0}, v4, vcc")
    nomoe = a.label("nomoe")
    a(f"s_cmp_ge_u32 s2, 224\ns_cbranch_scc1 {nomoe}")
    sC1, sC2 = 65, 66
    a(f"s_xor_b32 s{sT2}, s{sK1}, s{sK2}\ns_and_b32 s{sT2}, s{sT2}, 0x7e0\ns_cselect_b32 s{sT2}, 0, 128")
    for k, c in ((sK1, sC1), (sK2, sC2)):
        a(f"s_not_b32 s{sT0}, s{k}\ns_bfe_u32 s{sT1}, s{sT0}, 0x40007\ns_lshl_b32 s{sT1}, s{sT1}, 19\ns_bfe_u32 s{sT0}, s{sT0}, 0x20005\ns_lshl_b32 s{sT0}, s{sT0}, 8\ns_add_u32 s{c}, s{sT0}, s{sT1}")
    a(f"""
    s_add_u32 s{sC2}, s{sC2}, s{sT2}
    v_and_b32 v5, 1, v{vLANE}
    v_cmp_eq_u32 vcc, 1, v5
    v_mov_b32 v6, s{sC1}
    v_mov_b32 v7, s{sC2}
    v_cndmask_b32 v6, v6, v7, vcc
    v_add_u32 v6, v6, v{vC}
    s_lshl_b32 s{sT0}, s{sWAVE}, 17
    s_add_u32 s{sT0}, s{sT0}, {WS_HO + HO_CH}
    s_add_u32 s{sT1}, s{sT0}, {1 << 15}
    s_add_u32 s{sT2}, s{sT0}, {2 << 15}
    s_add_u32 s{sT3}, s{sT0}, {3 << 15}
    """)
    rows = [f"buffer_load_dwordx4 {R('v', BF + 4*ks)}, v6, {S4(S_L)}, s{sT0 + ks//2} offen offset:{(ks % 2)*64} sc1" for ks in range(8)]
    for l in rows: a(l)
    mask()
    poll(a, rows, bad_sentinel(list(range(BF, BF + 32)), K + 4), "rows", first="s_waitcnt vmcnt(0)")
    st()
    Y = 152
    a("s_waitcnt lgkmcnt(0)")
    for m in range(2):
        for ks in range(8):
            a(mf(R("v", Y + 4*m), R("a", MW + 8*ks + 4*m), R("v", BF + 4*ks), "0" if ks == 0 else None))
    a(f"v_lshl_add_u32 v2, v10, 11, v{vL16}\nv_add_u32 v2, {LDS_RED}, v2\nv_add_u32 v3, {LDS_RED}, v{vL16}\nv_bfe_u32 v7, v{vLANE}, 1, 3\ns_nop 3")
    a(f"ds_write_b128 v2, {R('v', Y)}\nds_write_b128 v2, {R('v', Y+4)} offset:1024\ns_waitcnt lgkmcnt(0)\ns_barrier")
    P = 160
    for w in range(4): a(f"ds_read_b128 {R('v', P+8*w)}, v3 offset:{w*2048}\nds_read_b128 {R('v', P+4+8*w)}, v3 offset:{w*2048+1024}")
    a(f"""
    v_lshlrev_b32 v5, 12, v5
    v_lshl_add_u32 v5, v7, 6, v5
    v_add_u32 v5, v5, v{vC}
    s_lshl_b32 s{sT0}, s{sWAVE}, 10
    s_add_u32 s{sT0}, s{sT0}, s{sHO}
    s_add_u32 s{sT0}, s{sT0}, {HO_YP}
    """)
    for j in range(8): a(f"v_cmp_eq_u32 s[{8+2*j}:{9+2*j}], {j}, v7")
    a("s_waitcnt lgkmcnt(0)")
    for i in range(0, 8, 2): a(pk("add", P + i, P + i, P + 8 + i)); a(pk("add", P + 16 + i, P + 16 + i, P + 24 + i))
    for i in range(0, 8, 2): a(pk("add", P + i, P + i, P + 16 + i))
    for i in range(0, 8, 2): rnd(a, P + i, P + i + 1)
    E = P + 8
    for i in range(4): a(f"v_mul_f32 v{E+i}, {f2u(-LOG2E)}, v{P+i}")
    for i in range(4): a(f"v_exp_f32 v{E+i}, v{E+i}")
    for i in range(4): a(f"v_add_f32 v{E+i}, 1.0, v{E+i}")
    for i in range(4): a(f"v_rcp_f32 v{E+i}, v{E+i}")
    for i in range(4): a(f"v_mul_f32 v{P+i}, v{P+i}, v{E+i}")
    for i in (0, 2): rnd(a, P + i, P + i + 1)
    for i in (0, 2): a(pk("mul", P + i, P + i, P + 4 + i))
    a(f"v_cvt_pk_bf16_f32 v{E}, v{P}, v{P+1}\nv_cvt_pk_bf16_f32 v{E+1}, v{P+2}, v{P+3}")
    for j in range(8): a(f"v_cndmask_b32 v{BF+2*j}, 0, v{E}, s[{8+2*j}:{9+2*j}]\nv_cndmask_b32 v{BF+2*j+1}, 0, v{E+1}, s[{8+2*j}:{9+2*j}]")
    for h in range(2):
        for j in range(8):
            a(f"v_mfma_f32_16x16x16_bf16 {R('v', Y+4*h)}, {R('a', MW + 64 + 2*(8*h + j), 2)}, {R('v', BF + 2*j, 2)}, {'0' if j == 0 else R('v', Y+4*h)}")
    a(f"buffer_store_dwordx4 {R('v', Y)}, v5, {S4(S_L)}, s{sT0} offen sc1\ns_nop 6\nbuffer_store_dwordx4 {R('v', Y+4)}, v5, {S4(S_L)}, s{sT0} offen offset:512 sc1")
    st()
    a(f"s_cmp_lt_u32 s2, 64\ns_cbranch_scc1 {go}\ns_branch {only}\n{nomoe}:")
    mask()
    a(f"{only}:")
    for s in outs: a(s)
    a(f"s_branch {end}\n{go}:")
    a(f"""
    s_cmp_lt_u32 s2, 32
    s_cselect_b32 s{sK1}, s{sK1}, s{sK2}
    s_cselect_b32 s{sC1}, s{sC1}, s{sC2}
    s_bfe_u32 s{sT0}, s2, 0x40001
    s_lshl_b32 s{sT0}, s{sT0}, 15
    s_add_u32 s{sC1}, s{sC1}, s{sT0}
    s_and_b32 s{sT0}, s2, 1
    s_lshl_b32 s{sT0}, s{sT0}, 6
    s_add_u32 s{sC1}, s{sC1}, s{sT0}
    s_add_u32 s{sC1}, s{sC1}, {WS_HO + HO_CB}
    s_and_b32 s{sT1}, s2, 31
    s_lshl_b32 s{sT1}, s{sT1}, 6
    s_lshl_b32 s{sC2}, s{sT1}, 1
    s_add_u32 s{sC2}, s{sC2}, {WS_MODP + 12288}
    s_add_u32 s{sT2}, s{sC2}, 16384
    s_not_b32 s{sT0}, s{sK1}
    s_and_b32 s{sT0}, s{sT0}, 2047
    s_lshl_b32 s{sT0}, s{sT0}, 11
    s_add_u32 s{sT0}, s{sT0}, s{sT1}
    v_and_b32 v2, 7, v0
    v_lshlrev_b32 v3, 3, v2
    v_lshlrev_b32 v4, 4, v2
    v_lshrrev_b32 v5, 3, v0
    v_lshl_add_u32 v5, v5, 15, v4
    """)
    a.srd(S_WG, PTR["out"], 4 << 20)
    a(f"s_mov_b32 s{sK2}, s{sT0}\ns_lshl_b32 s8, s2, 7\ns_add_u32 s8, s8, {WS_HO + HO_YP}")
    for i in range(1, 7): a(f"s_add_u32 s{8+i}, s8, {i << 20}")
    a(f"""
    s_and_b32 s{sT0}, s{sK1}, 0xffff0000
    s_ashr_i32 s{sT1}, s{sT0}, 31
    s_not_b32 s{sT1}, s{sT1}
    s_or_b32 s{sT1}, s{sT1}, 0x80000000
    s_xor_b32 s{sT0}, s{sT0}, s{sT1}
    s_and_b32 s{sT0}, s{sT0}, 0xffff0000
    v_mov_b32 v60, s{sT0}
    v_mul_f32 v60, {f2u(-LOG2E)}, v60
    v_exp_f32 v60, v60
    buffer_load_dwordx4 v[64:67], v4, {S4(S_L)}, s{sC2} offen sc1
    buffer_load_dwordx4 v[68:71], v4, {S4(S_L)}, s{sT2} offen sc1
    v_add_f32 v60, 1.0, v60
    v_rcp_f32 v60, v60
    s_nop 0
    v_cvt_pk_bf16_f32 v60, v60, v60
    v_lshlrev_b32 v60, 16, v60
    s_waitcnt vmcnt(0)
    """)
    poll(a, [f"buffer_load_dwordx4 {R('v', 16 + 4*i)}, v5, {S4(S_L)}, s{8+i} offen sc1" for i in range(7)] + [f"buffer_load_dwordx2 v[44:45], v3, {S4(S_L)}, s{sC1} offen sc1"],
         bad_sentinel(list(range(16, 46)), 50), "y")
    st()
    for s in outs: a(s)
    for i in range(1, 7):
        a(pk("add", 16, 16, 16 + 4*i)); a(pk("add", 18, 18, 18 + 4*i))
    red8(a, [16, 17, 18, 19], [20, 21, 22, 23])
    a(f"v_lshl_add_u32 v6, v10, 7, v4\nds_write_b128 v6, v[16:19]\ns_waitcnt lgkmcnt(0)\ns_barrier\ns_cmp_lg_u32 s{sWAVE}, 0\ns_cbranch_scc1 {end}")
    for w in range(4): a(f"ds_read_b128 {R('v', 16+4*w)}, v4 offset:{128*w}")
    a(f"v_lshrrev_b32 v6, 3, v{vLANE}\nv_lshl_add_u32 v3, v6, 24, v3\ns_waitcnt lgkmcnt(0)")
    for j in (0, 2):
        a(pk("add", 16 + j, 16 + j, 20 + j)); a(pk("add", 24 + j, 24 + j, 28 + j)); a(pk("add", 16 + j, 16 + j, 24 + j))
        rnd(a, 16 + j, 17 + j)
        a(pk("mul", 16 + j, 16 + j, 60, mods="op_sel_hi:[1,0]")); rnd(a, 16 + j, 17 + j)
        a(pk("add", 52, 64 + j, 68 + j)); rnd(a, 52, 53); unpack(a, 54, 55, 44 + j//2)
        a(pk("fma", 16 + j, 16 + j, 52, 54))
        a(f"v_cvt_pk_bf16_f32 v{56 + j//2}, v{16+j}, v{17+j}")
    a(f"buffer_store_dwordx2 v[56:57], v3, {S4(S_WG)}, s{sK2} offen {OPT['ofl']*'sc1'}")
    st()
    a(f"{end}:")
```

```python
import struct
from asmlib import Asm

NAME = "adaLN_cond__mha_block_cached__moe_arch_mod__prompt_kernel"
P0 = 68
PTR = {n: P0 + 2*i for i, n in enumerate("x k v wq wo bx wr wg wu wd c wmod out dbg ws".split())}

WS_MODP = 0x60000
WS_MODG = 0x4000
WS_NONCE = 0xB000
FS = 7
WS_F1 = 0x10000
WS_F2 = 0x20000
WS_F3 = 0x40000
WS_KEY = 0x18000
WS_H = 0x400000
WS_HO = 0x800000
HO_EX, HO_YP, HO_ST, HO_CH, HO_CB = 0, 16384, 24576, 26624, 27648
WS_O = 0x1000000
WS_STG = 0x2000000
WS_TS = 0x4000000
LOG2E = 1.4426950408889634

PIECE = 1056
TILE = 16 * PIECE
KRING, VRING = 0, 4 * TILE
LDS_FLAG = 8 * TILE
LDS_CST = 8 * TILE + 64
CSTW = 4 * PIECE + 2048 + 256
LDS_TOTAL = LDS_CST + 4 * CSTW
MW = 144

OPT = dict(diag=0, safe=0, spin=1 << 16, skew=6, barp=2, rg=[1, 2, 4, 5], vg=[3, 6], pat=[0, 2, 4, 6, 1, 1, 3, 3, 5], ctch=7, full=1, slp=0, wgf=1, hearly=1, nonc=0, t64=0, ofl=1, kvf=0, wf=0, tlb=1, mvp=1, slx=1, otch=0, exn=126, t3=1, sv=4, guw=0, nw=4, kvt=1, halftr=0, xa=0, nct=1, q8=1, qsn=2, osn=2, grp=1, pvs=0, bnorm=1, c3=1, cwq=1, qt0=0, qtouch=1, w1=0, w2=13, qdb=2, exoff=0, mlead=2, mslice=44, mlag=4)

def f2u(x): return "0x%08x" % struct.unpack("<I", struct.pack("<f", x))[0]
def R(f, i, n=4): return f"{f}[{i}:{i+n-1}]" if n > 1 else f"{f}{i}"
def S4(i): return f"s[{i}:{i+3}]"
def mf(d, A, B, c=None): return f"v_mfma_f32_16x16x32_bf16 {d}, {A}, {B}, {c if c is not None else d}"
def pk(op, d, x, y, z=None, mods=""):
    r2 = lambda r: r if isinstance(r, str) else f"v[{r}:{r+1}]"
    return f"v_pk_{op}_f32 {r2(d)}, {r2(x)}, {r2(y)}" + (f", {r2(z)}" if z is not None else "") + (" " + mods if mods else "")
def emit(a, mfmas, gaps):
    for g, m in enumerate(mfmas):
        a(m)
        for s in gaps.get(g, []): a(s)
def unpack(a, lo, hi, src):
    a(f"v_lshlrev_b32 v{lo}, 16, v{src}\nv_and_b32 v{hi}, 0xffff0000, v{src}")
def rnd(a, lo, hi, slo=None, shi=None):
    a(f"v_cvt_pk_bf16_f32 v{hi}, v{lo if slo is None else slo}, v{hi if shi is None else shi}")
    unpack(a, lo, hi, hi)
def swap_red(a, regs, tmps, op="v_add_f32"):
    for sw in ("v_permlane16_swap_b32", "v_permlane32_swap_b32"):
        for r_, t in zip(regs, tmps): a(f"v_mov_b32 v{t}, v{r_}")
        if len(regs) < 3: a(f"s_nop {2 - len(regs)}")
        for r_, t in zip(regs, tmps): a(f"{sw} v{r_}, v{t}")
        for r_, t in zip(regs, tmps): a(f"{op} v{r_}, v{r_}, v{t}")
def red8(a, regs, tmps):
    a("s_nop 1")
    for r_ in regs: a(f"v_add_f32_dpp v{r_}, v{r_}, v{r_} row_ror:8 row_mask:0xf bank_mask:0xf")
    swap_red(a, regs, tmps)
def shuffle(a, regs):
    a("s_nop 1")
    for sw in ("v_permlane32_swap_b32", "v_permlane16_swap_b32"):
        for d in regs: a(f"{sw} v{d}, v{d+2}\n{sw} v{d+1}, v{d+3}")
def top2_row(a, m1, m2, t):
    for sh in (8, 4, 2, 1):
        a("s_nop 1")
        a(f"v_min_u32_dpp v{t}, v{m1}, v{m1} row_ror:{sh} row_mask:0xf bank_mask:0xf")
        a(f"v_max_u32_dpp v{t+1}, v{m2}, v{m2} row_ror:{sh} row_mask:0xf bank_mask:0xf")
        a(f"v_max_u32_dpp v{m1}, v{m1}, v{m1} row_ror:{sh} row_mask:0xf bank_mask:0xf")
        a(f"v_max_u32 v{m2}, v{t}, v{t+1}")

class VM:
    def __init__(self): self.ops = []
    def add(self, tag): self.ops.append(tag)
    def count(self, *tags):
        last = max((i for i, t in enumerate(self.ops) if t in tags), default=-1)
        return min(len(self.ops) - 1 - last, 63)

sWAVE, sHEAD, sQB, sG64, sU, sG, sNT, sKH, sSL, sNONCE, sMW, sMW2 = 3, 52, 53, 54, 55, 56, 57, 58, 59, 60, 61, 62
sT0, sT1, sT2, sT3, sSPIN, sCNT = 44, 45, 46, 47, 48, 49
S_L = 4
vL16, vLANE, vG, vQ = 1, 11, 12, 13

def poll(a, loads, bad, name, first=None):
    lp, ok, ck = a.label("poll"), a.label("got" + name), a.label("chk")
    a(f"s_mov_b32 s{sSPIN}, 0")
    if first: a(f"{first}\ns_branch {ck}")
    a(f"{lp}:")
    for l in loads: a(l)
    a("s_waitcnt vmcnt(0)")
    if first: a(f"{ck}:")
    for l in bad: a(l)
    a(f"s_add_u32 s{sSPIN}, s{sSPIN}, 1\ns_cbranch_vccz {ok}")
    if OPT["slp"]: a(f"s_sleep {OPT['slp']}")
    a(f"s_cmp_lt_u32 s{sSPIN}, {OPT['spin']}\ns_cbranch_scc1 {lp}\n{ok}:")
def bad_sentinel(regs, t):
    out = []
    if len(regs) == 1: t = regs[0]
    else:
        out.append(f"v_max_u32 v{t}, v{regs[0]}, v{regs[1]}")
        for i in range(2, len(regs), 2): out.append(f"v_max3_u32 v{t}, v{t}, v{regs[i]}, v{regs[i+1]}")
    return out + [f"v_cmp_eq_u32 vcc, -1, v{t}"]
def bad_tags(regs, t):
    if len(regs) == 1: return [f"v_cmp_ne_u32 vcc, s{sNONCE}, v{regs[0]}"]
    out = [f"v_xor_b32 v{t}, s{sNONCE}, v{regs[0]}"]
    for r_ in regs[1:]: out += [f"v_xor_b32 v{t+1}, s{sNONCE}, v{r_}", f"v_or_b32 v{t}, v{t}, v{t+1}"]
    return out + [f"v_cmp_ne_u32 vcc, 0, v{t}"]

class Stamps:
    def __init__(self, a): self.a, self.n = a, 0
    def __call__(self):
        if not OPT["diag"] or self.n >= 32: return
        a = self.a
        if self.n == 0: a("v_mov_b32 v255, -1")
        a("s_memrealtime s[98:99]\ns_memtime s[100:101]\ns_waitcnt lgkmcnt(0)")
        a(f"v_writelane_b32 v255, s98, {2*self.n}\nv_writelane_b32 v255, s100, {2*self.n+1}")
        self.n += 1
    def dyn(self, cnt, lvl=2):
        if OPT["diag"] != lvl: return
        a = self.a
        a(f"s_memrealtime s[98:99]\ns_memtime s[100:101]\ns_waitcnt lgkmcnt(0)\ns_lshl_b32 s99, s{cnt}, 1\ns_add_u32 s99, s99, 48\ns_add_u32 s101, s99, 1\ns_mov_b32 m0, s99")
        a("v_writelane_b32 v255, s98, m0\ns_mov_b32 m0, s101\nv_writelane_b32 v255, s100, m0")
    def flush(self):
        if not OPT["diag"]: return
        a = self.a
        a.srd(8, PTR["ws"], 1 << 20, WS_TS)
        a(f"s_lshl_b32 s98, s2, 2\ns_add_u32 s98, s98, s{sWAVE}\ns_lshl_b32 s98, s98, 8\nv_lshlrev_b32 v254, 2, v{vLANE}")
        a("buffer_store_dword v255, v254, s[8:11], s98 offen")

FL = ["", "sc1", "nt", "sc0 sc1", "sc0"]
```

```python
from common import *

S_W, S_B, S_K, S_V, S_O, S_WG, S_WU, S_WD, S_STG = 8, 12, 16, 20, 24, 28, 32, 36, 40
sKOFF, sVOFF, sWOFF, sBOFF = 63, 64, 65, 66
vWOFF, vKV, vA, vKADDR, vBOFF = 2, 3, 4, 5, 6
vGA, vTO, vTD, vCL = 248, 249, 250, 251

def ids(a):
    a(f"s_load_dwordx16 s[{P0}:{P0+15}], s[0:1], 0\ns_load_dwordx8 s[{P0+16}:{P0+23}], s[0:1], 64\ns_load_dwordx4 s[{P0+24}:{P0+27}], s[0:1], 96\ns_load_dwordx2 s[{P0+28}:{P0+29}], s[0:1], 112")
    a(f"""
    v_lshrrev_b32 v10, 6, v0
    v_and_b32 v{vLANE}, 63, v0
    v_readfirstlane_b32 s{sWAVE}, v10
    v_lshlrev_b32 v{vL16}, 4, v{vLANE}
    v_lshrrev_b32 v{vG}, 4, v{vLANE}
    v_and_b32 v{vQ}, 15, v{vLANE}
    s_and_b32 s{sT0}, s2, 7
    s_bfe_u32 s{sT1}, s2, 0x20003
    s_lshl_b32 s{sHEAD}, s{sT0}, 2
    s_add_u32 s{sHEAD}, s{sHEAD}, s{sT1}
    s_lshr_b32 s{sQB}, s2, 5
    s_lshl_b32 s{sG64}, s{sQB}, 2
    s_add_u32 s{sG64}, s{sG64}, s{sWAVE}
    s_lshl_b32 s{sSL}, s{sQB}, 5
    s_add_u32 s{sSL}, s{sSL}, s{sHEAD}
    s_mul_i32 s{sMW}, s{sWAVE}, {4*PIECE}
    s_add_u32 s{sMW2}, s{sMW}, {4*TILE}
    s_bfe_u32 s{sKH}, s2, 0x10002
    s_xor_b32 s{sKH}, s{sKH}, 1
    s_and_b32 s{sNT}, s2, 1
    s_lshl_b32 s{sNT}, s{sNT}, 2
    s_add_u32 s{sNT}, s{sNT}, s{sT1}
    s_lshl_b32 s{sNT}, s{sNT}, 1
    s_add_u32 s{sNT}, s{sNT}, s{sKH}
    s_bfe_u32 s{sT0}, s2, 0x10001
    s_lshl_b32 s{sG}, s{sQB}, 1
    s_add_u32 s{sG}, s{sG}, s{sT0}
    s_lshl_b32 s{sU}, s{sG}, 4
    s_add_u32 s{sU}, s{sU}, s{sNT}
    s_lshl_b32 s{sG}, s{sG}, 2
    s_add_u32 s{sG}, s{sG}, s{sWAVE}
    """)

def code_touch(a, lo, hi, v, dst, sh=6):
    here = a.label("pc")
    a(f"""
    s_getpc_b64 s[50:51]
    {here}:
    s_lshr_b32 s{sT0}, s2, 3
    s_lshl_b32 s{sT0}, s{sT0}, 4
    v_and_b32 v{v}, 3, v0
    v_lshl_add_u32 v{v}, v10, 2, v{v}
    v_add_u32 v{v}, s{sT0}, v{v}
    v_lshlrev_b32 v{v}, {sh}, v{v}
    v_min_u32 v{v}, {hi}-{lo}-4, v{v}
    v_add_u32 v{v}, {lo}-{here}, v{v}
    v_mov_b32 v{v+1}, s51
    v_add_co_u32 v{v}, vcc, s50, v{v}
    s_nop 1
    v_addc_co_u32 v{v+1}, vcc, 0, v{v+1}, vcc
    """)
    if dst is not None: a(f"global_load_dword v{dst}, v[{v}:{v+1}], off")

def front(a, g, st):
    S_X, S_C, S_M, S_D = S_K, S_V, S_STG, S_WG
    XP, CP, WD, SV, AC, X, T, E = 16, 32, 144, 40, 56, 64, 96, 112
    U = T + 4
    vXO, vMO, vROW, vZ, NV, vF0 = 14, 215, 208, 209, 210, 211
    sCG, sMO = 50, 51
    d3 = st if OPT["diag"] == 3 else (lambda: None)
    a(f"""
    v_and_b32 v{vROW}, 7, v0
    v_lshrrev_b32 v{T}, 3, v{vLANE}
    v_lshl_add_u32 v{T}, v10, 5, v{T}
    v_lshlrev_b32 v{T}, 4, v{T}
    v_lshl_add_u32 v{vXO}, v{vROW}, 11, v{T}
    v_lshrrev_b32 v{T+1}, 2, v0
    v_and_b32 v{T+2}, 3, v0
    v_mul_u32_u24 v{vMO}, {16*12288}, v{T+1}
    v_lshl_add_u32 v{vMO}, v{T+2}, 4, v{vMO}
    v_lshlrev_b32 v{T+1}, 5, v{T+1}
    v_mov_b32 v{vZ}, 0
    v_lshlrev_b32 v{vF0}, 24, v{vLANE}
    s_and_b32 s{sT3}, s2, 7
    s_lshl_b32 s{sT0}, s{sT3}, 3
    s_lshr_b32 s{sT1}, s2, 3
    s_add_u32 s{sCG}, s{sT0}, s{sT1}
    s_add_u32 s{sT0}, s{sT0}, 56
    s_cmp_lt_u32 s2, 64
    s_cselect_b32 s{sT0}, 0, s{sT0}
    s_add_u32 s{sCG}, s{sCG}, s{sT0}
    s_lshl_b32 s{sMO}, s{sCG}, 6
    s_lshl_b32 s{sT2}, s{sSL}, 14
    s_waitcnt lgkmcnt(0)
    """)
    st()
    a.srd(S_M, PTR["wmod"], 1024*12288)
    a.srd(S_C, PTR["c"], 2048)
    a.srd(S_X, PTR["x"], 16384, f"s{sT2}")
    a.srd(S_L, PTR["ws"], 16 << 20)
    a.srd(S_D, PTR["dbg"], 256)
    nload = f"buffer_load_dword v{NV}, v{vZ}, {S4(S_D)}, 0 offen sc1"
    def cloads(vm):
        for i in range(2): a(f"buffer_load_dwordx4 {R('v', CP + 4*i)}, v{T+1}, {S4(S_C)}, 0 offen offset:{16*i}"); vm.add("C")
    def xloads(vm):
        for i in range(4): a(f"buffer_load_dwordx4 {R('v', XP + 4*i)}, v{vXO}, {S4(S_X)}, 0 offen offset:{128*i}"); vm.add("X")
    def w_zero(w):
        for i in range(144): w(f"v_accvgpr_write_b32 a{i}, 0")
    def w_silu(w):
        w("WAIT C")
        for i in range(8): unpack(w, SV + 2*i, SV + 2*i + 1, CP + i)
        for i in range(16): w(f"v_mul_f32 v{E+i}, {f2u(-LOG2E)}, v{SV+i}")
        for i in range(16): w(f"v_exp_f32 v{E+i}, v{E+i}")
        for i in range(0, 16, 2): w(pk("add", E + i, E + i, "1.0", mods="op_sel_hi:[1,0]"))
        for i in range(16): w(f"v_rcp_f32 v{E+i}, v{E+i}")
        for i in range(0, 16, 2): w(pk("mul", SV + i, SV + i, E + i))
        for i in range(0, 16, 2): rnd(w, SV + i, SV + i + 1)
    def w_stats(w):
        w("WAIT X")
        for i in range(16): unpack(w, X + 2*i, X + 2*i + 1, XP + i)
        w(pk("add", T, X, X + 2))
        for i in range(4, 32, 2): w(pk("add", T, T, X + i))
        w(f"v_add_f32 v{T}, v{T}, v{T+1}")
        red8(w, [T], [T + 1])
        w(f"v_mul_f32 v{T}, {f2u(-1/256)}, v{T}")
        for i in range(0, 32, 2):
            w(pk("add", E, X + i, T, mods="op_sel_hi:[1,0]"))
            w(pk("mul", T + 2, E, E) if i == 0 else pk("fma", T + 2, E, E, T + 2))
        w(f"v_add_f32 v{T+1}, v{T+2}, v{T+3}")
        red8(w, [T + 1], [T + 2])
        w(f"v_lshlrev_b32 v{T+3}, 5, v{vROW}\nv_lshl_add_u32 v{T+2}, v10, 3, v{T+3}\nds_write_b64 v{T+2}, v[{T}:{T+1}]")
    def w_fma(w, rows):
        for i in rows:
            w(f"WAIT M{i}")
            sel = "op_sel:[0,1,0] op_sel_hi:[1,1,1]" if i % 2 else "op_sel_hi:[1,0,1]"
            for j in range(4):
                unpack(w, U + 2*(j % 2), U + 2*(j % 2) + 1, WD + 4*i + j)
                if i == 0: w(pk("mul", AC + 2*j, U + 2*(j % 2), SV, mods="op_sel_hi:[1,0]"))
                else: w(pk("fma", AC + 2*j, U + 2*(j % 2), SV + i - i % 2, AC + 2*j, mods=sel))
    def run_side(side, vm, n=10000, issued=100):
        while side and n > 0:
            x = side[0]
            if x.startswith("WAIT"):
                tag = x.split()[1]
                if tag[0] == "M" and int(tag[1:]) > issued - OPT["mlag"]: return
                if tag not in vm.ops: return
                x = f"s_waitcnt vmcnt({vm.count(tag)})"
            a(x); side.pop(0); n -= 1
    def side_of(*fs):
        w = Asm()
        for f in fs: f(w)
        return [x.strip() for x in w.lines]
    def gemv(vm, side, hooks, wide=False):
        for i in range(16):
            a(f"buffer_load_dwordx4 {R('v', WD + 4*i)}, v{vMO}, {S4(S_M)}, s{sMO} offen"); vm.add(f"M{i}")
            if i < 15: a(f"s_add_u32 s{sMO}, s{sMO}, 12288")
            if i in hooks: hooks[i]()
            if OPT["mlead"] <= i < 15: run_side(side, vm, OPT["mslice"], i)
        run_side(side, vm)
        a("s_nop 1")
        for sh in ((8,) if wide else (8, 4)):
            for j in range(8): a(f"v_add_f32_dpp v{AC+j}, v{AC+j}, v{AC+j} row_ror:{sh} row_mask:0xf bank_mask:0xf")
        a(f"v_lshrrev_b32 v{U}, 4, v0\nv_lshlrev_b32 v{U}, {8 if wide else 7}, v{U}\nv_and_b32 v{U+1}, {7 if wide else 3}, v0\nv_lshl_add_u32 v{U}, v{U+1}, 5, v{U}")
        a(f"ds_write_b128 v{U}, {R('v', AC)} offset:1024\nds_write_b128 v{U}, {R('v', AC+4)} offset:1040")
    def finish():
        a(f"v_lshlrev_b32 v{U}, 9, v{vG}\nv_lshl_add_u32 v{U}, v{vQ}, 3, v{U}")
        for i in range(4): a(f"ds_read_b64 v[{AC+2*i}:{AC+2*i+1}], v{U} offset:{1024 + 128*i}")
        a(f"v_lshlrev_b32 v{U+2}, 24, v{vG}\ns_waitcnt lgkmcnt(0)")
        a(pk("add", AC, AC, AC + 2)); a(pk("add", AC + 4, AC + 4, AC + 6)); a(pk("add", AC, AC, AC + 4))
        swap_red(a, [AC, AC + 1], [AC + 2, AC + 3])
        a(f"v_cvt_pk_bf16_f32 v{AC+4}, v{AC}, v{AC+1}")
    def nonce(vm):
        poll(a, [nload], [f"v_cmp_eq_u32 vcc, 0, v{NV}"], "nonce", first=f"s_waitcnt vmcnt({vm.count('N')})")
        a(f"v_readfirstlane_b32 s{sNONCE}, v{NV}")

    if OPT["prew"] & 2:
        a(f"""
        s_lshl_b32 s{sT0}, s{sSL}, {2+FS}
        s_add_u32 s{sT0}, s{sT0}, {WS_F2}
        s_lshl_b32 s{sT1}, s{sCG}, 7
        s_add_u32 s{sT1}, s{sT1}, {WS_MODG}
        s_cmp_lt_u32 s2, 64
        s_cselect_b32 s{sT1}, s{sT1}, {1 << 24}
        s_cmp_eq_u32 s{sWAVE}, 0
        s_cselect_b32 s{sT0}, s{sT0}, s{sT1}
        v_and_b32 v{T+3}, 0xa0, v0
        v_lshlrev_b32 v{T+3}, 19, v{T+3}
        v_lshl_add_u32 v{T+3}, v{vLANE}, 2, v{T+3}
        buffer_store_dword v{vZ}, v{T+3}, {S4(S_L)}, s{sT0} offen sc1
        """)
    bc, join = a.label("roleBC"), a.label("join")
    a(f"s_cmp_ge_u32 s2, 64\ns_cbranch_scc1 {bc}")
    vm = VM()
    cloads(vm)
    xa = OPT["xa"]
    gemv(vm, side_of(w_zero, w_silu, lambda w: w_fma(w, range(xa)), w_stats, lambda w: w_fma(w, range(xa, 16))),
         {xa: lambda: xloads(vm), 15: lambda: (a(nload), vm.add("N"))})
    n0 = st.n
    st()
    a("s_waitcnt lgkmcnt(0)\ns_barrier")
    nonce(vm)
    a(f"s_cmp_lg_u32 s{sWAVE}, 0\ns_cbranch_scc1 {join}")
    finish()
    a(f"s_cmp_ge_u32 s{sCG}, 32\ns_cselect_b32 s{sT0}, 1.0, 0\ns_mov_b32 s{sT1}, s{sT0}")
    unpack(a, AC, AC + 1, AC + 4)
    a(pk("add", AC, AC, f"s[{sT0}:{sT1}]"))
    a(f"""
    v_lshl_add_u32 v{U+2}, v{vQ}, 3, v{U+2}
    v_cvt_pk_bf16_f32 v{AC+2}, v{AC}, v{AC+1}
    v_mov_b32 v{AC+3}, s{sNONCE}
    s_lshl_b32 s{sT0}, s{sCG}, 7
    s_add_u32 s{sT0}, s{sT0}, {WS_MODG}
    buffer_store_dwordx2 v[{AC+2}:{AC+3}], v{U+2}, {S4(S_L)}, s{sT0} offen sc1
    s_branch {join}
    """)
    a(f"{bc}:")
    vm = VM()
    l = a.label("nononce")
    a(f"s_xor_b32 s{sT0}, s2, 255\ns_or_b32 s{sT0}, s{sT0}, s{sWAVE}\ns_cbranch_scc1 {l}")
    a(f"""
    s_load_dword s{sT0}, s[{PTR['ws']}:{PTR['ws']+1}], {WS_NONCE}
    s_waitcnt lgkmcnt(0)
    s_mul_i32 s{sT0}, s{sT0}, 0x9e3779b1
    s_add_u32 s{sT0}, s{sT0}, 0x7f4a7c15
    s_add_u32 s{sT1}, s{sT0}, 1
    s_cmp_le_u32 s{sT1}, 1
    s_cselect_b32 s{sT0}, 0x7f4a7c15, s{sT0}
    v_mov_b32 v{T+3}, s{sT0}
    s_mov_b32 s{sT1}, {WS_NONCE}
    buffer_store_dword v{T+3}, v{vF0}, {S4(S_D)}, 0 offen sc1
    buffer_store_dword v{T+3}, v{vF0}, {S4(S_L)}, s{sT1} offen sc1
    {l}:
    """)
    isc = a.label("roleC")
    a(f"""
    s_lshr_b32 s{sT0}, s2, 3
    s_sub_u32 s{sT0}, s{sT0}, 8
    s_lshl_b32 s{sT0}, s{sT0}, 2
    s_add_u32 s{sT0}, s{sT0}, s{sWAVE}
    s_mul_i32 s{sT0}, s{sT0}, {8*12288}
    s_lshl_b32 s{sT3}, s{sT3}, 9
    v_lshrrev_b32 v{T+4}, 2, v{vLANE}
    v_mul_u32_u24 v{T+4}, 12288, v{T+4}
    v_lshl_add_u32 v{T+4}, v{T+2}, 7, v{T+4}
    s_cmp_ge_u32 s2, 192
    s_cbranch_scc1 {isc}
    s_add_u32 s{sT0}, s{sT0}, s{sT3}
    v_lshrrev_b32 v{T+5}, 5, v{vLANE}
    v_lshl_add_u32 v{T+4}, v{T+5}, 24, v{T+4}
    buffer_load_dword v212, v{T+4}, {S4(S_M)}, s{sT0} offen
    v_lshrrev_b32 v{T+1}, 3, v0
    s_and_b32 s{sT0}, s{sCG}, 1
    s_lshl_b32 s{sT0}, s{sT0}, 5
    v_add_u32 v{T+1}, s{sT0}, v{T+1}
    v_mul_u32_u24 v{vMO}, {16*12288}, v{T+1}
    v_lshl_add_u32 v{vMO}, v{vROW}, 4, v{vMO}
    v_lshlrev_b32 v{T+1}, 5, v{T+1}
    s_and_b32 s{sMO}, s{sMO}, {0xffffff80}
    """)
    vm.add("T")
    xloads(vm); cloads(vm)
    gemv(vm, side_of(w_zero, w_stats, w_silu, lambda w: w_fma(w, range(16))), {15: lambda: (a(nload), vm.add("N"))}, wide=True)
    st.n = n0
    st()
    a("s_waitcnt lgkmcnt(0)\ns_barrier")
    nonce(vm)
    a(f"s_cmp_lg_u32 s{sWAVE}, 0\ns_cbranch_scc1 {join}")
    a(f"v_lshlrev_b32 v{U}, 10, v{vG}\nv_lshl_add_u32 v{U}, v{vQ}, 4, v{U}")
    for i in range(4): a(f"ds_read_b128 {R('v', WD + 4*i)}, v{U} offset:{1024 + 256*i}")
    a(f"""
    v_lshlrev_b32 v{U+2}, 24, v{vG}
    v_lshl_add_u32 v{U+2}, v{vQ}, 4, v{U+2}
    s_and_b32 s{sT0}, s{sCG}, 1
    s_lshl_b32 s{sT0}, s{sT0}, 14
    s_lshr_b32 s{sT1}, s{sCG}, 1
    s_lshl_b32 s{sT1}, s{sT1}, 8
    s_add_u32 s{sT0}, s{sT0}, s{sT1}
    s_add_u32 s{sT0}, s{sT0}, {WS_MODP - 32*256}
    s_waitcnt lgkmcnt(0)
    """)
    for j in (0, 2):
        a(pk("add", WD + j, WD + j, WD + 4 + j)); a(pk("add", WD + 8 + j, WD + 8 + j, WD + 12 + j)); a(pk("add", WD + j, WD + j, WD + 8 + j))
    swap_red(a, [WD + i for i in range(4)], [WD + 4 + i for i in range(4)])
    a(f"buffer_store_dwordx4 {R('v', WD)}, v{U+2}, {S4(S_L)}, s{sT0} offen sc1\ns_branch {join}")
    a(f"{isc}:\ns_lshl_b32 s{sT0}, s{sT0}, 1\ns_add_u32 s{sT0}, s{sT0}, s{sT3}\ns_sub_u32 s{sT0}, s{sT0}, {512*12288}")
    vm = VM()
    a(f"buffer_load_dword v212, v{T+4}, {S4(S_M)}, s{sT0} offen"); vm.add("T")
    xloads(vm)
    a(nload); vm.add("N")
    run_side(side_of(w_zero, w_stats), vm)
    st.n = n0
    st()
    a("s_waitcnt lgkmcnt(0)\ns_barrier")
    nonce(vm)
    a(f"{join}:")
    st()
    a(f"ds_read_b128 {R('v', E)}, v{T+3}\nds_read_b128 {R('v', E+4)}, v{T+3} offset:16")
    g.setup()
    vm = VM()
    for i in range(OPT["qt0"]): g.issue(g.touch(), vm)
    a("s_waitcnt lgkmcnt(0)")
    a(pk("add", T, E, E + 2)); a(pk("add", T + 2, E + 4, E + 6)); a(pk("add", T, T, T + 2))
    a(f"v_mul_f32 v{T}, {f2u(0.25)}, v{T}")
    for i in range(4):
        a(f"v_sub_f32 v{T+2}, v{E+2*i}, v{T}")
        a(f"v_mul_f32 v{T+3}, v{T+2}, v{T+2}" if i == 0 else f"v_fmac_f32 v{T+3}, v{T+2}, v{T+2}")
    a(f"v_fmac_f32 v{T+1}, {f2u(256.0)}, v{T+3}\nv_mul_f32 v{T+1}, {f2u(1/1024)}, v{T+1}")
    rnd(a, T, T + 1)
    a(f"""
    v_add_f32 v{T+1}, {f2u(1e-5)}, v{T+1}
    v_cvt_pk_bf16_f32 v{T+1}, v{T+1}, v{T+1}
    v_lshlrev_b32 v{T+1}, 16, v{T+1}
    v_sqrt_f32 v{T+1}, v{T+1}
    s_nop 0
    v_cvt_pk_bf16_f32 v{T+1}, v{T+1}, v{T+1}
    v_lshlrev_b32 v{T+1}, 16, v{T+1}
    v_rcp_f32 v{T+1}, v{T+1}
    s_nop 0
    """)
    for i in range(0, 32, 2):
        a(pk("add", X + i, X + i, T, mods="op_sel_hi:[1,0]")); rnd(a, X + i, X + i + 1)
        a(pk("mul", X + i, X + i, T, mods="op_sel:[0,1] op_sel_hi:[1,1]")); rnd(a, X + i, X + i + 1)
    LW, LR, HO = T, T + 1, T + 2
    a(f"""
    v_lshlrev_b32 v{LW}, 3, v{vLANE}
    v_lshl_add_u32 v{LW}, v10, 10, v{LW}
    v_add_u32 v{LW}, 8192, v{LW}
    v_lshrrev_b32 v{HO}, 3, v{vLANE}
    v_lshlrev_b32 v{LR}, 4, v{HO}
    v_lshl_add_u32 v{LR}, v10, 10, v{LR}
    v_lshl_add_u32 v{HO}, v10, 5, v{HO}
    v_lshlrev_b32 v{HO}, 8, v{HO}
    v_lshl_add_u32 v{HO}, v{vROW}, 4, v{HO}
    v_mov_b32 v{NV}, s{sNONCE}
    s_lshr_b32 s{sT2}, s{sSL}, 1
    s_lshl_b32 s{sT2}, s{sT2}, 15
    s_and_b32 s{sT3}, s{sSL}, 1
    s_lshl_b32 s{sT3}, s{sT3}, 7
    s_add_u32 s{sT2}, s{sT2}, s{sT3}
    s_add_u32 s{sT2}, s{sT2}, {WS_H}
    s_add_u32 s{sT3}, s{sT2}, 4096
    s_lshl_b32 s{sT0}, s{sWAVE}, 10
    s_add_u32 s{sT0}, s{sT0}, {WS_MODG}
    s_add_u32 s{sT1}, s{sT0}, 4096
    """)
    d3()
    G = XP
    poll(a, [f"buffer_load_dwordx4 {R('v', G)}, v{vL16}, {S4(S_L)}, s{sT0} offen sc1", f"buffer_load_dwordx4 {R('v', G+4)}, v{vL16}, {S4(S_L)}, s{sT1} offen sc1"],
         bad_tags([G + 1, G + 3, G + 5, G + 7], U), "mod")
    st()
    a(f"ds_write2_b32 v{LW}, v{G}, v{G+2} offset0:0 offset1:1\nds_write2_b32 v{LW}, v{G+4}, v{G+6} offset0:128 offset1:129\ns_waitcnt lgkmcnt(0)")
    SH, SC = 112, 128
    for i in range(4):
        a(f"ds_read_b128 {R('v', SC + 4*i)}, v{LR} offset:{8192 + 512 + 128*i}\nds_read_b128 {R('v', SH + 4*i)}, v{LR} offset:{8192 + 128*i}")
    a(f"""
    s_lshl_b32 s{sT0}, s{sSL}, 2
    s_add_u32 s{sT0}, s{sT0}, s{sWAVE}
    s_lshl_b32 s{sT0}, s{sT0}, {FS}
    s_add_u32 s{sT0}, s{sT0}, {WS_F2}
    s_lshl_b32 s{sT1}, s{sG64}, {5+FS}
    s_add_u32 s{sT1}, s{sT1}, {WS_F2}
    v_and_b32 v212, {28 if OPT["wgf"] else 31}, v{vLANE}
    v_lshl_add_u32 v212, v212, {FS}, s{sT1}
    """)
    vm = VM()
    for i in range(4):
        a(f"s_waitcnt lgkmcnt({6 - 2*i})")
        for j in range(4*i, 4*i + 4):
            unpack(a, U + 2, U + 3, SC + j); a(pk("mul", X + 2*j, X + 2*j, U + 2)); rnd(a, X + 2*j, X + 2*j + 1)
            unpack(a, U + 2, U + 3, SH + j); a(pk("add", X + 2*j, X + 2*j, U + 2))
            a(f"v_cvt_pk_bf16_f32 v{SH+j}, v{X+2*j}, v{X+2*j+1}")
        a(f"buffer_store_dwordx4 {R('v', SH + 4*i)}, v{HO}, {S4(S_L)}, s{sT2 if i < 2 else sT3} offen offset:{2048*(i % 2)} sc1"); vm.add("H")
    wq = [(c, p) for c in range(4) for p in range(4)][:13]
    for c, p in wq[:OPT["w1"]]: g.issue(g.dma(c, p), vm)
    d3()
    if OPT["full"]: a(f"v_lshrrev_b32 v{vF0}, 5, v{0 if OPT['wgf'] else vLANE}\nv_lshlrev_b32 v{vF0}, 24, v{vF0}\nv_lshl_add_u32 v{vF0}, v{vLANE}, 2, v{vF0}")
    elif OPT["wgf"]: a(f"v_min_u32 v{vF0}, 64, v0\nv_lshlrev_b32 v{vF0}, 24, v{vF0}")
    a(f"s_waitcnt vmcnt({vm.count('H')})")
    if OPT["wgf"]: a("s_barrier")
    a(f"buffer_store_dword v{NV}, v{vF0}, {S4(S_L)}, s{sT0} offen sc1"); vm.add("F")
    st()
    for c, p in wq[OPT["w1"]:OPT["w2"]]: g.issue(g.dma(c, p), vm)
    g.wrest = wq[OPT["w2"]:]
    for i in range(OPT["qt0"], 2): g.issue(g.touch(), vm)
    a(f"s_sub_u32 s{sT0}, s2, 64\ns_cmp_lt_u32 s{sT0}, 128\ns_cselect_b32 s{sT0}, 0, {1 << 24}\ns_add_u32 s{sT0}, s{sT0}, {WS_F1}\ns_lshl_b32 s{sCG}, s{sCG}, {FS}\ns_add_u32 s{sT0}, s{sT0}, s{sCG}")
    a(f"buffer_store_dword v{NV}, v{vF0}, {S4(S_L)}, s{sT0} offen sc1")
    d3()
    hl = f"buffer_load_dword v213, v212, {S4(S_L)}, 0 offen sc1"
    if OPT["hearly"]: a(hl)
    g.between()
    if OPT["hearly"]: poll(a, [hl], bad_tags([213], None), "h", first="s_waitcnt vmcnt(0)")
    else: a("s_waitcnt vmcnt(0)"); poll(a, [hl], bad_tags([213], None), "h")
    st()
    def after_b():
        for i in range(0, 128, 2): a(f"v_mov_b64 v[{16+i}:{17+i}], 0")
    g.after_b = after_b
```

```python
import sys
from common import *
from front import *
import attn as A, back as K

HEAD = open("adaLN_cond__mha_block_cached__moe_arch_mod__prompt.s.ref").read().split("\n")[:18]

def generate():
    a = Asm()
    a.begin_kernel(NAME)
    l = a.label("go")
    a(f"s_cmp_lt_u32 s2, 256\ns_cbranch_scc1 {l}\ns_endpgm\n{l}:")
    st = Stamps(a)
    ids(a)
    if OPT["ctch"] & 1:
        code_touch(a, "L_code_lo", "L_code_hi", 216, 218, 7); a("L_code_lo:")
    g = A.QProj(a)
    wpre = [K.OProj(a).dma(c, p) for c in range(OPT['nw']) for p in range(4)]
    at = A.Attn(a, False, wpre)
    def between():
        a(f"""
        v_lshl_add_u32 v{vKV}, v10, 12, v{vL16}
        v_mul_u32_u24 v{vKADDR}, {PIECE}, v{vQ}
        v_lshl_add_u32 v{vKADDR}, v{vG}, 4, v{vKADDR}
        s_mov_b32 s{sKOFF}, 0
        s_mov_b32 s{sVOFF}, 0
        s_lshl_b32 s{sT0}, s{sHEAD}, 19
        s_lshl_b32 s{sT1}, s{sG64}, 14
        s_add_u32 s{sT1}, s{sT1}, s{sT0}
        s_add_u32 s{sT1}, s{sT1}, {WS_O}
        """)
        a.srd(S_K, PTR["k"], 1 << 19, f"s{sT0}"); a.srd(S_V, PTR["v"], 1 << 19, f"s{sT0}"); a.srd(S_O, PTR["ws"], 16384, f"s{sT1}")
        for i in range(4): a(f"v_mov_b32 v{A.ONES+i}, 0x3f803f80")
        a(f"v_and_b32 v14, 1, v{vLANE}\nv_mul_u32_u24 v15, 0xaaaa, v14\nv_add_u32 v15, 0x4444, v15\nv_lshl_add_u32 v{A.IDX}, v15, 16, v15")
        a(f"""
        v_lshrrev_b32 v15, 1, v{vLANE}
        v_mul_u32_u24 v{vGA}, 7168, v15
        v_lshl_add_u32 v{vGA}, v14, 4, v{vGA}
        v_lshlrev_b32 v{vTO}, 11, v15
        v_lshl_add_u32 v{vTO}, v14, 7, v{vTO}
        v_lshl_add_u32 v{vTO}, v{vG}, 24, v{vTO}
        v_lshlrev_b32 v{vTD}, 7, v{vLANE}
        v_lshl_add_u32 v{vTD}, v10, 13, v{vTD}
        v_lshrrev_b32 v15, 3, v{vLANE}
        v_lshl_add_u32 v{vTD}, v15, 24, v{vTD}
        s_lshl_b32 s{sT0}, s{sU}, 15
        s_mul_i32 s{sT1}, s{sWAVE}, 7168
        s_add_u32 s{sT0}, s{sT0}, s{sT1}
        s_add_u32 s{sT0}, s{sT0}, {WS_HO}
        v_add_u32 v{vCL}, s{sT0}, v{vL16}
        s_lshl_b32 s{sT0}, s2, 2
        s_add_u32 s{sT0}, s{sT0}, s{sWAVE}
        s_lshl_b32 s{sT0}, s{sT0}, 14
        s_add_u32 s{sT0}, s{sT0}, {WS_STG}
        s_min_u32 s{sT1}, s{sSL}, 223
        s_lshl_b32 s{sT1}, s{sT1}, 15
        s_cmp_lt_u32 s2, 224
        s_cselect_b32 s{sT2}, 32768, 0
        """)
        a.srd(S_STG, PTR["ws"], 16384, f"s{sT0}"); a.srd(S_WD, PTR["wd"], f"s{sT2}", f"s{sT1}")
        g.setup_b()
        K.const_setup(a)
    g.between = between
    front(a, g, st)
    kv, cs = at.first_dmas(), K.const_ops()
    tail = []
    while kv or cs:
        if kv: tail.append(kv.pop(0))
        if cs: tail.append(cs.pop(0))
    vm = g.run(tail, st)
    st()
    a(f"s_mov_b32 s50, {f2u(LOG2E * 128 ** -0.5)}\ns_mov_b32 s51, s50")
    K.setup_w(a)
    a(f"s_cmp_lt_u32 s2, 224\ns_cselect_b32 s{sT2}, {1024*7168}, 0")
    a.srd(S_WG, PTR["wg"], f"s{sT2}"); a.srd(S_WU, PTR["wu"], f"s{sT2}")
    for n in range(16):
        for i in range(0, 8, 2): a(pk("mul", A.ACC + 8*n + i, A.ACC + 8*n + i, "s[50:51]"))
        for i in range(4): a(f"v_cvt_pk_bf16_f32 v{A.QF + 4*n + i}, v{A.ACC + 8*n + 2*i}, v{A.ACC + 8*n + 2*i + 1}")
    shuffle(a, [A.QF + 4*n for n in range(16)])
    for qb in range(4): a(f"v_add_u32 v{vBOFF+qb}, {qb*4096}, v{vL16}")
    for i in range(4): a(f"v_mov_b32 v{A.NEG+i}, -1")
    a(f"v_lshrrev_b32 v14, 5, v{vLANE}\nv_and_b32 v15, 0x1ff, v{vL16}\nv_lshl_add_u32 v14, v14, 11, v15\nv_lshl_add_u32 v{A.vDN}, v10, 9, v14")
    if OPT["prew"] & 1:
        a(f"""
        s_lshl_b32 s50, s{sG64}, 5
        s_add_u32 s50, s50, s{sHEAD}
        s_lshl_b32 s50, s50, {FS}
        s_add_u32 s50, s50, {WS_F3}
        s_lshl_b32 s51, s{sNT}, 17
        s_add_u32 s51, s51, s{sG}
        s_lshl_b32 s51, s51, {FS}
        s_add_u32 s51, s51, {WS_KEY - 128}
        v_cmp_gt_u32 vcc, 8, v{vLANE}
        v_mov_b32 v14, s50
        v_mov_b32 v15, s51
        v_cndmask_b32 v14, v15, v14, vcc
        v_add_u32 v14, v14, v{vL16}
        v_lshl_add_u32 v{A.vPW}, v{vG}, 28, v14
        """)
    if OPT["ctch"] & 4: code_touch(a, "L_code_mid", "L_code_tail", 230, None)
    a(f"s_mul_i32 s{A.sGA}, s{sWAVE}, {256*7168}\ns_lshl_b32 s{A.sST}, s{sSL}, 5\ns_add_u32 s{A.sGA}, s{A.sGA}, s{A.sST}\ns_mov_b32 s{A.sST}, 0\ns_lshl_b32 s{A.sWT}, s{sG64}, 17\ns_mov_b32 s{A.sR1}, 0")
    st()
    at.body(vm.count(("K", 1), ("V", 0)), st)
    st()
    safe, cont = a.label("safe"), a.label("cont")
    A.verdict(a, safe)
    a(f"{cont}:")
    st()
    K.moe(a, st, *K.oproj(a, st))
    st.flush()
    a("s_endpgm\nL_code_hi:")
    g.outofline()
    a(f"{safe}:")
    A.safe_path(a, wpre, cont)
    a.end_kernel(NAME, 256, 256, sgpr=102)
    return a.text(HEAD + [f"; @launch grid=(256,1,1) block=(256,1,1) lds={LDS_TOTAL}"])

if __name__ == "__main__":
    for arg in sys.argv[2:]:
        k, v = arg.split("=")
        assert k in OPT, k
        OPT[k] = [int(c) for c in v] if isinstance(OPT[k], list) else int(v)
    open(sys.argv[1], "w").write(generate())
```

```python
from common import *
from front import *

ACC = 16
AFR = [144 + 4*i for i in range(4)]
BRING = [("v", 160 + 4*i) for i in range(16)] + [("v", 232 + 4*i) for i in range(4)] + [("a", 144 + 4*i) for i in range(12)]

vQT, sQT, vF1, vKT, vAQ = 252, 67, 229, 254, 231

class QProj:
    def __init__(self, a): self.a = a
    def setup(self):
        a = self.a
        a(f"""
        v_lshrrev_b32 v{vA}, 2, v{vLANE}
        v_mul_u32_u24 v{vA}, {PIECE}, v{vA}
        v_and_b32 v{vKV}, 3, v{vLANE}
        v_lshl_add_u32 v{vA}, v{vKV}, 3, v{vA}
        v_add_u32 v{vA}, {VRING}, v{vA}
        v_lshl_add_u32 v{vAQ}, v{vKV}, 3, v{vA}
        v_bfe_u32 v{vKV}, v{vLANE}, 2, 1
        v_mul_u32_u24 v{vKV}, 24, v{vKV}
        v_sub_u32 v{vAQ}, v{vAQ}, v{vKV}
        v_lshrrev_b32 v{vWOFF}, 1, v{vG}
        v_lshlrev_b32 v{vWOFF}, 5, v{vWOFF}
        v_and_b32 v{vKV}, 1, v{vG}
        v_lshl_add_u32 v{vWOFF}, v{vKV}, 2, v{vWOFF}
        v_lshl_add_u32 v{vWOFF}, v10, 3, v{vWOFF}
        v_lshlrev_b32 v{vWOFF}, 13, v{vWOFF}
        v_lshl_add_u32 v{vWOFF}, v{vQ}, 4, v{vWOFF}
        s_lshl_b32 s{sT0}, s{sHEAD}, 8
        s_mov_b32 s{sWOFF}, 0
        """)
        a.srd(S_W, PTR["wq"], (8 << 20) - 31*256, f"s{sT0}")
        T64 = OPT['t64'] & 2
        a(f"""
        v_lshrrev_b32 v{vQT}, {2 if T64 else 1}, v{vLANE}
        v_lshlrev_b32 v{vQT}, 13, v{vQT}
        v_and_b32 v{vKV}, {3 if T64 else 1}, v{vLANE}
        v_lshl_add_u32 v{vQT}, v{vKV}, {6 if T64 else 7}, v{vQT}
        v_lshrrev_b32 v{vKV}, {5 if T64 else 4}, v{vLANE}
        v_lshl_add_u32 v{vQT}, v{vKV}, 24, v{vQT}
        s_lshl_b32 s{sQT}, s{sG64}, 16
        """)
    def touch(self):
        return (None, f"buffer_load_dword v253, v{vQT}, {S4(S_W)}, s{sQT} offen", f"s_add_u32 s{sQT}, s{sQT}, {256*8192}", "T")
    def setup_b(self):
        a = self.a
        a(f"""
        s_lshl_b32 s{sT1}, s{sNT}, {1+FS}
        s_add_u32 s{sT1}, s{sT1}, {WS_F1 + (64 << FS)}
        v_bfe_u32 v{vF1}, v{vLANE}, 1, 2
        v_lshlrev_b32 v{vF1}, {5+FS}, v{vF1}
        v_and_b32 v14, 1, v{vLANE}
        v_lshl_add_u32 v{vF1}, v14, {FS}, v{vF1}
        v_add_u32 v{vF1}, s{sT1}, v{vF1}
        v_and_b32 v{vKT}, {7 if OPT['t64'] & 2 else 3}, v{vLANE}
        v_lshlrev_b32 v{vKT}, {6 if OPT['t64'] & 2 else 7}, v{vKT}
        s_lshl_b32 s{sT3}, s{sG64}, 9
        """)
        for qb in range(4): a(f"v_add_u32 v{vBOFF+qb}, {qb*32768}, v{vL16}")
        a(f"s_lshl_b32 s{sT0}, s{sG64}, 17\ns_add_u32 s{sT0}, s{sT0}, {WS_H}\ns_mov_b32 s{sBOFF}, 0")
        a.srd(S_B, PTR["ws"], 1 << 17, f"s{sT0}")
    def acc(self, nb, qb): return R("v", ACC + 4*(qb*8 + nb))
    def bfrag(self, c, qb, ks):
        f, i = BRING[(c % 4)*8 + qb*2 + ks]; return R(f, i)
    def a_reads(self, c, nb):
        if OPT["q8"]:
            return [f"ds_read_b64_tr_b16 {R('v', AFR[(nb % 2)*2 + ks] + 2*jj, 2)}, v{vAQ} offset:{(c % 4)*TILE + (2*ks + jj)*256 + (nb // 2)*64 + (nb % 2)*8}" for ks in range(2) for jj in range(2)]
        return [f"ds_read_b64_tr_b16 {R('v', AFR[(nb % 2)*2 + ks] + 2*jj, 2)}, v{vA} offset:{(c % 4)*TILE + (2*ks + jj)*256 + nb*32}" for ks in range(2) for jj in range(2)]
    def dma(self, c, p):
        return (f"s_add_u32 m0, s{sMW}, {VRING + (c % 4)*TILE + (p*1024 + (p >> 1)*64 + (p & 1)*8 if OPT['q8'] else p*PIECE)}", f"buffer_load_dwordx4 v{vWOFF}, {S4(S_W)}, s{sWOFF} offen {FL[OPT['wf']]} lds",
                f"s_add_u32 s{sWOFF}, s{sWOFF}, {8192 if p < 3 else 61*8192}", ("W", c))
    def bload(self, c, i):
        qb, ks = i // 2, i % 2
        return (None, f"buffer_load_dwordx4 {self.bfrag(c, qb, ks)}, v{vBOFF+qb}, {S4(S_B)}, s{sBOFF} offen offset:{ks*1024} sc1",
                f"s_add_u32 s{sBOFF}, s{sBOFF}, 2048" if i == 7 else None, ("B", c))
    def issue(self, op, vm):
        a = self.a
        if op[0]: a(op[0]); a("s_nop 0")
        a(op[1]); vm.add(op[3])
        if op[2]: a(op[2])
    def w_prologue(self, vm):
        for c in range(4):
            for p in range(4 if c < 3 else 1): self.issue(self.dma(c, p), vm)
    def steady(self, c, nb):
        ops = [self.bload(c + OPT['qdb'], nb)] if c + OPT['qdb'] < 16 else []
        if nb % 2 == 1:
            cc, p = (c + 4, 0) if nb == 7 else (c + 3, (nb + 1)//2)
            if cc < 16: ops.append(self.dma(cc, p))
        if OPT["qtouch"] and c < 12 and c % 4 == 0 and nb == 0: ops.append(self.touch())
        if OPT["kvt"] and c < 12 and c % 4 == 2 and nb in (0, 2):
            ops.append((None, f"buffer_load_dword v{230 if nb else 253}, v{vKT}, {S4(S_K if nb == 0 else S_V)}, s{sT3} offen", f"s_add_u32 s{sT3}, s{sT3}, 16384" if nb else None, "T"))
        return ops
    def chunk(self, a, c, vm, extra=None, need=None, fill=None):
        last = c == 15
        for nb in range(8):
            ms = [mf(self.acc(nb, qb), R("v", AFR[(nb % 2)*2 + ks]), self.bfrag(c, qb, ks)) for qb in (range(4) if nb % 2 == 0 or not OPT['qsn'] & 2 else (3, 2, 1, 0)) for ks in ((0, 1) if qb % 2 == 0 or not OPT['qsn'] & 1 else (1, 0))]
            gaps = {g: [] for g in range(8)}
            if not (last and nb == 7):
                rd = self.a_reads(c, nb + 1) if nb < 7 else self.a_reads(c + 1, 0)
                gaps[0] += rd[0:2]; gaps[1] += rd[2:4]
            ops = self.steady(c, nb)
            while extra and len(ops) < 2: ops.append(extra.pop(0))
            for k, op in enumerate(ops):
                g = 3 + 2*k
                if op[0]: gaps[g - 1].insert(0, op[0])
                gaps[g].append(op[1]); vm.add(op[3])
                if op[2]: gaps[g + 1].append(op[2])
            if fill and not ops and not extra:
                for g in range(2, 7):
                    n = 0
                    while fill and n < (3 if fill[0].startswith("s_") else 2): gaps[g].append(fill.pop(0)); n += 1
            if nb == 6: gaps[7] += [f"s_waitcnt vmcnt({vm.count(*(need or [('W', c + 1), ('B', c + 1)]))}) lgkmcnt(0)", "s_barrier"]
            elif not (last and nb == 7): gaps[7].append("s_waitcnt lgkmcnt(0)")
            emit(a, ms, gaps)
    def run(self, tail_ops, st, fill):
        a = self.a
        vm = VM()
        for c in range(4): vm.add(("W", c))
        for c in range(OPT["qdb"]):
            for i in range(8): self.issue(self.bload(c, i), vm)
            if c == 0:
                a("s_waitcnt lgkmcnt(0)\ns_barrier")
                self.after_b()
                for s in self.a_reads(0, 0): a(s)
            while self.wrest and (self.wrest[0][0] <= c + 1 or c == OPT["qdb"] - 1): self.issue(self.dma(*self.wrest.pop(0)), vm)
        a(f"s_waitcnt vmcnt({vm.count(('B', 0))}) lgkmcnt(0)")
        st()
        bodies = []
        for b in range(3):
            t = Asm()
            for c in range(4*b, 4*b + 4): self.chunk(t, c, vm)
            bodies.append(t.lines)
        l = a.label("qproj")
        a(f"s_mov_b32 s{sCNT}, 0\n{l}:")
        st.dyn(sCNT, 5)
        a.lines += strictest(bodies)
        a(f"s_add_u32 s{sCNT}, s{sCNT}, 1\ns_cmp_lt_u32 s{sCNT}, 3\ns_cbranch_scc1 {l}")
        st.dyn(sCNT, 5)
        f1 = f"buffer_load_dword v253, v{vF1}, {S4(S_L)}, 0 offen sc1"
        self.chunk(a, 12, vm, [(None, f1, None, "F")], need=[("W", 13), ("B", 13), "F"])
        slow, back = a.label("slowf1"), a.label("backf1")
        a(f"v_cmp_ne_u32 vcc, s{sNONCE}, v253\ns_cbranch_vccnz {slow}\n{back}:\nv_lshlrev_b32 v253, 2, v{vLANE}")
        def outofline():
            a(f"{slow}:")
            poll(a, [f1], bad_tags([253], None), "f1")
            a(f"s_branch {back}")
        self.outofline = outofline
        if OPT['diag'] == 5: a(f's_add_u32 s{sCNT}, s{sCNT}, 1'); st.dyn(sCNT, 5)
        self.chunk(a, 13, vm, tail_ops)
        if OPT['diag'] == 5: a(f's_add_u32 s{sCNT}, s{sCNT}, 1'); st.dyn(sCNT, 5)
        self.chunk(a, 14, vm, tail_ops)
        if OPT['diag'] == 5: a(f's_add_u32 s{sCNT}, s{sCNT}, 1'); st.dyn(sCNT, 5)
        self.chunk(a, 15, vm, tail_ops, need=[("K", 0)], fill=fill)
        assert not tail_ops
        for x in fill: a(x)
        return vm

def strictest(bodies):
    import re
    out = list(bodies[0])
    for o in bodies[1:]:
        assert len(o) == len(out), (len(o), len(out))
        for i, (p, q) in enumerate(zip(out, o)):
            if p != q:
                np_, nq = (int(re.search(r"vmcnt\((\d+)\)", z).group(1)) for z in (p, q))
                assert re.sub(r"vmcnt\(\d+\)", "", p) == re.sub(r"vmcnt\(\d+\)", "", q)
                out[i] = p if np_ < nq else q
    return out

QF, SB_, MB, PB_, KF, VF, ONES, IDX = 16, 80, 96, 112, 176, 208, 224, 228
OACC, LACC = 0, 128
TA, NEG, DUM = 96, 232, 108
sGA, sIX, sWT, sR1, sR4 = sT0, sT1, sT2, sT3, sBOFF
vDN = 238

class Attn:
    def __init__(self, a, safe, wpre=None):
        self.a, self.safe, self.wpre = a, safe, wpre
    def kread(self, T, kb, ds):
        return f"ds_read_b128 {R('v', KF + 16*(kb % 2) + 4*ds)}, v{vKADDR} offset:{(T % 4)*TILE + kb*256 + ds*64}"
    def vreads(self, T, db, ks):
        return [f"ds_read_b64_tr_b16 {R('v', VF + 8*(db % 2) + 4*ks + 2*jj, 2)}, v{vA} offset:{(T % 4)*TILE + (2*ks + jj)*256 + db*32}" for jj in range(2)]
    def dma(self, kind, T, p):
        ring, srd, so = (KRING, S_K, sKOFF) if kind == "K" else (VRING, S_V, sVOFF)
        return (f"s_add_u32 m0, s{sMW}, {ring + (T % 4)*TILE + 32*p}", f"buffer_load_dwordx4 v{vKV}, {S4(srd)}, s{so} offen offset:{p*1024} {FL[OPT['kvf']]} lds",
                f"s_add_u32 s{so}, s{so}, 16384" if p == 3 else None, (kind, T))
    def first_dmas(self):
        seq = [("K", 0, p) for p in range(4)]
        for T in range(2): seq += [("K", T + 1, p) for p in range(4)] + [("V", T, p) for p in range(4)]
        return [self.dma(*x) for x in seq]
    def qk(self, kb, qb):
        order = (0, 1, 2, 3) if qb % 2 == 0 else (3, 2, 1, 0)
        return [mf(R("v", SB_ + 4*qb), R("v", KF + 16*(kb % 2) + 4*ds), R("v", QF + 16*qb + 4*ds),
                   (R("v", MB + 4*qb) if self.safe else "0") if n == 0 else None) for n, ds in enumerate(order)]
    def pv(self, T, db, qbs):
        return [mf(R("a", OACC + 4*(qb*8 + db)), R("v", VF + 8*(db % 2) + 4*ks), R("v", PB_ + 32*(T % 2) + 8*qb + 4*ks))
                for qb in qbs for ks in ((0, 1) if qb % 2 == 0 or OPT["pvs"] == 0 else (1, 0))]
    def exp(self, blk, i):
        r_ = SB_ + 4*(blk % 4) + i
        return f"v_exp_f32 v{r_}, v{r_}"
    def cvt(self, X, blk, h):
        kb, qb = blk // 4, blk % 4
        return f"v_cvt_pk_bf16_f32 v{PB_ + 32*(X % 2) + 8*qb + 2*kb + h}, v{SB_ + 4*qb + 2*h}, v{SB_ + 4*qb + 2*h + 1}"
    def smf(self, T, qb):
        return f"v_smfmac_f32_16x16x64_bf16 {R('a', LACC + 4*qb)}, {R('v', ONES)}, {R('v', PB_ + 32*(T % 2) + 8*qb, 8)}, v{IDX}"
    def kread_at(self, T, s):
        n = s + 5
        return T + 1 + n // 16, (n % 16) // 4, n % 4
    def dma_ops(self, T, lo=0):
        ops = {}
        for s in range(1, 16, 2):
            n = (s - 11) // 2
            st = T + 3 if n >= 0 else T + 2
            n %= 8
            if s >= lo: ops[s] = ("K", st + 1, n) if n < 4 else ("V", st, n - 4)
        return ops
    def moe_loads(self, dst):
        return [f"buffer_load_dwordx4 {dst[0]}, v{vGA}, {S4(S_WG)}, s{sGA} offen", f"buffer_load_dwordx4 {dst[1]}, v{vGA}, {S4(S_WU)}, s{sGA} offen",
                f"buffer_load_dwordx4 {dst[2]}, v{vDN}, {S4(S_WD)}, s{sR4} offen"]
    def extras(self, T):
        if self.safe: return {}
        ld = self.moe_loads([R("v", TA + 4*i) for i in range(3)])
        full = [{12: (ld[0], None), 14: (f"buffer_load_dword v{DUM}, v{vTO}, {S4(S_W)}, s{sWT} offen", f"s_add_u32 s{sWT}, s{sWT}, 16384")},
                {12: (ld[1], f"s_add_u32 s{sGA}, s{sGA}, {32*7168}"), 14: (ld[2], f"s_add_u32 s{sR4}, s{sR4}, 4096")},
                {12: (f"buffer_store_dwordx4 {R('v', NEG)}, v{vCL}, {S4(S_L)}, s{sR1} offen sc1", f"s_add_u32 s{sR1}, s{sR1}, 1024"),
                 14: ("global_load_dword v110, v[236:237], off", None)}, {}][T % 4]
        off = OPT["exoff"] | (0 if OPT["ctch"] & 4 else 16)
        kind = [{12: 1, 14: 4}, {12: 1, 14: 2}, {12: 8, 14: 16}, {}][T % 4]
        return {s: v for s, v in full.items() if not kind[s] & off}
    def moves(self, T, s):
        if self.safe or T % 4 != 3: return []
        plan = [{0: (0, 2), 2: (2, 4), 11: (4, 6), 12: (6, 8), 14: (8, 10), 15: (10, 12)}, {12: (0, 12)}, {0: (0, 4), 12: (4, 8), 14: (8, 12)}, {12: (0, 6), 14: (6, 12)}][OPT["mvp"]]
        if s not in plan: return []
        return [f"s_set_gpr_idx_on s{sIX}, gpr_idx(DST)"] + [f"v_accvgpr_write_b32 a{MW + i}, v{TA + i}" for i in range(*plan[s])] + ["s_set_gpr_idx_off"]
    def iteration(self, T, do_qk=True, do_pv=True, tail=None, barwait=8, plan=None):
        a = self.a
        full = do_qk and do_pv
        dmas = self.dma_ops(T, 0 if full else 11) if do_qk else {}
        ex = self.extras(T) if full and not plan else {}
        for s in range(16):
            kb, qb, db = s // 4, s % 4, s // 2
            ms = (self.qk(kb, qb) if do_qk else []) + (self.pv(T, db, (2*(s % 2), 2*(s % 2) + 1)) if do_pv else [])
            if full and OPT["grp"]: ms = self.qk(kb, qb) + self.qk(kb, qb + 1) if s % 2 == 0 else self.pv(T, db, range(4))
            E, C = [], []
            if s >= 1:
                if do_qk: E = [self.exp(s - 1, i) for i in range(4)]
            elif do_pv: E = [self.exp(15, i) for i in range(4)]
            if s >= 2:
                if do_qk: C = [self.cvt(T + 1, s - 2, h) for h in range(2)]
            elif do_pv: C = [self.cvt(T, 14 + s, h) for h in range(2)]
            KR = [self.kread(*self.kread_at(T, s))] if do_qk and not (plan and self.kread_at(T, s)[0] > 31) else []
            VR, n = [], s + 2
            if n < 16:
                if do_pv: VR = self.vreads(T, n // 2, n % 2)
            elif do_qk: VR = self.vreads(T + 1, 0, n % 2)
            D = self.dma(*dmas[s]) if s in dmas else None
            if plan:
                if D is None or D[3][1] > 31: D = plan[1](T, s)
                if D: plan[0].add(D[3])
                if s == 10: barwait = plan[0].count(("K", T + 2), ("V", T + 1))
            gaps = {g: [] for g in range(9)}
            if full:
                pt = OPT["pat"]
                assert pt[6] <= pt[7] <= pt[8] and pt[8] >= 3
                prevk = 0 if plan and s > 0 and self.kread_at(T, s - 1)[0] > 31 else 1
                if s % 2 == 0: gaps[3].append(f"s_waitcnt lgkmcnt({prevk + sum(g < 3 for g in pt[6:8])})")
                for x, g in zip(VR + KR, pt[6:9]): gaps[g].append(x)
                for x, g in zip(C + E, pt[4:6] + pt[0:4]): gaps[g].append(x)
                last = 7
                if s % 4 == 3: ms.append(self.smf(T, s // 4)); last = 8
                if D:
                    if D[0]: gaps[6].insert(0, D[0])
                    gaps[7].append(D[1])
                    if D[2]: gaps[last].append(D[2])
                if s in ex: gaps[7].append(ex[s][0])
                if not plan: gaps[last] = self.moves(T, s) + gaps[last]
                if not plan and not self.safe and T % 4 == 0 and s == 4: gaps[0].insert(0, f"s_add_u32 s{sIX}, s{sIX}, 12")
                if s - 1 in ex and ex[s - 1][1]: gaps[0].insert(0, ex[s - 1][1])
                if s % 4 == 3: gaps[last].append(f"s_waitcnt lgkmcnt({len(KR) + len(VR)})")
                if s == 10: gaps[last] += [f"s_waitcnt vmcnt({barwait})", "s_barrier"]
                if s == 15 and tail: gaps[last] += tail
            elif do_qk:
                E = [self.exp(s - 2, i) for i in range(4)] if s >= 2 else []
                C = [self.cvt(T + 1, s - 3, h) for h in range(2)] if s >= 3 else []
                gaps[0] = VR + C
                if D: gaps[0].insert(0, D[0]); gaps[1] = [D[1]]; gaps[2] = [D[2]] if D[2] else []
                gaps[3] = list(KR)
                for g, x in enumerate(E): gaps[g].append(x)
                if s % 4 == 3: gaps[3].append(f"s_waitcnt lgkmcnt({len(KR) + len(VR)})")
                if s == 10: gaps[3] += [f"s_waitcnt vmcnt({barwait})", "s_barrier"]
                if s == 1: gaps[3].append("s_nop 1")
                if s == 15: gaps[3] += [self.exp(14, i) for i in range(4)] + [self.cvt(T + 1, 13, h) for h in range(2)]
            else:
                pre = E + C
                if s < 2: pre += ["s_nop 1"]
                if s % 2 == 0: pre += ["s_waitcnt lgkmcnt(0)"]
                for x in pre: a(x)
                gaps[0] = VR
                if s % 4 == 3: ms.append(self.smf(T, s // 4))
            emit(a, ms, gaps)
    def body(self, first_wait, st=None):
        a = self.a
        if self.safe:
            for s in range(11, 16): a(self.kread(*self.kread_at(-2, s)))
        a("s_waitcnt lgkmcnt(1)")
        self.iteration(-1, do_pv=False, barwait=first_wait)
        if st: st()
        loop, done = a.label("attn"), a.label("attn_done")
        a(f"s_mov_b32 s{sCNT}, 0\n.p2align 3\n{loop}:")
        if st: st.dyn(sCNT)
        for T in range(4):
            tail = None
            if self.safe:
                if T == 2: tail = [f"s_cmp_eq_u32 s{sCNT}, 7", f"s_cbranch_scc1 {done}"]
                if T == 3: tail = [f"s_add_u32 s{sCNT}, s{sCNT}, 1", f"s_branch {loop}"]
            elif T == 3: tail = [f"s_add_u32 s{sCNT}, s{sCNT}, 1", f"s_cmp_lt_u32 s{sCNT}, 7", f"s_cbranch_scc1 {loop}"]
            self.iteration(T, tail=tail, barwait=8 + (len(self.extras(T - 1)) if T else 0))
        a(f"{done}:")
        if self.safe:
            self.iteration(31, do_qk=False)
            return
        a("L_code_mid:")
        vm = VM()
        for t in [("K", 30), ("V", 29), ("K", 31)] + ["X"] * len(self.extras(3)) + [("K", 31), ("K", 31)]: vm.add(t)
        ld = self.moe_loads([R("a", MW + 84 + 4*i) for i in range(3)])
        q = {(28, 2): ld[0], (28, 12): ld[1], (28, 6): self.extras(0)[14][0], (29, 2): ld[2]}
        wq = list(self.wpre)
        def plan(T, s):
            if s == 10: return None
            if (T, s) in q: return (None, q.pop((T, s)), None, "G")
            if (T, s) > ({0: 28, 1: 29, 4: 29, 2: 30, 5: 30}.get(wq[0][3][1], 99), 10) and (s % 2 or (T, s) > (30, 10)): return wq.pop(0)
        for T in (28, 29, 30): self.iteration(T, plan=(vm, plan))
        assert not q
        if st: st()
        self.final(wq)
    def final(self, wq):
        a, T = self.a, 31
        L, Z, CK, SRC = 96, 104, 108, 176
        DST = [112 + 4*i for i in range(8)] + [192 + 4*i for i in range(4)] + [232 + 4*i for i in range(4)]
        for i in range(4): a(self.exp(15, i))
        for h in range(2): a(self.cvt(T, 14, h))
        a(self.smf(T, 0))
        for h in range(2): a(self.cvt(T, 15, h))
        a(self.smf(T, 1))
        for i in range(2): a(f"v_mov_b32 v{Z+i}, 0")
        a(self.smf(T, 2))
        for i in range(2, 4): a(f"v_mov_b32 v{Z+i}, 0")
        a("s_waitcnt lgkmcnt(0)\ns_barrier")
        a(self.smf(T, 3))
        fill = ["s_nop 0"] * 4
        for qb in range(4): fill += [f"v_accvgpr_read_b32 v{L+2*qb}, a{LACC+4*qb}", f"v_accvgpr_read_b32 v{L+2*qb+1}, a{LACC+4*qb+1}"]
        for qb in range(4): fill += [f"v_add_f32 v{L+2*qb}, v{L+2*qb}, v{L+2*qb+1}"]
        fill += [f"s_mov_b32 s{sT0}, {f2u(2.0**-24)}", f"s_mov_b32 s{sT1}, {f2u(2.0**60)}", f"s_mov_b64 s[50:51], {-1 if OPT['safe'] else 0}"]
        for qb in range(4):
            fill += [f"v_cmp_nle_f32 vcc, s{sT0}, v{L+2*qb}", "s_or_b64 s[50:51], s[50:51], vcc", f"v_cmp_nge_f32 vcc, s{sT1}, v{L+2*qb}", "s_or_b64 s[50:51], s[50:51], vcc"]
        for qb in range(4): fill += [f"v_rcp_f32 v{L+2*qb}, v{L+2*qb}"]
        nfr = [0]
        def frag(sg, qb, packed):
            n = nfr[0]; nfr[0] += 1
            src, dst = SRC + 8*(n % 2), DST[n]
            out = [f"v_accvgpr_read_b32 v{src+i}, a{OACC + 4*(qb*8 + 2*sg) + i}" for i in range(8)]
            if n: out.insert(4, mf(R("v", CK), R("v", Z), R("v", DST[n - 1]), "0" if n == 1 else None))
            if packed: out += [pk("mul", src + i, src + i, L + 2*qb, mods="op_sel_hi:[1,0]") for i in range(0, 8, 2)]
            else: out += [f"v_mul_f32 v{src+i}, v{src+i}, v{L+2*qb}" for i in range(8)]
            out += [f"v_cvt_pk_bf16_f32 v{dst+i}, v{src+2*i}, v{src+2*i+1}" for i in range(4)]
            return out + [f"buffer_store_dwordx4 {R('v', dst)}, v{vBOFF+qb}, {S4(S_O)}, 0 offen offset:{sg*1024} sc1"]
        for db in range(8):
            if db % 2 == 0 and db:
                assert not fill
                for qb in range(4): fill += frag(db // 2 - 1, qb, False)
            ms = self.pv(T, db, range(4))
            left = 16 - 8*(db % 2)
            for g, m in enumerate(ms):
                a(m)
                if g < 2 and db < 7:
                    for x in self.vreads(T, db + 1, g): a(x)
                if g in (2, 4, 6) and wq and db < 4:
                    op = wq.pop(0); a(op[0]); a("s_nop 0"); a(op[1]); a(op[2])
                if not (db % 2 == 0 and g < 2):
                    k = -(-len(fill) // (left - g))
                    for x in fill[:k]: a(x)
                    del fill[:k]
            if db < 7: a("s_waitcnt lgkmcnt(0)")
        assert not wq and not fill
        a("s_nop 1")
        for qb in range(4):
            for x in frag(3, qb, True): a(x)
        a("s_nop 0"); a(mf(R("v", CK), R("v", Z), R("v", DST[15])))
        a(f"s_nop 7\nv_cmp_u_f32 vcc, v{CK}, v{CK}\ns_or_b64 s[50:51], s[50:51], vcc\ns_or_b32 s50, s50, s51")

def epilogue(a, check):
    T = 80
    a("s_nop 7")
    for qb in range(4): a(f"v_accvgpr_read_b32 v{T+2*qb}, a{LACC+4*qb}\nv_accvgpr_read_b32 v{T+2*qb+1}, a{LACC+4*qb+1}")
    for qb in range(4): a(f"v_add_f32 v{T+2*qb}, v{T+2*qb}, v{T+2*qb+1}")
    if check:
        a(f"s_mov_b32 s{sT0}, {f2u(2.0**-24)}\ns_mov_b32 s{sT1}, {f2u(2.0**60)}\ns_mov_b64 s[50:51], {-1 if OPT['safe'] else 0}")
        for qb in range(4):
            a(f"v_cmp_nle_f32 vcc, s{sT0}, v{T+2*qb}\ns_or_b64 s[50:51], s[50:51], vcc")
            a(f"v_cmp_nge_f32 vcc, s{sT1}, v{T+2*qb}\ns_or_b64 s[50:51], s[50:51], vcc")
        for i in range(4): a(f"v_mov_b32 v{KF+i}, 0")
    for qb in range(4): a(f"v_rcp_f32 v{T+2*qb}, v{T+2*qb}")
    n = 0
    for qb in range(4):
        for s in range(4):
            src = 184 + 8*(n % 2); dst = 112 + 4*n
            for i in range(8): a(f"v_accvgpr_read_b32 v{src+i}, a{OACC + 4*(qb*8 + 2*s) + i}")
            for i in range(0, 8, 2): a(pk("mul", src + i, src + i, T + 2*qb, mods="op_sel_hi:[1,0]"))
            for i in range(4): a(f"v_cvt_pk_bf16_f32 v{dst+i}, v{src+2*i}, v{src+2*i+1}")
            a(f"buffer_store_dwordx4 {R('v', dst)}, v{vBOFF+qb}, {S4(S_O)}, 0 offen offset:{s*1024} sc1")
            if check and n: a(mf(R("v", KF + 4), R("v", KF), R("v", dst - 4), "0" if n == 1 else None))
            n += 1
    if check:
        a("s_nop 0"); a(mf(R("v", KF + 4), R("v", KF), R("v", 112 + 60)))
        a(f"s_nop 7\nv_cmp_u_f32 vcc, v{KF+4}, v{KF+4}\ns_or_b64 s[50:51], s[50:51], vcc\ns_or_b32 s50, s50, s51")

def verdict(a, safe):
    a(f"""
    v_mov_b32 v14, s50
    s_lshl_b32 s51, s{sWAVE}, 2
    s_add_u32 s51, s51, {LDS_FLAG}
    v_mov_b32 v15, s51
    ds_write_b32 v15, v14
    v_mov_b32 v15, {LDS_FLAG}
    s_waitcnt lgkmcnt(0)
    s_barrier
    ds_read_b128 v[80:83], v15
    s_waitcnt lgkmcnt(0)
    v_or_b32 v80, v80, v81
    v_or3_b32 v80, v80, v82, v83
    s_nop 0
    v_readfirstlane_b32 s50, v80
    s_nop 3
    s_cmp_lg_u32 s50, 0
    s_cbranch_scc1 {safe}
    """)

def safe_path(a, wpre, cont):
    a("s_waitcnt vmcnt(0) lgkmcnt(0)\ns_barrier")
    at, fast = Attn(a, True, wpre), Attn(a, False)
    for i in range(4): a(f"v_mov_b32 v{MB+4*i}, 0xff800000")
    mloop = a.label("maxloop")
    a(f"s_mov_b32 s{sKOFF}, 0\ns_mov_b32 s{sVOFF}, 0\ns_mul_i32 s{sWA}, s{sKH}, {63 << 17}\ns_mul_i32 s{sWOFF}, s{sKH}, {55 << 17}\ns_add_u32 s{sWOFF}, s{sWOFF}, {4 << 17}\n{mloop}:")
    def issue(op):
        a(op[0]); a("s_nop 0"); a(op[1])
        if op[2]: a(op[2])
    for p in range(4): issue(at.dma("K", 0, p))
    a("s_waitcnt vmcnt(0)\ns_barrier")
    for kb in range(4):
        for ds in range(4): a(at.kread(0, kb, ds))
        a("s_waitcnt lgkmcnt(0)")
        for qb in range(4):
            for m in fast.qk(kb, qb): a(m)
        a("s_nop 7")
        for qb in range(4):
            a(f"v_max3_f32 v{MB+4*qb}, v{MB+4*qb}, v{SB_+4*qb}, v{SB_+4*qb+1}\nv_max3_f32 v{MB+4*qb}, v{MB+4*qb}, v{SB_+4*qb+2}, v{SB_+4*qb+3}")
    a(f"s_barrier\ns_cmp_lt_u32 s{sKOFF}, {32*16384}\ns_cbranch_scc1 {mloop}")
    swap_red(a, [MB + 4*qb for qb in range(4)], [MB + 4*qb + 1 for qb in range(4)], "v_max_f32")
    for qb in range(4):
        a(f"v_sub_f32 v{MB+4*qb}, 0, v{MB+4*qb}")
        for i in range(1, 4): a(f"v_mov_b32 v{MB+4*qb+i}, v{MB+4*qb}")
    for i in range(144): a(f"v_accvgpr_write_b32 a{i}, 0")
    a(f"s_mov_b32 s{sKOFF}, 0")
    for op in at.first_dmas(): issue(op)
    a("s_waitcnt vmcnt(16)\ns_barrier")
    at.body(8)
    a("s_waitcnt vmcnt(0)\ns_barrier")
    for op in wpre: issue(op)
    epilogue(a, False)
    a(f"s_branch {cont}")
```

```python
from common import *
from front import *
from attn import strictest

S_OUT = S_O
vB0, vX0, vC = 6, 8, 9
vAS, vAK = (3, 4), (5, 15)
ACC, AF, XF, GA, C1, SBv, GBv, WP, T = 16, 48, 80, 112, 128, 144, 160, 176, 192
SENT, BR = 216, 0
sHO = 67
LDS_DN, LDS_RED = 4*TILE, 4*TILE + 32768

def const_ops():
    ops = []
    for p in range(4):
        ops.append((f"s_add_u32 m0, s{sT0}, {p*PIECE}", f"buffer_load_dwordx4 v14, {S4(S_WG)}, s{sT2} offen lds", f"s_add_u32 s{sT2}, s{sT2}, 16384", "C"))
    for e in range(2):
        ops.append((f"s_add_u32 m0, s{sT0}, {4*PIECE + 1024*e}", f"buffer_load_dwordx4 v15, {S4(S_L)}, s{sT1} offen sc1 lds", f"s_add_u32 s{sT1}, s{sT1}, 16384", "C"))
    ops.append((f"s_add_u32 m0, s{sT0}, {4*PIECE + 2048}", f"buffer_load_dword v{vL4}, {S4(S_WU)}, 0 offen lds", None, "C"))
    return ops

vL4 = 253
def const_setup(a):
    a(f"v_lshrrev_b32 v15, 3, v{vLANE}\nv_and_b32 v14, 7, v{vLANE}\nv_lshlrev_b32 v14, 4, v14\nv_lshl_add_u32 v14, v15, 11, v14")
    a(f"v_lshlrev_b32 v15, 12, v{vG}\nv_lshl_add_u32 v15, v{vQ}, 4, v15")
    a(f"s_lshl_b32 s{sT0}, s{sNT}, 7\ns_lshl_b32 s{sT1}, s{sG}, 16\ns_add_u32 s{sT1}, s{sT1}, s{sT0}")
    a.srd(S_WG, PTR["x"], 65536 - 1920, f"s{sT1}")
    a.srd(S_WU, PTR["wr"], 128, f"s{sT0}")
    a(f"s_lshl_b32 s{sT1}, s{sNT}, 8\ns_add_u32 s{sT1}, s{sT1}, {WS_MODP}\ns_mul_i32 s{sT0}, s{sWAVE}, {CSTW}\ns_add_u32 s{sT0}, s{sT0}, {LDS_CST}\ns_mov_b32 s{sT2}, 0")

def setup_w(a):
    a(f"""
    v_lshlrev_b32 v14, 4, v{vG}
    v_lshl_add_u32 v14, v10, 2, v14
    v_lshlrev_b32 v14, 11, v14
    v_lshl_add_u32 v{vWOFF}, v{vQ}, 4, v14
    s_mov_b32 s{sWOFF}, 0
    s_lshr_b32 s{sT0}, s{sNT}, 1
    s_lshl_b32 s{sT0}, s{sT0}, 8
    s_lshl_b32 s{sT1}, s{sKH}, 22
    s_add_u32 s{sT0}, s{sT0}, s{sT1}
    """)
    a.srd(S_W, PTR["wo"], (4 << 20) - 1792, f"s{sT0}")

class OProj:
    def __init__(self, a): self.a, self.vm, self.db, self.body = a, VM(), 3, 0
    def dma(self, c, p):
        base = sMW if (c // 4) % 2 == self.body % 2 else sMW2
        return (f"s_add_u32 m0, s{base}, {(c % 4)*TILE + p*1024 + (p >> 1)*64 + (p & 1)*8}", f"buffer_load_dwordx4 v{vWOFF}, {S4(S_W)}, s{sWOFF} offen {FL[OPT['wf']]} lds",
                f"s_add_u32 s{sWOFF}, s{sWOFF}, {2048 if p < 3 else 61*2048}", ("W", c))
    def bfrag(self, c, qb, ks): return R("a", BR + 16*(c % 4) + (64 if c >= 28 else 0) + 8*qb + 4*ks)
    def bload(self, c, i):
        qb, ks = i // 2, i % 2
        return (None, f"buffer_load_dwordx4 {self.bfrag(c, qb, ks)}, v{vB0+qb}, {S4(S_B)}, s{sBOFF} offen offset:{ks*1024} sc1",
                f"s_add_u32 s{sBOFF}, s{sBOFF}, {(1 << 19) - 2048 if c % 2 else 2048}" if i == 3 else None, ("B", c))
    def acc(self, s, j, qb): return R("v", (SENT if s < 2 else ACC) + 16*qb + 4*(2*(s % 2) + j))
    def issue(self, op, a=None):
        a = a or self.a
        if op[0]: a(op[0]); a("s_nop 0")
        a(op[1]); self.vm.add(op[3])
        if op[2]: a(op[2])
    def areads(self, c, s, buf):
        base = (vAS if s < 2 else vAK)[0 if c // 4 == self.body else 1]
        return [f"ds_read_b64_tr_b16 {R('v', AF + 16*buf + 8*j + 4*ks + 2*jj, 2)}, v{base} offset:{(c % 4)*TILE + (2*ks + jj)*256 + (s % 2)*64 + j*8}"
                for j in range(2) for ks in range(2) for jj in range(2)]
    def expand1(self):
        a = self.a
        a(f"""
        s_mul_i32 s{sT0}, s{sWAVE}, {CSTW}
        s_add_u32 s{sT0}, s{sT0}, {LDS_CST}
        v_lshl_add_u32 v21, v{vG}, 4, s{sT0}
        v_lshrrev_b32 v20, 3, v{vQ}
        v_mul_u32_u24 v20, {PIECE - 1024}, v20
        v_lshl_add_u32 v20, v{vQ}, 7, v20
        v_add_u32 v20, v20, v21
        """)
        a(f"""
        v_add_u32 v22, s{sT0}, v{vL16}
        ds_read_b128 v[24:27], v22 offset:{4*PIECE}
        ds_read_b128 v[28:31], v22 offset:{4*PIECE + 1024}
        """)
        rd = [(XF + 16*qb + 8*h, 20, 2*qb*PIECE + h*64) for qb in range(2) for h in range(2)] + [(WP + 8*h, 21, 4*PIECE + 2048 + h*64) for h in range(2)]
        for d, v, off in rd: a(f"ds_read_b128 {R('v', d + 4)}, v{v} offset:{off}")
        a(f"v_cmp_eq_u32 vcc, 2, v{vG}\nv_lshl_add_u32 v21, v{vG}, 5, s{sT0}\nv_mov_b32 v33, 0\nv_cndmask_b32 v32, 0, 1.0, vcc\ns_waitcnt lgkmcnt(6)")
        for j in (24, 26):
            a(pk("add", j, j, j + 4)); rnd(a, j, j + 1); a(pk("add", j, j, 32, mods="op_sel_hi:[1,0]")); rnd(a, j, j + 1)
        a(f"ds_write_b128 v22, v[24:27] offset:{4*PIECE}\ns_waitcnt lgkmcnt(0)")
        for j, dst in enumerate((GA, SBv, C1, GBv)):
            if j == 3: a("s_waitcnt lgkmcnt(8)")
            for nb in range(4): a(f"ds_read_b128 {R('v', dst + 4*nb)}, v21 offset:{4*PIECE + j*256 + (nb // 2)*128 + (nb % 2)*16}")
        for d, v, off in rd:
            for i in range(4): unpack(a, d + 2*i, d + 2*i + 1, d + 4 + i)
    def expand2(self):
        a = self.a
        a("s_waitcnt lgkmcnt(0)")
        for i in range(0, 16, 2):
            a(pk("mul", T + 2, SBv + i, WP + i) if i == 0 else pk("fma", T + 2, SBv + i, WP + i, T + 2))
            a(pk("mul", WP + i, WP + i, C1 + i))
            if i == 2: a(pk("add", T + 4, WP, WP + 2))
            elif i > 2: a(pk("add", T + 4, T + 4, WP + i))
        a(f"v_and_b32 v{T}, 1, v0\nv_cmp_eq_u32 vcc, 1, v{T}\nv_add_f32 v{T+2}, v{T+2}, v{T+3}\nv_add_f32 v{T+4}, v{T+4}, v{T+5}\nv_cndmask_b32 v14, v{T+4}, v{T+2}, vcc")
        swap_red(a, [14], [T])
    def touch(self):
        return f"buffer_load_dword v248, v{vTO}, {S4(S_W)}, s{sKOFF} offen"
    def send(self):
        out = [f"s_xor_b32 s{sT0}, s{sHO}, 32768", f"s_lshl_b32 s{sT1}, s{sWAVE}, 12", f"s_add_u32 s{sT0}, s{sT0}, s{sT1}", f"s_add_u32 s{sT2}, s{sHO}, s{sT1}"]
        for n in (0, 2, 1, 3):
            for i in range(4): out.append(f"v_cvt_pk_bf16_f32 v{T + 4*n + i}, v{SENT + 8*n + 2*i}, v{SENT + 8*n + 2*i + 1}")
            out.append(f"buffer_store_dwordx4 {R('v', T + 4*n)}, v{vL16}, {S4(S_L)}, s{sT0} offen offset:{HO_EX + n*1024} sc1")
        return out
    def main(self, st, exq):
        real = self.a
        sk, barp, RG, VG = OPT["skew"], OPT["barp"], OPT["rg"], OPT["vg"]
        order = [(c, s) for c in range(32 - sk) for s in range(4)]
        order += [(c, s) for c in range(32 - sk, 32) for s in range(2)] + [(c, s) for c in range(32 - sk, 32) for s in range(2, 4)]
        bq = [(c, i) for c in range(self.db, 32) for i in range(4)]
        visible, waitedB, sendq, bodies = set(range(barp)), {0}, None, []
        wq, freed = None, set()
        for n, (c, s) in enumerate(order):
            if n % 16 == 0 and n <= 96: a = Asm(); bodies.append(a); self.body = n // 16
            buf = n % 2
            ms = [mf(self.acc(s, j, qb), R("v", AF + 16*buf + (0 if OPT["halftr"] & 1 else 8*j) + 4*ks), self.bfrag(c - (j if OPT["halftr"] & 1 and c else 0), qb, ks), "0" if c == 0 and k == 0 else None)
                  for j in range(2) for qb in ((0, 1) if j == 0 or not OPT['osn'] & 2 else (1, 0)) for k, ks in enumerate((0, 1) if qb == 0 or not OPT['osn'] & 1 else (1, 0))]
            gaps = {g: [] for g in range(8)}
            nxt = order[n + 1] if n + 1 < len(order) else None
            wn = n + 1 + 4*(7 - barp)
            if n == 96: wq = [(i // 4, i % 4) for i in range(wn, 128)]
            if OPT["otch"] and n % 16 == 1 and n < 96:
                gaps[0] += [self.touch()]; gaps[1].append(f"s_add_u32 s{sKOFF}, s{sKOFF}, {256*2048}"); self.vm.add("T")
            for g in range(8):
                needfree = n >= 96 and wq and wq[0][0] - 8 not in freed and all((wq[0][0] - 8, ss) in order[:n] for ss in range(4))
                if g == RG[0] and nxt and (nxt[0] not in visible or needfree):
                    lb = max(i for i, t in enumerate(self.vm.ops) if t[0] == "B" and t[1] in waitedB)
                    if n < 96: newv = list(range(nxt[0], nxt[0] + barp))
                    else: newv = [nxt[0]]
                    lw = max(i for i, t in enumerate(self.vm.ops) if t[0] == "W" and t[1] in newv)
                    assert n < 96 or not any(w[0] in newv for w in wq)
                    if any(OPT["nw"] <= cc < 8 for cc in newv): lw = max(lw, self.wlast + 0.5)
                    if lw > lb: gaps[g].append(f"s_waitcnt vmcnt({min(63, len(self.vm.ops) - 1 - int(lw))})")
                    gaps[g].append("s_barrier")
                    if n >= 96:
                        newv += [cc for cc in range(32) if not any(w[0] == cc for w in wq) and max(i for i, t in enumerate(self.vm.ops) if t == ("W", cc)) <= max(lw, lb)]
                    visible |= set(newv)
                    freed |= {cc for cc in range(32) if all((cc, ss) in order[:n] for ss in range(4))}
                if g == 3 and n > 0: gaps[g].append(f"s_waitcnt lgkmcnt({2*len([x for x in RG if x < 3]) if nxt else 0})")
                if g in RG and nxt:
                    k = RG.index(g)
                    if not (OPT["halftr"] & 1 and k >= 2): gaps[g] += self.areads(nxt[0], nxt[1], 1 - buf)[2*k:2*k + 2]
                if g in VG or (n >= 96 and g == 0 and OPT["t3"]):
                    op, first = None, g != VG[1]
                    if first and bq: op = self.bload(*bq.pop(0))
                    elif not first and n < 96 and wn >= 32: op = self.dma(wn // 4, wn % 4)
                    elif n >= 96 and g > 0 and wq and wq[0][0] - 8 in freed: op = self.dma(*wq.pop(0))
                    elif n >= 96 and bq: op = self.bload(*bq.pop(0))
                    elif n >= OPT["exn"] and exq and sendq == []: op = (None, exq.pop(0), None, "E")
                    if op:
                        if op[0]: gaps[g - 1].insert(0, op[0])
                        gaps[g].append(op[1]); self.vm.add(op[3])
                        if op[2]: gaps[g + 1].insert(0, op[2])
                if sendq and g not in RG and not any(x.startswith("buffer") for x in gaps[g]):
                    while sendq and len([x for x in gaps[g] if x.startswith("v_")]) < OPT["sv"]:
                        x = sendq[0]
                        if x.startswith("buffer") and any(y.startswith("v_") for y in gaps[g]): break
                        gaps[g].append(sendq.pop(0))
                        if x.startswith("buffer"):
                            self.vm.add("S")
                            if OPT["sv"] == 2: break
            if nxt and nxt[0] not in waitedB:
                assert not any(b[0] == nxt[0] for b in bq)
                gaps[7].insert(0, f"s_waitcnt vmcnt({self.vm.count(('B', nxt[0]))}) lgkmcnt(4)"); waitedB.add(nxt[0])
            elif nxt: gaps[7].insert(0, "s_waitcnt lgkmcnt(4)")
            if n % 16 == 15 and n < 96:
                gaps[6] += [f"s_mov_b32 s{sT0}, s{sMW}"]
                gaps[7] += [f"v_swap_b32 v{vAS[0]}, v{vAS[1]}", f"v_swap_b32 v{vAK[0]}, v{vAK[1]}", f"s_mov_b32 s{sMW}, s{sMW2}", f"s_mov_b32 s{sMW2}, s{sT0}"]
            emit(a, ms, gaps)
            if n == 104 and OPT["ctch"] & 2: a("global_load_dword v252, v[250:251], off"); self.vm.add("T")
            if (c, s) == (31, 1): sendq = self.send()
        assert not bq and not wq
        a = real
        a.lines += bodies[0].lines
        l = a.label("oploop")
        a(f"s_mov_b32 s{sCNT}, 0\n{l}:")
        st.dyn(sCNT, 4)
        a.lines += strictest([b.lines for b in bodies[1:6]])
        a(f"s_add_u32 s{sCNT}, s{sCNT}, 1\ns_cmp_lt_u32 s{sCNT}, 5\ns_cbranch_scc1 {l}")
        st.dyn(sCNT, 4)
        a.lines += bodies[6].lines
        a("L_code_tail:")
        for x in sendq + exq: a(x)
        a("s_barrier")

def oproj(a, st):
    o = OProj(a)
    for c in range(OPT['nw']): o.vm.add(("W", c))
    f3 = f"buffer_load_dword v18, v19, {S4(S_L)}, s{sT3} offen sc1"
    a(f"""
    s_lshr_b32 s{sT2}, s{sG}, 1
    s_lshl_b32 s{sT2}, s{sT2}, {5+FS}
    s_lshl_b32 s{sT1}, s{sKH}, {4+FS}
    s_add_u32 s{sT2}, s{sT2}, s{sT1}
    s_add_u32 s{sT3}, s{sT2}, {WS_F3}
    v_lshlrev_b32 v19, {FS}, v{vQ}
    {f3}
    s_lshl_b32 s{sT0}, s{sG64}, {5+FS}
    s_lshl_b32 s{sT1}, s{sHEAD}, {FS}
    s_add_u32 s{sT0}, s{sT0}, s{sT1}
    s_add_u32 s{sT2}, s{sT0}, {WS_F3}
    v_mov_b32 v16, s{sNONCE}
    v_lshrrev_b32 v17, {5 if OPT["full"] else 0}, v{vLANE}
    v_lshlrev_b32 v17, 24, v17
    v_lshl_add_u32 v17, v{vLANE}, 2, v17
    s_lshl_b32 s{sT0}, s{sKH}, 7
    s_xor_b32 s{sT1}, s{sT0}, 128
    v_and_b32 v20, 3, v{vLANE}
    v_lshl_add_u32 v{vA}, v20, 3, v{vA}
    v_bfe_u32 v20, v{vLANE}, 2, 1
    v_mul_u32_u24 v20, 24, v20
    v_sub_u32 v{vA}, v{vA}, v20
    v_add_u32 v{vAK[1]}, s{sT0}, v{vA}
    v_add_u32 v{vAS[1]}, s{sT1}, v{vA}
    v_subrev_u32 v{vAS[0]}, {4*TILE}, v{vAS[1]}
    v_subrev_u32 v{vAK[0]}, {4*TILE}, v{vAK[1]}
    v_lshlrev_b32 v{vC}, 4, v{vG}
    v_lshl_add_u32 v{vX0}, v{vQ}, 11, v{vC}
    s_mov_b32 s{sBOFF}, 0
    s_lshl_b32 s{sHO}, s{sU}, 15
    s_add_u32 s{sHO}, s{sHO}, {WS_HO}
    s_lshl_b32 s{sT1}, s{sG}, 13
    s_lshl_b32 s{sT0}, s{sKH}, 23
    s_add_u32 s{sT1}, s{sT1}, s{sT0}
    s_add_u32 s{sT1}, s{sT1}, {WS_O}
    """)
    assert vAS[1] == vA
    a.lines.append(f"    s_nop 0")
    a.srd(S_B, PTR["ws"], (15 << 19) + 8192, f"s{sT1}")
    a(f"s_lshl_b32 s{sT0}, s{sNT}, 7\ns_lshl_b32 s{sT1}, s{sG}, 16\ns_add_u32 s{sT1}, s{sT1}, s{sT0}")
    a.srd(S_OUT, PTR["out"], 65536 - 1920, f"s{sT1}")
    a(f"s_waitcnt vmcnt(1)\nbuffer_store_dword v16, v17, {S4(S_L)}, s{sT2} offen sc1")
    st()
    bl = Asm()
    for c in range(OPT["nw"], 8):
        for p in range(4): o.vm.add(("W", c))
    for c in range(o.db):
        for i in range(4): o.issue(o.bload(c, i), bl)
    o.wlast = len(o.vm.ops) - 1
    skip, have = a.label("skipB"), a.label("haveB")
    a(f"s_waitcnt vmcnt(1)\nv_cmp_ne_u32 vcc, s{sNONCE}, v18\ns_mov_b32 s{sCNT}, 0\ns_cbranch_vccnz {skip}")
    a.lines += bl.lines
    a(f"s_mov_b32 s{sCNT}, 1\n{skip}:")
    o.expand1()
    nlate = 0
    for c in range(OPT["nw"], 8):
        for p in range(4):
            op = o.dma(c, p); a(op[0]); a("s_nop 0"); a(op[1]); a(op[2]); nlate += 1
    if OPT["otch"]:
        a(f"s_lshl_b32 s{sKOFF}, s{sG64}, 14\ns_add_u32 s{sKOFF}, s{sKOFF}, {512*2048}")
        for i in range(OPT["otch"]):
            a(o.touch().replace("v248", f"v{253 + i}")); a(f"s_add_u32 s{sKOFF}, s{sKOFF}, {256*2048}"); nlate += 1
    o.expand2()
    if OPT["ctch"] & 2: code_touch(a, "L_code_tail", "L_code_hi", 250, None)
    a("s_barrier")
    for s in o.areads(0, 0, 0): a(s)
    a(f"s_cmp_eq_u32 s{sCNT}, 1\ns_waitcnt vmcnt({8 + nlate})\ns_cbranch_scc1 {have}")
    poll(a, [f3], bad_tags([18], None), "f3")
    a.lines += bl.lines
    a(f"s_waitcnt vmcnt(8)\n{have}:\ns_waitcnt lgkmcnt(0)")
    st()
    t, Q = T, T + 24
    exl = [f"buffer_load_dwordx4 {R('v', Q + 4*n)}, v{vL16}, {S4(S_L)}, s{sT2} offen offset:{HO_EX + n*1024} sc1" for n in range(4)]
    o.main(st, list(exl))
    st()
    def gu_writes():
        for i in range(16):
            if i == 12: a("s_waitcnt lgkmcnt(8)")
            a(f"ds_write_b128 v2, {R('a', MW + 12*(i // 2) + 4*(i % 2))} offset:{i*1024}")
    a(f"v_lshl_add_u32 v2, v10, 14, v{vL16}")
    poll(a, exl, bad_sentinel(list(range(Q, Q + 16)), t + 22), "ex", first="s_waitcnt vmcnt(0)")
    for i in range(16):
        unpack(a, t + 2*(i % 2), t + 2*(i % 2) + 1, Q + i); a(pk("add", ACC + 2*i, ACC + 2*i, t + 2*(i % 2)))
    st()
    for qb in range(2):
        for i in range(0, 16, 2): a(pk("fma", XF + 16*qb + i, ACC + 16*qb + i, GA + i, XF + 16*qb + i))
    S, D, M = t, t + 4, t + 8
    for i in range(0, 16, 2):
        for qb in range(2):
            x = XF + 16*qb + i
            if i == 2: a(pk("add", S + 2*qb, x - 2, x))
            elif i > 2: a(pk("add", S + 2*qb, S + 2*qb, x))
            a(pk("mul", D + 2*qb, x, WP + i) if i == 0 else pk("fma", D + 2*qb, x, WP + i, D + 2*qb))
    for r_ in (S, S + 2, D, D + 2): a(f"v_add_f32 v{r_}, v{r_}, v{r_+1}")
    swap_red(a, [S, S + 2, D, D + 2], [S + 1, S + 3, D + 1, D + 3])
    for qb in range(2): a(f"v_mul_f32 v{S+2*qb}, {f2u(-1/64)}, v{S+2*qb}")
    for i in range(0, 16, 2):
        for qb in range(2): a(pk("add", t + 12 + 2*qb, XF + 16*qb + i, S + 2*qb, mods="op_sel_hi:[1,0]"))
        for qb in range(2): a(pk("mul", M + 2*qb, t + 12 + 2*qb, t + 12 + 2*qb) if i == 0 else pk("fma", M + 2*qb, t + 12 + 2*qb, t + 12 + 2*qb, M + 2*qb))
    for r_ in (M, M + 2): a(f"v_add_f32 v{r_}, v{r_}, v{r_+1}")
    swap_red(a, [M, M + 2], [M + 1, M + 3])
    G = t + 16
    a(f"""
    v_and_b32 v{G+4}, 16, v0
    v_cmp_ne_u32 vcc, 0, v{G+4}
    v_lshrrev_b32 v{G+4}, 5, v{vLANE}
    v_lshl_add_u32 v{G+4}, v{G+4}, 24, v{vL16}
    v_cndmask_b32 v{G}, v{S}, v{S+2}, vcc
    v_cndmask_b32 v{G+1}, v{M}, v{M+2}, vcc
    v_cndmask_b32 v{G+2}, v{D}, v{D+2}, vcc
    v_mov_b32 v{G+3}, v14
    s_lshl_b32 s{sT0}, s{sWAVE}, 9
    s_add_u32 s{sT0}, s{sT0}, {HO_ST}
    s_add_u32 s{sT1}, s{sT0}, s{sHO}
    buffer_store_dwordx4 {R('v', G)}, v{G+4}, {S4(S_L)}, s{sT1} offen sc1
    s_and_b32 s{sT1}, s{sHO}, {0xffffffff ^ (15 << 15)}
    s_add_u32 s{sT0}, s{sT0}, s{sT1}
    s_add_u32 s{sT1}, s{sT0}, {4 << 15}
    s_add_u32 s{sT2}, s{sT0}, {8 << 15}
    s_add_u32 s{sT3}, s{sT0}, {12 << 15}
    v_lshlrev_b32 v{G+5}, 15, v{vG}
    v_lshl_add_u32 v{G+5}, v{vQ}, 4, v{G+5}
    v_lshlrev_b32 v3, 8, v{vG}
    v_lshl_add_u32 v3, v{vQ}, 3, v3
    v_lshl_add_u32 v3, v10, 14, v3
    """)
    a.lines.append("    s_nop 0    ; REBASE v255=0")
    d6 = st if OPT["diag"] == 6 else (lambda: None)
    d6()
    if OPT["guw"] == 0: gu_writes()
    stl = [f"buffer_load_dwordx4 {R('v', Q + 4*j)}, v{G+5}, {S4(S_L)}, s{sT0 + (j >> 1)} offen offset:{(j & 1)*256} sc1" for j in range(8)]
    d6()
    a("s_waitcnt vmcnt(0)")
    d6()
    for l in stl: a(l)
    if OPT["guw"] == 1: gu_writes()
    def gu_reads():
        a("s_waitcnt lgkmcnt(0)")
        n = 0
        for ks in range(8):
            for m in range(2):
                for jj in range(2):
                    if n >= 12 and n % 4 == 0: a("s_waitcnt lgkmcnt(8)")
                    a(f"ds_read_b64_tr_b16 {R('a', MW + 12*ks + 4*m + 2*jj, 2)}, v3 offset:{ks*2048 + m*1024 + jj*128}"); n += 1
    if OPT["guw"] == 0: gu_reads()
    d6()
    if OPT["diag"] == 6: a("s_waitcnt vmcnt(0)"); d6()
    poll(a, stl, bad_sentinel(list(range(Q, Q + 32)), t + 22), "st", first="s_waitcnt vmcnt(0)")
    st()
    Z = t
    for qb in range(2):
        for h in range(2):
            a(pk("add", Z + 4*qb + 2*h, Q + 4*qb + 2*h, Q + 8 + 4*qb + 2*h)); a(pk("add", t + 8 + 4*qb + 2*h, Q + 16 + 4*qb + 2*h, Q + 24 + 4*qb + 2*h))
    for i in range(0, 8, 2): a(pk("add", Z + i, Z + i, t + 8 + i))
    swap_red(a, [Z + i for i in range(7)], [t + 8 + i for i in range(7)])
    for qb in range(2): a(f"v_mul_f32 v{Z+4*qb}, {f2u(1/16)}, v{Z+4*qb}")
    for j in range(8):
        qb = j & 1
        a(f"v_sub_f32 v{t+10+qb}, v{Q+4*j}, v{Z+4*qb}")
        a(f"v_mul_f32 v{t+8+qb}, v{t+10+qb}, v{t+10+qb}" if j < 2 else f"v_fmac_f32 v{t+8+qb}, v{t+10+qb}, v{t+10+qb}")
    swap_red(a, [t + 8, t + 9], [t + 10, t + 11])
    a(f"v_mov_b32_dpp v{t+12}, v{Z+3} quad_perm:[0,0,2,2] row_mask:0xf bank_mask:0xf\nv_mov_b32_dpp v{t+13}, v{Z+3} quad_perm:[1,1,3,3] row_mask:0xf bank_mask:0xf")
    for qb in range(2): a(f"v_fmac_f32 v{Z+4*qb+1}, {f2u(64.0)}, v{t+8+qb}\nv_mul_f32 v{Z+4*qb+1}, {f2u(1/1024)}, v{Z+4*qb+1}")
    for qb in range(2): rnd(a, Z + 4*qb, Z + 4*qb + 1)
    a(f"v_add_f32 v{Z+1}, {f2u(1e-5)}, v{Z+1}\nv_add_f32 v{Z+5}, {f2u(1e-5)}, v{Z+5}")
    rnd(a, Z + 1, Z + 5)
    a(f"v_sqrt_f32 v{Z+1}, v{Z+1}\nv_sqrt_f32 v{Z+5}, v{Z+5}\ns_nop 0")
    rnd(a, Z + 1, Z + 5)
    a(f"v_rcp_f32 v{Z+1}, v{Z+1}\nv_rcp_f32 v{Z+5}, v{Z+5}")
    K0 = t + 14
    for qb in range(2): a(f"v_fmac_f32 v{Z+4*qb+2}, v{Z+4*qb}, v{t+12}")
    for qb in range(2): a(f"v_fma_f32 v{Z+4*qb+2}, v{Z+4*qb+2}, v{Z+4*qb+1}, v{t+13}")
    rnd(a, K0, K0 + 1, Z + 2, Z + 6)
    a(f"s_lshl_b32 s{sT0}, s{sG}, 5\ns_sub_u32 s{sT0}, 2047, s{sT0}\nv_sub_u32 v{t+10}, s{sT0}, v{vQ}\nv_subrev_u32 v{t+11}, 16, v{t+10}")
    for qb in range(2):
        a(f"v_ashrrev_i32 v{t+8}, 31, v{K0+qb}\nv_or_b32 v{t+8}, 0x80000000, v{t+8}\nv_xor_b32 v{K0+qb}, v{K0+qb}, v{t+8}\nv_and_b32 v{K0+qb}, 0xffff0000, v{K0+qb}\nv_or_b32 v{K0+qb}, v{K0+qb}, v{t+10+qb}")
    m1, m2 = t + 16, t + 18
    a(f"v_max_u32 v{m1}, v{K0}, v{K0+1}\nv_min_u32 v{m2}, v{K0}, v{K0+1}\nv_mov_b32 v{m1+1}, s{sNONCE}\nv_mov_b32 v{m2+1}, s{sNONCE}")
    top2_row(a, m1, m2, t + 8)
    a(f"s_lshl_b32 s{sT0}, s{sG}, {FS}\ns_add_u32 s{sT0}, s{sT0}, {WS_KEY}\nv_lshrrev_b32 v{t+8}, {3 if OPT['full'] else 0}, v{vLANE}\nv_or_b32 v{t+8}, s{sNT}, v{t+8}\nv_lshl_add_u32 v{t+8}, v{t+8}, 24, v{vL16}")
    a(f"buffer_store_dwordx4 {R('v', m1)}, v{t+8}, {S4(S_L)}, s{sT0} offen sc1")
    CO = t + 20
    a(f"v_mov_b32 v{t+8}, 0x7f000000\nv_add_u32 v{t+10}, 128, v{vC}")
    for qb in range(2):
        a(f"v_cmp_eq_u32 vcc, v{K0+qb}, v{m1}\nv_cmp_eq_u32 s[50:51], v{K0+qb}, v{m2}\ns_nop 0")
        a(f"v_cndmask_b32 v{CO+qb}, v{t+8}, v{vC}, vcc\nv_cndmask_b32 v{CO+qb}, v{CO+qb}, v{t+10}, s[50:51]")
    for qb in range(2): a(f"v_mul_f32 v{Z+4*qb}, v{Z+4*qb}, v{Z+4*qb+1}")
    H, HP, OP = ACC, t + 24, t + 40
    for qb in range(2):
        for i in range(0, 16, 2): a(pk("fma", H + 16*qb + i, XF + 16*qb + i, Z + 4*qb, Z + 4*qb, mods="op_sel:[0,1,0] op_sel_hi:[1,1,0]"))
        for i in range(0, 16, 2): a(pk("fma", H + 16*qb + i, H + 16*qb + i, C1 + i, SBv + i))
        for i in range(0, 16, 2): a(f"v_cvt_pk_bf16_f32 v{HP + 8*qb + i//2}, v{H + 16*qb + i}, v{H + 16*qb + i + 1}")
    a(f"s_lshl_b32 s{sT0}, s{sWAVE}, 8\ns_add_u32 s{sT0}, s{sT0}, s{sHO}\ns_add_u32 s{sT3}, s{sT0}, {HO_CH}")
    for n in range(4): a(f"buffer_store_dwordx4 {R('v', HP + 4*n)}, v{CO + n//2}, {S4(S_L)}, s{sT3} offen offset:{(n % 2)*64} sc1")
    K = 144
    keys = f"buffer_load_dwordx4 {R('v', K)}, v14, {S4(S_L)}, s{sT1} offen sc1"
    a(f"s_lshl_b32 s{sT1}, s{sWAVE}, {4+FS}\ns_add_u32 s{sT1}, s{sT1}, {WS_KEY}\nv_lshlrev_b32 v14, {FS}, v{vQ}\ns_mov_b32 s{sMW}, s{sT3}\ns_mov_b32 s{sMW2}, 32768")
    for qb in range(2):
        for i in range(0, 16, 2): a(pk("fma", H + 16*qb + i, H + 16*qb + i, GBv + i, XF + 16*qb + i))
        for i in range(0, 16, 2): a(f"v_cvt_pk_bf16_f32 v{OP + 8*qb + i//2}, v{H + 16*qb + i}, v{H + 16*qb + i + 1}")
    outs = [f"buffer_store_dwordx4 {R('v', OP + 4*n)}, v{CO + n//2}, {S4(S_OUT)}, {'s%d' % sMW2 if n//2 else 0} offen offset:{(n % 2)*64} {OPT['ofl']*'sc1'}" for n in range(4)]
    base = [f"buffer_store_dwordx4 {R('v', OP + 4*n)}, v{CO + n//2}, {S4(S_L)}, s{sMW} offen offset:{HO_CB - HO_CH + (n % 2)*64} sc1" for n in range(4)]
    return keys, outs, base, ([gu_writes] if OPT['guw'] == 2 else []) + ([gu_reads] if OPT['guw'] else [])

def moe(a, st, keys, outs, base, later):
    BF, K = 112, 144
    sK1, sK2 = 63, 64
    end, go, only = a.label("end"), a.label("dofin"), a.label("onlyout")
    for s in base: a(s)
    st()
    for f in later: f()
    a("s_waitcnt lgkmcnt(0)")
    for p in range(8): a(f"ds_write_b128 v2, {R('a', MW + 12*p + 8)} offset:{p*1024}")
    a(keys)
    a(f"v_lshrrev_b32 v3, 2, v{vLANE}\nv_lshlrev_b32 v3, 9, v3\nv_and_b32 v4, 3, v{vLANE}\nv_lshl_add_u32 v3, v4, 3, v3\nv_lshl_add_u32 v3, v10, 14, v3\ns_waitcnt lgkmcnt(0)")
    for nb in range(16):
        if nb == 12: a("s_waitcnt lgkmcnt(8)")
        a(f"ds_read_b64_tr_b16 {R('a', MW + 12*(nb // 2) + 8 + 2*(nb % 2), 2)}, v3 offset:{nb*32}")
    poll(a, [keys], bad_tags([K + 1, K + 3], K + 4), "keys", first="s_waitcnt vmcnt(0)")
    st()
    top2_row(a, K, K + 2, K + 4)
    a(f"v_lshlrev_b32 v2, 4, v10\nv_add_u32 v2, {LDS_FLAG}, v2\nv_add_u32 v3, {LDS_FLAG}, v{vC}\nds_write_b128 v2, {R('v', K)}\ns_waitcnt lgkmcnt(0)\ns_barrier\nds_read_b128 {R('v', K)}, v3\ns_waitcnt lgkmcnt(0)")
    a(f"v_readlane_b32 s{sK1}, v{K}, 0\nv_readlane_b32 s{sK2}, v{K+2}, 0")
    for ln in (16, 32, 48):
        a(f"v_readlane_b32 s{sT0}, v{K}, {ln}\nv_readlane_b32 s{sT1}, v{K+2}, {ln}\ns_nop 3")
        a(f"s_min_u32 s{sT2}, s{sK1}, s{sT0}\ns_max_u32 s{sK2}, s{sK2}, s{sT1}\ns_max_u32 s{sK1}, s{sK1}, s{sT0}\ns_max_u32 s{sK2}, s{sK2}, s{sT2}")
    K0, CO = T + 14, T + 20
    def mask():
        a("v_mov_b32 v4, 0x7f000000")
        for qb in range(2):
            a(f"v_cmp_eq_u32 vcc, s{sK1}, v{K0+qb}\nv_cmp_eq_u32 s[50:51], s{sK2}, v{K0+qb}\ns_or_b64 vcc, vcc, s[50:51]\ns_nop 0\nv_cndmask_b32 v{CO+qb}, v{vX0}, v4, vcc")
    nomoe = a.label("nomoe")
    a(f"s_cmp_ge_u32 s2, 224\ns_cbranch_scc1 {nomoe}")
    sC1, sC2 = 65, 66
    a(f"s_xor_b32 s{sT2}, s{sK1}, s{sK2}\ns_and_b32 s{sT2}, s{sT2}, 0x7e0\ns_cselect_b32 s{sT2}, 0, 128")
    for k, c in ((sK1, sC1), (sK2, sC2)):
        a(f"s_not_b32 s{sT0}, s{k}\ns_bfe_u32 s{sT1}, s{sT0}, 0x40007\ns_lshl_b32 s{sT1}, s{sT1}, 19\ns_bfe_u32 s{sT0}, s{sT0}, 0x20005\ns_lshl_b32 s{sT0}, s{sT0}, 8\ns_add_u32 s{c}, s{sT0}, s{sT1}")
    a(f"""
    s_add_u32 s{sC2}, s{sC2}, s{sT2}
    v_and_b32 v5, 1, v{vLANE}
    v_cmp_eq_u32 vcc, 1, v5
    v_mov_b32 v6, s{sC1}
    v_mov_b32 v7, s{sC2}
    v_cndmask_b32 v6, v6, v7, vcc
    v_add_u32 v6, v6, v{vC}
    s_lshl_b32 s{sT0}, s{sWAVE}, 17
    s_add_u32 s{sT0}, s{sT0}, {WS_HO + HO_CH}
    s_add_u32 s{sT1}, s{sT0}, {1 << 15}
    s_add_u32 s{sT2}, s{sT0}, {2 << 15}
    s_add_u32 s{sT3}, s{sT0}, {3 << 15}
    """)
    rows = [f"buffer_load_dwordx4 {R('v', BF + 4*ks)}, v6, {S4(S_L)}, s{sT0 + ks//2} offen offset:{(ks % 2)*64} sc1" for ks in range(8)]
    for l in rows: a(l)
    mask()
    poll(a, rows, bad_sentinel(list(range(BF, BF + 32)), K + 4), "rows", first="s_waitcnt vmcnt(0)")
    st()
    Y = 152
    a("s_waitcnt lgkmcnt(0)")
    for m in range(2):
        for ks in range(8):
            a(mf(R("v", Y + 4*m), R("a", MW + 12*ks + 4*m), R("v", BF + 4*ks), "0" if ks == 0 else None))
    a(f"v_lshl_add_u32 v2, v10, 11, v{vL16}\nv_add_u32 v2, {LDS_RED}, v2\nv_add_u32 v3, {LDS_RED}, v{vL16}\nv_bfe_u32 v7, v{vLANE}, 1, 3\ns_nop 3")
    a(f"ds_write_b128 v2, {R('v', Y)}\nds_write_b128 v2, {R('v', Y+4)} offset:1024\ns_waitcnt lgkmcnt(0)\ns_barrier")
    P = 160
    for w in range(4): a(f"ds_read_b128 {R('v', P+8*w)}, v3 offset:{w*2048}\nds_read_b128 {R('v', P+4+8*w)}, v3 offset:{w*2048+1024}")
    a(f"""
    v_lshlrev_b32 v5, 12, v5
    v_lshl_add_u32 v5, v7, 6, v5
    v_add_u32 v5, v5, v{vC}
    s_lshl_b32 s{sT0}, s{sWAVE}, 10
    s_add_u32 s{sT0}, s{sT0}, s{sHO}
    s_add_u32 s{sT0}, s{sT0}, {HO_YP}
    """)
    for j in range(8): a(f"v_cmp_eq_u32 s[{8+2*j}:{9+2*j}], {j}, v7")
    a("s_waitcnt lgkmcnt(0)")
    for i in range(0, 8, 2): a(pk("add", P + i, P + i, P + 8 + i)); a(pk("add", P + 16 + i, P + 16 + i, P + 24 + i))
    for i in range(0, 8, 2): a(pk("add", P + i, P + i, P + 16 + i))
    for i in range(0, 8, 2): rnd(a, P + i, P + i + 1)
    E = P + 8
    for i in range(4): a(f"v_mul_f32 v{E+i}, {f2u(-LOG2E)}, v{P+i}")
    for i in range(4): a(f"v_exp_f32 v{E+i}, v{E+i}")
    for i in range(4): a(f"v_add_f32 v{E+i}, 1.0, v{E+i}")
    for i in range(4): a(f"v_rcp_f32 v{E+i}, v{E+i}")
    for i in range(4): a(f"v_mul_f32 v{P+i}, v{P+i}, v{E+i}")
    for i in (0, 2): rnd(a, P + i, P + i + 1)
    for i in (0, 2): a(pk("mul", P + i, P + i, P + 4 + i))
    a(f"v_cvt_pk_bf16_f32 v{E}, v{P}, v{P+1}\nv_cvt_pk_bf16_f32 v{E+1}, v{P+2}, v{P+3}")
    for j in range(8): a(f"v_cndmask_b32 v{BF+2*j}, 0, v{E}, s[{8+2*j}:{9+2*j}]\nv_cndmask_b32 v{BF+2*j+1}, 0, v{E+1}, s[{8+2*j}:{9+2*j}]")
    for h in range(2):
        for j in range(8):
            a(f"v_mfma_f32_16x16x16_bf16 {R('v', Y+4*h)}, {R('a', MW + 12*((8*h + j) // 2) + 8 + 2*(j % 2), 2)}, {R('v', BF + 2*j, 2)}, {'0' if j == 0 else R('v', Y+4*h)}")
    a(f"buffer_store_dwordx4 {R('v', Y)}, v5, {S4(S_L)}, s{sT0} offen sc1\ns_nop 6\nbuffer_store_dwordx4 {R('v', Y+4)}, v5, {S4(S_L)}, s{sT0} offen offset:512 sc1")
    st()
    a(f"s_cmp_lt_u32 s2, 64\ns_cbranch_scc1 {go}\ns_branch {only}\n{nomoe}:")
    a(f"s_xor_b32 s{sT0}, s2, 255\nv_or_b32 v5, s{sT0}, v0\nv_min_u32 v5, 64, v5\nv_lshlrev_b32 v5, 24, v5\nv_mov_b32 v6, s{sNONCE}\ns_mov_b32 s{sT0}, {WS_NONCE}")
    a(f"buffer_store_dword v6, v5, {S4(S_L)}, s{sT0} offen sc1")
    mask()
    a(f"{only}:")
    for s in outs: a(s)
    a(f"s_branch {end}\n{go}:")
    a(f"""
    s_cmp_lt_u32 s2, 32
    s_cselect_b32 s{sK1}, s{sK1}, s{sK2}
    s_cselect_b32 s{sC1}, s{sC1}, s{sC2}
    s_bfe_u32 s{sT0}, s2, 0x40001
    s_lshl_b32 s{sT0}, s{sT0}, 15
    s_add_u32 s{sC1}, s{sC1}, s{sT0}
    s_and_b32 s{sT0}, s2, 1
    s_lshl_b32 s{sT0}, s{sT0}, 6
    s_add_u32 s{sC1}, s{sC1}, s{sT0}
    s_add_u32 s{sC1}, s{sC1}, {WS_HO + HO_CB}
    s_and_b32 s{sT1}, s2, 31
    s_lshl_b32 s{sT1}, s{sT1}, 6
    s_lshl_b32 s{sC2}, s{sT1}, 1
    s_add_u32 s{sC2}, s{sC2}, {WS_MODP + 12288}
    s_add_u32 s{sT2}, s{sC2}, 16384
    s_not_b32 s{sT0}, s{sK1}
    s_and_b32 s{sT0}, s{sT0}, 2047
    s_lshl_b32 s{sT0}, s{sT0}, 11
    s_add_u32 s{sT0}, s{sT0}, s{sT1}
    v_and_b32 v2, 7, v0
    v_lshlrev_b32 v3, 3, v2
    v_lshlrev_b32 v4, 4, v2
    v_lshrrev_b32 v5, 3, v0
    v_lshl_add_u32 v5, v5, 15, v4
    """)
    a.srd(S_WG, PTR["out"], 4 << 20)
    a(f"s_mov_b32 s{sK2}, s{sT0}\ns_lshl_b32 s8, s2, 7\ns_add_u32 s8, s8, {WS_HO + HO_YP}")
    for i in range(1, 7): a(f"s_add_u32 s{8+i}, s8, {i << 20}")
    a(f"""
    s_and_b32 s{sT0}, s{sK1}, 0xffff0000
    s_ashr_i32 s{sT1}, s{sT0}, 31
    s_not_b32 s{sT1}, s{sT1}
    s_or_b32 s{sT1}, s{sT1}, 0x80000000
    s_xor_b32 s{sT0}, s{sT0}, s{sT1}
    s_and_b32 s{sT0}, s{sT0}, 0xffff0000
    v_mov_b32 v60, s{sT0}
    v_mul_f32 v60, {f2u(-LOG2E)}, v60
    v_exp_f32 v60, v60
    buffer_load_dwordx4 v[64:67], v4, {S4(S_L)}, s{sC2} offen sc1
    buffer_load_dwordx4 v[68:71], v4, {S4(S_L)}, s{sT2} offen sc1
    v_add_f32 v60, 1.0, v60
    v_rcp_f32 v60, v60
    s_nop 0
    v_cvt_pk_bf16_f32 v60, v60, v60
    v_lshlrev_b32 v60, 16, v60
    s_waitcnt vmcnt(0)
    """)
    poll(a, [f"buffer_load_dwordx4 {R('v', 16 + 4*i)}, v5, {S4(S_L)}, s{8+i} offen sc1" for i in range(7)] + [f"buffer_load_dwordx2 v[44:45], v3, {S4(S_L)}, s{sC1} offen sc1"],
         bad_sentinel(list(range(16, 46)), 50), "y")
    st()
    for s in outs: a(s)
    for i in range(1, 7):
        a(pk("add", 16, 16, 16 + 4*i)); a(pk("add", 18, 18, 18 + 4*i))
    red8(a, [16, 17, 18, 19], [20, 21, 22, 23])
    a(f"v_lshl_add_u32 v6, v10, 7, v4\nds_write_b128 v6, v[16:19]\ns_waitcnt lgkmcnt(0)\ns_barrier\ns_cmp_lg_u32 s{sWAVE}, 0\ns_cbranch_scc1 {end}")
    for w in range(4): a(f"ds_read_b128 {R('v', 16+4*w)}, v4 offset:{128*w}")
    a(f"v_lshrrev_b32 v6, 3, v{vLANE}\nv_lshl_add_u32 v3, v6, 24, v3\ns_waitcnt lgkmcnt(0)")
    for j in (0, 2):
        a(pk("add", 16 + j, 16 + j, 20 + j)); a(pk("add", 24 + j, 24 + j, 28 + j)); a(pk("add", 16 + j, 16 + j, 24 + j))
        rnd(a, 16 + j, 17 + j)
        a(pk("mul", 16 + j, 16 + j, 60, mods="op_sel_hi:[1,0]")); rnd(a, 16 + j, 17 + j)
        a(pk("add", 52, 64 + j, 68 + j)); rnd(a, 52, 53); unpack(a, 54, 55, 44 + j//2)
        a(pk("fma", 16 + j, 16 + j, 52, 54))
        a(f"v_cvt_pk_bf16_f32 v{56 + j//2}, v{16+j}, v{17+j}")
    a(f"buffer_store_dwordx2 v[56:57], v3, {S4(S_WG)}, s{sK2} offen {OPT['ofl']*'sc1'}")
    st()
    a(f"{end}:")
```

```python
from common import *

S_W, S_B, S_K, S_V, S_O, S_WG, S_WU, S_WD, S_STG = 8, 12, 16, 20, 24, 28, 32, 36, 40
sKOFF, sVOFF, sWOFF, sBOFF = 63, 64, 65, 66
vWOFF, vKV, vA, vKADDR, vBOFF = 2, 3, 4, 5, 6
vGA, vTO, vTD, vCL = 248, 249, 250, 251

def ids(a):
    a(f"s_load_dwordx16 s[{P0}:{P0+15}], s[0:1], 0\ns_load_dwordx8 s[{P0+16}:{P0+23}], s[0:1], 64\ns_load_dwordx4 s[{P0+24}:{P0+27}], s[0:1], 96\ns_load_dwordx2 s[{P0+28}:{P0+29}], s[0:1], 112")
    a(f"""
    v_lshrrev_b32 v10, 6, v0
    v_and_b32 v{vLANE}, 63, v0
    v_readfirstlane_b32 s{sWAVE}, v10
    v_lshlrev_b32 v{vL16}, 4, v{vLANE}
    v_lshrrev_b32 v{vG}, 4, v{vLANE}
    v_and_b32 v{vQ}, 15, v{vLANE}
    s_and_b32 s{sT0}, s2, 7
    s_bfe_u32 s{sT1}, s2, 0x20003
    s_lshl_b32 s{sHEAD}, s{sT0}, 2
    s_add_u32 s{sHEAD}, s{sHEAD}, s{sT1}
    s_lshr_b32 s{sQB}, s2, 5
    s_lshl_b32 s{sG64}, s{sQB}, 2
    s_add_u32 s{sG64}, s{sG64}, s{sWAVE}
    s_lshl_b32 s{sSL}, s{sQB}, 5
    s_add_u32 s{sSL}, s{sSL}, s{sHEAD}
    s_mul_i32 s{sMW}, s{sWAVE}, {4*PIECE}
    s_add_u32 s{sMW2}, s{sMW}, {4*TILE}
    s_bfe_u32 s{sKH}, s2, 0x10002
    s_xor_b32 s{sKH}, s{sKH}, 1
    s_and_b32 s{sNT}, s2, 1
    s_lshl_b32 s{sNT}, s{sNT}, 2
    s_add_u32 s{sNT}, s{sNT}, s{sT1}
    s_lshl_b32 s{sNT}, s{sNT}, 1
    s_add_u32 s{sNT}, s{sNT}, s{sKH}
    s_bfe_u32 s{sT0}, s2, 0x10001
    s_lshl_b32 s{sG}, s{sQB}, 1
    s_add_u32 s{sG}, s{sG}, s{sT0}
    s_lshl_b32 s{sU}, s{sG}, 4
    s_add_u32 s{sU}, s{sU}, s{sNT}
    s_lshl_b32 s{sG}, s{sG}, 2
    s_add_u32 s{sG}, s{sG}, s{sWAVE}
    """)

def code_touch(a, lo, hi, v, dst, sh=6):
    here = a.label("pc")
    a(f"""
    s_getpc_b64 s[50:51]
    {here}:
    s_lshr_b32 s{sT0}, s2, 3
    s_lshl_b32 s{sT0}, s{sT0}, 4
    v_and_b32 v{v}, 3, v0
    v_lshl_add_u32 v{v}, v10, 2, v{v}
    v_add_u32 v{v}, s{sT0}, v{v}
    v_lshlrev_b32 v{v}, {sh}, v{v}
    v_min_u32 v{v}, {hi}-{lo}-4, v{v}
    v_add_u32 v{v}, {lo}-{here}, v{v}
    v_mov_b32 v{v+1}, s51
    v_add_co_u32 v{v}, vcc, s50, v{v}
    s_nop 1
    v_addc_co_u32 v{v+1}, vcc, 0, v{v+1}, vcc
    """)
    if dst is not None: a(f"global_load_dword v{dst}, v[{v}:{v+1}], off")

def front(a, g, st):
    S_X, S_C, S_M, S_D = S_K, S_V, S_STG, S_WG
    XP, CP, WD, SV, AC, X, T, E = 16, 32, 144, 40, 56, 64, 96, 112
    U = T + 4
    vXO, vMO, vROW, vZ, NV, vF0 = 14, 215, 208, 209, 210, 211
    sCG, sMO = 50, 51
    d3 = st if OPT["diag"] == 3 else (lambda: None)
    a(f"""
    v_and_b32 v{vROW}, 7, v0
    v_lshrrev_b32 v{T}, 3, v{vLANE}
    v_lshl_add_u32 v{T}, v10, 5, v{T}
    v_lshlrev_b32 v{T}, 4, v{T}
    v_lshl_add_u32 v{vXO}, v{vROW}, 11, v{T}
    v_lshrrev_b32 v{T+1}, 2, v0
    v_and_b32 v{T+2}, 3, v0
    v_mul_u32_u24 v{vMO}, {16*12288}, v{T+1}
    v_lshl_add_u32 v{vMO}, v{T+2}, 4, v{vMO}
    v_lshlrev_b32 v{T+1}, 5, v{T+1}
    v_lshlrev_b32 v{vF0}, 24, v{vLANE}
    s_and_b32 s{sT3}, s2, 7
    s_lshl_b32 s{sT0}, s{sT3}, 3
    s_lshr_b32 s{sT1}, s2, 3
    s_add_u32 s{sCG}, s{sT0}, s{sT1}
    s_add_u32 s{sT0}, s{sT0}, 56
    s_cmp_lt_u32 s2, 64
    s_cselect_b32 s{sT0}, 0, s{sT0}
    s_add_u32 s{sCG}, s{sCG}, s{sT0}
    s_lshl_b32 s{sMO}, s{sCG}, 6
    s_lshl_b32 s{sT2}, s{sSL}, 14
    s_waitcnt lgkmcnt(0)
    """)
    st()
    a.srd(S_M, PTR["wmod"], 1024*12288)
    a.srd(S_C, PTR["c"], 2048)
    a.srd(S_X, PTR["x"], 16384, f"s{sT2}")
    a.srd(S_L, PTR["ws"], 16 << 20)
    a(f"v_mov_b32 v{NV}, {WS_NONCE}\nbuffer_load_dword v{NV}, v{NV}, {S4(S_L)}, 0 offen sc1")
    def cloads(vm):
        for i in range(2): a(f"buffer_load_dwordx4 {R('v', CP + 4*i)}, v{T+1}, {S4(S_C)}, 0 offen offset:{16*i}"); vm.add("C")
    def xloads(vm):
        for i in range(4): a(f"buffer_load_dwordx4 {R('v', XP + 4*i)}, v{vXO}, {S4(S_X)}, 0 offen offset:{128*i}"); vm.add("X")
    def w_zero(w):
        for i in range(144): w(f"v_accvgpr_write_b32 a{i}, 0")
    def w_silu(w):
        w("WAIT C")
        for i in range(8): unpack(w, SV + 2*i, SV + 2*i + 1, CP + i)
        for i in range(16): w(f"v_mul_f32 v{E+i}, {f2u(-LOG2E)}, v{SV+i}")
        for i in range(16): w(f"v_exp_f32 v{E+i}, v{E+i}")
        for i in range(0, 16, 2): w(pk("add", E + i, E + i, "1.0", mods="op_sel_hi:[1,0]"))
        for i in range(16): w(f"v_rcp_f32 v{E+i}, v{E+i}")
        for i in range(0, 16, 2): w(pk("mul", SV + i, SV + i, E + i))
        for i in range(0, 16, 2): rnd(w, SV + i, SV + i + 1)
    def w_stats(w):
        w("WAIT X")
        for i in range(16): unpack(w, X + 2*i, X + 2*i + 1, XP + i)
        w(pk("add", T, X, X + 2))
        for i in range(4, 32, 2): w(pk("add", T, T, X + i))
        w(f"v_add_f32 v{T}, v{T}, v{T+1}")
        red8(w, [T], [T + 1])
        w(f"v_mul_f32 v{T}, {f2u(-1/256)}, v{T}")
        for i in range(0, 32, 2):
            w(pk("add", E, X + i, T, mods="op_sel_hi:[1,0]"))
            w(pk("mul", T + 2, E, E) if i == 0 else pk("fma", T + 2, E, E, T + 2))
        w(f"v_add_f32 v{T+1}, v{T+2}, v{T+3}")
        red8(w, [T + 1], [T + 2])
        w(f"v_lshlrev_b32 v{T+3}, 5, v{vROW}\nv_lshl_add_u32 v{T+2}, v10, 3, v{T+3}\nds_write_b64 v{T+2}, v[{T}:{T+1}]")
    def w_norm(w):
        w(f"ds_read_b128 {R('v', E)}, v{T+3}\nds_read_b128 {R('v', E+4)}, v{T+3} offset:16")
        w("s_waitcnt lgkmcnt(0)")
        w(pk("add", T, E, E + 2)); w(pk("add", T + 2, E + 4, E + 6)); w(pk("add", T, T, T + 2))
        w(f"v_mul_f32 v{T}, {f2u(0.25)}, v{T}")
        for i in range(4):
            w(f"v_sub_f32 v{T+2}, v{E+2*i}, v{T}")
            w(f"v_mul_f32 v{T+3}, v{T+2}, v{T+2}" if i == 0 else f"v_fmac_f32 v{T+3}, v{T+2}, v{T+2}")
        w(f"v_fmac_f32 v{T+1}, {f2u(256.0)}, v{T+3}\nv_mul_f32 v{T+1}, {f2u(1/1024)}, v{T+1}")
        rnd(w, T, T + 1)
        w(f"""
        v_add_f32 v{T+1}, {f2u(1e-5)}, v{T+1}
        v_cvt_pk_bf16_f32 v{T+1}, v{T+1}, v{T+1}
        v_lshlrev_b32 v{T+1}, 16, v{T+1}
        v_sqrt_f32 v{T+1}, v{T+1}
        s_nop 0
        v_cvt_pk_bf16_f32 v{T+1}, v{T+1}, v{T+1}
        v_lshlrev_b32 v{T+1}, 16, v{T+1}
        v_rcp_f32 v{T+1}, v{T+1}
        s_nop 0
        """)
        for i in range(0, 32, 2):
            w(pk("add", X + i, X + i, T, mods="op_sel_hi:[1,0]")); rnd(w, X + i, X + i + 1)
            w(pk("mul", X + i, X + i, T, mods="op_sel:[0,1] op_sel_hi:[1,1]")); rnd(w, X + i, X + i + 1)
    def w_fma(w, rows):
        for i in rows:
            w(f"WAIT M{i}")
            sel = "op_sel:[0,1,0] op_sel_hi:[1,1,1]" if i % 2 else "op_sel_hi:[1,0,1]"
            for j in range(4):
                unpack(w, U + 2*(j % 2), U + 2*(j % 2) + 1, WD + 4*i + j)
                if i == 0: w(pk("mul", AC + 2*j, U + 2*(j % 2), SV, mods="op_sel_hi:[1,0]"))
                else: w(pk("fma", AC + 2*j, U + 2*(j % 2), SV + i - i % 2, AC + 2*j, mods=sel))
    def run_side(side, vm, n=10000, issued=100):
        while side and n > 0:
            x = side[0]
            if x.startswith("WAIT"):
                tag = x.split()[1]
                if tag[0] == "M" and int(tag[1:]) > issued - OPT["mlag"]: return
                if tag not in vm.ops: return
                x = f"s_waitcnt vmcnt({vm.count(tag)})"
            a(x); side.pop(0); n -= 1
    def side_of(*fs):
        w = Asm()
        for f in fs: f(w)
        return [x.strip() for x in w.lines]
    def gemv(vm, side, hooks, wide=False):
        for i in range(16):
            a(f"buffer_load_dwordx4 {R('v', WD + 4*i)}, v{vMO}, {S4(S_M)}, s{sMO} offen"); vm.add(f"M{i}")
            if i < 15: a(f"s_add_u32 s{sMO}, s{sMO}, 12288")
            if i in hooks: hooks[i]()
            if OPT["mlead"] <= i < 15: run_side(side, vm, OPT["mslice"], i)
        run_side(side, vm)
        a("s_nop 1")
        for sh in ((8,) if wide else (8, 4)):
            for j in range(8): a(f"v_add_f32_dpp v{AC+j}, v{AC+j}, v{AC+j} row_ror:{sh} row_mask:0xf bank_mask:0xf")
        a(f"v_lshrrev_b32 v{U}, 4, v0\nv_lshlrev_b32 v{U}, {8 if wide else 7}, v{U}\nv_and_b32 v{U+1}, {7 if wide else 3}, v0\nv_lshl_add_u32 v{U}, v{U+1}, 5, v{U}")
        a(f"ds_write_b128 v{U}, {R('v', AC)} offset:1024\nds_write_b128 v{U}, {R('v', AC+4)} offset:1040")
    def finish():
        a(f"v_lshlrev_b32 v{U}, 9, v{vG}\nv_lshl_add_u32 v{U}, v{vQ}, 3, v{U}")
        for i in range(4): a(f"ds_read_b64 v[{AC+2*i}:{AC+2*i+1}], v{U} offset:{1024 + 128*i}")
        a(f"v_lshlrev_b32 v{U+2}, 24, v{vG}\ns_waitcnt lgkmcnt(0)")
        a(pk("add", AC, AC, AC + 2)); a(pk("add", AC + 4, AC + 4, AC + 6)); a(pk("add", AC, AC, AC + 4))
        swap_red(a, [AC, AC + 1], [AC + 2, AC + 3])
        a(f"v_cvt_pk_bf16_f32 v{AC+4}, v{AC}, v{AC+1}")
    def nonce():
        a(f"""
        v_readfirstlane_b32 s{sNONCE}, v{NV}
        s_nop 3
        s_mul_i32 s{sNONCE}, s{sNONCE}, 0x9e3779b1
        s_add_u32 s{sNONCE}, s{sNONCE}, 0x7f4a7c15
        """)

    g.setup()
    bc, join, join2 = a.label("roleBC"), a.label("join"), a.label("join")
    a(f"s_cmp_ge_u32 s2, 64\ns_cbranch_scc1 {bc}")
    vm = VM()
    cloads(vm)
    xa = OPT["xa"]
    gemv(vm, side_of(w_zero, w_silu, lambda w: w_fma(w, range(xa)), w_stats, lambda w: w_fma(w, range(xa, 16))),
         {xa: lambda: xloads(vm)})
    n0 = st.n
    st()
    nonce()
    a("s_waitcnt lgkmcnt(0)\ns_barrier")
    a(f"s_cmp_lg_u32 s{sWAVE}, 0\ns_cbranch_scc1 {join}")
    finish()
    a(f"s_cmp_ge_u32 s{sCG}, 32\ns_cselect_b32 s{sT0}, 1.0, 0\ns_mov_b32 s{sT1}, s{sT0}")
    unpack(a, AC, AC + 1, AC + 4)
    a(pk("add", AC, AC, f"s[{sT0}:{sT1}]"))
    a(f"""
    v_lshl_add_u32 v{U+2}, v{vQ}, 3, v{U+2}
    v_cvt_pk_bf16_f32 v{AC+2}, v{AC}, v{AC+1}
    v_mov_b32 v{AC+3}, s{sNONCE}
    s_lshl_b32 s{sT0}, s{sCG}, 7
    s_add_u32 s{sT0}, s{sT0}, {WS_MODG}
    buffer_store_dwordx2 v[{AC+2}:{AC+3}], v{U+2}, {S4(S_L)}, s{sT0} offen sc1
    s_branch {join}
    """)
    a(f"{bc}:")
    vm = VM()
    isc = a.label("roleC")
    a(f"""
    s_lshr_b32 s{sT0}, s2, 3
    s_sub_u32 s{sT0}, s{sT0}, 8
    s_lshl_b32 s{sT0}, s{sT0}, 2
    s_add_u32 s{sT0}, s{sT0}, s{sWAVE}
    s_mul_i32 s{sT0}, s{sT0}, {8*12288}
    s_lshl_b32 s{sT3}, s{sT3}, 9
    v_lshrrev_b32 v{T+4}, 2, v{vLANE}
    v_mul_u32_u24 v{T+4}, 12288, v{T+4}
    v_lshl_add_u32 v{T+4}, v{T+2}, 7, v{T+4}
    s_cmp_ge_u32 s2, 192
    s_cbranch_scc1 {isc}
    s_add_u32 s{sT0}, s{sT0}, s{sT3}
    v_lshrrev_b32 v{T+5}, 5, v{vLANE}
    {"v_mul_u32_u24 v%d, %d, v%d" % (T+5, 8*12288 - 64, T+5) if OPT["t64"] & 4 else "v_lshlrev_b32 v%d, 24, v%d" % (T+5, T+5)}
    {"v_sub_u32" if OPT["t64"] & 4 else "v_add_u32"} v{T+4}, v{T+4}, v{T+5}
    buffer_load_dword v212, v{T+4}, {S4(S_M)}, s{sT0} offen
    v_lshrrev_b32 v{T+1}, 3, v0
    s_and_b32 s{sT0}, s{sCG}, 1
    s_lshl_b32 s{sT0}, s{sT0}, 5
    v_add_u32 v{T+1}, s{sT0}, v{T+1}
    v_mul_u32_u24 v{vMO}, {16*12288}, v{T+1}
    v_lshl_add_u32 v{vMO}, v{vROW}, 4, v{vMO}
    v_lshlrev_b32 v{T+1}, 5, v{T+1}
    s_and_b32 s{sMO}, s{sMO}, {0xffffff80}
    """)
    vm.add("T")
    xloads(vm); cloads(vm)
    jb = join2 if OPT["bnorm"] else join
    mid = [lambda w: w("s_waitcnt lgkmcnt(0)\ns_barrier"), w_norm] if OPT["bnorm"] else []
    gemv(vm, side_of(w_zero, w_stats, w_silu, *mid, lambda w: w_fma(w, range(16))), {}, wide=True)
    st.n = n0
    st()
    nonce()
    a("s_waitcnt lgkmcnt(0)\ns_barrier")
    a(f"s_cmp_lg_u32 s{sWAVE}, 0\ns_cbranch_scc1 {jb}")
    a(f"v_lshlrev_b32 v{U}, 10, v{vG}\nv_lshl_add_u32 v{U}, v{vQ}, 4, v{U}")
    for i in range(4): a(f"ds_read_b128 {R('v', WD + 4*i)}, v{U} offset:{1024 + 256*i}")
    a(f"""
    v_lshlrev_b32 v{U+2}, 24, v{vG}
    v_lshl_add_u32 v{U+2}, v{vQ}, 4, v{U+2}
    s_and_b32 s{sT0}, s{sCG}, 1
    s_lshl_b32 s{sT0}, s{sT0}, 14
    s_lshr_b32 s{sT1}, s{sCG}, 1
    s_lshl_b32 s{sT1}, s{sT1}, 8
    s_add_u32 s{sT0}, s{sT0}, s{sT1}
    s_add_u32 s{sT0}, s{sT0}, {WS_MODP - 32*256}
    s_waitcnt lgkmcnt(0)
    """)
    for j in (0, 2):
        a(pk("add", WD + j, WD + j, WD + 4 + j)); a(pk("add", WD + 8 + j, WD + 8 + j, WD + 12 + j)); a(pk("add", WD + j, WD + j, WD + 8 + j))
    swap_red(a, [WD + i for i in range(4)], [WD + 4 + i for i in range(4)])
    a(f"buffer_store_dwordx4 {R('v', WD)}, v{U+2}, {S4(S_L)}, s{sT0} offen sc1\ns_branch {jb}")
    a(f"{isc}:\ns_lshl_b32 s{sT0}, s{sT0}, 1\ns_add_u32 s{sT0}, s{sT0}, s{sT3}\ns_sub_u32 s{sT0}, s{sT0}, {512*12288}")
    vm = VM()
    a(f"buffer_load_dword v212, v{T+4}, {S4(S_M)}, s{sT0} offen"); vm.add("T")
    if OPT["t64"] & 4:
        a(f"v_xor_b32 v{T+5}, 3, v{T+2}\nv_lshl_add_u32 v{T+5}, v{T+5}, 24, v{T+4}\nbuffer_load_dword v219, v{T+5}, {S4(S_M)}, s{sT0} offen offset:64"); vm.add("T")
    if OPT["c3"]:
        a(f"""
        s_lshr_b32 s{sT0}, s2, 3
        s_sub_u32 s{sT0}, s{sT0}, 24
        s_lshl_b32 s{sT0}, s{sT0}, 2
        s_add_u32 s{sT0}, s{sT0}, s{sWAVE}
        s_mul_i32 s{sT0}, s{sT0}, {32*12288}
        s_lshl_b32 s{sT3}, s{sT3}, 1
        s_add_u32 s{sT0}, s{sT0}, s{sT3}
        s_add_u32 s{sT0}, s{sT0}, {4096 + 384}
        v_and_b32 v{T+5}, 31, v{vLANE}
        v_mul_u32_u24 v{T+5}, 12288, v{T+5}
        v_and_b32 v{T+6}, {32 if OPT["t64"] & 4 else 0}, v{vLANE}
        v_lshl_add_u32 v{T+5}, v{T+6}, 1, v{T+5}
        buffer_load_dword v213, v{T+5}, {S4(S_M)}, s{sT0} offen
        """)
        vm.add("T")
    xloads(vm)
    if OPT["cwq"]:
        a(f"""
        s_sub_u32 s{sT0}, s{sG64}, 24
        s_lshl_b32 s{sT0}, s{sT0}, 18
        v_lshrrev_b32 v{T+5}, 1, v{vLANE}
        v_lshlrev_b32 v{T+5}, 13, v{T+5}
        v_and_b32 v{T+6}, 1, v{vLANE}
        v_lshl_add_u32 v{T+5}, v{T+6}, 7, v{T+5}
        buffer_load_dword v214, v{T+5}, {S4(S_W)}, s{sT0} offen
        """)
        vm.add("T")
        if OPT["t64"] & 8:
            a(f"v_xor_b32 v{T+6}, 1, v{T+6}\nv_lshl_add_u32 v{T+5}, v{T+6}, 24, v{T+5}\nbuffer_load_dword v220, v{T+5}, {S4(S_W)}, s{sT0} offen offset:64"); vm.add("T")
    run_side(side_of(w_zero, w_stats), vm)
    st.n = n0
    st()
    nonce()
    a("s_waitcnt lgkmcnt(0)\ns_barrier")
    a(f"{join}:")
    w_norm(a)
    a(f"{join2}:")
    st()
    vm = VM()
    for i in range(OPT["qt0"]): g.issue(g.touch(), vm)
    LW, LR, HO = T, T + 1, T + 2
    a(f"""
    v_lshlrev_b32 v{LW}, 3, v{vLANE}
    v_lshl_add_u32 v{LW}, v10, 10, v{LW}
    v_add_u32 v{LW}, 8192, v{LW}
    v_lshrrev_b32 v{HO}, 3, v{vLANE}
    v_lshlrev_b32 v{LR}, 4, v{HO}
    v_lshl_add_u32 v{LR}, v10, 10, v{LR}
    v_lshl_add_u32 v{HO}, v10, 5, v{HO}
    v_lshlrev_b32 v{HO}, 8, v{HO}
    v_lshl_add_u32 v{HO}, v{vROW}, 4, v{HO}
    v_mov_b32 v{NV}, s{sNONCE}
    s_lshr_b32 s{sT2}, s{sSL}, 1
    s_lshl_b32 s{sT2}, s{sT2}, 15
    s_and_b32 s{sT3}, s{sSL}, 1
    s_lshl_b32 s{sT3}, s{sT3}, 7
    s_add_u32 s{sT2}, s{sT2}, s{sT3}
    s_add_u32 s{sT2}, s{sT2}, {WS_H}
    s_add_u32 s{sT3}, s{sT2}, 4096
    s_lshl_b32 s{sT0}, s{sWAVE}, 10
    s_add_u32 s{sT0}, s{sT0}, {WS_MODG}
    s_add_u32 s{sT1}, s{sT0}, 4096
    """)
    d3()
    G = XP
    poll(a, [f"buffer_load_dwordx4 {R('v', G)}, v{vL16}, {S4(S_L)}, s{sT0} offen sc1", f"buffer_load_dwordx4 {R('v', G+4)}, v{vL16}, {S4(S_L)}, s{sT1} offen sc1"],
         bad_tags([G + 1, G + 3, G + 5, G + 7], U), "mod")
    st()
    a(f"ds_write2_b32 v{LW}, v{G}, v{G+2} offset0:0 offset1:1\nds_write2_b32 v{LW}, v{G+4}, v{G+6} offset0:128 offset1:129\ns_waitcnt lgkmcnt(0)")
    SH, SC = 112, 128
    for i in range(4):
        a(f"ds_read_b128 {R('v', SC + 4*i)}, v{LR} offset:{8192 + 512 + 128*i}\nds_read_b128 {R('v', SH + 4*i)}, v{LR} offset:{8192 + 128*i}")
    a(f"""
    s_lshl_b32 s{sT0}, s{sSL}, 2
    s_add_u32 s{sT0}, s{sT0}, s{sWAVE}
    s_lshl_b32 s{sT0}, s{sT0}, {FS}
    s_add_u32 s{sT0}, s{sT0}, {WS_F2}
    s_lshl_b32 s{sT1}, s{sG64}, {5+FS}
    s_add_u32 s{sT1}, s{sT1}, {WS_F2}
    v_and_b32 v212, {28 if OPT["wgf"] else 31}, v{vLANE}
    v_lshl_add_u32 v212, v212, {FS}, s{sT1}
    """)
    vm = VM()
    for i in range(4):
        a(f"s_waitcnt lgkmcnt({6 - 2*i})")
        for j in range(4*i, 4*i + 4):
            unpack(a, U + 2, U + 3, SC + j); a(pk("mul", X + 2*j, X + 2*j, U + 2)); rnd(a, X + 2*j, X + 2*j + 1)
            unpack(a, U + 2, U + 3, SH + j); a(pk("add", X + 2*j, X + 2*j, U + 2))
            a(f"v_cvt_pk_bf16_f32 v{SH+j}, v{X+2*j}, v{X+2*j+1}")
        a(f"buffer_store_dwordx4 {R('v', SH + 4*i)}, v{HO}, {S4(S_L)}, s{sT2 if i < 2 else sT3} offen offset:{2048*(i % 2)} sc1"); vm.add("H")
    wq = [(c, p) for c in range(4) for p in range(4)][:13]
    for c, p in wq[:OPT["w1"]]: g.issue(g.dma(c, p), vm)
    d3()
    if OPT["full"]: a(f"v_lshrrev_b32 v{vF0}, 5, v{0 if OPT['wgf'] else vLANE}\nv_lshlrev_b32 v{vF0}, 24, v{vF0}\nv_lshl_add_u32 v{vF0}, v{vLANE}, 2, v{vF0}")
    elif OPT["wgf"]: a(f"v_min_u32 v{vF0}, 64, v0\nv_lshlrev_b32 v{vF0}, 24, v{vF0}")
    a(f"s_waitcnt vmcnt({vm.count('H')})")
    if OPT["wgf"]: a("s_barrier")
    a(f"buffer_store_dword v{NV}, v{vF0}, {S4(S_L)}, s{sT0} offen sc1"); vm.add("F")
    st()
    for c, p in wq[OPT["w1"]:OPT["w2"]]: g.issue(g.dma(c, p), vm)
    g.wrest = wq[OPT["w2"]:]
    if OPT["cwq"]: a(g.touch()[2])
    for i in range(OPT["qt0"] + OPT["cwq"], 2): g.issue(g.touch(), vm)
    a(f"s_sub_u32 s{sT0}, s2, 64\ns_cmp_lt_u32 s{sT0}, 128\ns_cselect_b32 s{sT0}, 0, {1 << 24}\ns_add_u32 s{sT0}, s{sT0}, {WS_F1}\ns_lshl_b32 s{sCG}, s{sCG}, {FS}\ns_add_u32 s{sT0}, s{sT0}, s{sCG}")
    a(f"buffer_store_dword v{NV}, v{vF0}, {S4(S_L)}, s{sT0} offen sc1")
    d3()
    hl = f"buffer_load_dword v213, v212, {S4(S_L)}, 0 offen sc1"
    if OPT["hearly"]: a(hl)
    g.between()
    if OPT["hearly"]: poll(a, [hl], bad_tags([213], None), "h", first="s_waitcnt vmcnt(0)")
    else: a("s_waitcnt vmcnt(0)"); poll(a, [hl], bad_tags([213], None), "h")
    st()
    def after_b():
        for i in range(0, 128, 2): a(f"v_mov_b64 v[{16+i}:{17+i}], 0")
    g.after_b = after_b
```

```python
import sys
from common import *
from front import *
import attn as A, back as K

HEAD = open("adaLN_cond__mha_block_cached__moe_arch_mod__prompt.s.ref").read().split("\n")[:18]

def generate():
    a = Asm()
    a.begin_kernel(NAME)
    l = a.label("go")
    a(f"s_cmp_lt_u32 s2, 256\ns_cbranch_scc1 {l}\ns_endpgm\n{l}:")
    st = Stamps(a)
    ids(a)
    if OPT["ctch"] & 1:
        code_touch(a, "L_code_lo", "L_code_hi", 216, 218, 7); a("L_code_lo:")
    g = A.QProj(a)
    wpre = [K.OProj(a).dma(c, p) for c in range(OPT['nw']) for p in range(4)]
    at = A.Attn(a, False, wpre)
    T64 = OPT['t64'] & 1
    def between():
        a(f"""
        v_lshl_add_u32 v{vKV}, v10, 12, v{vL16}
        v_mul_u32_u24 v{vKADDR}, {PIECE}, v{vQ}
        v_lshl_add_u32 v{vKADDR}, v{vG}, 4, v{vKADDR}
        s_mov_b32 s{sKOFF}, 0
        s_mov_b32 s{sVOFF}, 0
        s_lshl_b32 s{sT0}, s{sHEAD}, 19
        s_lshl_b32 s{sT1}, s{sG64}, 14
        s_add_u32 s{sT1}, s{sT1}, s{sT0}
        s_add_u32 s{sT1}, s{sT1}, {WS_O}
        """)
        a.srd(S_K, PTR["k"], 1 << 19, f"s{sT0}"); a.srd(S_V, PTR["v"], 1 << 19, f"s{sT0}"); a.srd(S_O, PTR["ws"], 16384, f"s{sT1}")
        for i in range(4): a(f"v_mov_b32 v{A.ONES+i}, 0x3f803f80")
        a(f"v_and_b32 v14, 1, v{vLANE}\nv_mul_u32_u24 v15, 0xaaaa, v14\nv_add_u32 v15, 0x4444, v15\nv_lshl_add_u32 v{A.IDX}, v15, 16, v15")
        a(f"""
        v_lshrrev_b32 v15, 1, v{vLANE}
        v_mul_u32_u24 v{vGA}, 7168, v15
        v_lshl_add_u32 v{vGA}, v14, 4, v{vGA}
        v_lshrrev_b32 v15, {2 if T64 else 1}, v{vLANE}
        v_lshlrev_b32 v{vTO}, 11, v15
        v_and_b32 v15, {3 if T64 else 1}, v{vLANE}
        v_lshl_add_u32 v{vTO}, v15, {6 if T64 else 7}, v{vTO}
        v_lshrrev_b32 v15, {5 if T64 else 4}, v{vLANE}
        v_lshl_add_u32 v{vTO}, v15, 24, v{vTO}
        s_lshl_b32 s{sT0}, s{sU}, 15
        s_mul_i32 s{sT1}, s{sWAVE}, 7168
        s_add_u32 s{sT0}, s{sT0}, s{sT1}
        s_add_u32 s{sT0}, s{sT0}, {WS_HO}
        v_add_u32 v{vCL}, s{sT0}, v{vL16}
        s_xor_b32 s{sT1}, s{sSL}, {4*OPT['slx']}
        s_min_u32 s{sT1}, s{sT1}, 223
        s_lshl_b32 s{sT1}, s{sT1}, 15
        s_cmp_lt_u32 s2, 224
        s_cselect_b32 s{sT2}, 32768, 0
        """)
        a.srd(S_WD, PTR["wd"], f"s{sT2}", f"s{sT1}")
        g.setup_b()
        K.const_setup(a)
    g.between = between
    front(a, g, st)
    kv, cs = at.first_dmas(), K.const_ops()
    tail = []
    while kv or cs:
        if kv: tail.append(kv.pop(0))
        if cs: tail.append(cs.pop(0))
    w = Asm()
    K.setup_w(w)
    w(f"s_cmp_lt_u32 s2, 224\ns_cselect_b32 s{sT2}, {1024*7168}, 0")
    w.srd(S_WG, PTR["wg"], f"s{sT2}"); w.srd(S_WU, PTR["wu"], f"s{sT2}")
    for qb in range(4): w(f"v_add_u32 v{vBOFF+qb}, {qb*4096}, v{vL16}")
    w(f"v_lshrrev_b32 v14, 5, v{vLANE}\nv_and_b32 v15, 0x1ff, v{vL16}\nv_lshl_add_u32 v14, v14, 11, v15\nv_lshl_add_u32 v{A.vDN}, v10, 9, v14")
    w.uid = 1000
    if OPT["ctch"] & 4: code_touch(w, "L_code_mid", "L_code_tail", 236, None)
    w(f"s_mul_i32 s{A.sGA}, s{sWAVE}, {256*7168}\ns_xor_b32 s{A.sIX}, s{sSL}, {4*OPT['slx']}\ns_lshl_b32 s{A.sIX}, s{A.sIX}, 5\ns_add_u32 s{A.sGA}, s{A.sGA}, s{A.sIX}\ns_mov_b32 s{A.sIX}, -12\ns_mov_b32 s{A.sR4}, 0\ns_lshl_b32 s{A.sWT}, s{sG64}, 17\ns_mov_b32 s{A.sR1}, 0")
    w(f"s_mov_b32 s50, {f2u(LOG2E * 128 ** -0.5)}\ns_mov_b32 s51, s50")
    for i in range(4): w(f"v_mov_b32 v{A.NEG+i}, -1")
    fill = []
    for x in w.lines:
        if x.endswith(":"): fill[-1] += "\n" + x
        else: fill.append(x.strip())
    vm = g.run(tail, st, fill)
    st()
    for s in range(11, 16): a(at.kread(*at.kread_at(-2, s)))
    for n in range(16):
        for i in range(0, 8, 2): a(pk("mul", A.ACC + 8*n + i, A.ACC + 8*n + i, "s[50:51]"))
        for i in range(4): a(f"v_cvt_pk_bf16_f32 v{A.QF + 4*n + i}, v{A.ACC + 8*n + 2*i}, v{A.ACC + 8*n + 2*i + 1}")
    st()
    at.body(vm.count(("K", 1), ("V", 0)), st)
    st()
    safe, cont = a.label("safe"), a.label("cont")
    A.verdict(a, safe)
    a(f"{cont}:")
    st()
    K.moe(a, st, *K.oproj(a, st))
    st.flush()
    a("s_endpgm\nL_code_hi:")
    g.outofline()
    a(f"{safe}:")
    A.safe_path(a, wpre, cont)
    a.end_kernel(NAME, 256, 256, sgpr=102)
    return a.text(HEAD + [f"; @launch grid=(256,1,1) block=(256,1,1) lds={LDS_TOTAL}"])

if __name__ == "__main__":
    for arg in sys.argv[2:]:
        k, v = arg.split("=")
        assert k in OPT, k
        OPT[k] = [int(c) for c in v] if isinstance(OPT[k], list) else int(v)
    open(sys.argv[1], "w").write(generate())
```

```python
from common import *

S_W, S_B, S_K, S_V, S_O, S_WG, S_WU, S_WD, S_STG = 8, 12, 16, 20, 24, 28, 32, 36, 40
sKOFF, sVOFF, sWOFF, sBOFF = 63, 64, 65, 66
vWOFF, vKV, vA, vKADDR, vBOFF = 2, 3, 4, 5, 6
vGA, vTO, vTD, vCL = 248, 249, 250, 251

def ids(a):
    a(f"s_load_dwordx16 s[{P0}:{P0+15}], s[0:1], 0\ns_load_dwordx8 s[{P0+16}:{P0+23}], s[0:1], 64\ns_load_dwordx4 s[{P0+24}:{P0+27}], s[0:1], 96\ns_load_dwordx2 s[{P0+28}:{P0+29}], s[0:1], 112")
    a(f"""
    v_lshrrev_b32 v10, 6, v0
    v_and_b32 v{vLANE}, 63, v0
    v_readfirstlane_b32 s{sWAVE}, v10
    v_lshlrev_b32 v{vL16}, 4, v{vLANE}
    v_lshrrev_b32 v{vG}, 4, v{vLANE}
    v_and_b32 v{vQ}, 15, v{vLANE}
    s_and_b32 s{sT0}, s2, 7
    s_bfe_u32 s{sT1}, s2, 0x20003
    s_lshl_b32 s{sHEAD}, s{sT0}, 2
    s_add_u32 s{sHEAD}, s{sHEAD}, s{sT1}
    s_lshr_b32 s{sQB}, s2, 5
    s_lshl_b32 s{sG64}, s{sQB}, 2
    s_add_u32 s{sG64}, s{sG64}, s{sWAVE}
    s_lshl_b32 s{sSL}, s{sQB}, 5
    s_add_u32 s{sSL}, s{sSL}, s{sHEAD}
    s_mul_i32 s{sMW}, s{sWAVE}, {4*PIECE}
    s_add_u32 s{sMW2}, s{sMW}, {4*TILE}
    s_bfe_u32 s{sKH}, s2, 0x10002
    s_xor_b32 s{sKH}, s{sKH}, 1
    s_and_b32 s{sNT}, s2, 1
    s_lshl_b32 s{sNT}, s{sNT}, 2
    s_add_u32 s{sNT}, s{sNT}, s{sT1}
    s_lshl_b32 s{sNT}, s{sNT}, 1
    s_add_u32 s{sNT}, s{sNT}, s{sKH}
    s_bfe_u32 s{sT0}, s2, 0x10001
    s_lshl_b32 s{sG}, s{sQB}, 1
    s_add_u32 s{sG}, s{sG}, s{sT0}
    s_lshl_b32 s{sU}, s{sG}, 4
    s_add_u32 s{sU}, s{sU}, s{sNT}
    s_lshl_b32 s{sG}, s{sG}, 2
    s_add_u32 s{sG}, s{sG}, s{sWAVE}
    """)

def code_touch(a, lo, hi, v, dst, sh=6):
    here = a.label("pc")
    a(f"""
    s_getpc_b64 s[50:51]
    {here}:
    s_lshr_b32 s{sT0}, s2, 3
    s_lshl_b32 s{sT0}, s{sT0}, 4
    v_and_b32 v{v}, 3, v0
    v_lshl_add_u32 v{v}, v10, 2, v{v}
    v_add_u32 v{v}, s{sT0}, v{v}
    v_lshlrev_b32 v{v}, {sh}, v{v}
    v_min_u32 v{v}, {hi}-{lo}-4, v{v}
    v_add_u32 v{v}, {lo}-{here}, v{v}
    v_mov_b32 v{v+1}, s51
    v_add_co_u32 v{v}, vcc, s50, v{v}
    s_nop 1
    v_addc_co_u32 v{v+1}, vcc, 0, v{v+1}, vcc
    """)
    if dst is not None: a(f"global_load_dword v{dst}, v[{v}:{v+1}], off")

def front(a, g, st):
    S_X, S_C, S_M, S_D = S_K, S_V, S_STG, S_WG
    XP, CP, WD, SV, AC, X, T, E = 16, 32, 144, 40, 56, 64, 96, 112
    U = T + 4
    vXO, vMO, vROW, vZ, NV, vF0 = 14, 215, 208, 209, 210, 211
    sCG, sMO = 50, 51
    d3 = st if OPT["diag"] == 3 else (lambda: None)
    a(f"""
    v_and_b32 v{vROW}, 7, v0
    v_lshrrev_b32 v{T}, 3, v{vLANE}
    v_lshl_add_u32 v{T}, v10, 5, v{T}
    v_lshlrev_b32 v{T}, 4, v{T}
    v_lshl_add_u32 v{vXO}, v{vROW}, 11, v{T}
    v_lshrrev_b32 v{T+1}, 2, v0
    v_and_b32 v{T+2}, 3, v0
    v_mul_u32_u24 v{vMO}, {16*12288}, v{T+1}
    v_lshl_add_u32 v{vMO}, v{T+2}, 4, v{vMO}
    v_lshlrev_b32 v{T+1}, 5, v{T+1}
    v_lshlrev_b32 v{vF0}, 24, v{vLANE}
    s_and_b32 s{sT3}, s2, 7
    s_lshl_b32 s{sT0}, s{sT3}, 3
    s_lshr_b32 s{sT1}, s2, 3
    s_add_u32 s{sCG}, s{sT0}, s{sT1}
    s_add_u32 s{sT0}, s{sT0}, 56
    s_cmp_lt_u32 s2, 64
    s_cselect_b32 s{sT0}, 0, s{sT0}
    s_add_u32 s{sCG}, s{sCG}, s{sT0}
    s_lshl_b32 s{sMO}, s{sCG}, 6
    s_lshl_b32 s{sT2}, s{sSL}, 14
    s_waitcnt lgkmcnt(0)
    """)
    st()
    a.srd(S_M, PTR["wmod"], 1024*12288)
    a.srd(S_C, PTR["c"], 2048)
    a.srd(S_X, PTR["x"], 16384, f"s{sT2}")
    a.srd(S_L, PTR["ws"], 16 << 20)
    a(f"v_mov_b32 v{NV}, {WS_NONCE}\nbuffer_load_dword v{NV}, v{NV}, {S4(S_L)}, 0 offen sc1")
    def cloads(vm):
        for i in range(2): a(f"buffer_load_dwordx4 {R('v', CP + 4*i)}, v{T+1}, {S4(S_C)}, 0 offen offset:{16*i}"); vm.add("C")
    def xloads(vm):
        for i in range(4): a(f"buffer_load_dwordx4 {R('v', XP + 4*i)}, v{vXO}, {S4(S_X)}, 0 offen offset:{128*i}"); vm.add("X")
    def w_zero(w):
        for i in range(144): w(f"v_accvgpr_write_b32 a{i}, 0")
    def w_silu(w):
        w("WAIT C")
        for i in range(8): unpack(w, SV + 2*i, SV + 2*i + 1, CP + i)
        for i in range(16): w(f"v_mul_f32 v{E+i}, {f2u(-LOG2E)}, v{SV+i}")
        for i in range(16): w(f"v_exp_f32 v{E+i}, v{E+i}")
        for i in range(0, 16, 2): w(pk("add", E + i, E + i, "1.0", mods="op_sel_hi:[1,0]"))
        for i in range(16): w(f"v_rcp_f32 v{E+i}, v{E+i}")
        for i in range(0, 16, 2): w(pk("mul", SV + i, SV + i, E + i))
        for i in range(0, 16, 2): rnd(w, SV + i, SV + i + 1)
    def w_stats(w):
        w("WAIT X")
        for i in range(16): unpack(w, X + 2*i, X + 2*i + 1, XP + i)
        w(pk("add", T, X, X + 2))
        for i in range(4, 32, 2): w(pk("add", T, T, X + i))
        w(f"v_add_f32 v{T}, v{T}, v{T+1}")
        red8(w, [T], [T + 1])
        w(f"v_mul_f32 v{T}, {f2u(-1/256)}, v{T}")
        for i in range(0, 32, 2):
            w(pk("add", E, X + i, T, mods="op_sel_hi:[1,0]"))
            w(pk("mul", T + 2, E, E) if i == 0 else pk("fma", T + 2, E, E, T + 2))
        w(f"v_add_f32 v{T+1}, v{T+2}, v{T+3}")
        red8(w, [T + 1], [T + 2])
        w(f"v_lshlrev_b32 v{T+3}, 5, v{vROW}\nv_lshl_add_u32 v{T+2}, v10, 3, v{T+3}\nds_write_b64 v{T+2}, v[{T}:{T+1}]")
    def w_norm(w):
        w(f"ds_read_b128 {R('v', E)}, v{T+3}\nds_read_b128 {R('v', E+4)}, v{T+3} offset:16")
        w("s_waitcnt lgkmcnt(0)")
        w(pk("add", T, E, E + 2)); w(pk("add", T + 2, E + 4, E + 6)); w(pk("add", T, T, T + 2))
        w(f"v_mul_f32 v{T}, {f2u(0.25)}, v{T}")
        for i in range(4):
            w(f"v_sub_f32 v{T+2}, v{E+2*i}, v{T}")
            w(f"v_mul_f32 v{T+3}, v{T+2}, v{T+2}" if i == 0 else f"v_fmac_f32 v{T+3}, v{T+2}, v{T+2}")
        w(f"v_fmac_f32 v{T+1}, {f2u(256.0)}, v{T+3}\nv_mul_f32 v{T+1}, {f2u(1/1024)}, v{T+1}")
        rnd(w, T, T + 1)
        w(f"""
        v_add_f32 v{T+1}, {f2u(1e-5)}, v{T+1}
        v_cvt_pk_bf16_f32 v{T+1}, v{T+1}, v{T+1}
        v_lshlrev_b32 v{T+1}, 16, v{T+1}
        v_sqrt_f32 v{T+1}, v{T+1}
        s_nop 0
        v_cvt_pk_bf16_f32 v{T+1}, v{T+1}, v{T+1}
        v_lshlrev_b32 v{T+1}, 16, v{T+1}
        v_rcp_f32 v{T+1}, v{T+1}
        s_nop 0
        """)
        for i in range(0, 32, 2):
            w(pk("add", X + i, X + i, T, mods="op_sel_hi:[1,0]")); rnd(w, X + i, X + i + 1)
            w(pk("mul", X + i, X + i, T, mods="op_sel:[0,1] op_sel_hi:[1,1]")); rnd(w, X + i, X + i + 1)
    def w_fma(w, rows):
        for i in rows:
            w(f"WAIT M{i}")
            sel = "op_sel:[0,1,0] op_sel_hi:[1,1,1]" if i % 2 else "op_sel_hi:[1,0,1]"
            for j in range(4):
                unpack(w, U + 2*(j % 2), U + 2*(j % 2) + 1, WD + 4*i + j)
                if i == 0: w(pk("mul", AC + 2*j, U + 2*(j % 2), SV, mods="op_sel_hi:[1,0]"))
                else: w(pk("fma", AC + 2*j, U + 2*(j % 2), SV + i - i % 2, AC + 2*j, mods=sel))
    def run_side(side, vm, n=10000, issued=100):
        while side and n > 0:
            x = side[0]
            if x.startswith("WAIT"):
                tag = x.split()[1]
                if tag[0] == "M" and int(tag[1:]) > issued - OPT["mlag"]: return
                if tag not in vm.ops: return
                x = f"s_waitcnt vmcnt({vm.count(tag)})"
            a(x); side.pop(0); n -= 1
    def side_of(*fs):
        w = Asm()
        for f in fs: f(w)
        return [x.strip() for x in w.lines]
    def gemv(vm, side, hooks, wide=False):
        for i in range(16):
            a(f"buffer_load_dwordx4 {R('v', WD + 4*i)}, v{vMO}, {S4(S_M)}, s{sMO} offen"); vm.add(f"M{i}")
            if i < 15: a(f"s_add_u32 s{sMO}, s{sMO}, 12288")
            if i in hooks: hooks[i]()
            if OPT["mlead"] <= i < 15: run_side(side, vm, OPT["mslice"], i)
        run_side(side, vm)
        a("s_nop 1")
        for sh in ((8,) if wide else (8, 4)):
            for j in range(8): a(f"v_add_f32_dpp v{AC+j}, v{AC+j}, v{AC+j} row_ror:{sh} row_mask:0xf bank_mask:0xf")
        a(f"v_lshrrev_b32 v{U}, 4, v0\nv_lshlrev_b32 v{U}, {8 if wide else 7}, v{U}\nv_and_b32 v{U+1}, {7 if wide else 3}, v0\nv_lshl_add_u32 v{U}, v{U+1}, 5, v{U}")
        a(f"ds_write_b128 v{U}, {R('v', AC)} offset:1024\nds_write_b128 v{U}, {R('v', AC+4)} offset:1040")
    def finish():
        a(f"v_lshlrev_b32 v{U}, 9, v{vG}\nv_lshl_add_u32 v{U}, v{vQ}, 3, v{U}")
        for i in range(4): a(f"ds_read_b64 v[{AC+2*i}:{AC+2*i+1}], v{U} offset:{1024 + 128*i}")
        a(f"v_lshlrev_b32 v{U+2}, 24, v{vG}\ns_waitcnt lgkmcnt(0)")
        a(pk("add", AC, AC, AC + 2)); a(pk("add", AC + 4, AC + 4, AC + 6)); a(pk("add", AC, AC, AC + 4))
        swap_red(a, [AC, AC + 1], [AC + 2, AC + 3])
        a(f"v_cvt_pk_bf16_f32 v{AC+4}, v{AC}, v{AC+1}")
    def nonce():
        a(f"""
        v_readfirstlane_b32 s{sNONCE}, v{NV}
        s_nop 3
        s_mul_i32 s{sNONCE}, s{sNONCE}, 0x9e3779b1
        s_add_u32 s{sNONCE}, s{sNONCE}, 0x7f4a7c15
        """)

    g.setup()
    bc, join, join2 = a.label("roleBC"), a.label("join"), a.label("join")
    a(f"s_cmp_ge_u32 s2, 64\ns_cbranch_scc1 {bc}")
    vm = VM()
    cloads(vm)
    xa = OPT["xa"]
    gemv(vm, side_of(w_zero, w_silu, lambda w: w_fma(w, range(xa)), w_stats, lambda w: w_fma(w, range(xa, 16))),
         {xa: lambda: xloads(vm)})
    n0 = st.n
    st()
    nonce()
    a("s_waitcnt lgkmcnt(0)\ns_barrier")
    a(f"s_cmp_lg_u32 s{sWAVE}, 0\ns_cbranch_scc1 {join}")
    finish()
    a(f"s_cmp_ge_u32 s{sCG}, 32\ns_cselect_b32 s{sT0}, 1.0, 0\ns_mov_b32 s{sT1}, s{sT0}")
    unpack(a, AC, AC + 1, AC + 4)
    a(pk("add", AC, AC, f"s[{sT0}:{sT1}]"))
    a(f"""
    v_lshl_add_u32 v{U+2}, v{vQ}, 3, v{U+2}
    v_cvt_pk_bf16_f32 v{AC+2}, v{AC}, v{AC+1}
    v_mov_b32 v{AC+3}, s{sNONCE}
    s_lshl_b32 s{sT0}, s{sCG}, 7
    s_add_u32 s{sT0}, s{sT0}, {WS_MODG}
    buffer_store_dwordx2 v[{AC+2}:{AC+3}], v{U+2}, {S4(S_L)}, s{sT0} offen sc1
    s_branch {join}
    """)
    a(f"{bc}:")
    vm = VM()
    isc = a.label("roleC")
    a(f"""
    s_lshr_b32 s{sT0}, s2, 3
    s_sub_u32 s{sT0}, s{sT0}, 8
    s_lshl_b32 s{sT0}, s{sT0}, 2
    s_add_u32 s{sT0}, s{sT0}, s{sWAVE}
    s_mul_i32 s{sT0}, s{sT0}, {8*12288}
    s_lshl_b32 s{sT3}, s{sT3}, 9
    v_lshrrev_b32 v{T+4}, 2, v{vLANE}
    v_mul_u32_u24 v{T+4}, 12288, v{T+4}
    v_lshl_add_u32 v{T+4}, v{T+2}, 7, v{T+4}
    s_cmp_ge_u32 s2, 192
    s_cbranch_scc1 {isc}
    s_add_u32 s{sT0}, s{sT0}, s{sT3}
    v_lshrrev_b32 v{T+5}, 5, v{vLANE}
    {"v_mul_u32_u24 v%d, %d, v%d" % (T+5, 8*12288 - 64, T+5) if OPT["t64"] & 4 else "v_lshlrev_b32 v%d, 24, v%d" % (T+5, T+5)}
    {"v_sub_u32" if OPT["t64"] & 4 else "v_add_u32"} v{T+4}, v{T+4}, v{T+5}
    buffer_load_dword v212, v{T+4}, {S4(S_M)}, s{sT0} offen
    v_lshrrev_b32 v{T+1}, 3, v0
    s_and_b32 s{sT0}, s{sCG}, 1
    s_lshl_b32 s{sT0}, s{sT0}, 5
    v_add_u32 v{T+1}, s{sT0}, v{T+1}
    v_mul_u32_u24 v{vMO}, {16*12288}, v{T+1}
    v_lshl_add_u32 v{vMO}, v{vROW}, 4, v{vMO}
    v_lshlrev_b32 v{T+1}, 5, v{T+1}
    s_and_b32 s{sMO}, s{sMO}, {0xffffff80}
    """)
    vm.add("T")
    xloads(vm); cloads(vm)
    jb = join2 if OPT["bnorm"] else join
    mid = [lambda w: w("s_waitcnt lgkmcnt(0)\ns_barrier"), w_norm] if OPT["bnorm"] else []
    gemv(vm, side_of(w_zero, w_stats, w_silu, *mid, lambda w: w_fma(w, range(16))), {}, wide=True)
    st.n = n0
    st()
    nonce()
    a("s_waitcnt lgkmcnt(0)\ns_barrier")
    a(f"s_cmp_lg_u32 s{sWAVE}, 0\ns_cbranch_scc1 {jb}")
    a(f"v_lshlrev_b32 v{U}, 10, v{vG}\nv_lshl_add_u32 v{U}, v{vQ}, 4, v{U}")
    for i in range(4): a(f"ds_read_b128 {R('v', WD + 4*i)}, v{U} offset:{1024 + 256*i}")
    a(f"""
    v_lshlrev_b32 v{U+2}, 24, v{vG}
    v_lshl_add_u32 v{U+2}, v{vQ}, 4, v{U+2}
    s_and_b32 s{sT0}, s{sCG}, 1
    s_lshl_b32 s{sT0}, s{sT0}, 14
    s_lshr_b32 s{sT1}, s{sCG}, 1
    s_lshl_b32 s{sT1}, s{sT1}, 8
    s_add_u32 s{sT0}, s{sT0}, s{sT1}
    s_add_u32 s{sT0}, s{sT0}, {WS_MODP - 32*256}
    s_waitcnt lgkmcnt(0)
    """)
    for j in (0, 2):
        a(pk("add", WD + j, WD + j, WD + 4 + j)); a(pk("add", WD + 8 + j, WD + 8 + j, WD + 12 + j)); a(pk("add", WD + j, WD + j, WD + 8 + j))
    swap_red(a, [WD + i for i in range(4)], [WD + 4 + i for i in range(4)])
    a(f"buffer_store_dwordx4 {R('v', WD)}, v{U+2}, {S4(S_L)}, s{sT0} offen sc1\ns_branch {jb}")
    a(f"{isc}:\ns_lshl_b32 s{sT0}, s{sT0}, 1\ns_add_u32 s{sT0}, s{sT0}, s{sT3}\ns_sub_u32 s{sT0}, s{sT0}, {512*12288}")
    vm = VM()
    a(f"buffer_load_dword v212, v{T+4}, {S4(S_M)}, s{sT0} offen"); vm.add("T")
    if OPT["t64"] & 4:
        a(f"v_xor_b32 v{T+5}, 3, v{T+2}\nv_lshl_add_u32 v{T+5}, v{T+5}, 24, v{T+4}\nbuffer_load_dword v219, v{T+5}, {S4(S_M)}, s{sT0} offen offset:64"); vm.add("T")
    if OPT["c3"]:
        a(f"""
        s_lshr_b32 s{sT0}, s2, 3
        s_sub_u32 s{sT0}, s{sT0}, 24
        s_lshl_b32 s{sT0}, s{sT0}, 2
        s_add_u32 s{sT0}, s{sT0}, s{sWAVE}
        s_mul_i32 s{sT0}, s{sT0}, {32*12288}
        s_lshl_b32 s{sT3}, s{sT3}, 1
        s_add_u32 s{sT0}, s{sT0}, s{sT3}
        s_add_u32 s{sT0}, s{sT0}, {4096 + 384}
        v_and_b32 v{T+5}, 31, v{vLANE}
        v_mul_u32_u24 v{T+5}, 12288, v{T+5}
        v_and_b32 v{T+6}, {32 if OPT["t64"] & 4 else 0}, v{vLANE}
        v_lshl_add_u32 v{T+5}, v{T+6}, 1, v{T+5}
        buffer_load_dword v213, v{T+5}, {S4(S_M)}, s{sT0} offen
        """)
        vm.add("T")
    xloads(vm)
    if OPT["tlb"]:
        mb = [4, 16, 16, 8, 8, 0, 1, 7, 7, 7, 0, 0, 4, 0, 32, 0]
        w = [sum(mb[4*i + j] << (8*j) for j in range(4)) for i in range(4)]
        a(f"""
        s_bfe_u32 s{sT0}, s2, 0x20003
        s_cmp_eq_u32 s{sT0}, 1
        s_mov_b32 s{sT2}, {w[0]}
        s_cselect_b32 s{sT2}, {w[1]}, s{sT2}
        s_cmp_eq_u32 s{sT0}, 2
        s_cselect_b32 s{sT2}, {w[2]}, s{sT2}
        s_cmp_eq_u32 s{sT0}, 3
        s_cselect_b32 s{sT2}, {w[3]}, s{sT2}
        s_lshl_b32 s{sT0}, s{sT0}, 2
        s_add_u32 s{sT0}, s{sT0}, s{sWAVE}
        s_min_u32 s{sT0}, s{sT0}, 14
        s_lshl_b32 s{sT0}, s{sT0}, 3
        s_load_dwordx2 s[{S_D}:{S_D+1}], s[0:1], s{sT0}
        s_lshl_b32 s{sT1}, s{sWAVE}, 3
        s_lshr_b32 s{sT2}, s{sT2}, s{sT1}
        s_and_b32 s{sT2}, s{sT2}, 0xff
        s_lshl_b32 s{sT2}, s{sT2}, 20
        s_sub_u32 s{sT2}, s{sT2}, {(1 << 20) - 4}
        s_cselect_b32 s{S_D+2}, 0, s{sT2}
        s_mov_b32 s{S_D+3}, 0x20000
        v_lshlrev_b32 v{T+5}, 20, v{vLANE}
        s_waitcnt lgkmcnt(0)
        s_and_b32 s{S_D+1}, s{S_D+1}, 0xffff
        buffer_load_dword v221, v{T+5}, {S4(S_D)}, 0 offen
        """)
        vm.add("T")
    if OPT["cwq"]:
        a(f"""
        s_sub_u32 s{sT0}, s{sG64}, 24
        s_lshl_b32 s{sT0}, s{sT0}, 18
        v_lshrrev_b32 v{T+5}, 1, v{vLANE}
        v_lshlrev_b32 v{T+5}, 13, v{T+5}
        v_and_b32 v{T+6}, 1, v{vLANE}
        v_lshl_add_u32 v{T+5}, v{T+6}, 7, v{T+5}
        buffer_load_dword v214, v{T+5}, {S4(S_W)}, s{sT0} offen
        """)
        vm.add("T")
        if OPT["t64"] & 8:
            a(f"v_xor_b32 v{T+6}, 1, v{T+6}\nv_lshl_add_u32 v{T+5}, v{T+6}, 24, v{T+5}\nbuffer_load_dword v220, v{T+5}, {S4(S_W)}, s{sT0} offen offset:64"); vm.add("T")
    run_side(side_of(w_zero, w_stats), vm)
    st.n = n0
    st()
    nonce()
    a("s_waitcnt lgkmcnt(0)\ns_barrier")
    a(f"{join}:")
    w_norm(a)
    a(f"{join2}:")
    st()
    vm = VM()
    for i in range(OPT["qt0"]): g.issue(g.touch(), vm)
    LW, LR, HO = T, T + 1, T + 2
    a(f"""
    v_lshlrev_b32 v{LW}, 3, v{vLANE}
    v_lshl_add_u32 v{LW}, v10, 10, v{LW}
    v_add_u32 v{LW}, 8192, v{LW}
    v_lshrrev_b32 v{HO}, 3, v{vLANE}
    v_lshlrev_b32 v{LR}, 4, v{HO}
    v_lshl_add_u32 v{LR}, v10, 10, v{LR}
    v_lshl_add_u32 v{HO}, v10, 5, v{HO}
    v_lshlrev_b32 v{HO}, 8, v{HO}
    v_lshl_add_u32 v{HO}, v{vROW}, 4, v{HO}
    v_mov_b32 v{NV}, s{sNONCE}
    s_lshr_b32 s{sT2}, s{sSL}, 1
    s_lshl_b32 s{sT2}, s{sT2}, 15
    s_and_b32 s{sT3}, s{sSL}, 1
    s_lshl_b32 s{sT3}, s{sT3}, 7
    s_add_u32 s{sT2}, s{sT2}, s{sT3}
    s_add_u32 s{sT2}, s{sT2}, {WS_H}
    s_add_u32 s{sT3}, s{sT2}, 4096
    s_lshl_b32 s{sT0}, s{sWAVE}, 10
    s_add_u32 s{sT0}, s{sT0}, {WS_MODG}
    s_add_u32 s{sT1}, s{sT0}, 4096
    """)
    d3()
    G = XP
    poll(a, [f"buffer_load_dwordx4 {R('v', G)}, v{vL16}, {S4(S_L)}, s{sT0} offen sc1", f"buffer_load_dwordx4 {R('v', G+4)}, v{vL16}, {S4(S_L)}, s{sT1} offen sc1"],
         bad_tags([G + 1, G + 3, G + 5, G + 7], U), "mod")
    st()
    a(f"ds_write2_b32 v{LW}, v{G}, v{G+2} offset0:0 offset1:1\nds_write2_b32 v{LW}, v{G+4}, v{G+6} offset0:128 offset1:129\ns_waitcnt lgkmcnt(0)")
    SH, SC = 112, 128
    for i in range(4):
        a(f"ds_read_b128 {R('v', SC + 4*i)}, v{LR} offset:{8192 + 512 + 128*i}\nds_read_b128 {R('v', SH + 4*i)}, v{LR} offset:{8192 + 128*i}")
    a(f"""
    s_lshl_b32 s{sT0}, s{sSL}, 2
    s_add_u32 s{sT0}, s{sT0}, s{sWAVE}
    s_lshl_b32 s{sT0}, s{sT0}, {FS}
    s_add_u32 s{sT0}, s{sT0}, {WS_F2}
    s_lshl_b32 s{sT1}, s{sG64}, {5+FS}
    s_add_u32 s{sT1}, s{sT1}, {WS_F2}
    v_and_b32 v212, {28 if OPT["wgf"] else 31}, v{vLANE}
    v_lshl_add_u32 v212, v212, {FS}, s{sT1}
    """)
    vm = VM()
    for i in range(4):
        a(f"s_waitcnt lgkmcnt({6 - 2*i})")
        for j in range(4*i, 4*i + 4):
            unpack(a, U + 2, U + 3, SC + j); a(pk("mul", X + 2*j, X + 2*j, U + 2)); rnd(a, X + 2*j, X + 2*j + 1)
            unpack(a, U + 2, U + 3, SH + j); a(pk("add", X + 2*j, X + 2*j, U + 2))
            a(f"v_cvt_pk_bf16_f32 v{SH+j}, v{X+2*j}, v{X+2*j+1}")
        a(f"buffer_store_dwordx4 {R('v', SH + 4*i)}, v{HO}, {S4(S_L)}, s{sT2 if i < 2 else sT3} offen offset:{2048*(i % 2)} sc1"); vm.add("H")
    wq = [(c, p) for c in range(4) for p in range(4)][:13]
    for c, p in wq[:OPT["w1"]]: g.issue(g.dma(c, p), vm)
    d3()
    if OPT["full"]: a(f"v_lshrrev_b32 v{vF0}, 5, v{0 if OPT['wgf'] else vLANE}\nv_lshlrev_b32 v{vF0}, 24, v{vF0}\nv_lshl_add_u32 v{vF0}, v{vLANE}, 2, v{vF0}")
    elif OPT["wgf"]: a(f"v_min_u32 v{vF0}, 64, v0\nv_lshlrev_b32 v{vF0}, 24, v{vF0}")
    a(f"s_waitcnt vmcnt({vm.count('H')})")
    if OPT["wgf"]: a("s_barrier")
    a(f"buffer_store_dword v{NV}, v{vF0}, {S4(S_L)}, s{sT0} offen sc1"); vm.add("F")
    st()
    for c, p in wq[OPT["w1"]:OPT["w2"]]: g.issue(g.dma(c, p), vm)
    g.wrest = wq[OPT["w2"]:]
    if OPT["cwq"]: a(g.touch()[2])
    for i in range(OPT["qt0"] + OPT["cwq"], 2): g.issue(g.touch(), vm)
    a(f"s_sub_u32 s{sT0}, s2, 64\ns_cmp_lt_u32 s{sT0}, 128\ns_cselect_b32 s{sT0}, 0, {1 << 24}\ns_add_u32 s{sT0}, s{sT0}, {WS_F1}\ns_lshl_b32 s{sCG}, s{sCG}, {FS}\ns_add_u32 s{sT0}, s{sT0}, s{sCG}")
    a(f"buffer_store_dword v{NV}, v{vF0}, {S4(S_L)}, s{sT0} offen sc1")
    d3()
    hl = f"buffer_load_dword v213, v212, {S4(S_L)}, 0 offen sc1"
    if OPT["hearly"]: a(hl)
    g.between()
    if OPT["hearly"]: poll(a, [hl], bad_tags([213], None), "h", first="s_waitcnt vmcnt(0)")
    else: a("s_waitcnt vmcnt(0)"); poll(a, [hl], bad_tags([213], None), "h")
    st()
    def after_b():
        for i in range(0, 128, 2): a(f"v_mov_b64 v[{16+i}:{17+i}], 0")
    g.after_b = after_b
```

```python
import struct
from asmlib import Asm

NAME = "adaLN_cond__mha_block_cached__moe_arch_mod__prompt_kernel"
P0 = 68
PTR = {n: P0 + 2*i for i, n in enumerate("x k v wq wo bx wr wg wu wd c wmod out dbg ws".split())}

WS_MODP = 0x60000
WS_MODG = 0x4000
WS_NONCE = 0xB000
FS = 7
WS_F1 = 0x10000
WS_F2 = 0x20000
WS_F3 = 0x40000
WS_KEY = 0x18000
WS_H = 0x400000
WS_HO = 0x800000
HO_EX, HO_YP, HO_ST, HO_CH, HO_CB = 0, 16384, 24576, 26624, 27648
WS_O = 0x1000000
WS_STG = 0x2000000
WS_TS = 0x4000000
LOG2E = 1.4426950408889634

PIECE = 1056
TILE = 16 * PIECE
KRING, VRING = 0, 4 * TILE
LDS_FLAG = 8 * TILE
LDS_CST = 8 * TILE + 64
CSTW = 4 * PIECE + 2048 + 256
LDS_TOTAL = LDS_CST + 4 * CSTW
MW = 144

OPT = dict(diag=0, safe=0, spin=1 << 16, skew=6, barp=2, rg=[1, 2, 4, 5], vg=[3, 6], pat=[0, 2, 4, 6, 1, 1, 3, 3, 5], ctch=7, full=1, slp=0, wgf=1, hearly=1, nonc=0, t64=0, ofl=1, kvf=0, wf=0, bias=1, fpos=12, dbg=0, tlb=1, mvp=1, slx=1, exn=126, t3=1, sv=4, guw=0, nw=6, kvt=1, halftr=0, xa=0, nct=1, q8=1, qsn=2, osn=2, grp=1, pvs=0, bnorm=1, c3=1, cwq=1, qt0=0, qtouch=1, w1=0, w2=13, qdb=2, exoff=0, mlead=2, mslice=44, mlag=4)

def f2u(x): return "0x%08x" % struct.unpack("<I", struct.pack("<f", x))[0]
def R(f, i, n=4): return f"{f}[{i}:{i+n-1}]" if n > 1 else f"{f}{i}"
def S4(i): return f"s[{i}:{i+3}]"
def mf(d, A, B, c=None): return f"v_mfma_f32_16x16x32_bf16 {d}, {A}, {B}, {c if c is not None else d}"
def pk(op, d, x, y, z=None, mods=""):
    r2 = lambda r: r if isinstance(r, str) else f"v[{r}:{r+1}]"
    return f"v_pk_{op}_f32 {r2(d)}, {r2(x)}, {r2(y)}" + (f", {r2(z)}" if z is not None else "") + (" " + mods if mods else "")
def emit(a, mfmas, gaps):
    for g, m in enumerate(mfmas):
        a(m)
        for s in gaps.get(g, []): a(s)
def unpack(a, lo, hi, src):
    a(f"v_lshlrev_b32 v{lo}, 16, v{src}\nv_and_b32 v{hi}, 0xffff0000, v{src}")
def rnd(a, lo, hi, slo=None, shi=None):
    a(f"v_cvt_pk_bf16_f32 v{hi}, v{lo if slo is None else slo}, v{hi if shi is None else shi}")
    unpack(a, lo, hi, hi)
def swap_red(a, regs, tmps, op="v_add_f32"):
    for sw in ("v_permlane16_swap_b32", "v_permlane32_swap_b32"):
        for r_, t in zip(regs, tmps): a(f"v_mov_b32 v{t}, v{r_}")
        if len(regs) < 3: a(f"s_nop {2 - len(regs)}")
        for r_, t in zip(regs, tmps): a(f"{sw} v{r_}, v{t}")
        for r_, t in zip(regs, tmps): a(f"{op} v{r_}, v{r_}, v{t}")
def red8(a, regs, tmps):
    a("s_nop 1")
    for r_ in regs: a(f"v_add_f32_dpp v{r_}, v{r_}, v{r_} row_ror:8 row_mask:0xf bank_mask:0xf")
    swap_red(a, regs, tmps)
def shuffle(a, regs):
    a("s_nop 1")
    for sw in ("v_permlane32_swap_b32", "v_permlane16_swap_b32"):
        for d in regs: a(f"{sw} v{d}, v{d+2}\n{sw} v{d+1}, v{d+3}")
def top2_row(a, m1, m2, t):
    for sh in (8, 4, 2, 1):
        a("s_nop 1")
        a(f"v_min_u32_dpp v{t}, v{m1}, v{m1} row_ror:{sh} row_mask:0xf bank_mask:0xf")
        a(f"v_max_u32_dpp v{t+1}, v{m2}, v{m2} row_ror:{sh} row_mask:0xf bank_mask:0xf")
        a(f"v_max_u32_dpp v{m1}, v{m1}, v{m1} row_ror:{sh} row_mask:0xf bank_mask:0xf")
        a(f"v_max_u32 v{m2}, v{t}, v{t+1}")

class VM:
    def __init__(self): self.ops = []
    def add(self, tag): self.ops.append(tag)
    def count(self, *tags):
        last = max((i for i, t in enumerate(self.ops) if t in tags), default=-1)
        return min(len(self.ops) - 1 - last, 63)

sWAVE, sHEAD, sQB, sG64, sU, sG, sNT, sKH, sSL, sNONCE, sMW, sMW2 = 3, 52, 53, 54, 55, 56, 57, 58, 59, 60, 61, 62
sT0, sT1, sT2, sT3, sSPIN, sCNT = 44, 45, 46, 47, 48, 49
S_L = 4
vL16, vLANE, vG, vQ = 1, 11, 12, 13

def poll(a, loads, bad, name, first=None):
    lp, ok, ck = a.label("poll"), a.label("got" + name), a.label("chk")
    a(f"s_mov_b32 s{sSPIN}, 0")
    if first: a(f"{first}\ns_branch {ck}")
    a(f"{lp}:")
    for l in loads: a(l)
    a("s_waitcnt vmcnt(0)")
    if first: a(f"{ck}:")
    for l in bad: a(l)
    a(f"s_add_u32 s{sSPIN}, s{sSPIN}, 1\ns_cbranch_vccz {ok}")
    if OPT["slp"]: a(f"s_sleep {OPT['slp']}")
    a(f"s_cmp_lt_u32 s{sSPIN}, {OPT['spin']}\ns_cbranch_scc1 {lp}\n{ok}:")
def bad_sentinel(regs, t):
    out = []
    if len(regs) == 1: t = regs[0]
    else:
        out.append(f"v_max_u32 v{t}, v{regs[0]}, v{regs[1]}")
        for i in range(2, len(regs), 2): out.append(f"v_max3_u32 v{t}, v{t}, v{regs[i]}, v{regs[i+1]}")
    return out + [f"v_cmp_eq_u32 vcc, -1, v{t}"]
def bad_tags(regs, t):
    if len(regs) == 1: return [f"v_cmp_ne_u32 vcc, s{sNONCE}, v{regs[0]}"]
    out = [f"v_xor_b32 v{t}, s{sNONCE}, v{regs[0]}"]
    for r_ in regs[1:]: out += [f"v_xor_b32 v{t+1}, s{sNONCE}, v{r_}", f"v_or_b32 v{t}, v{t}, v{t+1}"]
    return out + [f"v_cmp_ne_u32 vcc, 0, v{t}"]

class Stamps:
    def __init__(self, a): self.a, self.n = a, 0
    def __call__(self):
        if not OPT["diag"] or self.n >= 32: return
        a = self.a
        if self.n == 0: a("v_mov_b32 v255, -1")
        a("s_memrealtime s[98:99]\ns_memtime s[100:101]\ns_waitcnt lgkmcnt(0)")
        a(f"v_writelane_b32 v255, s98, {2*self.n}\nv_writelane_b32 v255, s100, {2*self.n+1}")
        self.n += 1
    def dyn(self, cnt, lvl=2):
        if OPT["diag"] != lvl: return
        a = self.a
        a(f"s_memrealtime s[98:99]\ns_memtime s[100:101]\ns_waitcnt lgkmcnt(0)\ns_lshl_b32 s99, s{cnt}, 1\ns_add_u32 s99, s99, 48\ns_add_u32 s101, s99, 1\ns_mov_b32 m0, s99")
        a("v_writelane_b32 v255, s98, m0\ns_mov_b32 m0, s101\nv_writelane_b32 v255, s100, m0")
    def flush(self):
        if not OPT["diag"]: return
        a = self.a
        a.srd(8, PTR["ws"], 1 << 20, WS_TS)
        a(f"s_lshl_b32 s98, s2, 2\ns_add_u32 s98, s98, s{sWAVE}\ns_lshl_b32 s98, s98, 8\nv_lshlrev_b32 v254, 2, v{vLANE}")
        a("buffer_store_dword v255, v254, s[8:11], s98 offen")
        if OPT["dbg"]:
            a.srd(8, PTR["dbg"], 64)
            a(f"v_readlane_b32 s98, v255, 0\ns_xor_b32 s99, s2, {OPT['dbg']}\ns_or_b32 s99, s99, s{sWAVE}\ns_lshl_b32 s99, s99, 8\nv_subrev_u32 v255, s98, v255")
            a(f"v_and_b32 v254, 1, v{vLANE}\nv_lshl_add_u32 v254, v254, 8, v{vLANE}\nbuffer_store_short v255, v254, s[8:11], s99 offen")

FL = ["", "sc1", "nt", "sc0 sc1", "sc0"]
```

```python
from common import *
from front import *
from attn import strictest

S_OUT = S_O
vB0, vX0, vC = 6, 8, 9
vAS, vAK = (3, 4), (5, 15)
ACC, AF, XF, GA, C1, SBv, GBv, WP, T = 16, 48, 80, 112, 128, 144, 160, 176, 192
SENT, BR = 216, 0
sHO = 67
LDS_DN, LDS_RED = 4*TILE, 4*TILE + 32768

def const_ops():
    ops = []
    for p in range(4):
        ops.append((f"s_add_u32 m0, s{sT0}, {p*PIECE}", f"buffer_load_dwordx4 v14, {S4(S_WG)}, s{sT2} offen lds", f"s_add_u32 s{sT2}, s{sT2}, 16384", "C"))
    for e in range(2):
        ops.append((f"s_add_u32 m0, s{sT0}, {4*PIECE + 1024*e}", f"buffer_load_dwordx4 v15, {S4(S_L)}, s{sT1} offen sc1 lds", f"s_add_u32 s{sT1}, s{sT1}, 16384", "C"))
    ops.append((f"s_add_u32 m0, s{sT0}, {4*PIECE + 2048}", f"buffer_load_dword v{vL4}, {S4(S_WU)}, 0 offen lds", None, "C"))
    return ops

vL4 = 253
def const_setup(a):
    a(f"v_lshrrev_b32 v15, 3, v{vLANE}\nv_and_b32 v14, 7, v{vLANE}\nv_lshlrev_b32 v14, 4, v14\nv_lshl_add_u32 v14, v15, 11, v14")
    a(f"v_lshlrev_b32 v15, 12, v{vG}\nv_lshl_add_u32 v15, v{vQ}, 4, v15")
    a(f"s_lshl_b32 s{sT0}, s{sNT}, 7\ns_lshl_b32 s{sT1}, s{sG}, 16\ns_add_u32 s{sT1}, s{sT1}, s{sT0}")
    a.srd(S_WG, PTR["x"], 65536 - 1920, f"s{sT1}")
    a.srd(S_WU, PTR["wr"], 128, f"s{sT0}")
    a(f"s_lshl_b32 s{sT1}, s{sNT}, 8\ns_add_u32 s{sT1}, s{sT1}, {WS_MODP}\ns_mul_i32 s{sT0}, s{sWAVE}, {CSTW}\ns_add_u32 s{sT0}, s{sT0}, {LDS_CST}\ns_mov_b32 s{sT2}, 0")

def setup_w(a):
    a(f"""
    v_lshlrev_b32 v14, 4, v{vG}
    v_lshl_add_u32 v14, v10, 2, v14
    v_lshlrev_b32 v14, 11, v14
    v_lshl_add_u32 v{vWOFF}, v{vQ}, 4, v14
    s_mul_i32 s{sWA}, s{sKH}, {63 << 17}
    s_mul_i32 s{sWOFF}, s{sKH}, {55 << 17}
    s_add_u32 s{sWOFF}, s{sWOFF}, {4 << 17}
    s_mul_i32 s{sWST}, s{sKH}, {(-128*2048) & 0xffffffff}
    s_add_u32 s{sWST}, s{sWST}, {61*2048}
    s_lshr_b32 s{sT0}, s{sNT}, 1
    s_lshl_b32 s{sT0}, s{sT0}, 8
    """)
    a.srd(S_W, PTR["wo"], (8 << 20) - 1792, f"s{sT0}")

OUT = []
vF2, vFL = 248, 254

class OProj:
    def __init__(self, a): self.a, self.vm, self.db, self.body = a, VM(), 3, 0
    def dma(self, c, p):
        base = sMW if (c // 4) % 2 == self.body % 2 else sMW2
        sWOFF = sWA if c < 4 else globals()["sWOFF"]
        return (f"s_add_u32 m0, s{base}, {(c % 4)*TILE + p*1024 + (p >> 1)*64 + (p & 1)*8}", f"buffer_load_dwordx4 v{vWOFF}, {S4(S_W)}, s{sWOFF} offen {FL[OPT['wf']]} lds",
                f"s_add_u32 s{sWOFF}, s{sWOFF}, {2048 if p < 3 else 's%d' % sWST}", ("W", c))
    def bfrag(self, c, qb, ks): return R("a", BR + 16*(c % 4) + (64 if c >= 28 else 0) + 8*qb + 4*ks)
    def bload(self, c, i):
        qb, ks = i // 2, i % 2
        return (None, f"buffer_load_dwordx4 {self.bfrag(c, qb, ks)}, v{vB0+qb}, {S4(S_B)}, s{sBOFF} offen offset:{ks*1024} sc1",
                f"s_add_u32 s{sBOFF}, s{sBOFF}, s{sBS + c % 2}" if i == 3 else None, ("B", c))
    def acc(self, s, j, qb): return R("v", (SENT if s < 2 else ACC) + 16*qb + 4*(2*(s % 2) + j))
    def issue(self, op, a=None):
        a = a or self.a
        if op[0]: a(op[0]); a("s_nop 0")
        a(op[1]); self.vm.add(op[3])
        if op[2]: a(op[2])
    def areads(self, c, s, buf):
        base = (vAS if s < 2 else vAK)[0 if c // 4 == self.body else 1]
        return [f"ds_read_b64_tr_b16 {R('v', AF + 16*buf + 8*j + 4*ks + 2*jj, 2)}, v{base} offset:{(c % 4)*TILE + (2*ks + jj)*256 + (s % 2)*64 + j*8}"
                for j in range(2) for ks in range(2) for jj in range(2)]
    def expand1(self):
        a = self.a
        a(f"""
        s_mul_i32 s{sT0}, s{sWAVE}, {CSTW}
        s_add_u32 s{sT0}, s{sT0}, {LDS_CST}
        v_lshl_add_u32 v21, v{vG}, 4, s{sT0}
        v_lshrrev_b32 v20, 3, v{vQ}
        v_mul_u32_u24 v20, {PIECE - 1024}, v20
        v_lshl_add_u32 v20, v{vQ}, 7, v20
        v_add_u32 v20, v20, v21
        """)
        a(f"""
        v_add_u32 v22, s{sT0}, v{vL16}
        ds_read_b128 v[24:27], v22 offset:{4*PIECE}
        ds_read_b128 v[28:31], v22 offset:{4*PIECE + 1024}
        """)
        rd = [(XF + 16*qb + 8*h, 20, 2*qb*PIECE + h*64) for qb in range(2) for h in range(2)] + [(WP + 8*h, 21, 4*PIECE + 2048 + h*64) for h in range(2)]
        for d, v, off in rd: a(f"ds_read_b128 {R('v', d + 4)}, v{v} offset:{off}")
        a(f"v_cmp_eq_u32 vcc, 2, v{vG}\nv_lshl_add_u32 v21, v{vG}, 5, s{sT0}\nv_mov_b32 v33, 0\nv_cndmask_b32 v32, 0, 1.0, vcc\ns_waitcnt lgkmcnt(6)")
        for j in (24, 26):
            a(pk("add", j, j, j + 4)); rnd(a, j, j + 1); a(pk("add", j, j, 32, mods="op_sel_hi:[1,0]")); rnd(a, j, j + 1)
        a(f"ds_write_b128 v22, v[24:27] offset:{4*PIECE}\ns_waitcnt lgkmcnt(0)")
        for j, dst in enumerate((GA, SBv, C1, GBv)):
            if j == 3: a("s_waitcnt lgkmcnt(8)")
            for nb in range(4): a(f"ds_read_b128 {R('v', dst + 4*nb)}, v21 offset:{4*PIECE + j*256 + (nb // 2)*128 + (nb % 2)*16}")
        for d, v, off in rd:
            for i in range(4): unpack(a, d + 2*i, d + 2*i + 1, d + 4 + i)
    def expand2(self):
        a = self.a
        a("s_waitcnt lgkmcnt(0)")
        for i in range(0, 16, 2):
            a(pk("mul", T + 2, SBv + i, WP + i) if i == 0 else pk("fma", T + 2, SBv + i, WP + i, T + 2))
            a(pk("mul", WP + i, WP + i, C1 + i))
            if i == 2: a(pk("add", T + 4, WP, WP + 2))
            elif i > 2: a(pk("add", T + 4, T + 4, WP + i))
        a(f"v_and_b32 v{T}, 1, v0\nv_cmp_eq_u32 vcc, 1, v{T}\nv_add_f32 v{T+2}, v{T+2}, v{T+3}\nv_add_f32 v{T+4}, v{T+4}, v{T+5}\nv_cndmask_b32 v14, v{T+4}, v{T+2}, vcc")
        swap_red(a, [14], [T])
    def send(self):
        out = [f"s_xor_b32 s{sT0}, s{sHO}, 32768", f"s_lshl_b32 s{sT1}, s{sWAVE}, 12", f"s_add_u32 s{sT0}, s{sT0}, s{sT1}", f"s_add_u32 s{sT2}, s{sHO}, s{sT1}"]
        for n in (0, 2, 1, 3):
            for i in range(4): out.append(f"v_cvt_pk_bf16_f32 v{T + 4*n + i}, v{SENT + 8*n + 2*i}, v{SENT + 8*n + 2*i + 1}")
            out.append(f"buffer_store_dwordx4 {R('v', T + 4*n)}, v{vL16}, {S4(S_L)}, s{sT0} offen offset:{HO_EX + n*1024} sc1")
        return out
    def stream(self, NC, exq):
        sk, barp, RG, VG = min(OPT["skew"], NC - 24), OPT["barp"], OPT["rg"], OPT["vg"]
        order = [(c, s) for c in range(NC - sk) for s in range(4)]
        order += [(c, s) for c in range(NC - sk, NC) for s in range(2)] + [(c, s) for c in range(NC - sk, NC) for s in range(2, 4)]
        bq = [(c, i) for c in range(self.db, NC) for i in range(4)]
        visible, waitedB, sendq, bodies = set(range(barp)), {0}, None, []
        wq, freed = None, set()
        for n, (c, s) in enumerate(order):
            if n % 16 == 0 and n <= 96: a = Asm(); bodies.append(a); self.body = n // 16
            buf = n % 2
            ms = [mf(self.acc(s, j, qb), R("v", AF + 16*buf + (0 if OPT["halftr"] & 1 else 8*j) + 4*ks), self.bfrag(c - (j if OPT["halftr"] & 1 and c else 0), qb, ks), "0" if c == 0 and k == 0 else None)
                  for j in range(2) for qb in ((0, 1) if j == 0 or not OPT['osn'] & 2 else (1, 0)) for k, ks in enumerate((0, 1) if qb == 0 or not OPT['osn'] & 1 else (1, 0))]
            gaps = {g: [] for g in range(8)}
            nxt = order[n + 1] if n + 1 < len(order) else None
            wn = n + 1 + 4*(7 - barp)
            if n == 96: wq = [(i // 4, i % 4) for i in range(wn, 4*NC)]
            if 16 <= n < 96 and n % 16 == OPT["fpos"]: gaps[0].append(self.fl); self.vm.add("F")
            if n == 48: self.fwait = self.vm.count("F")
            for g in range(8):
                needfree = n >= 96 and wq and wq[0][0] - 8 not in freed and all((wq[0][0] - 8, ss) in order[:n] for ss in range(4))
                if g == RG[0] and nxt and (nxt[0] not in visible or needfree):
                    lb = max(i for i, t in enumerate(self.vm.ops) if t[0] == "B" and t[1] in waitedB)
                    if n < 96: newv = list(range(nxt[0], nxt[0] + barp))
                    else: newv = [nxt[0]]
                    lw = max(i for i, t in enumerate(self.vm.ops) if t[0] == "W" and t[1] in newv)
                    assert n < 96 or not any(w[0] in newv for w in wq)
                    if lw > lb: gaps[g].append(f"s_waitcnt vmcnt({min(63, len(self.vm.ops) - 1 - int(lw))})")
                    gaps[g].append("s_barrier")
                    if n >= 96:
                        newv += [cc for cc in range(NC) if not any(w[0] == cc for w in wq) and max(i for i, t in enumerate(self.vm.ops) if t == ("W", cc)) <= max(lw, lb)]
                    visible |= set(newv)
                    freed |= {cc for cc in range(32) if all((cc, ss) in order[:n] for ss in range(4))}
                if g == 3 and n > 0: gaps[g].append(f"s_waitcnt lgkmcnt({2*len([x for x in RG if x < 3]) if nxt else 0})")
                if g in RG and nxt:
                    k = RG.index(g)
                    if not (OPT["halftr"] & 1 and k >= 2): gaps[g] += self.areads(nxt[0], nxt[1], 1 - buf)[2*k:2*k + 2]
                if g in VG or (n >= 96 and g == 0 and OPT["t3"]):
                    op, first = None, g != VG[1]
                    if first and bq: op = self.bload(*bq.pop(0))
                    elif not first and n < 96 and wn >= 4*OPT['nw']: op = self.dma(wn // 4, wn % 4)
                    elif n >= 96 and g > 0 and wq and wq[0][0] - 8 in freed: op = self.dma(*wq.pop(0))
                    elif n >= 96 and bq: op = self.bload(*bq.pop(0))
                    elif n >= OPT["exn"] - 4*(32 - NC) and exq and sendq == []: op = (None, exq.pop(0), None, "E")
                    if op:
                        if op[0]: gaps[g - 1].insert(0, op[0])
                        gaps[g].append(op[1]); self.vm.add(op[3])
                        if op[2]: gaps[g + 1].insert(0, op[2])
                if sendq and g not in RG and not any(x.startswith("buffer") for x in gaps[g]):
                    while sendq and len([x for x in gaps[g] if x.startswith("v_")]) < OPT["sv"]:
                        x = sendq[0]
                        if x.startswith("buffer") and any(y.startswith("v_") for y in gaps[g]): break
                        gaps[g].append(sendq.pop(0))
                        if x.startswith("buffer"):
                            self.vm.add("S")
                            if OPT["sv"] == 2: break
            if nxt and nxt[0] not in waitedB:
                assert not any(b[0] == nxt[0] for b in bq)
                gaps[7].insert(0, f"s_waitcnt vmcnt({self.vm.count(('B', nxt[0]))}) lgkmcnt(4)"); waitedB.add(nxt[0])
            elif nxt: gaps[7].insert(0, "s_waitcnt lgkmcnt(4)")
            if n % 16 == 15 and n < 96:
                gaps[6] += [f"s_mov_b32 s{sT0}, s{sMW}"]
                gaps[7] += [f"v_swap_b32 v{vAS[0]}, v{vAS[1]}", f"v_swap_b32 v{vAK[0]}, v{vAK[1]}", f"s_mov_b32 s{sMW}, s{sMW2}", f"s_mov_b32 s{sMW2}, s{sT0}"]
            emit(a, ms, gaps)
            if n == 100 and OPT["ctch"] & 2: a("global_load_dword v249, v[250:251], off"); self.vm.add("T")
            if (c, s) == (NC - 1, 1): sendq = self.send()
        assert not bq and not wq
        for x in sendq + exq: a(x)
        return [b.lines for b in bodies]
    def main(self, st, exq):
        a = self.a
        self.fl = fl = f"buffer_load_dword v{vFL}, v{vF2}, {S4(S_L)}, s{sKOFF} offen sc1"
        bodies = self.stream(32 - 2*(OPT["bias"] % 2), list(exq))
        a.lines += bodies[0]
        l, slow, back = (a.label(x) for x in ("oploop", "phase2", "phase2back"))
        a(f"s_mov_b32 s{sCNT}, 0\n{l}:\ns_cmp_eq_u32 s{sCNT}, 2\ns_cbranch_scc1 {slow}\n{back}:\ns_cmp_eq_u32 s{sCNT}, 1\ns_cselect_b32 s{sKOFF}, 0, {1 << 24}")
        st.dyn(sCNT, 4)
        a.lines += strictest(bodies[1:6])
        a(f"s_add_u32 s{sCNT}, s{sCNT}, 1\ns_cmp_lt_u32 s{sCNT}, s{sNB}\ns_cbranch_scc1 {l}")
        st.dyn(sCNT, 4)
        a.lines += bodies[6]
        a("L_code_tail:\ns_barrier")
        def out():
            a(f"{slow}:")
            poll(a, [fl], bad_tags([vFL], None), "p2", first=f"s_waitcnt vmcnt({self.fwait})")
            a(f"s_branch {back}")
        OUT.append(out)

def oproj(a, st):
    o = OProj(a)
    for c in range(OPT['nw']): o.vm.add(("W", c))
    f3 = f"buffer_load_dword v18, v19, {S4(S_L)}, s{sT3} offen sc1"
    a(f"""
    s_lshr_b32 s{sT2}, s{sG}, 1
    s_lshl_b32 s{sT2}, s{sT2}, {5+FS}
    s_mul_i32 s{sT1}, s{sKH}, {24 << FS}
    s_add_u32 s{sT2}, s{sT2}, {WS_F3}
    s_add_u32 s{sT3}, s{sT2}, s{sT1}
    v_and_b32 v19, 7, v{vLANE}
    v_lshlrev_b32 v19, {FS}, v19
    {f3}
    v_and_b32 v{vF2}, 31, v{vLANE}
    v_lshl_add_u32 v{vF2}, v{vF2}, {FS}, s{sT2}
    s_lshl_b32 s{sT0}, s{sKH}, 1
    s_sub_u32 s{sT0}, 1, s{sT0}
    s_mul_i32 s{sBS}, s{sT0}, 2048
    s_mul_i32 s{sBS+1}, s{sT0}, {(1 << 19) - 2048}
    s_mul_i32 s{sNB}, s{sKH}, {OPT['bias']}
    s_sub_u32 s{sNB}, {(OPT['bias'] + 11) >> 1}, s{sNB}
    s_lshl_b32 s{sT0}, s{sG64}, {5+FS}
    s_lshl_b32 s{sT1}, s{sHEAD}, {FS}
    s_add_u32 s{sT0}, s{sT0}, s{sT1}
    s_add_u32 s{sT2}, s{sT0}, {WS_F3}
    v_mov_b32 v16, s{sNONCE}
    v_lshrrev_b32 v17, {5 if OPT["full"] else 0}, v{vLANE}
    v_lshlrev_b32 v17, 24, v17
    v_lshl_add_u32 v17, v{vLANE}, 2, v17
    s_lshl_b32 s{sT0}, s{sKH}, 7
    s_xor_b32 s{sT1}, s{sT0}, 128
    v_and_b32 v20, 3, v{vLANE}
    v_lshl_add_u32 v{vA}, v20, 3, v{vA}
    v_bfe_u32 v20, v{vLANE}, 2, 1
    v_mul_u32_u24 v20, 24, v20
    v_sub_u32 v{vA}, v{vA}, v20
    v_add_u32 v{vAK[1]}, s{sT0}, v{vA}
    v_add_u32 v{vAS[1]}, s{sT1}, v{vA}
    v_subrev_u32 v{vAS[0]}, {4*TILE}, v{vAS[1]}
    v_subrev_u32 v{vAK[0]}, {4*TILE}, v{vAK[1]}
    v_lshlrev_b32 v{vC}, 4, v{vG}
    v_lshl_add_u32 v{vX0}, v{vQ}, 11, v{vC}
    s_mul_i32 s{sBOFF}, s{sKH}, {(31 << 19) + 2048}
    s_lshl_b32 s{sHO}, s{sU}, 15
    s_add_u32 s{sHO}, s{sHO}, {WS_HO}
    s_lshl_b32 s{sT1}, s{sG}, 13
    s_add_u32 s{sT1}, s{sT1}, {WS_O}
    """)
    assert vAS[1] == vA
    a.lines.append(f"    s_nop 0")
    a.srd(S_B, PTR["ws"], (31 << 19) + 8192, f"s{sT1}")
    a(f"s_lshl_b32 s{sT0}, s{sNT}, 7\ns_lshl_b32 s{sT1}, s{sG}, 16\ns_add_u32 s{sT1}, s{sT1}, s{sT0}")
    a.srd(S_OUT, PTR["out"], 65536 - 1920, f"s{sT1}")
    a(f"s_waitcnt vmcnt(1)\nbuffer_store_dword v16, v17, {S4(S_L)}, s{sT2} offen sc1")
    st()
    bl = Asm()
    for c in range(o.db):
        for i in range(4): o.issue(o.bload(c, i), bl)
    skip, have = a.label("skipB"), a.label("haveB")
    a(f"s_waitcnt vmcnt(1)\nv_cmp_ne_u32 vcc, s{sNONCE}, v18\ns_mov_b32 s{sCNT}, 0\ns_cbranch_vccnz {skip}")
    a.lines += bl.lines
    a(f"s_mov_b32 s{sCNT}, 1\n{skip}:")
    o.expand1()
    o.expand2()
    if OPT["ctch"] & 2: code_touch(a, "L_code_tail", "L_code_hi", 250, None)
    a("s_barrier")
    for s in o.areads(0, 0, 0): a(s)
    a(f"s_cmp_eq_u32 s{sCNT}, 1\ns_cbranch_scc1 {have}")
    poll(a, [f3], bad_tags([18], None), "f3")
    a.lines += bl.lines
    a(f"{have}:\ns_waitcnt vmcnt(8) lgkmcnt(0)")
    st()
    t, Q = T, T + 24
    exl = [f"buffer_load_dwordx4 {R('v', Q + 4*n)}, v{vL16}, {S4(S_L)}, s{sT2} offen offset:{HO_EX + n*1024} sc1" for n in range(4)]
    o.main(st, exl)
    st()
    def gu_writes():
        for i in range(16):
            if i == 12: a("s_waitcnt lgkmcnt(8)")
            a(f"ds_write_b128 v2, {R('a', MW + 12*(i // 2) + 4*(i % 2))} offset:{i*1024}")
    a(f"v_lshl_add_u32 v2, v10, 14, v{vL16}")
    poll(a, exl, bad_sentinel(list(range(Q, Q + 16)), t + 22), "ex", first="s_waitcnt vmcnt(0)")
    for i in range(16):
        unpack(a, t + 2*(i % 2), t + 2*(i % 2) + 1, Q + i); a(pk("add", ACC + 2*i, ACC + 2*i, t + 2*(i % 2)))
    st()
    for qb in range(2):
        for i in range(0, 16, 2): a(pk("fma", XF + 16*qb + i, ACC + 16*qb + i, GA + i, XF + 16*qb + i))
    S, D, M = t, t + 4, t + 8
    for i in range(0, 16, 2):
        for qb in range(2):
            x = XF + 16*qb + i
            if i == 2: a(pk("add", S + 2*qb, x - 2, x))
            elif i > 2: a(pk("add", S + 2*qb, S + 2*qb, x))
            a(pk("mul", D + 2*qb, x, WP + i) if i == 0 else pk("fma", D + 2*qb, x, WP + i, D + 2*qb))
    for r_ in (S, S + 2, D, D + 2): a(f"v_add_f32 v{r_}, v{r_}, v{r_+1}")
    swap_red(a, [S, S + 2, D, D + 2], [S + 1, S + 3, D + 1, D + 3])
    for qb in range(2): a(f"v_mul_f32 v{S+2*qb}, {f2u(-1/64)}, v{S+2*qb}")
    for i in range(0, 16, 2):
        for qb in range(2): a(pk("add", t + 12 + 2*qb, XF + 16*qb + i, S + 2*qb, mods="op_sel_hi:[1,0]"))
        for qb in range(2): a(pk("mul", M + 2*qb, t + 12 + 2*qb, t + 12 + 2*qb) if i == 0 else pk("fma", M + 2*qb, t + 12 + 2*qb, t + 12 + 2*qb, M + 2*qb))
    for r_ in (M, M + 2): a(f"v_add_f32 v{r_}, v{r_}, v{r_+1}")
    swap_red(a, [M, M + 2], [M + 1, M + 3])
    G = t + 16
    a(f"""
    v_and_b32 v{G+4}, 16, v0
    v_cmp_ne_u32 vcc, 0, v{G+4}
    v_lshrrev_b32 v{G+4}, 5, v{vLANE}
    v_lshl_add_u32 v{G+4}, v{G+4}, 24, v{vL16}
    v_cndmask_b32 v{G}, v{S}, v{S+2}, vcc
    v_cndmask_b32 v{G+1}, v{M}, v{M+2}, vcc
    v_cndmask_b32 v{G+2}, v{D}, v{D+2}, vcc
    v_mov_b32 v{G+3}, v14
    s_lshl_b32 s{sT0}, s{sWAVE}, 9
    s_add_u32 s{sT0}, s{sT0}, {HO_ST}
    s_add_u32 s{sT1}, s{sT0}, s{sHO}
    buffer_store_dwordx4 {R('v', G)}, v{G+4}, {S4(S_L)}, s{sT1} offen sc1
    s_and_b32 s{sT1}, s{sHO}, {0xffffffff ^ (15 << 15)}
    s_add_u32 s{sT0}, s{sT0}, s{sT1}
    s_add_u32 s{sT1}, s{sT0}, {4 << 15}
    s_add_u32 s{sT2}, s{sT0}, {8 << 15}
    s_add_u32 s{sT3}, s{sT0}, {12 << 15}
    v_lshlrev_b32 v{G+5}, 15, v{vG}
    v_lshl_add_u32 v{G+5}, v{vQ}, 4, v{G+5}
    v_lshlrev_b32 v3, 8, v{vG}
    v_lshl_add_u32 v3, v{vQ}, 3, v3
    v_lshl_add_u32 v3, v10, 14, v3
    """)
    a.lines.append("    s_nop 0    ; REBASE v255=0")
    d6 = st if OPT["diag"] == 6 else (lambda: None)
    d6()
    if OPT["guw"] == 0: gu_writes()
    stl = [f"buffer_load_dwordx4 {R('v', Q + 4*j)}, v{G+5}, {S4(S_L)}, s{sT0 + (j >> 1)} offen offset:{(j & 1)*256} sc1" for j in range(8)]
    d6()
    a("s_waitcnt vmcnt(0)")
    d6()
    for l in stl: a(l)
    if OPT["guw"] == 1: gu_writes()
    def gu_reads():
        a("s_waitcnt lgkmcnt(0)")
        n = 0
        for ks in range(8):
            for m in range(2):
                for jj in range(2):
                    if n >= 12 and n % 4 == 0: a("s_waitcnt lgkmcnt(8)")
                    a(f"ds_read_b64_tr_b16 {R('a', MW + 12*ks + 4*m + 2*jj, 2)}, v3 offset:{ks*2048 + m*1024 + jj*128}"); n += 1
    if OPT["guw"] == 0: gu_reads()
    d6()
    if OPT["diag"] == 6: a("s_waitcnt vmcnt(0)"); d6()
    poll(a, stl, bad_sentinel(list(range(Q, Q + 32)), t + 22), "st", first="s_waitcnt vmcnt(0)")
    st()
    Z = t
    for qb in range(2):
        for h in range(2):
            a(pk("add", Z + 4*qb + 2*h, Q + 4*qb + 2*h, Q + 8 + 4*qb + 2*h)); a(pk("add", t + 8 + 4*qb + 2*h, Q + 16 + 4*qb + 2*h, Q + 24 + 4*qb + 2*h))
    for i in range(0, 8, 2): a(pk("add", Z + i, Z + i, t + 8 + i))
    swap_red(a, [Z + i for i in range(7)], [t + 8 + i for i in range(7)])
    for qb in range(2): a(f"v_mul_f32 v{Z+4*qb}, {f2u(1/16)}, v{Z+4*qb}")
    for j in range(8):
        qb = j & 1
        a(f"v_sub_f32 v{t+10+qb}, v{Q+4*j}, v{Z+4*qb}")
        a(f"v_mul_f32 v{t+8+qb}, v{t+10+qb}, v{t+10+qb}" if j < 2 else f"v_fmac_f32 v{t+8+qb}, v{t+10+qb}, v{t+10+qb}")
    swap_red(a, [t + 8, t + 9], [t + 10, t + 11])
    a(f"v_mov_b32_dpp v{t+12}, v{Z+3} quad_perm:[0,0,2,2] row_mask:0xf bank_mask:0xf\nv_mov_b32_dpp v{t+13}, v{Z+3} quad_perm:[1,1,3,3] row_mask:0xf bank_mask:0xf")
    for qb in range(2): a(f"v_fmac_f32 v{Z+4*qb+1}, {f2u(64.0)}, v{t+8+qb}\nv_mul_f32 v{Z+4*qb+1}, {f2u(1/1024)}, v{Z+4*qb+1}")
    for qb in range(2): rnd(a, Z + 4*qb, Z + 4*qb + 1)
    a(f"v_add_f32 v{Z+1}, {f2u(1e-5)}, v{Z+1}\nv_add_f32 v{Z+5}, {f2u(1e-5)}, v{Z+5}")
    rnd(a, Z + 1, Z + 5)
    a(f"v_sqrt_f32 v{Z+1}, v{Z+1}\nv_sqrt_f32 v{Z+5}, v{Z+5}\ns_nop 0")
    rnd(a, Z + 1, Z + 5)
    a(f"v_rcp_f32 v{Z+1}, v{Z+1}\nv_rcp_f32 v{Z+5}, v{Z+5}")
    K0 = t + 14
    for qb in range(2): a(f"v_fmac_f32 v{Z+4*qb+2}, v{Z+4*qb}, v{t+12}")
    for qb in range(2): a(f"v_fma_f32 v{Z+4*qb+2}, v{Z+4*qb+2}, v{Z+4*qb+1}, v{t+13}")
    rnd(a, K0, K0 + 1, Z + 2, Z + 6)
    a(f"s_lshl_b32 s{sT0}, s{sG}, 5\ns_sub_u32 s{sT0}, 2047, s{sT0}\nv_sub_u32 v{t+10}, s{sT0}, v{vQ}\nv_subrev_u32 v{t+11}, 16, v{t+10}")
    for qb in range(2):
        a(f"v_ashrrev_i32 v{t+8}, 31, v{K0+qb}\nv_or_b32 v{t+8}, 0x80000000, v{t+8}\nv_xor_b32 v{K0+qb}, v{K0+qb}, v{t+8}\nv_and_b32 v{K0+qb}, 0xffff0000, v{K0+qb}\nv_or_b32 v{K0+qb}, v{K0+qb}, v{t+10+qb}")
    m1, m2 = t + 16, t + 18
    a(f"v_max_u32 v{m1}, v{K0}, v{K0+1}\nv_min_u32 v{m2}, v{K0}, v{K0+1}\nv_mov_b32 v{m1+1}, s{sNONCE}\nv_mov_b32 v{m2+1}, s{sNONCE}")
    top2_row(a, m1, m2, t + 8)
    a(f"s_lshl_b32 s{sT0}, s{sG}, {FS}\ns_add_u32 s{sT0}, s{sT0}, {WS_KEY}\nv_lshrrev_b32 v{t+8}, {3 if OPT['full'] else 0}, v{vLANE}\nv_or_b32 v{t+8}, s{sNT}, v{t+8}\nv_lshl_add_u32 v{t+8}, v{t+8}, 24, v{vL16}")
    a(f"buffer_store_dwordx4 {R('v', m1)}, v{t+8}, {S4(S_L)}, s{sT0} offen sc1")
    CO = t + 20
    a(f"v_mov_b32 v{t+8}, 0x7f000000\nv_add_u32 v{t+10}, 128, v{vC}")
    for qb in range(2):
        a(f"v_cmp_eq_u32 vcc, v{K0+qb}, v{m1}\nv_cmp_eq_u32 s[50:51], v{K0+qb}, v{m2}\ns_nop 0")
        a(f"v_cndmask_b32 v{CO+qb}, v{t+8}, v{vC}, vcc\nv_cndmask_b32 v{CO+qb}, v{CO+qb}, v{t+10}, s[50:51]")
    for qb in range(2): a(f"v_mul_f32 v{Z+4*qb}, v{Z+4*qb}, v{Z+4*qb+1}")
    H, HP, OP = ACC, t + 24, t + 40
    for qb in range(2):
        for i in range(0, 16, 2): a(pk("fma", H + 16*qb + i, XF + 16*qb + i, Z + 4*qb, Z + 4*qb, mods="op_sel:[0,1,0] op_sel_hi:[1,1,0]"))
        for i in range(0, 16, 2): a(pk("fma", H + 16*qb + i, H + 16*qb + i, C1 + i, SBv + i))
        for i in range(0, 16, 2): a(f"v_cvt_pk_bf16_f32 v{HP + 8*qb + i//2}, v{H + 16*qb + i}, v{H + 16*qb + i + 1}")
    a(f"s_lshl_b32 s{sT0}, s{sWAVE}, 8\ns_add_u32 s{sT0}, s{sT0}, s{sHO}\ns_add_u32 s{sT3}, s{sT0}, {HO_CH}")
    for n in range(4): a(f"buffer_store_dwordx4 {R('v', HP + 4*n)}, v{CO + n//2}, {S4(S_L)}, s{sT3} offen offset:{(n % 2)*64} sc1")
    K = 144
    keys = f"buffer_load_dwordx4 {R('v', K)}, v14, {S4(S_L)}, s{sT1} offen sc1"
    a(f"s_lshl_b32 s{sT1}, s{sWAVE}, {4+FS}\ns_add_u32 s{sT1}, s{sT1}, {WS_KEY}\nv_lshlrev_b32 v14, {FS}, v{vQ}\ns_mov_b32 s{sMW}, s{sT3}\ns_mov_b32 s{sMW2}, 32768")
    for qb in range(2):
        for i in range(0, 16, 2): a(pk("fma", H + 16*qb + i, H + 16*qb + i, GBv + i, XF + 16*qb + i))
        for i in range(0, 16, 2): a(f"v_cvt_pk_bf16_f32 v{OP + 8*qb + i//2}, v{H + 16*qb + i}, v{H + 16*qb + i + 1}")
    outs = [f"buffer_store_dwordx4 {R('v', OP + 4*n)}, v{CO + n//2}, {S4(S_OUT)}, {'s%d' % sMW2 if n//2 else 0} offen offset:{(n % 2)*64} {OPT['ofl']*'sc1'}" for n in range(4)]
    base = [f"buffer_store_dwordx4 {R('v', OP + 4*n)}, v{CO + n//2}, {S4(S_L)}, s{sMW} offen offset:{HO_CB - HO_CH + (n % 2)*64} sc1" for n in range(4)]
    return keys, outs, base, ([gu_writes] if OPT['guw'] == 2 else []) + ([gu_reads] if OPT['guw'] else [])

def moe(a, st, keys, outs, base, later):
    BF, K = 112, 144
    sK1, sK2 = 63, 64
    end, go, only = a.label("end"), a.label("dofin"), a.label("onlyout")
    for s in base: a(s)
    st()
    for f in later: f()
    a("s_waitcnt lgkmcnt(0)")
    for p in range(8): a(f"ds_write_b128 v2, {R('a', MW + 12*p + 8)} offset:{p*1024}")
    a(keys)
    a(f"v_lshrrev_b32 v3, 2, v{vLANE}\nv_lshlrev_b32 v3, 9, v3\nv_and_b32 v4, 3, v{vLANE}\nv_lshl_add_u32 v3, v4, 3, v3\nv_lshl_add_u32 v3, v10, 14, v3\ns_waitcnt lgkmcnt(0)")
    for nb in range(16):
        if nb == 12: a("s_waitcnt lgkmcnt(8)")
        a(f"ds_read_b64_tr_b16 {R('a', MW + 12*(nb // 2) + 8 + 2*(nb % 2), 2)}, v3 offset:{nb*32}")
    poll(a, [keys], bad_tags([K + 1, K + 3], K + 4), "keys", first="s_waitcnt vmcnt(0)")
    st()
    top2_row(a, K, K + 2, K + 4)
    a(f"v_lshlrev_b32 v2, 4, v10\nv_add_u32 v2, {LDS_FLAG}, v2\nv_add_u32 v3, {LDS_FLAG}, v{vC}\nds_write_b128 v2, {R('v', K)}\ns_waitcnt lgkmcnt(0)\ns_barrier\nds_read_b128 {R('v', K)}, v3\ns_waitcnt lgkmcnt(0)")
    a(f"v_readlane_b32 s{sK1}, v{K}, 0\nv_readlane_b32 s{sK2}, v{K+2}, 0")
    for ln in (16, 32, 48):
        a(f"v_readlane_b32 s{sT0}, v{K}, {ln}\nv_readlane_b32 s{sT1}, v{K+2}, {ln}\ns_nop 3")
        a(f"s_min_u32 s{sT2}, s{sK1}, s{sT0}\ns_max_u32 s{sK2}, s{sK2}, s{sT1}\ns_max_u32 s{sK1}, s{sK1}, s{sT0}\ns_max_u32 s{sK2}, s{sK2}, s{sT2}")
    K0, CO = T + 14, T + 20
    def mask():
        a("v_mov_b32 v4, 0x7f000000")
        for qb in range(2):
            a(f"v_cmp_eq_u32 vcc, s{sK1}, v{K0+qb}\nv_cmp_eq_u32 s[50:51], s{sK2}, v{K0+qb}\ns_or_b64 vcc, vcc, s[50:51]\ns_nop 0\nv_cndmask_b32 v{CO+qb}, v{vX0}, v4, vcc")
    nomoe = a.label("nomoe")
    a(f"s_cmp_ge_u32 s2, 224\ns_cbranch_scc1 {nomoe}")
    sC1, sC2 = 65, 66
    a(f"s_xor_b32 s{sT2}, s{sK1}, s{sK2}\ns_and_b32 s{sT2}, s{sT2}, 0x7e0\ns_cselect_b32 s{sT2}, 0, 128")
    for k, c in ((sK1, sC1), (sK2, sC2)):
        a(f"s_not_b32 s{sT0}, s{k}\ns_bfe_u32 s{sT1}, s{sT0}, 0x40007\ns_lshl_b32 s{sT1}, s{sT1}, 19\ns_bfe_u32 s{sT0}, s{sT0}, 0x20005\ns_lshl_b32 s{sT0}, s{sT0}, 8\ns_add_u32 s{c}, s{sT0}, s{sT1}")
    a(f"""
    s_add_u32 s{sC2}, s{sC2}, s{sT2}
    v_and_b32 v5, 1, v{vLANE}
    v_cmp_eq_u32 vcc, 1, v5
    v_mov_b32 v6, s{sC1}
    v_mov_b32 v7, s{sC2}
    v_cndmask_b32 v6, v6, v7, vcc
    v_add_u32 v6, v6, v{vC}
    s_lshl_b32 s{sT0}, s{sWAVE}, 17
    s_add_u32 s{sT0}, s{sT0}, {WS_HO + HO_CH}
    s_add_u32 s{sT1}, s{sT0}, {1 << 15}
    s_add_u32 s{sT2}, s{sT0}, {2 << 15}
    s_add_u32 s{sT3}, s{sT0}, {3 << 15}
    """)
    rows = [f"buffer_load_dwordx4 {R('v', BF + 4*ks)}, v6, {S4(S_L)}, s{sT0 + ks//2} offen offset:{(ks % 2)*64} sc1" for ks in range(8)]
    for l in rows: a(l)
    mask()
    poll(a, rows, bad_sentinel(list(range(BF, BF + 32)), K + 4), "rows", first="s_waitcnt vmcnt(0)")
    st()
    Y = 152
    a("s_waitcnt lgkmcnt(0)")
    for m in range(2):
        for ks in range(8):
            a(mf(R("v", Y + 4*m), R("a", MW + 12*ks + 4*m), R("v", BF + 4*ks), "0" if ks == 0 else None))
    a(f"v_lshl_add_u32 v2, v10, 11, v{vL16}\nv_add_u32 v2, {LDS_RED}, v2\nv_add_u32 v3, {LDS_RED}, v{vL16}\nv_bfe_u32 v7, v{vLANE}, 1, 3\ns_nop 3")
    a(f"ds_write_b128 v2, {R('v', Y)}\nds_write_b128 v2, {R('v', Y+4)} offset:1024\ns_waitcnt lgkmcnt(0)\ns_barrier")
    P = 160
    for w in range(4): a(f"ds_read_b128 {R('v', P+8*w)}, v3 offset:{w*2048}\nds_read_b128 {R('v', P+4+8*w)}, v3 offset:{w*2048+1024}")
    a(f"""
    v_lshlrev_b32 v5, 12, v5
    v_lshl_add_u32 v5, v7, 6, v5
    v_add_u32 v5, v5, v{vC}
    s_lshl_b32 s{sT0}, s{sWAVE}, 10
    s_add_u32 s{sT0}, s{sT0}, s{sHO}
    s_add_u32 s{sT0}, s{sT0}, {HO_YP}
    """)
    for j in range(8): a(f"v_cmp_eq_u32 s[{8+2*j}:{9+2*j}], {j}, v7")
    a("s_waitcnt lgkmcnt(0)")
    for i in range(0, 8, 2): a(pk("add", P + i, P + i, P + 8 + i)); a(pk("add", P + 16 + i, P + 16 + i, P + 24 + i))
    for i in range(0, 8, 2): a(pk("add", P + i, P + i, P + 16 + i))
    for i in range(0, 8, 2): rnd(a, P + i, P + i + 1)
    E = P + 8
    for i in range(4): a(f"v_mul_f32 v{E+i}, {f2u(-LOG2E)}, v{P+i}")
    for i in range(4): a(f"v_exp_f32 v{E+i}, v{E+i}")
    for i in range(4): a(f"v_add_f32 v{E+i}, 1.0, v{E+i}")
    for i in range(4): a(f"v_rcp_f32 v{E+i}, v{E+i}")
    for i in range(4): a(f"v_mul_f32 v{P+i}, v{P+i}, v{E+i}")
    for i in (0, 2): rnd(a, P + i, P + i + 1)
    for i in (0, 2): a(pk("mul", P + i, P + i, P + 4 + i))
    a(f"v_cvt_pk_bf16_f32 v{E}, v{P}, v{P+1}\nv_cvt_pk_bf16_f32 v{E+1}, v{P+2}, v{P+3}")
    for j in range(8): a(f"v_cndmask_b32 v{BF+2*j}, 0, v{E}, s[{8+2*j}:{9+2*j}]\nv_cndmask_b32 v{BF+2*j+1}, 0, v{E+1}, s[{8+2*j}:{9+2*j}]")
    for h in range(2):
        for j in range(8):
            a(f"v_mfma_f32_16x16x16_bf16 {R('v', Y+4*h)}, {R('a', MW + 12*((8*h + j) // 2) + 8 + 2*(j % 2), 2)}, {R('v', BF + 2*j, 2)}, {'0' if j == 0 else R('v', Y+4*h)}")
    a(f"buffer_store_dwordx4 {R('v', Y)}, v5, {S4(S_L)}, s{sT0} offen sc1\ns_nop 6\nbuffer_store_dwordx4 {R('v', Y+4)}, v5, {S4(S_L)}, s{sT0} offen offset:512 sc1")
    st()
    a(f"s_cmp_lt_u32 s2, 64\ns_cbranch_scc1 {go}\ns_branch {only}\n{nomoe}:")
    a(f"s_xor_b32 s{sT0}, s2, 255\nv_or_b32 v5, s{sT0}, v0\nv_min_u32 v5, 64, v5\nv_lshlrev_b32 v5, 24, v5\nv_mov_b32 v6, s{sNONCE}\ns_mov_b32 s{sT0}, {WS_NONCE}")
    a(f"buffer_store_dword v6, v5, {S4(S_L)}, s{sT0} offen sc1")
    mask()
    a(f"{only}:")
    for s in outs: a(s)
    a(f"s_branch {end}\n{go}:")
    a(f"""
    s_cmp_lt_u32 s2, 32
    s_cselect_b32 s{sK1}, s{sK1}, s{sK2}
    s_cselect_b32 s{sC1}, s{sC1}, s{sC2}
    s_bfe_u32 s{sT0}, s2, 0x40001
    s_lshl_b32 s{sT0}, s{sT0}, 15
    s_add_u32 s{sC1}, s{sC1}, s{sT0}
    s_and_b32 s{sT0}, s2, 1
    s_lshl_b32 s{sT0}, s{sT0}, 6
    s_add_u32 s{sC1}, s{sC1}, s{sT0}
    s_add_u32 s{sC1}, s{sC1}, {WS_HO + HO_CB}
    s_and_b32 s{sT1}, s2, 31
    s_lshl_b32 s{sT1}, s{sT1}, 6
    s_lshl_b32 s{sC2}, s{sT1}, 1
    s_add_u32 s{sC2}, s{sC2}, {WS_MODP + 12288}
    s_add_u32 s{sT2}, s{sC2}, 16384
    s_not_b32 s{sT0}, s{sK1}
    s_and_b32 s{sT0}, s{sT0}, 2047
    s_lshl_b32 s{sT0}, s{sT0}, 11
    s_add_u32 s{sT0}, s{sT0}, s{sT1}
    v_and_b32 v2, 7, v0
    v_lshlrev_b32 v3, 3, v2
    v_lshlrev_b32 v4, 4, v2
    v_lshrrev_b32 v5, 3, v0
    v_lshl_add_u32 v5, v5, 15, v4
    """)
    a.srd(S_WG, PTR["out"], 4 << 20)
    a(f"s_mov_b32 s{sK2}, s{sT0}\ns_lshl_b32 s8, s2, 7\ns_add_u32 s8, s8, {WS_HO + HO_YP}")
    for i in range(1, 7): a(f"s_add_u32 s{8+i}, s8, {i << 20}")
    a(f"""
    s_and_b32 s{sT0}, s{sK1}, 0xffff0000
    s_ashr_i32 s{sT1}, s{sT0}, 31
    s_not_b32 s{sT1}, s{sT1}
    s_or_b32 s{sT1}, s{sT1}, 0x80000000
    s_xor_b32 s{sT0}, s{sT0}, s{sT1}
    s_and_b32 s{sT0}, s{sT0}, 0xffff0000
    v_mov_b32 v60, s{sT0}
    v_mul_f32 v60, {f2u(-LOG2E)}, v60
    v_exp_f32 v60, v60
    buffer_load_dwordx4 v[64:67], v4, {S4(S_L)}, s{sC2} offen sc1
    buffer_load_dwordx4 v[68:71], v4, {S4(S_L)}, s{sT2} offen sc1
    v_add_f32 v60, 1.0, v60
    v_rcp_f32 v60, v60
    s_nop 0
    v_cvt_pk_bf16_f32 v60, v60, v60
    v_lshlrev_b32 v60, 16, v60
    s_waitcnt vmcnt(0)
    """)
    poll(a, [f"buffer_load_dwordx4 {R('v', 16 + 4*i)}, v5, {S4(S_L)}, s{8+i} offen sc1" for i in range(7)] + [f"buffer_load_dwordx2 v[44:45], v3, {S4(S_L)}, s{sC1} offen sc1"],
         bad_sentinel(list(range(16, 46)), 50), "y")
    st()
    for s in outs: a(s)
    for i in range(1, 7):
        a(pk("add", 16, 16, 16 + 4*i)); a(pk("add", 18, 18, 18 + 4*i))
    red8(a, [16, 17, 18, 19], [20, 21, 22, 23])
    a(f"v_lshl_add_u32 v6, v10, 7, v4\nds_write_b128 v6, v[16:19]\ns_waitcnt lgkmcnt(0)\ns_barrier\ns_cmp_lg_u32 s{sWAVE}, 0\ns_cbranch_scc1 {end}")
    for w in range(4): a(f"ds_read_b128 {R('v', 16+4*w)}, v4 offset:{128*w}")
    a(f"v_lshrrev_b32 v6, 3, v{vLANE}\nv_lshl_add_u32 v3, v6, 24, v3\ns_waitcnt lgkmcnt(0)")
    for j in (0, 2):
        a(pk("add", 16 + j, 16 + j, 20 + j)); a(pk("add", 24 + j, 24 + j, 28 + j)); a(pk("add", 16 + j, 16 + j, 24 + j))
        rnd(a, 16 + j, 17 + j)
        a(pk("mul", 16 + j, 16 + j, 60, mods="op_sel_hi:[1,0]")); rnd(a, 16 + j, 17 + j)
        a(pk("add", 52, 64 + j, 68 + j)); rnd(a, 52, 53); unpack(a, 54, 55, 44 + j//2)
        a(pk("fma", 16 + j, 16 + j, 52, 54))
        a(f"v_cvt_pk_bf16_f32 v{56 + j//2}, v{16+j}, v{17+j}")
    a(f"buffer_store_dwordx2 v[56:57], v3, {S4(S_WG)}, s{sK2} offen {OPT['ofl']*'sc1'}")
    st()
    a(f"{end}:")
```

```python
from common import *

S_W, S_B, S_K, S_V, S_O, S_WG, S_WU, S_WD, S_STG = 8, 12, 16, 20, 24, 28, 32, 36, 40
sKOFF, sVOFF, sWOFF, sBOFF = 63, 64, 65, 66
sWST, sBS, sNB, sWA = 40, 41, 43, 67
vWOFF, vKV, vA, vKADDR, vBOFF = 2, 3, 4, 5, 6
vGA, vTO, vTD, vCL = 248, 249, 250, 251

def ids(a):
    a(f"s_load_dwordx16 s[{P0}:{P0+15}], s[0:1], 0\ns_load_dwordx8 s[{P0+16}:{P0+23}], s[0:1], 64\ns_load_dwordx4 s[{P0+24}:{P0+27}], s[0:1], 96\ns_load_dwordx2 s[{P0+28}:{P0+29}], s[0:1], 112")
    a(f"""
    v_lshrrev_b32 v10, 6, v0
    v_and_b32 v{vLANE}, 63, v0
    v_readfirstlane_b32 s{sWAVE}, v10
    v_lshlrev_b32 v{vL16}, 4, v{vLANE}
    v_lshrrev_b32 v{vG}, 4, v{vLANE}
    v_and_b32 v{vQ}, 15, v{vLANE}
    s_and_b32 s{sT0}, s2, 7
    s_bfe_u32 s{sT1}, s2, 0x20003
    s_lshl_b32 s{sHEAD}, s{sT0}, 2
    s_add_u32 s{sHEAD}, s{sHEAD}, s{sT1}
    s_lshr_b32 s{sQB}, s2, 5
    s_lshl_b32 s{sG64}, s{sQB}, 2
    s_add_u32 s{sG64}, s{sG64}, s{sWAVE}
    s_lshl_b32 s{sSL}, s{sQB}, 5
    s_add_u32 s{sSL}, s{sSL}, s{sHEAD}
    s_mul_i32 s{sMW}, s{sWAVE}, {4*PIECE}
    s_add_u32 s{sMW2}, s{sMW}, {4*TILE}
    s_lshl_b32 s{sT0}, s{sT0}, 2
    s_lshr_b32 s{sHEAD}, 0x57463120, s{sT0}
    s_and_b32 s{sHEAD}, s{sHEAD}, 7
    s_lshl_b32 s{sHEAD}, s{sHEAD}, 2
    s_add_u32 s{sHEAD}, s{sHEAD}, s{sT1}
    s_and_b32 s{sKH}, s2, 1
    s_and_b32 s{sNT}, s2, 4
    s_add_u32 s{sNT}, s{sNT}, s{sT1}
    s_lshl_b32 s{sNT}, s{sNT}, 1
    s_add_u32 s{sNT}, s{sNT}, s{sKH}
    s_bfe_u32 s{sT0}, s2, 0x10001
    s_lshl_b32 s{sG}, s{sQB}, 1
    s_add_u32 s{sG}, s{sG}, s{sT0}
    s_lshl_b32 s{sU}, s{sG}, 4
    s_add_u32 s{sU}, s{sU}, s{sNT}
    s_lshl_b32 s{sG}, s{sG}, 2
    s_add_u32 s{sG}, s{sG}, s{sWAVE}
    """)

def code_touch(a, lo, hi, v, dst, sh=6):
    here = a.label("pc")
    a(f"""
    s_getpc_b64 s[50:51]
    {here}:
    s_lshr_b32 s{sT0}, s2, 3
    s_lshl_b32 s{sT0}, s{sT0}, 4
    v_and_b32 v{v}, 3, v0
    v_lshl_add_u32 v{v}, v10, 2, v{v}
    v_add_u32 v{v}, s{sT0}, v{v}
    v_lshlrev_b32 v{v}, {sh}, v{v}
    v_min_u32 v{v}, {hi}-{lo}-4, v{v}
    v_add_u32 v{v}, {lo}-{here}, v{v}
    v_mov_b32 v{v+1}, s51
    v_add_co_u32 v{v}, vcc, s50, v{v}
    s_nop 1
    v_addc_co_u32 v{v+1}, vcc, 0, v{v+1}, vcc
    """)
    if dst is not None: a(f"global_load_dword v{dst}, v[{v}:{v+1}], off")

def front(a, g, st):
    S_X, S_C, S_M, S_D = S_K, S_V, S_STG, S_WG
    XP, CP, WD, SV, AC, X, T, E = 16, 32, 144, 40, 56, 64, 96, 112
    U = T + 4
    vXO, vMO, vROW, vZ, NV, vF0 = 14, 215, 208, 209, 210, 211
    sCG, sMO = 50, 51
    d3 = st if OPT["diag"] == 3 else (lambda: None)
    a(f"""
    v_and_b32 v{vROW}, 7, v0
    v_lshrrev_b32 v{T}, 3, v{vLANE}
    v_lshl_add_u32 v{T}, v10, 5, v{T}
    v_lshlrev_b32 v{T}, 4, v{T}
    v_lshl_add_u32 v{vXO}, v{vROW}, 11, v{T}
    v_lshrrev_b32 v{T+1}, 2, v0
    v_and_b32 v{T+2}, 3, v0
    v_mul_u32_u24 v{vMO}, {16*12288}, v{T+1}
    v_lshl_add_u32 v{vMO}, v{T+2}, 4, v{vMO}
    v_lshlrev_b32 v{T+1}, 5, v{T+1}
    v_lshlrev_b32 v{vF0}, 24, v{vLANE}
    s_and_b32 s{sT3}, s2, 7
    s_lshl_b32 s{sT0}, s{sT3}, 3
    s_lshr_b32 s{sT1}, s2, 3
    s_add_u32 s{sCG}, s{sT0}, s{sT1}
    s_add_u32 s{sT0}, s{sT0}, 56
    s_cmp_lt_u32 s2, 64
    s_cselect_b32 s{sT0}, 0, s{sT0}
    s_add_u32 s{sCG}, s{sCG}, s{sT0}
    s_lshl_b32 s{sMO}, s{sCG}, 6
    s_lshl_b32 s{sT2}, s{sSL}, 14
    s_waitcnt lgkmcnt(0)
    """)
    st()
    a.srd(S_M, PTR["wmod"], 1024*12288)
    a.srd(S_C, PTR["c"], 2048)
    a.srd(S_X, PTR["x"], 16384, f"s{sT2}")
    a.srd(S_L, PTR["ws"], 16 << 20)
    a(f"v_mov_b32 v{NV}, {WS_NONCE}\nbuffer_load_dword v{NV}, v{NV}, {S4(S_L)}, 0 offen sc1")
    def cloads(vm):
        for i in range(2): a(f"buffer_load_dwordx4 {R('v', CP + 4*i)}, v{T+1}, {S4(S_C)}, 0 offen offset:{16*i}"); vm.add("C")
    def xloads(vm):
        for i in range(4): a(f"buffer_load_dwordx4 {R('v', XP + 4*i)}, v{vXO}, {S4(S_X)}, 0 offen offset:{128*i}"); vm.add("X")
    def w_zero(w):
        for i in range(144): w(f"v_accvgpr_write_b32 a{i}, 0")
    def w_silu(w):
        w("WAIT C")
        for i in range(8): unpack(w, SV + 2*i, SV + 2*i + 1, CP + i)
        for i in range(16): w(f"v_mul_f32 v{E+i}, {f2u(-LOG2E)}, v{SV+i}")
        for i in range(16): w(f"v_exp_f32 v{E+i}, v{E+i}")
        for i in range(0, 16, 2): w(pk("add", E + i, E + i, "1.0", mods="op_sel_hi:[1,0]"))
        for i in range(16): w(f"v_rcp_f32 v{E+i}, v{E+i}")
        for i in range(0, 16, 2): w(pk("mul", SV + i, SV + i, E + i))
        for i in range(0, 16, 2): rnd(w, SV + i, SV + i + 1)
    def w_stats(w):
        w("WAIT X")
        for i in range(16): unpack(w, X + 2*i, X + 2*i + 1, XP + i)
        w(pk("add", T, X, X + 2))
        for i in range(4, 32, 2): w(pk("add", T, T, X + i))
        w(f"v_add_f32 v{T}, v{T}, v{T+1}")
        red8(w, [T], [T + 1])
        w(f"v_mul_f32 v{T}, {f2u(-1/256)}, v{T}")
        for i in range(0, 32, 2):
            w(pk("add", E, X + i, T, mods="op_sel_hi:[1,0]"))
            w(pk("mul", T + 2, E, E) if i == 0 else pk("fma", T + 2, E, E, T + 2))
        w(f"v_add_f32 v{T+1}, v{T+2}, v{T+3}")
        red8(w, [T + 1], [T + 2])
        w(f"v_lshlrev_b32 v{T+3}, 5, v{vROW}\nv_lshl_add_u32 v{T+2}, v10, 3, v{T+3}\nds_write_b64 v{T+2}, v[{T}:{T+1}]")
    def w_norm(w):
        w(f"ds_read_b128 {R('v', E)}, v{T+3}\nds_read_b128 {R('v', E+4)}, v{T+3} offset:16")
        w("s_waitcnt lgkmcnt(0)")
        w(pk("add", T, E, E + 2)); w(pk("add", T + 2, E + 4, E + 6)); w(pk("add", T, T, T + 2))
        w(f"v_mul_f32 v{T}, {f2u(0.25)}, v{T}")
        for i in range(4):
            w(f"v_sub_f32 v{T+2}, v{E+2*i}, v{T}")
            w(f"v_mul_f32 v{T+3}, v{T+2}, v{T+2}" if i == 0 else f"v_fmac_f32 v{T+3}, v{T+2}, v{T+2}")
        w(f"v_fmac_f32 v{T+1}, {f2u(256.0)}, v{T+3}\nv_mul_f32 v{T+1}, {f2u(1/1024)}, v{T+1}")
        rnd(w, T, T + 1)
        w(f"""
        v_add_f32 v{T+1}, {f2u(1e-5)}, v{T+1}
        v_cvt_pk_bf16_f32 v{T+1}, v{T+1}, v{T+1}
        v_lshlrev_b32 v{T+1}, 16, v{T+1}
        v_sqrt_f32 v{T+1}, v{T+1}
        s_nop 0
        v_cvt_pk_bf16_f32 v{T+1}, v{T+1}, v{T+1}
        v_lshlrev_b32 v{T+1}, 16, v{T+1}
        v_rcp_f32 v{T+1}, v{T+1}
        s_nop 0
        """)
        for i in range(0, 32, 2):
            w(pk("add", X + i, X + i, T, mods="op_sel_hi:[1,0]")); rnd(w, X + i, X + i + 1)
            w(pk("mul", X + i, X + i, T, mods="op_sel:[0,1] op_sel_hi:[1,1]")); rnd(w, X + i, X + i + 1)
    def w_fma(w, rows):
        for i in rows:
            w(f"WAIT M{i}")
            sel = "op_sel:[0,1,0] op_sel_hi:[1,1,1]" if i % 2 else "op_sel_hi:[1,0,1]"
            for j in range(4):
                unpack(w, U + 2*(j % 2), U + 2*(j % 2) + 1, WD + 4*i + j)
                if i == 0: w(pk("mul", AC + 2*j, U + 2*(j % 2), SV, mods="op_sel_hi:[1,0]"))
                else: w(pk("fma", AC + 2*j, U + 2*(j % 2), SV + i - i % 2, AC + 2*j, mods=sel))
    def run_side(side, vm, n=10000, issued=100):
        while side and n > 0:
            x = side[0]
            if x.startswith("WAIT"):
                tag = x.split()[1]
                if tag[0] == "M" and int(tag[1:]) > issued - OPT["mlag"]: return
                if tag not in vm.ops: return
                x = f"s_waitcnt vmcnt({vm.count(tag)})"
            a(x); side.pop(0); n -= 1
    def side_of(*fs):
        w = Asm()
        for f in fs: f(w)
        return [x.strip() for x in w.lines]
    def gemv(vm, side, hooks, wide=False):
        for i in range(16):
            a(f"buffer_load_dwordx4 {R('v', WD + 4*i)}, v{vMO}, {S4(S_M)}, s{sMO} offen"); vm.add(f"M{i}")
            if i < 15: a(f"s_add_u32 s{sMO}, s{sMO}, 12288")
            if i in hooks: hooks[i]()
            if OPT["mlead"] <= i < 15: run_side(side, vm, OPT["mslice"], i)
        run_side(side, vm)
        a("s_nop 1")
        for sh in ((8,) if wide else (8, 4)):
            for j in range(8): a(f"v_add_f32_dpp v{AC+j}, v{AC+j}, v{AC+j} row_ror:{sh} row_mask:0xf bank_mask:0xf")
        a(f"v_lshrrev_b32 v{U}, 4, v0\nv_lshlrev_b32 v{U}, {8 if wide else 7}, v{U}\nv_and_b32 v{U+1}, {7 if wide else 3}, v0\nv_lshl_add_u32 v{U}, v{U+1}, 5, v{U}")
        a(f"ds_write_b128 v{U}, {R('v', AC)} offset:1024\nds_write_b128 v{U}, {R('v', AC+4)} offset:1040")
    def finish():
        a(f"v_lshlrev_b32 v{U}, 9, v{vG}\nv_lshl_add_u32 v{U}, v{vQ}, 3, v{U}")
        for i in range(4): a(f"ds_read_b64 v[{AC+2*i}:{AC+2*i+1}], v{U} offset:{1024 + 128*i}")
        a(f"v_lshlrev_b32 v{U+2}, 24, v{vG}\ns_waitcnt lgkmcnt(0)")
        a(pk("add", AC, AC, AC + 2)); a(pk("add", AC + 4, AC + 4, AC + 6)); a(pk("add", AC, AC, AC + 4))
        swap_red(a, [AC, AC + 1], [AC + 2, AC + 3])
        a(f"v_cvt_pk_bf16_f32 v{AC+4}, v{AC}, v{AC+1}")
    def nonce():
        a(f"""
        v_readfirstlane_b32 s{sNONCE}, v{NV}
        s_nop 3
        s_mul_i32 s{sNONCE}, s{sNONCE}, 0x9e3779b1
        s_add_u32 s{sNONCE}, s{sNONCE}, 0x7f4a7c15
        """)

    g.setup()
    bc, join, join2 = a.label("roleBC"), a.label("join"), a.label("join")
    a(f"s_cmp_ge_u32 s2, 64\ns_cbranch_scc1 {bc}")
    vm = VM()
    cloads(vm)
    xa = OPT["xa"]
    gemv(vm, side_of(w_zero, w_silu, lambda w: w_fma(w, range(xa)), w_stats, lambda w: w_fma(w, range(xa, 16))),
         {xa: lambda: xloads(vm)})
    n0 = st.n
    st()
    nonce()
    a("s_waitcnt lgkmcnt(0)\ns_barrier")
    a(f"s_cmp_lg_u32 s{sWAVE}, 0\ns_cbranch_scc1 {join}")
    finish()
    a(f"s_cmp_ge_u32 s{sCG}, 32\ns_cselect_b32 s{sT0}, 1.0, 0\ns_mov_b32 s{sT1}, s{sT0}")
    unpack(a, AC, AC + 1, AC + 4)
    a(pk("add", AC, AC, f"s[{sT0}:{sT1}]"))
    a(f"""
    v_lshl_add_u32 v{U+2}, v{vQ}, 3, v{U+2}
    v_cvt_pk_bf16_f32 v{AC+2}, v{AC}, v{AC+1}
    v_mov_b32 v{AC+3}, s{sNONCE}
    s_lshl_b32 s{sT0}, s{sCG}, 7
    s_add_u32 s{sT0}, s{sT0}, {WS_MODG}
    buffer_store_dwordx2 v[{AC+2}:{AC+3}], v{U+2}, {S4(S_L)}, s{sT0} offen sc1
    s_branch {join}
    """)
    a(f"{bc}:")
    vm = VM()
    isc = a.label("roleC")
    a(f"""
    s_lshr_b32 s{sT0}, s2, 3
    s_sub_u32 s{sT0}, s{sT0}, 8
    s_lshl_b32 s{sT0}, s{sT0}, 2
    s_add_u32 s{sT0}, s{sT0}, s{sWAVE}
    s_mul_i32 s{sT0}, s{sT0}, {8*12288}
    s_lshl_b32 s{sT3}, s{sT3}, 9
    v_lshrrev_b32 v{T+4}, 2, v{vLANE}
    v_mul_u32_u24 v{T+4}, 12288, v{T+4}
    v_lshl_add_u32 v{T+4}, v{T+2}, 7, v{T+4}
    s_cmp_ge_u32 s2, 192
    s_cbranch_scc1 {isc}
    s_add_u32 s{sT0}, s{sT0}, s{sT3}
    v_lshrrev_b32 v{T+5}, 5, v{vLANE}
    {"v_mul_u32_u24 v%d, %d, v%d" % (T+5, 8*12288 - 64, T+5) if OPT["t64"] & 4 else "v_lshlrev_b32 v%d, 24, v%d" % (T+5, T+5)}
    {"v_sub_u32" if OPT["t64"] & 4 else "v_add_u32"} v{T+4}, v{T+4}, v{T+5}
    buffer_load_dword v212, v{T+4}, {S4(S_M)}, s{sT0} offen
    v_lshrrev_b32 v{T+1}, 3, v0
    s_and_b32 s{sT0}, s{sCG}, 1
    s_lshl_b32 s{sT0}, s{sT0}, 5
    v_add_u32 v{T+1}, s{sT0}, v{T+1}
    v_mul_u32_u24 v{vMO}, {16*12288}, v{T+1}
    v_lshl_add_u32 v{vMO}, v{vROW}, 4, v{vMO}
    v_lshlrev_b32 v{T+1}, 5, v{T+1}
    s_and_b32 s{sMO}, s{sMO}, {0xffffff80}
    """)
    vm.add("T")
    xloads(vm); cloads(vm)
    jb = join2 if OPT["bnorm"] else join
    mid = [lambda w: w("s_waitcnt lgkmcnt(0)\ns_barrier"), w_norm] if OPT["bnorm"] else []
    gemv(vm, side_of(w_zero, w_stats, w_silu, *mid, lambda w: w_fma(w, range(16))), {}, wide=True)
    st.n = n0
    st()
    nonce()
    a("s_waitcnt lgkmcnt(0)\ns_barrier")
    a(f"s_cmp_lg_u32 s{sWAVE}, 0\ns_cbranch_scc1 {jb}")
    a(f"v_lshlrev_b32 v{U}, 10, v{vG}\nv_lshl_add_u32 v{U}, v{vQ}, 4, v{U}")
    for i in range(4): a(f"ds_read_b128 {R('v', WD + 4*i)}, v{U} offset:{1024 + 256*i}")
    a(f"""
    v_lshlrev_b32 v{U+2}, 24, v{vG}
    v_lshl_add_u32 v{U+2}, v{vQ}, 4, v{U+2}
    s_and_b32 s{sT0}, s{sCG}, 1
    s_lshl_b32 s{sT0}, s{sT0}, 14
    s_lshr_b32 s{sT1}, s{sCG}, 1
    s_lshl_b32 s{sT1}, s{sT1}, 8
    s_add_u32 s{sT0}, s{sT0}, s{sT1}
    s_add_u32 s{sT0}, s{sT0}, {WS_MODP - 32*256}
    s_waitcnt lgkmcnt(0)
    """)
    for j in (0, 2):
        a(pk("add", WD + j, WD + j, WD + 4 + j)); a(pk("add", WD + 8 + j, WD + 8 + j, WD + 12 + j)); a(pk("add", WD + j, WD + j, WD + 8 + j))
    swap_red(a, [WD + i for i in range(4)], [WD + 4 + i for i in range(4)])
    a(f"buffer_store_dwordx4 {R('v', WD)}, v{U+2}, {S4(S_L)}, s{sT0} offen sc1\ns_branch {jb}")
    a(f"{isc}:\ns_lshl_b32 s{sT0}, s{sT0}, 1\ns_add_u32 s{sT0}, s{sT0}, s{sT3}\ns_sub_u32 s{sT0}, s{sT0}, {512*12288}")
    vm = VM()
    a(f"buffer_load_dword v212, v{T+4}, {S4(S_M)}, s{sT0} offen"); vm.add("T")
    if OPT["t64"] & 4:
        a(f"v_xor_b32 v{T+5}, 3, v{T+2}\nv_lshl_add_u32 v{T+5}, v{T+5}, 24, v{T+4}\nbuffer_load_dword v219, v{T+5}, {S4(S_M)}, s{sT0} offen offset:64"); vm.add("T")
    if OPT["c3"]:
        a(f"""
        s_lshr_b32 s{sT0}, s2, 3
        s_sub_u32 s{sT0}, s{sT0}, 24
        s_lshl_b32 s{sT0}, s{sT0}, 2
        s_add_u32 s{sT0}, s{sT0}, s{sWAVE}
        s_mul_i32 s{sT0}, s{sT0}, {32*12288}
        s_lshl_b32 s{sT3}, s{sT3}, 1
        s_add_u32 s{sT0}, s{sT0}, s{sT3}
        s_add_u32 s{sT0}, s{sT0}, {4096 + 384}
        v_and_b32 v{T+5}, 31, v{vLANE}
        v_mul_u32_u24 v{T+5}, 12288, v{T+5}
        v_and_b32 v{T+6}, {32 if OPT["t64"] & 4 else 0}, v{vLANE}
        v_lshl_add_u32 v{T+5}, v{T+6}, 1, v{T+5}
        buffer_load_dword v213, v{T+5}, {S4(S_M)}, s{sT0} offen
        """)
        vm.add("T")
    xloads(vm)
    if OPT["tlb"]:
        mb = [4, 16, 16, 8, 8, 0, 1, 7, 7, 7, 0, 0, 4, 0, 32, 0]
        w = [sum(mb[4*i + j] << (8*j) for j in range(4)) for i in range(4)]
        a(f"""
        s_bfe_u32 s{sT0}, s2, 0x20003
        s_cmp_eq_u32 s{sT0}, 1
        s_mov_b32 s{sT2}, {w[0]}
        s_cselect_b32 s{sT2}, {w[1]}, s{sT2}
        s_cmp_eq_u32 s{sT0}, 2
        s_cselect_b32 s{sT2}, {w[2]}, s{sT2}
        s_cmp_eq_u32 s{sT0}, 3
        s_cselect_b32 s{sT2}, {w[3]}, s{sT2}
        s_lshl_b32 s{sT0}, s{sT0}, 2
        s_add_u32 s{sT0}, s{sT0}, s{sWAVE}
        s_min_u32 s{sT0}, s{sT0}, 14
        s_lshl_b32 s{sT0}, s{sT0}, 3
        s_load_dwordx2 s[{S_D}:{S_D+1}], s[0:1], s{sT0}
        s_lshl_b32 s{sT1}, s{sWAVE}, 3
        s_lshr_b32 s{sT2}, s{sT2}, s{sT1}
        s_and_b32 s{sT2}, s{sT2}, 0xff
        s_lshl_b32 s{sT2}, s{sT2}, 20
        s_sub_u32 s{sT2}, s{sT2}, {(1 << 20) - 4}
        s_cselect_b32 s{S_D+2}, 0, s{sT2}
        s_mov_b32 s{S_D+3}, 0x20000
        v_lshlrev_b32 v{T+5}, 20, v{vLANE}
        s_waitcnt lgkmcnt(0)
        s_and_b32 s{S_D+1}, s{S_D+1}, 0xffff
        buffer_load_dword v221, v{T+5}, {S4(S_D)}, 0 offen
        """)
        vm.add("T")
    if OPT["cwq"]:
        a(f"""
        s_sub_u32 s{sT0}, s{sG64}, 24
        s_lshl_b32 s{sT0}, s{sT0}, 18
        v_lshrrev_b32 v{T+5}, 1, v{vLANE}
        v_lshlrev_b32 v{T+5}, 13, v{T+5}
        v_and_b32 v{T+6}, 1, v{vLANE}
        v_lshl_add_u32 v{T+5}, v{T+6}, 7, v{T+5}
        buffer_load_dword v214, v{T+5}, {S4(S_W)}, s{sT0} offen
        """)
        vm.add("T")
        if OPT["t64"] & 8:
            a(f"v_xor_b32 v{T+6}, 1, v{T+6}\nv_lshl_add_u32 v{T+5}, v{T+6}, 24, v{T+5}\nbuffer_load_dword v220, v{T+5}, {S4(S_W)}, s{sT0} offen offset:64"); vm.add("T")
    run_side(side_of(w_zero, w_stats), vm)
    st.n = n0
    st()
    nonce()
    a("s_waitcnt lgkmcnt(0)\ns_barrier")
    a(f"{join}:")
    w_norm(a)
    a(f"{join2}:")
    st()
    vm = VM()
    for i in range(OPT["qt0"]): g.issue(g.touch(), vm)
    LW, LR, HO = T, T + 1, T + 2
    a(f"""
    v_lshlrev_b32 v{LW}, 3, v{vLANE}
    v_lshl_add_u32 v{LW}, v10, 10, v{LW}
    v_add_u32 v{LW}, 8192, v{LW}
    v_lshrrev_b32 v{HO}, 3, v{vLANE}
    v_lshlrev_b32 v{LR}, 4, v{HO}
    v_lshl_add_u32 v{LR}, v10, 10, v{LR}
    v_lshl_add_u32 v{HO}, v10, 5, v{HO}
    v_lshlrev_b32 v{HO}, 8, v{HO}
    v_lshl_add_u32 v{HO}, v{vROW}, 4, v{HO}
    v_mov_b32 v{NV}, s{sNONCE}
    s_lshr_b32 s{sT2}, s{sSL}, 1
    s_lshl_b32 s{sT2}, s{sT2}, 15
    s_and_b32 s{sT3}, s{sSL}, 1
    s_lshl_b32 s{sT3}, s{sT3}, 7
    s_add_u32 s{sT2}, s{sT2}, s{sT3}
    s_add_u32 s{sT2}, s{sT2}, {WS_H}
    s_add_u32 s{sT3}, s{sT2}, 4096
    s_lshl_b32 s{sT0}, s{sWAVE}, 10
    s_add_u32 s{sT0}, s{sT0}, {WS_MODG}
    s_add_u32 s{sT1}, s{sT0}, 4096
    """)
    d3()
    G = XP
    poll(a, [f"buffer_load_dwordx4 {R('v', G)}, v{vL16}, {S4(S_L)}, s{sT0} offen sc1", f"buffer_load_dwordx4 {R('v', G+4)}, v{vL16}, {S4(S_L)}, s{sT1} offen sc1"],
         bad_tags([G + 1, G + 3, G + 5, G + 7], U), "mod")
    st()
    a(f"ds_write2_b32 v{LW}, v{G}, v{G+2} offset0:0 offset1:1\nds_write2_b32 v{LW}, v{G+4}, v{G+6} offset0:128 offset1:129\ns_waitcnt lgkmcnt(0)")
    SH, SC = 112, 128
    for i in range(4):
        a(f"ds_read_b128 {R('v', SC + 4*i)}, v{LR} offset:{8192 + 512 + 128*i}\nds_read_b128 {R('v', SH + 4*i)}, v{LR} offset:{8192 + 128*i}")
    a(f"""
    s_lshl_b32 s{sT0}, s{sSL}, 2
    s_add_u32 s{sT0}, s{sT0}, s{sWAVE}
    s_lshl_b32 s{sT0}, s{sT0}, {FS}
    s_add_u32 s{sT0}, s{sT0}, {WS_F2}
    s_lshl_b32 s{sT1}, s{sG64}, {5+FS}
    s_add_u32 s{sT1}, s{sT1}, {WS_F2}
    v_and_b32 v212, {28 if OPT["wgf"] else 31}, v{vLANE}
    v_lshl_add_u32 v212, v212, {FS}, s{sT1}
    """)
    vm = VM()
    for i in range(4):
        a(f"s_waitcnt lgkmcnt({6 - 2*i})")
        for j in range(4*i, 4*i + 4):
            unpack(a, U + 2, U + 3, SC + j); a(pk("mul", X + 2*j, X + 2*j, U + 2)); rnd(a, X + 2*j, X + 2*j + 1)
            unpack(a, U + 2, U + 3, SH + j); a(pk("add", X + 2*j, X + 2*j, U + 2))
            a(f"v_cvt_pk_bf16_f32 v{SH+j}, v{X+2*j}, v{X+2*j+1}")
        a(f"buffer_store_dwordx4 {R('v', SH + 4*i)}, v{HO}, {S4(S_L)}, s{sT2 if i < 2 else sT3} offen offset:{2048*(i % 2)} sc1"); vm.add("H")
    wq = [(c, p) for c in range(4) for p in range(4)][:13]
    for c, p in wq[:OPT["w1"]]: g.issue(g.dma(c, p), vm)
    d3()
    if OPT["full"]: a(f"v_lshrrev_b32 v{vF0}, 5, v{0 if OPT['wgf'] else vLANE}\nv_lshlrev_b32 v{vF0}, 24, v{vF0}\nv_lshl_add_u32 v{vF0}, v{vLANE}, 2, v{vF0}")
    elif OPT["wgf"]: a(f"v_min_u32 v{vF0}, 64, v0\nv_lshlrev_b32 v{vF0}, 24, v{vF0}")
    a(f"s_waitcnt vmcnt({vm.count('H')})")
    if OPT["wgf"]: a("s_barrier")
    a(f"buffer_store_dword v{NV}, v{vF0}, {S4(S_L)}, s{sT0} offen sc1"); vm.add("F")
    st()
    for c, p in wq[OPT["w1"]:OPT["w2"]]: g.issue(g.dma(c, p), vm)
    g.wrest = wq[OPT["w2"]:]
    if OPT["cwq"]: a(g.touch()[2])
    for i in range(OPT["qt0"] + OPT["cwq"], 2): g.issue(g.touch(), vm)
    a(f"s_sub_u32 s{sT0}, s2, 64\ns_cmp_lt_u32 s{sT0}, 128\ns_cselect_b32 s{sT0}, 0, {1 << 24}\ns_add_u32 s{sT0}, s{sT0}, {WS_F1}\ns_lshl_b32 s{sCG}, s{sCG}, {FS}\ns_add_u32 s{sT0}, s{sT0}, s{sCG}")
    a(f"buffer_store_dword v{NV}, v{vF0}, {S4(S_L)}, s{sT0} offen sc1")
    d3()
    hl = f"buffer_load_dword v213, v212, {S4(S_L)}, 0 offen sc1"
    if OPT["hearly"]: a(hl)
    g.between()
    if OPT["hearly"]: poll(a, [hl], bad_tags([213], None), "h", first="s_waitcnt vmcnt(0)")
    else: a("s_waitcnt vmcnt(0)"); poll(a, [hl], bad_tags([213], None), "h")
    st()
    def after_b():
        for i in range(0, 128, 2): a(f"v_mov_b64 v[{16+i}:{17+i}], 0")
    g.after_b = after_b
```

```python
import sys
from common import *
from front import *
import attn as A, back as K

HEAD = open("adaLN_cond__mha_block_cached__moe_arch_mod__prompt.s.ref").read().split("\n")[:18]

def generate():
    a = Asm()
    a.begin_kernel(NAME)
    l = a.label("go")
    a(f"s_cmp_lt_u32 s2, 256\ns_cbranch_scc1 {l}\ns_endpgm\n{l}:")
    st = Stamps(a)
    ids(a)
    if OPT["ctch"] & 1:
        code_touch(a, "L_code_lo", "L_code_hi", 216, 218, 7); a("L_code_lo:")
    g = A.QProj(a)
    wpre = [K.OProj(a).dma(c, p) for c in (0, 1, 4, 2, 5, 3, 6)[:OPT['nw']] for p in range(4)]
    at = A.Attn(a, False, wpre)
    T64 = OPT['t64'] & 1
    def between():
        a(f"""
        v_lshl_add_u32 v{vKV}, v10, 12, v{vL16}
        v_mul_u32_u24 v{vKADDR}, {PIECE}, v{vQ}
        v_lshl_add_u32 v{vKADDR}, v{vG}, 4, v{vKADDR}
        s_mov_b32 s{sKOFF}, 0
        s_mov_b32 s{sVOFF}, 0
        s_lshl_b32 s{sT0}, s{sHEAD}, 19
        s_lshl_b32 s{sT1}, s{sG64}, 14
        s_add_u32 s{sT1}, s{sT1}, s{sT0}
        s_add_u32 s{sT1}, s{sT1}, {WS_O}
        """)
        a.srd(S_K, PTR["k"], 1 << 19, f"s{sT0}"); a.srd(S_V, PTR["v"], 1 << 19, f"s{sT0}"); a.srd(S_O, PTR["ws"], 16384, f"s{sT1}")
        for i in range(4): a(f"v_mov_b32 v{A.ONES+i}, 0x3f803f80")
        a(f"v_and_b32 v14, 1, v{vLANE}\nv_mul_u32_u24 v15, 0xaaaa, v14\nv_add_u32 v15, 0x4444, v15\nv_lshl_add_u32 v{A.IDX}, v15, 16, v15")
        a(f"""
        v_lshrrev_b32 v15, 1, v{vLANE}
        v_mul_u32_u24 v{vGA}, 7168, v15
        v_lshl_add_u32 v{vGA}, v14, 4, v{vGA}
        v_lshrrev_b32 v15, {2 if T64 else 1}, v{vLANE}
        v_lshlrev_b32 v{vTO}, 11, v15
        v_and_b32 v15, {3 if T64 else 1}, v{vLANE}
        v_lshl_add_u32 v{vTO}, v15, {6 if T64 else 7}, v{vTO}
        v_lshrrev_b32 v15, {5 if T64 else 4}, v{vLANE}
        v_lshl_add_u32 v{vTO}, v15, 24, v{vTO}
        s_lshl_b32 s{sT0}, s{sU}, 15
        s_mul_i32 s{sT1}, s{sWAVE}, 7168
        s_add_u32 s{sT0}, s{sT0}, s{sT1}
        s_add_u32 s{sT0}, s{sT0}, {WS_HO}
        v_add_u32 v{vCL}, s{sT0}, v{vL16}
        s_xor_b32 s{sT1}, s{sSL}, {4*OPT['slx']}
        s_min_u32 s{sT1}, s{sT1}, 223
        s_lshl_b32 s{sT1}, s{sT1}, 15
        s_cmp_lt_u32 s2, 224
        s_cselect_b32 s{sT2}, 32768, 0
        """)
        a.srd(S_WD, PTR["wd"], f"s{sT2}", f"s{sT1}")
        g.setup_b()
        K.const_setup(a)
    g.between = between
    front(a, g, st)
    kv, cs = at.first_dmas(), K.const_ops()
    tail = []
    while kv or cs:
        if kv: tail.append(kv.pop(0))
        if cs: tail.append(cs.pop(0))
    w = Asm()
    K.setup_w(w)
    w(f"s_cmp_lt_u32 s2, 224\ns_cselect_b32 s{sT2}, {1024*7168}, 0")
    w.srd(S_WG, PTR["wg"], f"s{sT2}"); w.srd(S_WU, PTR["wu"], f"s{sT2}")
    for qb in range(4): w(f"v_add_u32 v{vBOFF+qb}, {qb*4096}, v{vL16}")
    w(f"v_lshrrev_b32 v14, 5, v{vLANE}\nv_and_b32 v15, 0x1ff, v{vL16}\nv_lshl_add_u32 v14, v14, 11, v15\nv_lshl_add_u32 v{A.vDN}, v10, 9, v14")
    w.uid = 1000
    if OPT["ctch"] & 4: code_touch(w, "L_code_mid", "L_code_tail", 236, None)
    w(f"s_mul_i32 s{A.sGA}, s{sWAVE}, {256*7168}\ns_xor_b32 s{A.sIX}, s{sSL}, {4*OPT['slx']}\ns_lshl_b32 s{A.sIX}, s{A.sIX}, 5\ns_add_u32 s{A.sGA}, s{A.sGA}, s{A.sIX}\ns_mov_b32 s{A.sIX}, -12\ns_mov_b32 s{A.sR4}, 0\ns_lshl_b32 s{A.sWT}, s{sKH}, 5\ns_add_u32 s{A.sWT}, s{A.sWT}, s{sG64}\ns_lshl_b32 s{A.sWT}, s{A.sWT}, 17\ns_mov_b32 s{A.sR1}, 0")
    w(f"s_mov_b32 s50, {f2u(LOG2E * 128 ** -0.5)}\ns_mov_b32 s51, s50")
    for i in range(4): w(f"v_mov_b32 v{A.NEG+i}, -1")
    fill = []
    for x in w.lines:
        if x.endswith(":"): fill[-1] += "\n" + x
        else: fill.append(x.strip())
    vm = g.run(tail, st, fill)
    st()
    for s in range(11, 16): a(at.kread(*at.kread_at(-2, s)))
    for n in range(16):
        for i in range(0, 8, 2): a(pk("mul", A.ACC + 8*n + i, A.ACC + 8*n + i, "s[50:51]"))
        for i in range(4): a(f"v_cvt_pk_bf16_f32 v{A.QF + 4*n + i}, v{A.ACC + 8*n + 2*i}, v{A.ACC + 8*n + 2*i + 1}")
    st()
    at.body(vm.count(("K", 1), ("V", 0)), st)
    st()
    safe, cont = a.label("safe"), a.label("cont")
    A.verdict(a, safe)
    a(f"{cont}:")
    st()
    K.moe(a, st, *K.oproj(a, st))
    st.flush()
    a("s_endpgm")
    K.OUT[0]()
    a("L_code_hi:")
    g.outofline()
    a(f"{safe}:")
    A.safe_path(a, wpre, cont)
    a.end_kernel(NAME, 256, 256, sgpr=102)
    return a.text(HEAD + [f"; @launch grid=(256,1,1) block=(256,1,1) lds={LDS_TOTAL}"])

if __name__ == "__main__":
    for arg in sys.argv[2:]:
        k, v = arg.split("=")
        assert k in OPT, k
        OPT[k] = [int(c) for c in v] if isinstance(OPT[k], list) else int(v)
    open(sys.argv[1], "w").write(generate())
```

```python
from common import *
from front import *

ACC = 16
AFR = [144 + 4*i for i in range(4)]
BRING = [("v", 160 + 4*i) for i in range(16)] + [("v", 232 + 4*i) for i in range(4)] + [("a", 144 + 4*i) for i in range(12)]

vQT, sQT, vF1, vKT, vAQ = 252, 67, 229, 254, 231

class QProj:
    def __init__(self, a): self.a = a
    def setup(self):
        a = self.a
        a(f"""
        v_lshrrev_b32 v{vA}, 2, v{vLANE}
        v_mul_u32_u24 v{vA}, {PIECE}, v{vA}
        v_and_b32 v{vKV}, 3, v{vLANE}
        v_lshl_add_u32 v{vA}, v{vKV}, 3, v{vA}
        v_add_u32 v{vA}, {VRING}, v{vA}
        v_lshl_add_u32 v{vAQ}, v{vKV}, 3, v{vA}
        v_bfe_u32 v{vKV}, v{vLANE}, 2, 1
        v_mul_u32_u24 v{vKV}, 24, v{vKV}
        v_sub_u32 v{vAQ}, v{vAQ}, v{vKV}
        v_lshrrev_b32 v{vWOFF}, 1, v{vG}
        v_lshlrev_b32 v{vWOFF}, 5, v{vWOFF}
        v_and_b32 v{vKV}, 1, v{vG}
        v_lshl_add_u32 v{vWOFF}, v{vKV}, 2, v{vWOFF}
        v_lshl_add_u32 v{vWOFF}, v10, 3, v{vWOFF}
        v_lshlrev_b32 v{vWOFF}, 13, v{vWOFF}
        v_lshl_add_u32 v{vWOFF}, v{vQ}, 4, v{vWOFF}
        s_lshl_b32 s{sT0}, s{sHEAD}, 8
        s_mov_b32 s{sWOFF}, 0
        """)
        a.srd(S_W, PTR["wq"], (8 << 20) - 31*256, f"s{sT0}")
        T64 = OPT['t64'] & 2
        a(f"""
        v_lshrrev_b32 v{vQT}, {2 if T64 else 1}, v{vLANE}
        v_lshlrev_b32 v{vQT}, 13, v{vQT}
        v_and_b32 v{vKV}, {3 if T64 else 1}, v{vLANE}
        v_lshl_add_u32 v{vQT}, v{vKV}, {6 if T64 else 7}, v{vQT}
        v_lshrrev_b32 v{vKV}, {5 if T64 else 4}, v{vLANE}
        v_lshl_add_u32 v{vQT}, v{vKV}, 24, v{vQT}
        s_lshl_b32 s{sQT}, s{sG64}, 16
        """)
    def touch(self):
        return (None, f"buffer_load_dword v253, v{vQT}, {S4(S_W)}, s{sQT} offen", f"s_add_u32 s{sQT}, s{sQT}, {256*8192}", "T")
    def setup_b(self):
        a = self.a
        a(f"""
        s_lshl_b32 s{sT1}, s{sNT}, {1+FS}
        s_add_u32 s{sT1}, s{sT1}, {WS_F1 + (64 << FS)}
        v_bfe_u32 v{vF1}, v{vLANE}, 1, 2
        v_lshlrev_b32 v{vF1}, {5+FS}, v{vF1}
        v_and_b32 v14, 1, v{vLANE}
        v_lshl_add_u32 v{vF1}, v14, {FS}, v{vF1}
        v_add_u32 v{vF1}, s{sT1}, v{vF1}
        v_and_b32 v{vKT}, {7 if OPT['t64'] & 2 else 3}, v{vLANE}
        v_lshlrev_b32 v{vKT}, {6 if OPT['t64'] & 2 else 7}, v{vKT}
        s_lshl_b32 s{sT3}, s{sG64}, 9
        """)
        for qb in range(4): a(f"v_add_u32 v{vBOFF+qb}, {qb*32768}, v{vL16}")
        a(f"s_lshl_b32 s{sT0}, s{sG64}, 17\ns_add_u32 s{sT0}, s{sT0}, {WS_H}\ns_mov_b32 s{sBOFF}, 0")
        a.srd(S_B, PTR["ws"], 1 << 17, f"s{sT0}")
    def acc(self, nb, qb): return R("v", ACC + 4*(qb*8 + nb))
    def bfrag(self, c, qb, ks):
        f, i = BRING[(c % 4)*8 + qb*2 + ks]; return R(f, i)
    def a_reads(self, c, nb):
        if OPT["q8"]:
            return [f"ds_read_b64_tr_b16 {R('v', AFR[(nb % 2)*2 + ks] + 2*jj, 2)}, v{vAQ} offset:{(c % 4)*TILE + (2*ks + jj)*256 + (nb // 2)*64 + (nb % 2)*8}" for ks in range(2) for jj in range(2)]
        return [f"ds_read_b64_tr_b16 {R('v', AFR[(nb % 2)*2 + ks] + 2*jj, 2)}, v{vA} offset:{(c % 4)*TILE + (2*ks + jj)*256 + nb*32}" for ks in range(2) for jj in range(2)]
    def dma(self, c, p):
        return (f"s_add_u32 m0, s{sMW}, {VRING + (c % 4)*TILE + (p*1024 + (p >> 1)*64 + (p & 1)*8 if OPT['q8'] else p*PIECE)}", f"buffer_load_dwordx4 v{vWOFF}, {S4(S_W)}, s{sWOFF} offen {FL[OPT['wf']]} lds",
                f"s_add_u32 s{sWOFF}, s{sWOFF}, {8192 if p < 3 else 61*8192}", ("W", c))
    def bload(self, c, i):
        qb, ks = i // 2, i % 2
        return (None, f"buffer_load_dwordx4 {self.bfrag(c, qb, ks)}, v{vBOFF+qb}, {S4(S_B)}, s{sBOFF} offen offset:{ks*1024} sc1",
                f"s_add_u32 s{sBOFF}, s{sBOFF}, 2048" if i == 7 else None, ("B", c))
    def issue(self, op, vm):
        a = self.a
        if op[0]: a(op[0]); a("s_nop 0")
        a(op[1]); vm.add(op[3])
        if op[2]: a(op[2])
    def w_prologue(self, vm):
        for c in range(4):
            for p in range(4 if c < 3 else 1): self.issue(self.dma(c, p), vm)
    def steady(self, c, nb):
        ops = [self.bload(c + OPT['qdb'], nb)] if c + OPT['qdb'] < 16 else []
        if nb % 2 == 1:
            cc, p = (c + 4, 0) if nb == 7 else (c + 3, (nb + 1)//2)
            if cc < 16: ops.append(self.dma(cc, p))
        if OPT["qtouch"] and c < 12 and c % 4 == 0 and nb == 0: ops.append(self.touch())
        if OPT["kvt"] and c < 12 and c % 4 == 2 and nb in (0, 2):
            ops.append((None, f"buffer_load_dword v{230 if nb else 253}, v{vKT}, {S4(S_K if nb == 0 else S_V)}, s{sT3} offen", f"s_add_u32 s{sT3}, s{sT3}, 16384" if nb else None, "T"))
        return ops
    def chunk(self, a, c, vm, extra=None, need=None, fill=None):
        last = c == 15
        for nb in range(8):
            ms = [mf(self.acc(nb, qb), R("v", AFR[(nb % 2)*2 + ks]), self.bfrag(c, qb, ks)) for qb in (range(4) if nb % 2 == 0 or not OPT['qsn'] & 2 else (3, 2, 1, 0)) for ks in ((0, 1) if qb % 2 == 0 or not OPT['qsn'] & 1 else (1, 0))]
            gaps = {g: [] for g in range(8)}
            if not (last and nb == 7):
                rd = self.a_reads(c, nb + 1) if nb < 7 else self.a_reads(c + 1, 0)
                gaps[0] += rd[0:2]; gaps[1] += rd[2:4]
            ops = self.steady(c, nb)
            while extra and len(ops) < 2: ops.append(extra.pop(0))
            for k, op in enumerate(ops):
                g = 3 + 2*k
                if op[0]: gaps[g - 1].insert(0, op[0])
                gaps[g].append(op[1]); vm.add(op[3])
                if op[2]: gaps[g + 1].append(op[2])
            if fill and not ops and not extra:
                for g in range(2, 7):
                    n = 0
                    while fill and n < (3 if fill[0].startswith("s_") else 2): gaps[g].append(fill.pop(0)); n += 1
            if nb == 6: gaps[7] += [f"s_waitcnt vmcnt({vm.count(*(need or [('W', c + 1), ('B', c + 1)]))}) lgkmcnt(0)", "s_barrier"]
            elif not (last and nb == 7): gaps[7].append("s_waitcnt lgkmcnt(0)")
            emit(a, ms, gaps)
    def run(self, tail_ops, st, fill):
        a = self.a
        vm = VM()
        for c in range(4): vm.add(("W", c))
        for c in range(OPT["qdb"]):
            for i in range(8): self.issue(self.bload(c, i), vm)
            if c == 0:
                a("s_waitcnt lgkmcnt(0)\ns_barrier")
                self.after_b()
                for s in self.a_reads(0, 0): a(s)
            while self.wrest and (self.wrest[0][0] <= c + 1 or c == OPT["qdb"] - 1): self.issue(self.dma(*self.wrest.pop(0)), vm)
        a(f"s_waitcnt vmcnt({vm.count(('B', 0))}) lgkmcnt(0)")
        st()
        bodies = []
        for b in range(3):
            t = Asm()
            for c in range(4*b, 4*b + 4): self.chunk(t, c, vm)
            bodies.append(t.lines)
        l = a.label("qproj")
        a(f"s_mov_b32 s{sCNT}, 0\n{l}:")
        st.dyn(sCNT, 5)
        a.lines += strictest(bodies)
        a(f"s_add_u32 s{sCNT}, s{sCNT}, 1\ns_cmp_lt_u32 s{sCNT}, 3\ns_cbranch_scc1 {l}")
        st.dyn(sCNT, 5)
        f1 = f"buffer_load_dword v253, v{vF1}, {S4(S_L)}, 0 offen sc1"
        self.chunk(a, 12, vm, [(None, f1, None, "F")], need=[("W", 13), ("B", 13), "F"])
        slow, back = a.label("slowf1"), a.label("backf1")
        a(f"v_cmp_ne_u32 vcc, s{sNONCE}, v253\ns_cbranch_vccnz {slow}\n{back}:\nv_lshlrev_b32 v253, 2, v{vLANE}")
        def outofline():
            a(f"{slow}:")
            poll(a, [f1], bad_tags([253], None), "f1")
            a(f"s_branch {back}")
        self.outofline = outofline
        if OPT['diag'] == 5: a(f's_add_u32 s{sCNT}, s{sCNT}, 1'); st.dyn(sCNT, 5)
        self.chunk(a, 13, vm, tail_ops)
        if OPT['diag'] == 5: a(f's_add_u32 s{sCNT}, s{sCNT}, 1'); st.dyn(sCNT, 5)
        self.chunk(a, 14, vm, tail_ops)
        if OPT['diag'] == 5: a(f's_add_u32 s{sCNT}, s{sCNT}, 1'); st.dyn(sCNT, 5)
        self.chunk(a, 15, vm, tail_ops, need=[("K", 0)], fill=fill)
        assert not tail_ops
        for x in fill: a(x)
        return vm

def strictest(bodies):
    import re
    out = list(bodies[0])
    for o in bodies[1:]:
        assert len(o) == len(out), (len(o), len(out))
        for i, (p, q) in enumerate(zip(out, o)):
            if p != q:
                np_, nq = (int(re.search(r"vmcnt\((\d+)\)", z).group(1)) for z in (p, q))
                assert re.sub(r"vmcnt\(\d+\)", "", p) == re.sub(r"vmcnt\(\d+\)", "", q)
                out[i] = p if np_ < nq else q
    return out

QF, SB_, MB, PB_, KF, VF, ONES, IDX = 16, 80, 96, 112, 176, 208, 224, 228
OACC, LACC = 0, 128
TA, NEG, DUM = 96, 232, 108
sGA, sIX, sWT, sR1, sR4 = sT0, sT1, sT2, sT3, sBOFF
vDN = 238

class Attn:
    def __init__(self, a, safe, wpre=None):
        self.a, self.safe, self.wpre = a, safe, wpre
    def kread(self, T, kb, ds):
        return f"ds_read_b128 {R('v', KF + 16*(kb % 2) + 4*ds)}, v{vKADDR} offset:{(T % 4)*TILE + kb*256 + ds*64}"
    def vreads(self, T, db, ks):
        return [f"ds_read_b64_tr_b16 {R('v', VF + 8*(db % 2) + 4*ks + 2*jj, 2)}, v{vA} offset:{(T % 4)*TILE + (2*ks + jj)*256 + db*32}" for jj in range(2)]
    def dma(self, kind, T, p):
        ring, srd, so = (KRING, S_K, sKOFF) if kind == "K" else (VRING, S_V, sVOFF)
        return (f"s_add_u32 m0, s{sMW}, {ring + (T % 4)*TILE + 32*p}", f"buffer_load_dwordx4 v{vKV}, {S4(srd)}, s{so} offen offset:{p*1024} {FL[OPT['kvf']]} lds",
                f"s_add_u32 s{so}, s{so}, 16384" if p == 3 else None, (kind, T))
    def first_dmas(self):
        seq = [("K", 0, p) for p in range(4)]
        for T in range(2): seq += [("K", T + 1, p) for p in range(4)] + [("V", T, p) for p in range(4)]
        return [self.dma(*x) for x in seq]
    def qk(self, kb, qb):
        order = (0, 1, 2, 3) if qb % 2 == 0 else (3, 2, 1, 0)
        return [mf(R("v", SB_ + 4*qb), R("v", KF + 16*(kb % 2) + 4*ds), R("v", QF + 16*qb + 4*ds),
                   (R("v", MB + 4*qb) if self.safe else "0") if n == 0 else None) for n, ds in enumerate(order)]
    def pv(self, T, db, qbs):
        return [mf(R("a", OACC + 4*(qb*8 + db)), R("v", VF + 8*(db % 2) + 4*ks), R("v", PB_ + 32*(T % 2) + 8*qb + 4*ks))
                for qb in qbs for ks in ((0, 1) if qb % 2 == 0 or OPT["pvs"] == 0 else (1, 0))]
    def exp(self, blk, i):
        r_ = SB_ + 4*(blk % 4) + i
        return f"v_exp_f32 v{r_}, v{r_}"
    def cvt(self, X, blk, h):
        kb, qb = blk // 4, blk % 4
        return f"v_cvt_pk_bf16_f32 v{PB_ + 32*(X % 2) + 8*qb + 2*kb + h}, v{SB_ + 4*qb + 2*h}, v{SB_ + 4*qb + 2*h + 1}"
    def smf(self, T, qb):
        return f"v_smfmac_f32_16x16x64_bf16 {R('a', LACC + 4*qb)}, {R('v', ONES)}, {R('v', PB_ + 32*(T % 2) + 8*qb, 8)}, v{IDX}"
    def kread_at(self, T, s):
        n = s + 5
        return T + 1 + n // 16, (n % 16) // 4, n % 4
    def dma_ops(self, T, lo=0):
        ops = {}
        for s in range(1, 16, 2):
            n = (s - 11) // 2
            st = T + 3 if n >= 0 else T + 2
            n %= 8
            if s >= lo: ops[s] = ("K", st + 1, n) if n < 4 else ("V", st, n - 4)
        return ops
    def moe_loads(self, dst):
        return [f"buffer_load_dwordx4 {dst[0]}, v{vGA}, {S4(S_WG)}, s{sGA} offen", f"buffer_load_dwordx4 {dst[1]}, v{vGA}, {S4(S_WU)}, s{sGA} offen",
                f"buffer_load_dwordx4 {dst[2]}, v{vDN}, {S4(S_WD)}, s{sR4} offen"]
    def extras(self, T):
        if self.safe: return {}
        ld = self.moe_loads([R("v", TA + 4*i) for i in range(3)])
        full = [{12: (ld[0], None), 14: (f"buffer_load_dword v{DUM}, v{vTO}, {S4(S_W)}, s{sWT} offen", f"s_add_u32 s{sWT}, s{sWT}, 16384")},
                {12: (ld[1], f"s_add_u32 s{sGA}, s{sGA}, {32*7168}"), 14: (ld[2], f"s_add_u32 s{sR4}, s{sR4}, 4096")},
                {12: (f"buffer_store_dwordx4 {R('v', NEG)}, v{vCL}, {S4(S_L)}, s{sR1} offen sc1", f"s_add_u32 s{sR1}, s{sR1}, 1024"),
                 14: ("global_load_dword v110, v[236:237], off", None)}, {}][T % 4]
        off = OPT["exoff"] | (0 if OPT["ctch"] & 4 else 16)
        kind = [{12: 1, 14: 4}, {12: 1, 14: 2}, {12: 8, 14: 16}, {}][T % 4]
        return {s: v for s, v in full.items() if not kind[s] & off}
    def moves(self, T, s):
        if self.safe or T % 4 != 3: return []
        plan = [{0: (0, 2), 2: (2, 4), 11: (4, 6), 12: (6, 8), 14: (8, 10), 15: (10, 12)}, {12: (0, 12)}, {0: (0, 4), 12: (4, 8), 14: (8, 12)}, {12: (0, 6), 14: (6, 12)}][OPT["mvp"]]
        if s not in plan: return []
        return [f"s_set_gpr_idx_on s{sIX}, gpr_idx(DST)"] + [f"v_accvgpr_write_b32 a{MW + i}, v{TA + i}" for i in range(*plan[s])] + ["s_set_gpr_idx_off"]
    def iteration(self, T, do_qk=True, do_pv=True, tail=None, barwait=8, plan=None):
        a = self.a
        full = do_qk and do_pv
        dmas = self.dma_ops(T, 0 if full else 11) if do_qk else {}
        ex = self.extras(T) if full and not plan else {}
        for s in range(16):
            kb, qb, db = s // 4, s % 4, s // 2
            ms = (self.qk(kb, qb) if do_qk else []) + (self.pv(T, db, (2*(s % 2), 2*(s % 2) + 1)) if do_pv else [])
            if full and OPT["grp"]: ms = self.qk(kb, qb) + self.qk(kb, qb + 1) if s % 2 == 0 else self.pv(T, db, range(4))
            E, C = [], []
            if s >= 1:
                if do_qk: E = [self.exp(s - 1, i) for i in range(4)]
            elif do_pv: E = [self.exp(15, i) for i in range(4)]
            if s >= 2:
                if do_qk: C = [self.cvt(T + 1, s - 2, h) for h in range(2)]
            elif do_pv: C = [self.cvt(T, 14 + s, h) for h in range(2)]
            KR = [self.kread(*self.kread_at(T, s))] if do_qk and not (plan and self.kread_at(T, s)[0] > 31) else []
            VR, n = [], s + 2
            if n < 16:
                if do_pv: VR = self.vreads(T, n // 2, n % 2)
            elif do_qk: VR = self.vreads(T + 1, 0, n % 2)
            D = self.dma(*dmas[s]) if s in dmas else None
            if plan:
                if D is None or D[3][1] > 31: D = plan[1](T, s)
                if D: plan[0].add(D[3])
                if s == 10: barwait = plan[0].count(("K", T + 2), ("V", T + 1))
            gaps = {g: [] for g in range(9)}
            if full:
                pt = OPT["pat"]
                assert pt[6] <= pt[7] <= pt[8] and pt[8] >= 3
                prevk = 0 if plan and s > 0 and self.kread_at(T, s - 1)[0] > 31 else 1
                if s % 2 == 0: gaps[3].append(f"s_waitcnt lgkmcnt({prevk + sum(g < 3 for g in pt[6:8])})")
                for x, g in zip(VR + KR, pt[6:9]): gaps[g].append(x)
                for x, g in zip(C + E, pt[4:6] + pt[0:4]): gaps[g].append(x)
                last = 7
                if s % 4 == 3: ms.append(self.smf(T, s // 4)); last = 8
                if D:
                    if D[0]: gaps[6].insert(0, D[0])
                    gaps[7].append(D[1])
                    if D[2]: gaps[last].append(D[2])
                if s in ex: gaps[7].append(ex[s][0])
                if not plan: gaps[last] = self.moves(T, s) + gaps[last]
                if not plan and not self.safe and T % 4 == 0 and s == 4: gaps[0].insert(0, f"s_add_u32 s{sIX}, s{sIX}, 12")
                if s - 1 in ex and ex[s - 1][1]: gaps[0].insert(0, ex[s - 1][1])
                if s % 4 == 3: gaps[last].append(f"s_waitcnt lgkmcnt({len(KR) + len(VR)})")
                if s == 10: gaps[last] += [f"s_waitcnt vmcnt({barwait})", "s_barrier"]
                if s == 15 and tail: gaps[last] += tail
            elif do_qk:
                E = [self.exp(s - 2, i) for i in range(4)] if s >= 2 else []
                C = [self.cvt(T + 1, s - 3, h) for h in range(2)] if s >= 3 else []
                gaps[0] = VR + C
                if D: gaps[0].insert(0, D[0]); gaps[1] = [D[1]]; gaps[2] = [D[2]] if D[2] else []
                gaps[3] = list(KR)
                for g, x in enumerate(E): gaps[g].append(x)
                if s % 4 == 3: gaps[3].append(f"s_waitcnt lgkmcnt({len(KR) + len(VR)})")
                if s == 10: gaps[3] += [f"s_waitcnt vmcnt({barwait})", "s_barrier"]
                if s == 1: gaps[3].append("s_nop 1")
                if s == 15: gaps[3] += [self.exp(14, i) for i in range(4)] + [self.cvt(T + 1, 13, h) for h in range(2)]
            else:
                pre = E + C
                if s < 2: pre += ["s_nop 1"]
                if s % 2 == 0: pre += ["s_waitcnt lgkmcnt(0)"]
                for x in pre: a(x)
                gaps[0] = VR
                if s % 4 == 3: ms.append(self.smf(T, s // 4))
            emit(a, ms, gaps)
    def body(self, first_wait, st=None):
        a = self.a
        if self.safe:
            for s in range(11, 16): a(self.kread(*self.kread_at(-2, s)))
        a("s_waitcnt lgkmcnt(1)")
        self.iteration(-1, do_pv=False, barwait=first_wait)
        if st: st()
        loop, done = a.label("attn"), a.label("attn_done")
        a(f"s_mov_b32 s{sCNT}, 0\n.p2align 3\n{loop}:")
        if st: st.dyn(sCNT)
        for T in range(4):
            tail = None
            if self.safe:
                if T == 2: tail = [f"s_cmp_eq_u32 s{sCNT}, 7", f"s_cbranch_scc1 {done}"]
                if T == 3: tail = [f"s_add_u32 s{sCNT}, s{sCNT}, 1", f"s_branch {loop}"]
            elif T == 3: tail = [f"s_add_u32 s{sCNT}, s{sCNT}, 1", f"s_cmp_lt_u32 s{sCNT}, 7", f"s_cbranch_scc1 {loop}"]
            self.iteration(T, tail=tail, barwait=8 + (len(self.extras(T - 1)) if T else 0))
        a(f"{done}:")
        if self.safe:
            self.iteration(31, do_qk=False)
            return
        a("L_code_mid:")
        vm = VM()
        for t in [("K", 30), ("V", 29), ("K", 31)] + ["X"] * len(self.extras(3)) + [("K", 31), ("K", 31)]: vm.add(t)
        ld = self.moe_loads([R("a", MW + 84 + 4*i) for i in range(3)])
        q = {(28, 2): ld[0], (28, 12): ld[1], (28, 6): self.extras(0)[14][0], (29, 2): ld[2]}
        wq = list(self.wpre)
        def plan(T, s):
            if s == 10: return None
            if (T, s) in q: return (None, q.pop((T, s)), None, "G")
            if (T, s) > ({0: 28, 1: 29, 4: 29, 2: 30, 5: 30}.get(wq[0][3][1], 99), 10) and (s % 2 or (T, s) > (30, 10)): return wq.pop(0)
        for T in (28, 29, 30): self.iteration(T, plan=(vm, plan))
        assert not q
        if st: st()
        self.final(wq)
    def final(self, wq):
        a, T = self.a, 31
        a.c("last P.V merged with normalisation and stores. Softmax guard: the fast loop used the constant 0 as stand-in for the row maximum;")
        a.c("it is safe iff every row sum l lies in [2^-24, 2^60] and every output is finite. Otherwise the whole workgroup redoes the")
        a.c("head with the true row maximum (L_safe).")
        L, Z, CK, SRC = 96, 104, 108, 176
        DST = [112 + 4*i for i in range(8)] + [192 + 4*i for i in range(4)] + [232 + 4*i for i in range(4)]
        for i in range(4): a(self.exp(15, i))
        for h in range(2): a(self.cvt(T, 14, h))
        a(self.smf(T, 0))
        for h in range(2): a(self.cvt(T, 15, h))
        a(self.smf(T, 1))
        for i in range(2): a(f"v_mov_b32 v{Z+i}, 0")
        a(self.smf(T, 2))
        for i in range(2, 4): a(f"v_mov_b32 v{Z+i}, 0")
        a("s_waitcnt lgkmcnt(0)\ns_barrier")
        a(self.smf(T, 3))
        fill = ["s_nop 0"] * 4
        for qb in range(4): fill += [f"v_accvgpr_read_b32 v{L+2*qb}, a{LACC+4*qb}", f"v_accvgpr_read_b32 v{L+2*qb+1}, a{LACC+4*qb+1}"]
        for qb in range(4): fill += [f"v_add_f32 v{L+2*qb}, v{L+2*qb}, v{L+2*qb+1}"]
        fill += [f"s_mov_b32 s{sT0}, {f2u(2.0**-24)}", f"s_mov_b32 s{sT1}, {f2u(2.0**60)}", f"s_mov_b64 s[50:51], {-1 if OPT['safe'] else 0}"]
        for qb in range(4):
            fill += [f"v_cmp_nle_f32 vcc, s{sT0}, v{L+2*qb}", "s_or_b64 s[50:51], s[50:51], vcc", f"v_cmp_nge_f32 vcc, s{sT1}, v{L+2*qb}", "s_or_b64 s[50:51], s[50:51], vcc"]
        for qb in range(4): fill += [f"v_rcp_f32 v{L+2*qb}, v{L+2*qb}"]
        nfr = [0]
        def frag(sg, qb, packed):
            n = nfr[0]; nfr[0] += 1
            src, dst = SRC + 8*(n % 2), DST[n]
            out = [f"v_accvgpr_read_b32 v{src+i}, a{OACC + 4*(qb*8 + 2*sg) + i}" for i in range(8)]
            if n: out.insert(4, mf(R("v", CK), R("v", Z), R("v", DST[n - 1]), "0" if n == 1 else None))
            if packed: out += [pk("mul", src + i, src + i, L + 2*qb, mods="op_sel_hi:[1,0]") for i in range(0, 8, 2)]
            else: out += [f"v_mul_f32 v{src+i}, v{src+i}, v{L+2*qb}" for i in range(8)]
            out += [f"v_cvt_pk_bf16_f32 v{dst+i}, v{src+2*i}, v{src+2*i+1}" for i in range(4)]
            if n == 16 - OPT["f3p"]: out.insert(0, F3LOAD)
            return out + [f"buffer_store_dwordx4 {R('v', dst)}, v{vBOFF+qb}, {S4(S_O)}, 0 offen offset:{sg*1024} sc1"]
        for db in range(8):
            if db % 2 == 0 and db:
                assert not fill
                for qb in range(4): fill += frag(db // 2 - 1, qb, False)
            ms = self.pv(T, db, range(4))
            left = 16 - 8*(db % 2)
            for g, m in enumerate(ms):
                a(m)
                if g < 2 and db < 7:
                    for x in self.vreads(T, db + 1, g): a(x)
                if g in (2, 4, 6) and wq and db < 4:
                    op = wq.pop(0); a(op[0]); a("s_nop 0"); a(op[1]); a(op[2])
                if not (db % 2 == 0 and g < 2):
                    k = -(-len(fill) // (left - g))
                    for x in fill[:k]: a(x)
                    del fill[:k]
            if db < 7: a("s_waitcnt lgkmcnt(0)")
        assert not wq and not fill
        a("s_nop 1")
        for qb in range(4):
            for x in frag(3, qb, True): a(x)
        a("s_nop 0"); a(mf(R("v", CK), R("v", Z), R("v", DST[15])))
        a(f"s_nop 7\nv_cmp_u_f32 vcc, v{CK}, v{CK}\ns_or_b64 s[50:51], s[50:51], vcc\ns_or_b32 s50, s50, s51")

def epilogue(a, check):
    T = 80
    a("s_nop 7")
    for qb in range(4): a(f"v_accvgpr_read_b32 v{T+2*qb}, a{LACC+4*qb}\nv_accvgpr_read_b32 v{T+2*qb+1}, a{LACC+4*qb+1}")
    for qb in range(4): a(f"v_add_f32 v{T+2*qb}, v{T+2*qb}, v{T+2*qb+1}")
    if check:
        a(f"s_mov_b32 s{sT0}, {f2u(2.0**-24)}\ns_mov_b32 s{sT1}, {f2u(2.0**60)}\ns_mov_b64 s[50:51], {-1 if OPT['safe'] else 0}")
        for qb in range(4):
            a(f"v_cmp_nle_f32 vcc, s{sT0}, v{T+2*qb}\ns_or_b64 s[50:51], s[50:51], vcc")
            a(f"v_cmp_nge_f32 vcc, s{sT1}, v{T+2*qb}\ns_or_b64 s[50:51], s[50:51], vcc")
        for i in range(4): a(f"v_mov_b32 v{KF+i}, 0")
    for qb in range(4): a(f"v_rcp_f32 v{T+2*qb}, v{T+2*qb}")
    n = 0
    for qb in range(4):
        for s in range(4):
            src = 184 + 8*(n % 2); dst = 112 + 4*n
            for i in range(8): a(f"v_accvgpr_read_b32 v{src+i}, a{OACC + 4*(qb*8 + 2*s) + i}")
            for i in range(0, 8, 2): a(pk("mul", src + i, src + i, T + 2*qb, mods="op_sel_hi:[1,0]"))
            for i in range(4): a(f"v_cvt_pk_bf16_f32 v{dst+i}, v{src+2*i}, v{src+2*i+1}")
            a(f"buffer_store_dwordx4 {R('v', dst)}, v{vBOFF+qb}, {S4(S_O)}, 0 offen offset:{s*1024} sc1")
            if check and n: a(mf(R("v", KF + 4), R("v", KF), R("v", dst - 4), "0" if n == 1 else None))
            n += 1
    if check:
        a("s_nop 0"); a(mf(R("v", KF + 4), R("v", KF), R("v", 112 + 60)))
        a(f"s_nop 7\nv_cmp_u_f32 vcc, v{KF+4}, v{KF+4}\ns_or_b64 s[50:51], s[50:51], vcc\ns_or_b32 s50, s50, s51")

def verdict(a, safe):
    a(f"""
    v_mov_b32 v14, s50
    s_lshl_b32 s51, s{sWAVE}, 2
    s_add_u32 s51, s51, {LDS_FLAG}
    v_mov_b32 v15, s51
    ds_write_b32 v15, v14
    v_mov_b32 v15, {LDS_FLAG}
    s_waitcnt lgkmcnt(0)
    s_barrier
    ds_read_b128 v[80:83], v15
    s_waitcnt lgkmcnt(0)
    v_or_b32 v80, v80, v81
    v_or3_b32 v80, v80, v82, v83
    s_nop 0
    v_readfirstlane_b32 s50, v80
    s_nop 3
    s_cmp_lg_u32 s50, 0
    s_cbranch_scc1 {safe}
    """)

def safe_path(a, wpre, cont):
    a.c("fallback: pass 1 computes the true row maximum over all keys, pass 2 repeats attention with scores - max (MFMA C operand)")
    a("s_waitcnt vmcnt(0) lgkmcnt(0)\ns_barrier")
    at, fast = Attn(a, True, wpre), Attn(a, False)
    for i in range(4): a(f"v_mov_b32 v{MB+4*i}, 0xff800000")
    mloop = a.label("maxloop")
    a(f"s_mov_b32 s{sKOFF}, 0\ns_mov_b32 s{sVOFF}, 0\ns_mul_i32 s{sWA}, s{sKH}, {63 << 17}\ns_mul_i32 s{sWOFF}, s{sKH}, {55 << 17}\ns_add_u32 s{sWOFF}, s{sWOFF}, {4 << 17}\n{mloop}:")
    def issue(op):
        a(op[0]); a("s_nop 0"); a(op[1])
        if op[2]: a(op[2])
    for p in range(4): issue(at.dma("K", 0, p))
    a("s_waitcnt vmcnt(0)\ns_barrier")
    for kb in range(4):
        for ds in range(4): a(at.kread(0, kb, ds))
        a("s_waitcnt lgkmcnt(0)")
        for qb in range(4):
            for m in fast.qk(kb, qb): a(m)
        a("s_nop 7")
        for qb in range(4):
            a(f"v_max3_f32 v{MB+4*qb}, v{MB+4*qb}, v{SB_+4*qb}, v{SB_+4*qb+1}\nv_max3_f32 v{MB+4*qb}, v{MB+4*qb}, v{SB_+4*qb+2}, v{SB_+4*qb+3}")
    a(f"s_barrier\ns_cmp_lt_u32 s{sKOFF}, {32*16384}\ns_cbranch_scc1 {mloop}")
    swap_red(a, [MB + 4*qb for qb in range(4)], [MB + 4*qb + 1 for qb in range(4)], "v_max_f32")
    for qb in range(4):
        a(f"v_sub_f32 v{MB+4*qb}, 0, v{MB+4*qb}")
        for i in range(1, 4): a(f"v_mov_b32 v{MB+4*qb+i}, v{MB+4*qb}")
    for i in range(144): a(f"v_accvgpr_write_b32 a{i}, 0")
    a(f"s_mov_b32 s{sKOFF}, 0")
    for op in at.first_dmas(): issue(op)
    a("s_waitcnt vmcnt(16)\ns_barrier")
    at.body(8)
    a("s_waitcnt vmcnt(0)\ns_barrier")
    for op in wpre: issue(op)
    a(F3LOAD)
    epilogue(a, False)
    a(f"s_branch {cont}")
```

```python
from common import *
from front import *
from attn import strictest

S_OUT = S_O
vB0, vX0, vC = 6, 8, 9
vAS, vAK = (3, 4), (5, 15)
ACC, AF, XF, GA, C1, SBv, GBv, WP, T = 16, 48, 80, 112, 128, 144, 160, 176, 192
SENT, BR = 216, 0
sHO = 67
LDS_DN, LDS_RED = 4*TILE, 4*TILE + 32768

def const_ops():
    ops = []
    for p in range(4):
        ops.append((f"s_add_u32 m0, s{sT0}, {p*PIECE}", f"buffer_load_dwordx4 v14, {S4(S_WG)}, s{sT2} offen lds", f"s_add_u32 s{sT2}, s{sT2}, 16384", "C"))
    for e in range(2):
        ops.append((f"s_add_u32 m0, s{sT0}, {4*PIECE + 1024*e}", f"buffer_load_dwordx4 v15, {S4(S_L)}, s{sT1} offen sc1 lds", f"s_add_u32 s{sT1}, s{sT1}, 16384", "C"))
    ops.append((f"s_add_u32 m0, s{sT0}, {4*PIECE + 2048}", f"buffer_load_dword v{vL4}, {S4(S_WU)}, 0 offen lds", None, "C"))
    return ops

vL4 = 253
def const_setup(a):
    a(f"v_lshrrev_b32 v15, 3, v{vLANE}\nv_and_b32 v14, 7, v{vLANE}\nv_lshlrev_b32 v14, 4, v14\nv_lshl_add_u32 v14, v15, 11, v14")
    a(f"v_lshlrev_b32 v15, 12, v{vG}\nv_lshl_add_u32 v15, v{vQ}, 4, v15")
    a(f"s_lshl_b32 s{sT0}, s{sNT}, 7\ns_lshl_b32 s{sT1}, s{sG}, 16\ns_add_u32 s{sT1}, s{sT1}, s{sT0}")
    a.srd(S_WG, PTR["x"], 65536 - 1920, f"s{sT1}")
    a.srd(S_WU, PTR["wr"], 128, f"s{sT0}")
    a(f"s_lshl_b32 s{sT1}, s{sNT}, 8\ns_add_u32 s{sT1}, s{sT1}, {WS_MODP}\ns_mul_i32 s{sT0}, s{sWAVE}, {CSTW}\ns_add_u32 s{sT0}, s{sT0}, {LDS_CST}\ns_mov_b32 s{sT2}, 0")

def setup_w(a):
    a(f"""
    v_lshlrev_b32 v14, 4, v{vG}
    v_lshl_add_u32 v14, v10, 2, v14
    v_lshlrev_b32 v14, 11, v14
    v_lshl_add_u32 v{vWOFF}, v{vQ}, 4, v14
    s_mul_i32 s{sWA}, s{sKH}, {63 << 17}
    s_mul_i32 s{sWOFF}, s{sKH}, {55 << 17}
    s_add_u32 s{sWOFF}, s{sWOFF}, {4 << 17}
    s_mul_i32 s{sWST}, s{sKH}, {(-128*2048) & 0xffffffff}
    s_add_u32 s{sWST}, s{sWST}, {61*2048}
    s_lshr_b32 s{sT0}, s{sNT}, 1
    s_lshl_b32 s{sT0}, s{sT0}, 8
    """)
    a.srd(S_W, PTR["wo"], (8 << 20) - 1792, f"s{sT0}")
    a(f"""
    s_lshr_b32 s{sT0}, s{sG}, 1
    s_lshl_b32 s{sT0}, s{sT0}, {5+FS}
    s_mul_i32 s{sT1}, s{sKH}, {24 << FS}
    s_add_u32 s{sT0}, s{sT0}, s{sT1}
    s_add_u32 s{sT0}, s{sT0}, {WS_F3}
    v_and_b32 v{vF3}, 7, v{vLANE}
    v_lshl_add_u32 v{vF3}, v{vF3}, {FS}, s{sT0}
    s_lshl_b32 s{sT0}, s{sKH}, 1
    s_sub_u32 s{sT0}, 1, s{sT0}
    s_mul_i32 s{sBS}, s{sT0}, 2048
    s_mul_i32 s{sBS+1}, s{sT0}, {(1 << 19) - 2048}
    s_mul_i32 s{sNB}, s{sKH}, {OPT['bias']}
    s_sub_u32 s{sNB}, {(OPT['bias'] + 11) >> 1}, s{sNB}
    s_lshl_b32 s{sT1}, s{sG}, 13
    s_add_u32 s{sT1}, s{sT1}, {WS_O}
    """)
    a.srd(S_B, PTR["ws"], (31 << 19) + 8192, f"s{sT1}")

OUT = []
vF2, vFL = 248, 254

class OProj:
    def __init__(self, a): self.a, self.vm, self.db, self.body = a, VM(), 3, 0
    def dma(self, c, p):
        base = sMW if (c // 4) % 2 == self.body % 2 else sMW2
        sWOFF = sWA if c < 4 else globals()["sWOFF"]
        return (f"s_add_u32 m0, s{base}, {(c % 4)*TILE + p*1024 + (p >> 1)*64 + (p & 1)*8}", f"buffer_load_dwordx4 v{vWOFF}, {S4(S_W)}, s{sWOFF} offen {FL[OPT['wf']]} lds",
                f"s_add_u32 s{sWOFF}, s{sWOFF}, {2048 if p < 3 else 's%d' % sWST}", ("W", c))
    def bfrag(self, c, qb, ks): return R("a", BR + 16*(c % 4) + (64 if c >= 28 else 0) + 8*qb + 4*ks)
    def bload(self, c, i):
        qb, ks = i // 2, i % 2
        return (None, f"buffer_load_dwordx4 {self.bfrag(c, qb, ks)}, v{vB0+qb}, {S4(S_B)}, s{sBOFF} offen offset:{ks*1024} sc1",
                f"s_add_u32 s{sBOFF}, s{sBOFF}, s{sBS + c % 2}" if i == 3 else None, ("B", c))
    def acc(self, s, j, qb): return R("v", (SENT if s < 2 else ACC) + 16*qb + 4*(2*(s % 2) + j))
    def issue(self, op, a=None):
        a = a or self.a
        if op[0]: a(op[0]); a("s_nop 0")
        a(op[1]); self.vm.add(op[3])
        if op[2]: a(op[2])
    def areads(self, c, s, buf):
        base = (vAS if s < 2 else vAK)[0 if c // 4 == self.body else 1]
        return [f"ds_read_b64_tr_b16 {R('v', AF + 16*buf + 8*j + 4*ks + 2*jj, 2)}, v{base} offset:{(c % 4)*TILE + (2*ks + jj)*256 + (s % 2)*64 + j*8}"
                for j in range(2) for ks in range(2) for jj in range(2)]
    def expand1(self):
        a = self.a
        a(f"""
        s_mul_i32 s{sT0}, s{sWAVE}, {CSTW}
        s_add_u32 s{sT0}, s{sT0}, {LDS_CST}
        v_lshl_add_u32 v21, v{vG}, 4, s{sT0}
        v_lshrrev_b32 v20, 3, v{vQ}
        v_mul_u32_u24 v20, {PIECE - 1024}, v20
        v_lshl_add_u32 v20, v{vQ}, 7, v20
        v_add_u32 v20, v20, v21
        """)
        a(f"""
        v_add_u32 v22, s{sT0}, v{vL16}
        ds_read_b128 v[24:27], v22 offset:{4*PIECE}
        ds_read_b128 v[28:31], v22 offset:{4*PIECE + 1024}
        """)
        rd = [(XF + 16*qb + 8*h, 20, 2*qb*PIECE + h*64) for qb in range(2) for h in range(2)] + [(WP + 8*h, 21, 4*PIECE + 2048 + h*64) for h in range(2)]
        for d, v, off in rd: a(f"ds_read_b128 {R('v', d + 4)}, v{v} offset:{off}")
        a(f"v_cmp_eq_u32 vcc, 2, v{vG}\nv_lshl_add_u32 v21, v{vG}, 5, s{sT0}\nv_mov_b32 v33, 0\nv_cndmask_b32 v32, 0, 1.0, vcc\ns_waitcnt lgkmcnt(6)")
        for j in (24, 26):
            a(pk("add", j, j, j + 4)); rnd(a, j, j + 1); a(pk("add", j, j, 32, mods="op_sel_hi:[1,0]")); rnd(a, j, j + 1)
        a(f"ds_write_b128 v22, v[24:27] offset:{4*PIECE}\ns_waitcnt lgkmcnt(0)")
        for j, dst in enumerate((GA, SBv, C1, GBv)):
            if j == 3: a("s_waitcnt lgkmcnt(8)")
            for nb in range(4): a(f"ds_read_b128 {R('v', dst + 4*nb)}, v21 offset:{4*PIECE + j*256 + (nb // 2)*128 + (nb % 2)*16}")
        for d, v, off in rd:
            for i in range(4): unpack(a, d + 2*i, d + 2*i + 1, d + 4 + i)
    def expand2(self):
        a = self.a
        a("s_waitcnt lgkmcnt(0)")
        for i in range(0, 16, 2):
            a(pk("mul", T + 2, SBv + i, WP + i) if i == 0 else pk("fma", T + 2, SBv + i, WP + i, T + 2))
            a(pk("mul", WP + i, WP + i, C1 + i))
            if i == 2: a(pk("add", T + 4, WP, WP + 2))
            elif i > 2: a(pk("add", T + 4, T + 4, WP + i))
        a(f"v_and_b32 v{T}, 1, v0\nv_cmp_eq_u32 vcc, 1, v{T}\nv_add_f32 v{T+2}, v{T+2}, v{T+3}\nv_add_f32 v{T+4}, v{T+4}, v{T+5}\nv_cndmask_b32 v14, v{T+4}, v{T+2}, vcc")
        swap_red(a, [14], [T])
    def send(self):
        out = [f"s_xor_b32 s{sT0}, s{sHO}, 32768", f"s_lshl_b32 s{sT1}, s{sWAVE}, 12", f"s_add_u32 s{sT0}, s{sT0}, s{sT1}", f"s_add_u32 s{sT2}, s{sHO}, s{sT1}"]
        for n in (0, 2, 1, 3):
            for i in range(4): out.append(f"v_cvt_pk_bf16_f32 v{T + 4*n + i}, v{SENT + 8*n + 2*i}, v{SENT + 8*n + 2*i + 1}")
            out.append(f"buffer_store_dwordx4 {R('v', T + 4*n)}, v{vL16}, {S4(S_L)}, s{sT0} offen offset:{HO_EX + n*1024} sc1")
        return out
    def stream(self, NC, exq):
        sk, barp, RG, VG = min(OPT["skew"], NC - 24), OPT["barp"], OPT["rg"], OPT["vg"]
        order = [(c, s) for c in range(NC - sk) for s in range(4)]
        order += [(c, s) for c in range(NC - sk, NC) for s in range(2)] + [(c, s) for c in range(NC - sk, NC) for s in range(2, 4)]
        bq = [(c, i) for c in range(self.db, NC) for i in range(4)]
        visible, waitedB, sendq, bodies = set(range(barp)), {0}, None, []
        wq, freed = None, set()
        for n, (c, s) in enumerate(order):
            if n % 16 == 0 and n <= 96: a = Asm(); bodies.append(a); self.body = n // 16
            buf = n % 2
            ms = [mf(self.acc(s, j, qb), R("v", AF + 16*buf + (0 if OPT["halftr"] & 1 else 8*j) + 4*ks), self.bfrag(c - (j if OPT["halftr"] & 1 and c else 0), qb, ks), "0" if c == 0 and k == 0 else None)
                  for j in range(2) for qb in ((0, 1) if j == 0 or not OPT['osn'] & 2 else (1, 0)) for k, ks in enumerate((0, 1) if qb == 0 or not OPT['osn'] & 1 else (1, 0))]
            gaps = {g: [] for g in range(8)}
            nxt = order[n + 1] if n + 1 < len(order) else None
            wn = n + 1 + 4*(7 - barp)
            if n == 96: wq = [(i // 4, i % 4) for i in range(wn, 4*NC)]
            if 16 <= n < 96 and n % 16 == OPT["fpos"]: gaps[0].append(self.fl); self.vm.add("F")
            if n == 48: self.fwait = self.vm.count("F")
            for g in range(8):
                needfree = n >= 96 and wq and wq[0][0] - 8 not in freed and all((wq[0][0] - 8, ss) in order[:n] for ss in range(4))
                if g == RG[0] and nxt and (nxt[0] not in visible or needfree):
                    lb = max(i for i, t in enumerate(self.vm.ops) if t[0] == "B" and t[1] in waitedB)
                    if n < 96: newv = list(range(nxt[0], nxt[0] + barp))
                    else: newv = [nxt[0]]
                    lw = max(i for i, t in enumerate(self.vm.ops) if t[0] == "W" and t[1] in newv)
                    assert n < 96 or not any(w[0] in newv for w in wq)
                    if lw > lb: gaps[g].append(f"s_waitcnt vmcnt({min(63, len(self.vm.ops) - 1 - int(lw))})")
                    gaps[g].append("s_barrier")
                    if n >= 96:
                        newv += [cc for cc in range(NC) if not any(w[0] == cc for w in wq) and max(i for i, t in enumerate(self.vm.ops) if t == ("W", cc)) <= max(lw, lb)]
                    visible |= set(newv)
                    freed |= {cc for cc in range(32) if all((cc, ss) in order[:n] for ss in range(4))}
                if g == 3 and n > 0: gaps[g].append(f"s_waitcnt lgkmcnt({2*len([x for x in RG if x < 3]) if nxt else 0})")
                if g in RG and nxt:
                    k = RG.index(g)
                    if not (OPT["halftr"] & 1 and k >= 2): gaps[g] += self.areads(nxt[0], nxt[1], 1 - buf)[2*k:2*k + 2]
                if g in VG or (n >= 96 and g == 0 and OPT["t3"]):
                    op, first = None, g != VG[1]
                    if first and bq: op = self.bload(*bq.pop(0))
                    elif not first and n < 96 and wn >= 4*OPT['nw']: op = self.dma(wn // 4, wn % 4)
                    elif n >= 96 and g > 0 and wq and wq[0][0] - 8 in freed: op = self.dma(*wq.pop(0))
                    elif n >= 96 and bq: op = self.bload(*bq.pop(0))
                    elif n >= OPT["exn"] - 4*(32 - NC) and exq and sendq == []: op = (None, exq.pop(0), None, "E")
                    if op:
                        if op[0]: gaps[g - 1].insert(0, op[0])
                        gaps[g].append(op[1]); self.vm.add(op[3])
                        if op[2]: gaps[g + 1].insert(0, op[2])
                if sendq and g not in RG and not any(x.startswith("buffer") for x in gaps[g]):
                    while sendq and len([x for x in gaps[g] if x.startswith("v_")]) < OPT["sv"]:
                        x = sendq[0]
                        if x.startswith("buffer") and any(y.startswith("v_") for y in gaps[g]): break
                        gaps[g].append(sendq.pop(0))
                        if x.startswith("buffer"):
                            self.vm.add("S")
                            if OPT["sv"] == 2: break
            if nxt and nxt[0] not in waitedB:
                assert not any(b[0] == nxt[0] for b in bq)
                gaps[7].insert(0, f"s_waitcnt vmcnt({self.vm.count(('B', nxt[0]))}) lgkmcnt(4)"); waitedB.add(nxt[0])
            elif nxt: gaps[7].insert(0, "s_waitcnt lgkmcnt(4)")
            if n % 16 == 15 and n < 96:
                gaps[6] += [f"s_mov_b32 s{sT0}, s{sMW}"]
                gaps[7] += [f"v_swap_b32 v{vAS[0]}, v{vAS[1]}", f"v_swap_b32 v{vAK[0]}, v{vAK[1]}", f"s_mov_b32 s{sMW}, s{sMW2}", f"s_mov_b32 s{sMW2}, s{sT0}"]
            emit(a, ms, gaps)
            if n == 100 and OPT["ctch"] & 2: a("global_load_dword v249, v[250:251], off"); self.vm.add("T")
            if (c, s) == (NC - 1, 1): sendq = self.send()
        assert not bq and not wq
        for x in sendq + exq: a(x)
        return [b.lines for b in bodies]
    def main(self, st, exq):
        a = self.a
        self.fl = fl = f"buffer_load_dword v{vFL}, v{vF2}, {S4(S_L)}, s{sKOFF} offen sc1"
        bodies = self.stream(32 - 2*(OPT["bias"] % 2), list(exq))
        a.lines += bodies[0]
        l, slow, back = (a.label(x) for x in ("oploop", "phase2", "phase2back"))
        a(f"s_mov_b32 s{sCNT}, 0\n{l}:\ns_cmp_eq_u32 s{sCNT}, 2\ns_cbranch_scc1 {slow}\n{back}:\ns_cmp_eq_u32 s{sCNT}, 1\ns_cselect_b32 s{sKOFF}, 0, {1 << 24}")
        st.dyn(sCNT, 4)
        a.lines += strictest(bodies[1:6])
        a(f"s_add_u32 s{sCNT}, s{sCNT}, 1\ns_cmp_lt_u32 s{sCNT}, s{sNB}\ns_cbranch_scc1 {l}")
        st.dyn(sCNT, 4)
        a.lines += bodies[6]
        a("L_code_tail:\ns_barrier")
        def out():
            a(f"{slow}:")
            poll(a, [fl], bad_tags([vFL], None), "p2", first=f"s_waitcnt vmcnt({self.fwait})")
            a(f"s_branch {back}")
        OUT.append(out)

def oproj(a, st):
    o = OProj(a)
    for c in range(OPT['nw']): o.vm.add(("W", c))
    f3 = F3LOAD
    bl = Asm()
    for c in range(o.db):
        for i in range(4): o.issue(o.bload(c, i), bl)
    skip, have, fl2 = a.label("skipB"), a.label("haveB"), a.label("flag")
    a(f"s_mul_i32 s{sBOFF}, s{sKH}, {(31 << 19) + 2048}\ns_waitcnt vmcnt({OPT['f3p']})\nv_cmp_ne_u32 vcc, s{sNONCE}, v{vF3+1}\ns_mov_b32 s{sCNT}, 0\ns_cbranch_vccnz {skip}")
    a.lines += bl.lines
    a(f"s_mov_b32 s{sCNT}, 1\n{skip}:")
    a(f"""
    s_lshr_b32 s{sT2}, s{sG}, 1
    s_lshl_b32 s{sT2}, s{sT2}, {5+FS}
    s_add_u32 s{sT2}, s{sT2}, {WS_F3}
    v_and_b32 v{vF2}, 31, v{vLANE}
    v_lshl_add_u32 v{vF2}, v{vF2}, {FS}, s{sT2}
    s_lshl_b32 s{sT0}, s{sG64}, {5+FS}
    s_lshl_b32 s{sT1}, s{sHEAD}, {FS}
    s_add_u32 s{sT0}, s{sT0}, s{sT1}
    s_add_u32 s{sT2}, s{sT0}, {WS_F3}
    v_mov_b32 v16, s{sNONCE}
    v_lshrrev_b32 v17, {5 if OPT["full"] else 0}, v{vLANE}
    v_lshlrev_b32 v17, 24, v17
    v_lshl_add_u32 v17, v{vLANE}, 2, v17
    s_lshl_b32 s{sT0}, s{sKH}, 7
    s_xor_b32 s{sT1}, s{sT0}, 128
    v_and_b32 v20, 3, v{vLANE}
    v_lshl_add_u32 v{vA}, v20, 3, v{vA}
    v_bfe_u32 v20, v{vLANE}, 2, 1
    v_mul_u32_u24 v20, 24, v20
    v_sub_u32 v{vA}, v{vA}, v20
    v_add_u32 v{vAK[1]}, s{sT0}, v{vA}
    v_add_u32 v{vAS[1]}, s{sT1}, v{vA}
    v_subrev_u32 v{vAS[0]}, {4*TILE}, v{vAS[1]}
    v_subrev_u32 v{vAK[0]}, {4*TILE}, v{vAK[1]}
    v_lshlrev_b32 v{vC}, 4, v{vG}
    v_lshl_add_u32 v{vX0}, v{vQ}, 11, v{vC}
    s_lshl_b32 s{sHO}, s{sU}, 15
    s_add_u32 s{sHO}, s{sHO}, {WS_HO}
    """)
    assert vAS[1] == vA
    a.lines.append(f"    s_nop 0")
    a(f"s_lshl_b32 s{sT0}, s{sNT}, 7\ns_lshl_b32 s{sT1}, s{sG}, 16\ns_add_u32 s{sT1}, s{sT1}, s{sT0}")
    a.srd(S_OUT, PTR["out"], 65536 - 1920, f"s{sT1}")
    a(f"s_cmp_eq_u32 s{sCNT}, 1\ns_waitcnt vmcnt(12)\ns_cbranch_scc1 {fl2}\ns_waitcnt vmcnt(0)\n{fl2}:\nbuffer_store_dword v16, v17, {S4(S_L)}, s{sT2} offen sc1")
    st()
    o.expand1()
    o.expand2()
    if OPT["ctch"] & 2: code_touch(a, "L_code_tail", "L_code_hi", 250, None)
    a("s_barrier")
    for s in o.areads(0, 0, 0): a(s)
    a(f"s_cmp_eq_u32 s{sCNT}, 1\ns_cbranch_scc1 {have}")
    poll(a, [f3], bad_tags([vF3 + 1], None), "f3")
    a.lines += bl.lines
    a(f"{have}:\ns_waitcnt vmcnt(8) lgkmcnt(0)")
    st()
    t, Q = T, T + 24
    exl = [f"buffer_load_dwordx4 {R('v', Q + 4*n)}, v{vL16}, {S4(S_L)}, s{sT2} offen offset:{HO_EX + n*1024} sc1" for n in range(4)]
    o.main(st, exl)
    st()
    def gu_writes():
        for i in range(16):
            if i == 12: a("s_waitcnt lgkmcnt(8)")
            a(f"ds_write_b128 v2, {R('a', MW + 12*(i // 2) + 4*(i % 2))} offset:{i*1024}")
    a(f"v_lshl_add_u32 v2, v10, 14, v{vL16}")
    poll(a, exl, bad_sentinel(list(range(Q, Q + 16)), t + 22), "ex", first="s_waitcnt vmcnt(0)")
    for i in range(16):
        unpack(a, t + 2*(i % 2), t + 2*(i % 2) + 1, Q + i); a(pk("add", ACC + 2*i, ACC + 2*i, t + 2*(i % 2)))
    st()
    for qb in range(2):
        for i in range(0, 16, 2): a(pk("fma", XF + 16*qb + i, ACC + 16*qb + i, GA + i, XF + 16*qb + i))
    S, D, M = t, t + 4, t + 8
    for i in range(0, 16, 2):
        for qb in range(2):
            x = XF + 16*qb + i
            if i == 2: a(pk("add", S + 2*qb, x - 2, x))
            elif i > 2: a(pk("add", S + 2*qb, S + 2*qb, x))
            a(pk("mul", D + 2*qb, x, WP + i) if i == 0 else pk("fma", D + 2*qb, x, WP + i, D + 2*qb))
    for r_ in (S, S + 2, D, D + 2): a(f"v_add_f32 v{r_}, v{r_}, v{r_+1}")
    swap_red(a, [S, S + 2, D, D + 2], [S + 1, S + 3, D + 1, D + 3])
    for qb in range(2): a(f"v_mul_f32 v{S+2*qb}, {f2u(-1/64)}, v{S+2*qb}")
    for i in range(0, 16, 2):
        for qb in range(2): a(pk("add", t + 12 + 2*qb, XF + 16*qb + i, S + 2*qb, mods="op_sel_hi:[1,0]"))
        for qb in range(2): a(pk("mul", M + 2*qb, t + 12 + 2*qb, t + 12 + 2*qb) if i == 0 else pk("fma", M + 2*qb, t + 12 + 2*qb, t + 12 + 2*qb, M + 2*qb))
    for r_ in (M, M + 2): a(f"v_add_f32 v{r_}, v{r_}, v{r_+1}")
    swap_red(a, [M, M + 2], [M + 1, M + 3])
    G = t + 16
    a(f"""
    v_and_b32 v{G+4}, 16, v0
    v_cmp_ne_u32 vcc, 0, v{G+4}
    v_lshrrev_b32 v{G+4}, 5, v{vLANE}
    v_lshl_add_u32 v{G+4}, v{G+4}, 24, v{vL16}
    v_cndmask_b32 v{G}, v{S}, v{S+2}, vcc
    v_cndmask_b32 v{G+1}, v{M}, v{M+2}, vcc
    v_cndmask_b32 v{G+2}, v{D}, v{D+2}, vcc
    v_mov_b32 v{G+3}, v14
    s_lshl_b32 s{sT0}, s{sWAVE}, 9
    s_add_u32 s{sT0}, s{sT0}, {HO_ST}
    s_add_u32 s{sT1}, s{sT0}, s{sHO}
    buffer_store_dwordx4 {R('v', G)}, v{G+4}, {S4(S_L)}, s{sT1} offen sc1
    s_and_b32 s{sT1}, s{sHO}, {0xffffffff ^ (15 << 15)}
    s_add_u32 s{sT0}, s{sT0}, s{sT1}
    s_add_u32 s{sT1}, s{sT0}, {4 << 15}
    s_add_u32 s{sT2}, s{sT0}, {8 << 15}
    s_add_u32 s{sT3}, s{sT0}, {12 << 15}
    v_lshlrev_b32 v{G+5}, 15, v{vG}
    v_lshl_add_u32 v{G+5}, v{vQ}, 4, v{G+5}
    v_lshlrev_b32 v3, 8, v{vG}
    v_lshl_add_u32 v3, v{vQ}, 3, v3
    v_lshl_add_u32 v3, v10, 14, v3
    """)
    a.lines.append("    s_nop 0    ; REBASE v255=0")
    d6 = st if OPT["diag"] == 6 else (lambda: None)
    d6()
    if OPT["guw"] == 0: gu_writes()
    stl = [f"buffer_load_dwordx4 {R('v', Q + 4*j)}, v{G+5}, {S4(S_L)}, s{sT0 + (j >> 1)} offen offset:{(j & 1)*256} sc1" for j in range(8)]
    d6()
    a("s_waitcnt vmcnt(0)")
    d6()
    for l in stl: a(l)
    if OPT["guw"] == 1: gu_writes()
    def gu_reads():
        a("s_waitcnt lgkmcnt(0)")
        n = 0
        for ks in range(8):
            for m in range(2):
                for jj in range(2):
                    if n >= 12 and n % 4 == 0: a("s_waitcnt lgkmcnt(8)")
                    a(f"ds_read_b64_tr_b16 {R('a', MW + 12*ks + 4*m + 2*jj, 2)}, v3 offset:{ks*2048 + m*1024 + jj*128}"); n += 1
    if OPT["guw"] == 0: gu_reads()
    d6()
    if OPT["diag"] == 6: a("s_waitcnt vmcnt(0)"); d6()
    poll(a, stl, bad_sentinel(list(range(Q, Q + 32)), t + 22), "st", first="s_waitcnt vmcnt(0)")
    st()
    Z = t
    for qb in range(2):
        for h in range(2):
            a(pk("add", Z + 4*qb + 2*h, Q + 4*qb + 2*h, Q + 8 + 4*qb + 2*h)); a(pk("add", t + 8 + 4*qb + 2*h, Q + 16 + 4*qb + 2*h, Q + 24 + 4*qb + 2*h))
    for i in range(0, 8, 2): a(pk("add", Z + i, Z + i, t + 8 + i))
    swap_red(a, [Z + i for i in range(7)], [t + 8 + i for i in range(7)])
    for qb in range(2): a(f"v_mul_f32 v{Z+4*qb}, {f2u(1/16)}, v{Z+4*qb}")
    for j in range(8):
        qb = j & 1
        a(f"v_sub_f32 v{t+10+qb}, v{Q+4*j}, v{Z+4*qb}")
        a(f"v_mul_f32 v{t+8+qb}, v{t+10+qb}, v{t+10+qb}" if j < 2 else f"v_fmac_f32 v{t+8+qb}, v{t+10+qb}, v{t+10+qb}")
    swap_red(a, [t + 8, t + 9], [t + 10, t + 11])
    a(f"v_mov_b32_dpp v{t+12}, v{Z+3} quad_perm:[0,0,2,2] row_mask:0xf bank_mask:0xf\nv_mov_b32_dpp v{t+13}, v{Z+3} quad_perm:[1,1,3,3] row_mask:0xf bank_mask:0xf")
    for qb in range(2): a(f"v_fmac_f32 v{Z+4*qb+1}, {f2u(64.0)}, v{t+8+qb}\nv_mul_f32 v{Z+4*qb+1}, {f2u(1/1024)}, v{Z+4*qb+1}")
    for qb in range(2): rnd(a, Z + 4*qb, Z + 4*qb + 1)
    a(f"v_add_f32 v{Z+1}, {f2u(1e-5)}, v{Z+1}\nv_add_f32 v{Z+5}, {f2u(1e-5)}, v{Z+5}")
    rnd(a, Z + 1, Z + 5)
    a(f"v_sqrt_f32 v{Z+1}, v{Z+1}\nv_sqrt_f32 v{Z+5}, v{Z+5}\ns_nop 0")
    rnd(a, Z + 1, Z + 5)
    a(f"v_rcp_f32 v{Z+1}, v{Z+1}\nv_rcp_f32 v{Z+5}, v{Z+5}")
    K0 = t + 14
    for qb in range(2): a(f"v_fmac_f32 v{Z+4*qb+2}, v{Z+4*qb}, v{t+12}")
    for qb in range(2): a(f"v_fma_f32 v{Z+4*qb+2}, v{Z+4*qb+2}, v{Z+4*qb+1}, v{t+13}")
    rnd(a, K0, K0 + 1, Z + 2, Z + 6)
    a(f"s_lshl_b32 s{sT0}, s{sG}, 5\ns_sub_u32 s{sT0}, 2047, s{sT0}\nv_sub_u32 v{t+10}, s{sT0}, v{vQ}\nv_subrev_u32 v{t+11}, 16, v{t+10}")
    for qb in range(2):
        a(f"v_ashrrev_i32 v{t+8}, 31, v{K0+qb}\nv_or_b32 v{t+8}, 0x80000000, v{t+8}\nv_xor_b32 v{K0+qb}, v{K0+qb}, v{t+8}\nv_and_b32 v{K0+qb}, 0xffff0000, v{K0+qb}\nv_or_b32 v{K0+qb}, v{K0+qb}, v{t+10+qb}")
    m1, m2 = t + 16, t + 18
    a(f"v_max_u32 v{m1}, v{K0}, v{K0+1}\nv_min_u32 v{m2}, v{K0}, v{K0+1}\nv_mov_b32 v{m1+1}, s{sNONCE}\nv_mov_b32 v{m2+1}, s{sNONCE}")
    top2_row(a, m1, m2, t + 8)
    a(f"s_lshl_b32 s{sT0}, s{sG}, {FS}\ns_add_u32 s{sT0}, s{sT0}, {WS_KEY}\nv_lshrrev_b32 v{t+8}, {3 if OPT['full'] else 0}, v{vLANE}\nv_or_b32 v{t+8}, s{sNT}, v{t+8}\nv_lshl_add_u32 v{t+8}, v{t+8}, 24, v{vL16}")
    a(f"buffer_store_dwordx4 {R('v', m1)}, v{t+8}, {S4(S_L)}, s{sT0} offen sc1")
    CO = t + 20
    a(f"v_mov_b32 v{t+8}, 0x7f000000\nv_add_u32 v{t+10}, 128, v{vC}")
    for qb in range(2):
        a(f"v_cmp_eq_u32 vcc, v{K0+qb}, v{m1}\nv_cmp_eq_u32 s[50:51], v{K0+qb}, v{m2}\ns_nop 0")
        a(f"v_cndmask_b32 v{CO+qb}, v{t+8}, v{vC}, vcc\nv_cndmask_b32 v{CO+qb}, v{CO+qb}, v{t+10}, s[50:51]")
    for qb in range(2): a(f"v_mul_f32 v{Z+4*qb}, v{Z+4*qb}, v{Z+4*qb+1}")
    H, HP, OP = ACC, t + 24, t + 40
    for qb in range(2):
        for i in range(0, 16, 2): a(pk("fma", H + 16*qb + i, XF + 16*qb + i, Z + 4*qb, Z + 4*qb, mods="op_sel:[0,1,0] op_sel_hi:[1,1,0]"))
        for i in range(0, 16, 2): a(pk("fma", H + 16*qb + i, H + 16*qb + i, C1 + i, SBv + i))
        for i in range(0, 16, 2): a(f"v_cvt_pk_bf16_f32 v{HP + 8*qb + i//2}, v{H + 16*qb + i}, v{H + 16*qb + i + 1}")
    a(f"s_lshl_b32 s{sT0}, s{sWAVE}, 8\ns_add_u32 s{sT0}, s{sT0}, s{sHO}\ns_add_u32 s{sT3}, s{sT0}, {HO_CH}")
    for n in range(4): a(f"buffer_store_dwordx4 {R('v', HP + 4*n)}, v{CO + n//2}, {S4(S_L)}, s{sT3} offen offset:{(n % 2)*64} sc1")
    K = 144
    keys = f"buffer_load_dwordx4 {R('v', K)}, v14, {S4(S_L)}, s{sT1} offen sc1"
    a(f"s_lshl_b32 s{sT1}, s{sWAVE}, {4+FS}\ns_add_u32 s{sT1}, s{sT1}, {WS_KEY}\nv_lshlrev_b32 v14, {FS}, v{vQ}\ns_mov_b32 s{sMW}, s{sT3}\ns_mov_b32 s{sMW2}, 32768")
    for qb in range(2):
        for i in range(0, 16, 2): a(pk("fma", H + 16*qb + i, H + 16*qb + i, GBv + i, XF + 16*qb + i))
        for i in range(0, 16, 2): a(f"v_cvt_pk_bf16_f32 v{OP + 8*qb + i//2}, v{H + 16*qb + i}, v{H + 16*qb + i + 1}")
    outs = [f"buffer_store_dwordx4 {R('v', OP + 4*n)}, v{CO + n//2}, {S4(S_OUT)}, {'s%d' % sMW2 if n//2 else 0} offen offset:{(n % 2)*64} {OPT['ofl']*'sc1'}" for n in range(4)]
    base = [f"buffer_store_dwordx4 {R('v', OP + 4*n)}, v{CO + n//2}, {S4(S_L)}, s{sMW} offen offset:{HO_CB - HO_CH + (n % 2)*64} sc1" for n in range(4)]
    return keys, outs, base, ([gu_writes] if OPT['guw'] == 2 else []) + ([gu_reads] if OPT['guw'] else [])

def moe(a, st, keys, outs, base, later):
    BF, K = 112, 144
    sK1, sK2 = 63, 64
    end, go, only = a.label("end"), a.label("dofin"), a.label("onlyout")
    for s in base: a(s)
    st()
    for f in later: f()
    a("s_waitcnt lgkmcnt(0)")
    for p in range(8): a(f"ds_write_b128 v2, {R('a', MW + 12*p + 8)} offset:{p*1024}")
    a(keys)
    a(f"v_lshrrev_b32 v3, 2, v{vLANE}\nv_lshlrev_b32 v3, 9, v3\nv_and_b32 v4, 3, v{vLANE}\nv_lshl_add_u32 v3, v4, 3, v3\nv_lshl_add_u32 v3, v10, 14, v3\ns_waitcnt lgkmcnt(0)")
    for nb in range(16):
        if nb == 12: a("s_waitcnt lgkmcnt(8)")
        a(f"ds_read_b64_tr_b16 {R('a', MW + 12*(nb // 2) + 8 + 2*(nb % 2), 2)}, v3 offset:{nb*32}")
    poll(a, [keys], bad_tags([K + 1, K + 3], K + 4), "keys", first="s_waitcnt vmcnt(0)")
    st()
    top2_row(a, K, K + 2, K + 4)
    a(f"v_lshlrev_b32 v2, 4, v10\nv_add_u32 v2, {LDS_FLAG}, v2\nv_add_u32 v3, {LDS_FLAG}, v{vC}\nds_write_b128 v2, {R('v', K)}\ns_waitcnt lgkmcnt(0)\ns_barrier\nds_read_b128 {R('v', K)}, v3\ns_waitcnt lgkmcnt(0)")
    a(f"v_readlane_b32 s{sK1}, v{K}, 0\nv_readlane_b32 s{sK2}, v{K+2}, 0")
    for ln in (16, 32, 48):
        a(f"v_readlane_b32 s{sT0}, v{K}, {ln}\nv_readlane_b32 s{sT1}, v{K+2}, {ln}\ns_nop 3")
        a(f"s_min_u32 s{sT2}, s{sK1}, s{sT0}\ns_max_u32 s{sK2}, s{sK2}, s{sT1}\ns_max_u32 s{sK1}, s{sK1}, s{sT0}\ns_max_u32 s{sK2}, s{sK2}, s{sT2}")
    K0, CO = T + 14, T + 20
    def mask():
        a("v_mov_b32 v4, 0x7f000000")
        for qb in range(2):
            a(f"v_cmp_eq_u32 vcc, s{sK1}, v{K0+qb}\nv_cmp_eq_u32 s[50:51], s{sK2}, v{K0+qb}\ns_or_b64 vcc, vcc, s[50:51]\ns_nop 0\nv_cndmask_b32 v{CO+qb}, v{vX0}, v4, vcc")
    nomoe = a.label("nomoe")
    a(f"s_cmp_ge_u32 s2, 224\ns_cbranch_scc1 {nomoe}")
    sC1, sC2 = 65, 66
    a(f"s_xor_b32 s{sT2}, s{sK1}, s{sK2}\ns_and_b32 s{sT2}, s{sT2}, 0x7e0\ns_cselect_b32 s{sT2}, 0, 128")
    for k, c in ((sK1, sC1), (sK2, sC2)):
        a(f"s_not_b32 s{sT0}, s{k}\ns_bfe_u32 s{sT1}, s{sT0}, 0x40007\ns_lshl_b32 s{sT1}, s{sT1}, 19\ns_bfe_u32 s{sT0}, s{sT0}, 0x20005\ns_lshl_b32 s{sT0}, s{sT0}, 8\ns_add_u32 s{c}, s{sT0}, s{sT1}")
    a(f"""
    s_add_u32 s{sC2}, s{sC2}, s{sT2}
    v_and_b32 v5, 1, v{vLANE}
    v_cmp_eq_u32 vcc, 1, v5
    v_mov_b32 v6, s{sC1}
    v_mov_b32 v7, s{sC2}
    v_cndmask_b32 v6, v6, v7, vcc
    v_add_u32 v6, v6, v{vC}
    s_lshl_b32 s{sT0}, s{sWAVE}, 17
    s_add_u32 s{sT0}, s{sT0}, {WS_HO + HO_CH}
    s_add_u32 s{sT1}, s{sT0}, {1 << 15}
    s_add_u32 s{sT2}, s{sT0}, {2 << 15}
    s_add_u32 s{sT3}, s{sT0}, {3 << 15}
    """)
    rows = [f"buffer_load_dwordx4 {R('v', BF + 4*ks)}, v6, {S4(S_L)}, s{sT0 + ks//2} offen offset:{(ks % 2)*64} sc1" for ks in range(8)]
    for l in rows: a(l)
    mask()
    poll(a, rows, bad_sentinel(list(range(BF, BF + 32)), K + 4), "rows", first="s_waitcnt vmcnt(0)")
    st()
    Y = 152
    a("s_waitcnt lgkmcnt(0)")
    for m in range(2):
        for ks in range(8):
            a(mf(R("v", Y + 4*m), R("a", MW + 12*ks + 4*m), R("v", BF + 4*ks), "0" if ks == 0 else None))
    a(f"v_lshl_add_u32 v2, v10, 11, v{vL16}\nv_add_u32 v2, {LDS_RED}, v2\nv_add_u32 v3, {LDS_RED}, v{vL16}\nv_bfe_u32 v7, v{vLANE}, 1, 3\ns_nop 3")
    a(f"ds_write_b128 v2, {R('v', Y)}\nds_write_b128 v2, {R('v', Y+4)} offset:1024\ns_waitcnt lgkmcnt(0)\ns_barrier")
    P = 160
    for w in range(4): a(f"ds_read_b128 {R('v', P+8*w)}, v3 offset:{w*2048}\nds_read_b128 {R('v', P+4+8*w)}, v3 offset:{w*2048+1024}")
    a(f"""
    v_lshlrev_b32 v5, 12, v5
    v_lshl_add_u32 v5, v7, 6, v5
    v_add_u32 v5, v5, v{vC}
    s_lshl_b32 s{sT0}, s{sWAVE}, 10
    s_add_u32 s{sT0}, s{sT0}, s{sHO}
    s_add_u32 s{sT0}, s{sT0}, {HO_YP}
    """)
    for j in range(8): a(f"v_cmp_eq_u32 s[{8+2*j}:{9+2*j}], {j}, v7")
    a("s_waitcnt lgkmcnt(0)")
    for i in range(0, 8, 2): a(pk("add", P + i, P + i, P + 8 + i)); a(pk("add", P + 16 + i, P + 16 + i, P + 24 + i))
    for i in range(0, 8, 2): a(pk("add", P + i, P + i, P + 16 + i))
    for i in range(0, 8, 2): rnd(a, P + i, P + i + 1)
    E = P + 8
    for i in range(4): a(f"v_mul_f32 v{E+i}, {f2u(-LOG2E)}, v{P+i}")
    for i in range(4): a(f"v_exp_f32 v{E+i}, v{E+i}")
    for i in range(4): a(f"v_add_f32 v{E+i}, 1.0, v{E+i}")
    for i in range(4): a(f"v_rcp_f32 v{E+i}, v{E+i}")
    for i in range(4): a(f"v_mul_f32 v{P+i}, v{P+i}, v{E+i}")
    for i in (0, 2): rnd(a, P + i, P + i + 1)
    for i in (0, 2): a(pk("mul", P + i, P + i, P + 4 + i))
    a(f"v_cvt_pk_bf16_f32 v{E}, v{P}, v{P+1}\nv_cvt_pk_bf16_f32 v{E+1}, v{P+2}, v{P+3}")
    for j in range(8): a(f"v_cndmask_b32 v{BF+2*j}, 0, v{E}, s[{8+2*j}:{9+2*j}]\nv_cndmask_b32 v{BF+2*j+1}, 0, v{E+1}, s[{8+2*j}:{9+2*j}]")
    for h in range(2):
        for j in range(8):
            a(f"v_mfma_f32_16x16x16_bf16 {R('v', Y+4*h)}, {R('a', MW + 12*((8*h + j) // 2) + 8 + 2*(j % 2), 2)}, {R('v', BF + 2*j, 2)}, {'0' if j == 0 else R('v', Y+4*h)}")
    a(f"buffer_store_dwordx4 {R('v', Y)}, v5, {S4(S_L)}, s{sT0} offen sc1\ns_nop 6\nbuffer_store_dwordx4 {R('v', Y+4)}, v5, {S4(S_L)}, s{sT0} offen offset:512 sc1")
    st()
    a(f"s_cmp_lt_u32 s2, 64\ns_cbranch_scc1 {go}\ns_branch {only}\n{nomoe}:")
    a(f"s_xor_b32 s{sT0}, s2, 255\nv_or_b32 v5, s{sT0}, v0\nv_min_u32 v5, 64, v5\nv_lshlrev_b32 v5, 24, v5\nv_mov_b32 v6, s{sNONCE}\ns_mov_b32 s{sT0}, {WS_NONCE}")
    a(f"buffer_store_dword v6, v5, {S4(S_L)}, s{sT0} offen sc1")
    mask()
    a(f"{only}:")
    for s in outs: a(s)
    a(f"s_branch {end}\n{go}:")
    a(f"""
    s_cmp_lt_u32 s2, 32
    s_cselect_b32 s{sK1}, s{sK1}, s{sK2}
    s_cselect_b32 s{sC1}, s{sC1}, s{sC2}
    s_bfe_u32 s{sT0}, s2, 0x40001
    s_lshl_b32 s{sT0}, s{sT0}, 15
    s_add_u32 s{sC1}, s{sC1}, s{sT0}
    s_and_b32 s{sT0}, s2, 1
    s_lshl_b32 s{sT0}, s{sT0}, 6
    s_add_u32 s{sC1}, s{sC1}, s{sT0}
    s_add_u32 s{sC1}, s{sC1}, {WS_HO + HO_CB}
    s_and_b32 s{sT1}, s2, 31
    s_lshl_b32 s{sT1}, s{sT1}, 6
    s_lshl_b32 s{sC2}, s{sT1}, 1
    s_add_u32 s{sC2}, s{sC2}, {WS_MODP + 12288}
    s_add_u32 s{sT2}, s{sC2}, 16384
    s_not_b32 s{sT0}, s{sK1}
    s_and_b32 s{sT0}, s{sT0}, 2047
    s_lshl_b32 s{sT0}, s{sT0}, 11
    s_add_u32 s{sT0}, s{sT0}, s{sT1}
    v_and_b32 v2, 7, v0
    v_lshlrev_b32 v3, 3, v2
    v_lshlrev_b32 v4, 4, v2
    v_lshrrev_b32 v5, 3, v0
    v_lshl_add_u32 v5, v5, 15, v4
    """)
    a.srd(S_WG, PTR["out"], 4 << 20)
    a(f"s_mov_b32 s{sK2}, s{sT0}\ns_lshl_b32 s8, s2, 7\ns_add_u32 s8, s8, {WS_HO + HO_YP}")
    for i in range(1, 7): a(f"s_add_u32 s{8+i}, s8, {i << 20}")
    a(f"""
    s_and_b32 s{sT0}, s{sK1}, 0xffff0000
    s_ashr_i32 s{sT1}, s{sT0}, 31
    s_not_b32 s{sT1}, s{sT1}
    s_or_b32 s{sT1}, s{sT1}, 0x80000000
    s_xor_b32 s{sT0}, s{sT0}, s{sT1}
    s_and_b32 s{sT0}, s{sT0}, 0xffff0000
    v_mov_b32 v60, s{sT0}
    v_mul_f32 v60, {f2u(-LOG2E)}, v60
    v_exp_f32 v60, v60
    buffer_load_dwordx4 v[64:67], v4, {S4(S_L)}, s{sC2} offen sc1
    buffer_load_dwordx4 v[68:71], v4, {S4(S_L)}, s{sT2} offen sc1
    v_add_f32 v60, 1.0, v60
    v_rcp_f32 v60, v60
    s_nop 0
    v_cvt_pk_bf16_f32 v60, v60, v60
    v_lshlrev_b32 v60, 16, v60
    s_waitcnt vmcnt(0)
    """)
    poll(a, [f"buffer_load_dwordx4 {R('v', 16 + 4*i)}, v5, {S4(S_L)}, s{8+i} offen sc1" for i in range(7)] + [f"buffer_load_dwordx2 v[44:45], v3, {S4(S_L)}, s{sC1} offen sc1"],
         bad_sentinel(list(range(16, 46)), 50), "y")
    st()
    for s in outs: a(s)
    for i in range(1, 7):
        a(pk("add", 16, 16, 16 + 4*i)); a(pk("add", 18, 18, 18 + 4*i))
    red8(a, [16, 17, 18, 19], [20, 21, 22, 23])
    a(f"v_lshl_add_u32 v6, v10, 7, v4\nds_write_b128 v6, v[16:19]\ns_waitcnt lgkmcnt(0)\ns_barrier\ns_cmp_lg_u32 s{sWAVE}, 0\ns_cbranch_scc1 {end}")
    for w in range(4): a(f"ds_read_b128 {R('v', 16+4*w)}, v4 offset:{128*w}")
    a(f"v_lshrrev_b32 v6, 3, v{vLANE}\nv_lshl_add_u32 v3, v6, 24, v3\ns_waitcnt lgkmcnt(0)")
    for j in (0, 2):
        a(pk("add", 16 + j, 16 + j, 20 + j)); a(pk("add", 24 + j, 24 + j, 28 + j)); a(pk("add", 16 + j, 16 + j, 24 + j))
        rnd(a, 16 + j, 17 + j)
        a(pk("mul", 16 + j, 16 + j, 60, mods="op_sel_hi:[1,0]")); rnd(a, 16 + j, 17 + j)
        a(pk("add", 52, 64 + j, 68 + j)); rnd(a, 52, 53); unpack(a, 54, 55, 44 + j//2)
        a(pk("fma", 16 + j, 16 + j, 52, 54))
        a(f"v_cvt_pk_bf16_f32 v{56 + j//2}, v{16+j}, v{17+j}")
    a(f"buffer_store_dwordx2 v[56:57], v3, {S4(S_WG)}, s{sK2} offen {OPT['ofl']*'sc1'}")
    st()
    a(f"{end}:")
```

```python
import struct
from asmlib import Asm

NAME = "adaLN_cond__mha_block_cached__moe_arch_mod__prompt_kernel"
P0 = 68
PTR = {n: P0 + 2*i for i, n in enumerate("x k v wq wo bx wr wg wu wd c wmod out dbg ws".split())}

WS_MODP = 0x60000
WS_MODG = 0x4000
WS_NONCE = 0xB000
FS = 7
WS_F1 = 0x10000
WS_F2 = 0x20000
WS_F3 = 0x40000
WS_KEY = 0x18000
WS_FX = 0x70000
WS_H = 0x400000
WS_HO = 0x800000
HO_EX, HO_YP, HO_ST, HO_CH, HO_CB = 0, 16384, 24576, 26624, 27648
WS_O = 0x1000000
WS_STG = 0x2000000
WS_TS = 0x4000000
LOG2E = 1.4426950408889634

PIECE = 1056
TILE = 16 * PIECE
KRING, VRING = 0, 4 * TILE
LDS_FLAG = 8 * TILE
LDS_CST = 8 * TILE + 64
CSTW = 4 * PIECE + 2048 + 256
LDS_TOTAL = LDS_CST + 4 * CSTW
MW = 144

OPT = dict(diag=0, safe=0, spin=1 << 16, skew=6, barp=2, rg=[1, 2, 4, 5], vg=[3, 6], pat=[0, 2, 4, 6, 1, 1, 3, 3, 5], ctch=7, full=1, slp=0, wgf=1, hearly=1, nonc=0, t64=0, ofl=1, kvf=0, wf=0, jit=0, f3p=4, par=1, flip=0, xcc=0, bias=1, fpos=12, dbg=0, tlb=1, mvp=1, slx=1, exn=126, t3=1, sv=4, guw=0, nw=6, kvt=1, halftr=0, xa=0, nct=1, q8=1, qsn=2, osn=2, grp=1, pvs=0, bnorm=1, c3=1, cwq=1, qt0=0, qtouch=1, w1=4, w2=13, qdb=2, exoff=0, mlead=2, mslice=44, mlag=4)

def f2u(x): return "0x%08x" % struct.unpack("<I", struct.pack("<f", x))[0]
def R(f, i, n=4): return f"{f}[{i}:{i+n-1}]" if n > 1 else f"{f}{i}"
def S4(i): return f"s[{i}:{i+3}]"
def mf(d, A, B, c=None): return f"v_mfma_f32_16x16x32_bf16 {d}, {A}, {B}, {c if c is not None else d}"
def pk(op, d, x, y, z=None, mods=""):
    r2 = lambda r: r if isinstance(r, str) else f"v[{r}:{r+1}]"
    return f"v_pk_{op}_f32 {r2(d)}, {r2(x)}, {r2(y)}" + (f", {r2(z)}" if z is not None else "") + (" " + mods if mods else "")
def emit(a, mfmas, gaps):
    for g, m in enumerate(mfmas):
        a(m)
        for s in gaps.get(g, []): a(s)
def unpack(a, lo, hi, src):
    a(f"v_lshlrev_b32 v{lo}, 16, v{src}\nv_and_b32 v{hi}, 0xffff0000, v{src}")
def rnd(a, lo, hi, slo=None, shi=None):
    a(f"v_cvt_pk_bf16_f32 v{hi}, v{lo if slo is None else slo}, v{hi if shi is None else shi}")
    unpack(a, lo, hi, hi)
def swap_red(a, regs, tmps, op="v_add_f32"):
    for sw in ("v_permlane16_swap_b32", "v_permlane32_swap_b32"):
        for r_, t in zip(regs, tmps): a(f"v_mov_b32 v{t}, v{r_}")
        if len(regs) < 3: a(f"s_nop {2 - len(regs)}")
        for r_, t in zip(regs, tmps): a(f"{sw} v{r_}, v{t}")
        for r_, t in zip(regs, tmps): a(f"{op} v{r_}, v{r_}, v{t}")
def red8(a, regs, tmps):
    a("s_nop 1")
    for r_ in regs: a(f"v_add_f32_dpp v{r_}, v{r_}, v{r_} row_ror:8 row_mask:0xf bank_mask:0xf")
    swap_red(a, regs, tmps)
def shuffle(a, regs):
    a("s_nop 1")
    for sw in ("v_permlane32_swap_b32", "v_permlane16_swap_b32"):
        for d in regs: a(f"{sw} v{d}, v{d+2}\n{sw} v{d+1}, v{d+3}")
def top2_row(a, m1, m2, t):
    for sh in (8, 4, 2, 1):
        a("s_nop 1")
        a(f"v_min_u32_dpp v{t}, v{m1}, v{m1} row_ror:{sh} row_mask:0xf bank_mask:0xf")
        a(f"v_max_u32_dpp v{t+1}, v{m2}, v{m2} row_ror:{sh} row_mask:0xf bank_mask:0xf")
        a(f"v_max_u32_dpp v{m1}, v{m1}, v{m1} row_ror:{sh} row_mask:0xf bank_mask:0xf")
        a(f"v_max_u32 v{m2}, v{t}, v{t+1}")

class VM:
    def __init__(self): self.ops = []
    def add(self, tag): self.ops.append(tag)
    def count(self, *tags):
        last = max((i for i, t in enumerate(self.ops) if t in tags), default=-1)
        return min(len(self.ops) - 1 - last, 63)

sWAVE, sHEAD, sQB, sG64, sU, sG, sNT, sKH, sSL, sNONCE, sMW, sMW2 = 3, 52, 53, 54, 55, 56, 57, 58, 59, 60, 61, 62
sT0, sT1, sT2, sT3, sSPIN, sCNT = 44, 45, 46, 47, 48, 49
S_L = 4
vL16, vLANE, vG, vQ = 1, 11, 12, 13

def poll(a, loads, bad, name, first=None):
    lp, ok, ck = a.label("poll"), a.label("got" + name), a.label("chk")
    a(f"s_mov_b32 s{sSPIN}, 0")
    if first: a(f"{first}\ns_branch {ck}")
    a(f"{lp}:")
    for l in loads: a(l)
    a("s_waitcnt vmcnt(0)")
    if first: a(f"{ck}:")
    for l in bad: a(l)
    a(f"s_add_u32 s{sSPIN}, s{sSPIN}, 1\ns_cbranch_vccz {ok}")
    if OPT["slp"]: a(f"s_sleep {OPT['slp']}")
    a(f"s_cmp_lt_u32 s{sSPIN}, {OPT['spin']}\ns_cbranch_scc1 {lp}\n{ok}:")
def bad_sentinel(regs, t):
    out = []
    if len(regs) == 1: t = regs[0]
    else:
        out.append(f"v_max_u32 v{t}, v{regs[0]}, v{regs[1]}")
        for i in range(2, len(regs), 2): out.append(f"v_max3_u32 v{t}, v{t}, v{regs[i]}, v{regs[i+1]}")
    return out + [f"v_cmp_eq_u32 vcc, -1, v{t}"]
def bad_tags(regs, t):
    if len(regs) == 1: return [f"v_cmp_ne_u32 vcc, s{sNONCE}, v{regs[0]}"]
    out = [f"v_xor_b32 v{t}, s{sNONCE}, v{regs[0]}"]
    for r_ in regs[1:]: out += [f"v_xor_b32 v{t+1}, s{sNONCE}, v{r_}", f"v_or_b32 v{t}, v{t}, v{t+1}"]
    return out + [f"v_cmp_ne_u32 vcc, 0, v{t}"]

class Stamps:
    def __init__(self, a): self.a, self.n = a, 0
    def __call__(self):
        if OPT["jit"]:
            a = self.a; self.j = getattr(self, "j", 0) + 1
            l, e = a.label("jit"), a.label("jitend")
            a(f"s_lshl_b32 s98, s2, 2\ns_add_u32 s98, s98, {'s%d' % sWAVE if OPT['jit'] & 1 else 0}\ns_add_u32 s98, s98, {(self.j * 7919 + OPT['jit'] * 104729) & 0xffff}")
            a(f"s_mul_i32 s98, s98, 0x9e3779b1\ns_lshr_b32 s99, s98, 15\ns_xor_b32 s98, s98, s99\ns_mul_i32 s98, s98, 0x85ebca6b\ns_lshr_b32 s98, s98, 28")
            a(f"s_cmp_lt_u32 s98, 11\ns_cbranch_scc1 {e}\n{l}:\ns_sleep 40\ns_sub_u32 s98, s98, 1\ns_cmp_gt_u32 s98, 8\ns_cbranch_scc1 {l}\n{e}:")
        if not OPT["diag"] or self.n >= 32: return
        a = self.a
        if self.n == 0: a("v_mov_b32 v255, -1")
        a("s_memrealtime s[98:99]\ns_memtime s[100:101]\ns_waitcnt lgkmcnt(0)")
        a(f"v_writelane_b32 v255, s98, {2*self.n}\nv_writelane_b32 v255, s100, {2*self.n+1}")
        self.n += 1
    def dyn(self, cnt, lvl=2):
        if OPT["diag"] != lvl: return
        a = self.a
        a(f"s_memrealtime s[98:99]\ns_memtime s[100:101]\ns_waitcnt lgkmcnt(0)\ns_lshl_b32 s99, s{cnt}, 1\ns_add_u32 s99, s99, 48\ns_add_u32 s101, s99, 1\ns_mov_b32 m0, s99")
        a("v_writelane_b32 v255, s98, m0\ns_mov_b32 m0, s101\nv_writelane_b32 v255, s100, m0")
    def flush(self):
        if not OPT["diag"]: return
        a = self.a
        a.srd(8, PTR["ws"], 1 << 20, WS_TS)
        a(f"s_lshl_b32 s98, s2, 2\ns_add_u32 s98, s98, s{sWAVE}\ns_lshl_b32 s98, s98, 8\nv_lshlrev_b32 v254, 2, v{vLANE}")
        a("buffer_store_dword v255, v254, s[8:11], s98 offen")
        if OPT["dbg"]:
            a.srd(8, PTR["dbg"], 64)
            a(f"v_readlane_b32 s98, v255, 0\ns_xor_b32 s99, s2, {OPT['dbg']}\ns_or_b32 s99, s99, s{sWAVE}\ns_lshl_b32 s99, s99, 8\nv_subrev_u32 v255, s98, v255")
            a(f"v_and_b32 v254, 1, v{vLANE}\nv_lshl_add_u32 v254, v254, 8, v{vLANE}\nbuffer_store_short v255, v254, s[8:11], s99 offen")

FL = ["", "sc1", "nt", "sc0 sc1", "sc0"]
```

```python
from common import *

S_W, S_B, S_K, S_V, S_O, S_WG, S_WU, S_WD, S_STG = 8, 12, 16, 20, 24, 28, 32, 36, 40
sKOFF, sVOFF, sWOFF, sBOFF = 63, 64, 65, 66
sWST, sBS, sNB, sWA = 40, 41, 43, 67
vWOFF, vKV, vA, vKADDR, vBOFF = 2, 3, 4, 5, 6
vGA, vTO, vCL = 248, 249, 251
vF3 = 229
F3LOAD = f"buffer_load_dword v{vF3+1}, v{vF3}, {S4(S_L)}, 0 offen sc1"

def ids(a):
    a(f"s_load_dwordx16 s[{P0}:{P0+15}], s[0:1], 0\ns_load_dwordx8 s[{P0+16}:{P0+23}], s[0:1], 64\ns_load_dwordx4 s[{P0+24}:{P0+27}], s[0:1], 96\ns_load_dwordx2 s[{P0+28}:{P0+29}], s[0:1], 112")
    a(f"""
    v_lshrrev_b32 v10, 6, v0
    v_and_b32 v{vLANE}, 63, v0
    v_readfirstlane_b32 s{sWAVE}, v10
    v_lshlrev_b32 v{vL16}, 4, v{vLANE}
    v_lshrrev_b32 v{vG}, 4, v{vLANE}
    v_and_b32 v{vQ}, 15, v{vLANE}
    s_lshr_b32 s{sQB}, s2, 5
    s_lshl_b32 s{sG64}, s{sQB}, 2
    s_add_u32 s{sG64}, s{sG64}, s{sWAVE}
    s_mul_i32 s{sMW}, s{sWAVE}, {4*PIECE}
    s_add_u32 s{sMW2}, s{sMW}, {4*TILE}
    """)
    ids2(a)
    if OPT["par"]:
        a(f"s_getreg_b32 s{sXP}, hwreg(HW_REG_XCC_ID, 0, 1)\ns_and_b32 s{sT0}, s2, 6\ns_or_b32 s{sT0}, s{sT0}, s{sXP}")
        head(a)

sXP = 43
def head(a):
    a(f"s_lshl_b32 s{sT0}, s{sT0}, 2\ns_lshr_b32 s{sHEAD}, 0x57463120, s{sT0}\ns_and_b32 s{sHEAD}, s{sHEAD}, 7\ns_lshl_b32 s{sHEAD}, s{sHEAD}, 2\ns_add_u32 s{sHEAD}, s{sHEAD}, s{sT1}")
def ids2(a):
    a(f"""
    s_and_b32 s{sT0}, s2, 7
    s_bfe_u32 s{sT1}, s2, 0x20003
    s_lshl_b32 s{sSL}, s{sQB}, 3
    s_add_u32 s{sSL}, s{sSL}, s{sT0}
    s_lshl_b32 s{sSL}, s{sSL}, 2
    s_add_u32 s{sSL}, s{sSL}, s{sT1}
    """)
    head(a)
    a(f"""
    s_and_b32 s{sKH}, s2, 1
    s_and_b32 s{sNT}, s2, 4
    s_add_u32 s{sNT}, s{sNT}, s{sT1}
    s_lshl_b32 s{sNT}, s{sNT}, 1
    s_add_u32 s{sNT}, s{sNT}, s{sKH}
    s_bfe_u32 s{sT0}, s2, 0x10001
    s_lshl_b32 s{sG}, s{sQB}, 1
    s_add_u32 s{sG}, s{sG}, s{sT0}
    s_lshl_b32 s{sU}, s{sG}, 4
    s_add_u32 s{sU}, s{sU}, s{sNT}
    s_lshl_b32 s{sG}, s{sG}, 2
    s_add_u32 s{sG}, s{sG}, s{sWAVE}
    """)

def code_touch(a, lo, hi, v, dst, sh=6):
    here = a.label("pc")
    a(f"""
    s_getpc_b64 s[50:51]
    {here}:
    s_lshr_b32 s{sT0}, s2, 3
    s_lshl_b32 s{sT0}, s{sT0}, 4
    v_and_b32 v{v}, 3, v0
    v_lshl_add_u32 v{v}, v10, 2, v{v}
    v_add_u32 v{v}, s{sT0}, v{v}
    v_lshlrev_b32 v{v}, {sh}, v{v}
    v_min_u32 v{v}, {hi}-{lo}-4, v{v}
    v_add_u32 v{v}, {lo}-{here}, v{v}
    v_mov_b32 v{v+1}, s51
    v_add_co_u32 v{v}, vcc, s50, v{v}
    s_nop 1
    v_addc_co_u32 v{v+1}, vcc, 0, v{v+1}, vcc
    """)
    if dst is not None: a(f"global_load_dword v{dst}, v[{v}:{v+1}], off")

def front(a, g, st):
    S_X, S_C, S_M, S_D = S_K, S_V, S_WD, S_WG
    XP, CP, WD, SV, AC, X, T, E = 16, 32, 144, 40, 56, 64, 96, 112
    U = T + 4
    vXO, vMO, vROW, vZ, NV, vF0 = 14, 215, 208, 209, 210, 211
    sCG, sMO = 50, 51
    d3 = st if OPT["diag"] == 3 else (lambda: None)
    a(f"""
    v_and_b32 v{vROW}, 7, v0
    v_lshrrev_b32 v{T}, 3, v{vLANE}
    v_lshl_add_u32 v{T}, v10, 5, v{T}
    v_lshlrev_b32 v{T}, 4, v{T}
    v_lshl_add_u32 v{vXO}, v{vROW}, 11, v{T}
    v_lshrrev_b32 v{T+1}, 2, v0
    v_and_b32 v{T+2}, 3, v0
    v_mul_u32_u24 v{vMO}, {16*12288}, v{T+1}
    v_lshl_add_u32 v{vMO}, v{T+2}, 4, v{vMO}
    v_lshlrev_b32 v{T+1}, 5, v{T+1}
    v_lshlrev_b32 v{vF0}, 24, v{vLANE}
    s_and_b32 s{sT3}, s2, 7
    s_lshl_b32 s{sT0}, s{sT3}, 3
    s_lshr_b32 s{sT1}, s2, 3
    s_add_u32 s{sCG}, s{sT0}, s{sT1}
    s_add_u32 s{sT0}, s{sT0}, 56
    s_cmp_lt_u32 s2, 64
    s_cselect_b32 s{sT0}, 0, s{sT0}
    s_add_u32 s{sCG}, s{sCG}, s{sT0}
    s_lshl_b32 s{sMO}, s{sCG}, 6
    s_lshl_b32 s{sT2}, s{sSL}, 14
    s_waitcnt lgkmcnt(0)
    """)
    st()
    a.srd(S_M, PTR["wmod"], 1024*12288)
    a.srd(S_C, PTR["c"], 2048)
    a.srd(S_X, PTR["x"], 16384, f"s{sT2}")
    a.srd(S_L, PTR["ws"], 16 << 20)
    a(f"v_mov_b32 v{NV}, {WS_NONCE}\nbuffer_load_dword v{NV}, v{NV}, {S4(S_L)}, 0 offen sc1")
    def cloads(vm):
        for i in range(2): a(f"buffer_load_dwordx4 {R('v', CP + 4*i)}, v{T+1}, {S4(S_C)}, 0 offen offset:{16*i}"); vm.add("C")
    def xloads(vm):
        for i in range(4): a(f"buffer_load_dwordx4 {R('v', XP + 4*i)}, v{vXO}, {S4(S_X)}, 0 offen offset:{128*i}"); vm.add("X")
    def w_zero(w):
        for i in range(144): w(f"v_accvgpr_write_b32 a{i}, 0")
    def w_silu(w):
        w("WAIT C")
        for i in range(8): unpack(w, SV + 2*i, SV + 2*i + 1, CP + i)
        for i in range(16): w(f"v_mul_f32 v{E+i}, {f2u(-LOG2E)}, v{SV+i}")
        for i in range(16): w(f"v_exp_f32 v{E+i}, v{E+i}")
        for i in range(0, 16, 2): w(pk("add", E + i, E + i, "1.0", mods="op_sel_hi:[1,0]"))
        for i in range(16): w(f"v_rcp_f32 v{E+i}, v{E+i}")
        for i in range(0, 16, 2): w(pk("mul", SV + i, SV + i, E + i))
        for i in range(0, 16, 2): rnd(w, SV + i, SV + i + 1)
    def w_stats(w):
        w("WAIT X")
        for i in range(16): unpack(w, X + 2*i, X + 2*i + 1, XP + i)
        w(pk("add", T, X, X + 2))
        for i in range(4, 32, 2): w(pk("add", T, T, X + i))
        w(f"v_add_f32 v{T}, v{T}, v{T+1}")
        red8(w, [T], [T + 1])
        w(f"v_mul_f32 v{T}, {f2u(-1/256)}, v{T}")
        for i in range(0, 32, 2):
            w(pk("add", E, X + i, T, mods="op_sel_hi:[1,0]"))
            w(pk("mul", T + 2, E, E) if i == 0 else pk("fma", T + 2, E, E, T + 2))
        w(f"v_add_f32 v{T+1}, v{T+2}, v{T+3}")
        red8(w, [T + 1], [T + 2])
        w(f"v_lshlrev_b32 v{T+3}, 5, v{vROW}\nv_lshl_add_u32 v{T+2}, v10, 3, v{T+3}\nds_write_b64 v{T+2}, v[{T}:{T+1}]")
    def w_norm(w):
        w(f"ds_read_b128 {R('v', E)}, v{T+3}\nds_read_b128 {R('v', E+4)}, v{T+3} offset:16")
        w("s_waitcnt lgkmcnt(0)")
        w(pk("add", T, E, E + 2)); w(pk("add", T + 2, E + 4, E + 6)); w(pk("add", T, T, T + 2))
        w(f"v_mul_f32 v{T}, {f2u(0.25)}, v{T}")
        for i in range(4):
            w(f"v_sub_f32 v{T+2}, v{E+2*i}, v{T}")
            w(f"v_mul_f32 v{T+3}, v{T+2}, v{T+2}" if i == 0 else f"v_fmac_f32 v{T+3}, v{T+2}, v{T+2}")
        w(f"v_fmac_f32 v{T+1}, {f2u(256.0)}, v{T+3}\nv_mul_f32 v{T+1}, {f2u(1/1024)}, v{T+1}")
        rnd(w, T, T + 1)
        w(f"""
        v_add_f32 v{T+1}, {f2u(1e-5)}, v{T+1}
        v_cvt_pk_bf16_f32 v{T+1}, v{T+1}, v{T+1}
        v_lshlrev_b32 v{T+1}, 16, v{T+1}
        v_sqrt_f32 v{T+1}, v{T+1}
        s_nop 0
        v_cvt_pk_bf16_f32 v{T+1}, v{T+1}, v{T+1}
        v_lshlrev_b32 v{T+1}, 16, v{T+1}
        v_rcp_f32 v{T+1}, v{T+1}
        s_nop 0
        """)
        for i in range(0, 32, 2):
            w(pk("add", X + i, X + i, T, mods="op_sel_hi:[1,0]")); rnd(w, X + i, X + i + 1)
            w(pk("mul", X + i, X + i, T, mods="op_sel:[0,1] op_sel_hi:[1,1]")); rnd(w, X + i, X + i + 1)
    def w_fma(w, rows):
        for i in rows:
            w(f"WAIT M{i}")
            sel = "op_sel:[0,1,0] op_sel_hi:[1,1,1]" if i % 2 else "op_sel_hi:[1,0,1]"
            for j in range(4):
                unpack(w, U + 2*(j % 2), U + 2*(j % 2) + 1, WD + 4*i + j)
                if i == 0: w(pk("mul", AC + 2*j, U + 2*(j % 2), SV, mods="op_sel_hi:[1,0]"))
                else: w(pk("fma", AC + 2*j, U + 2*(j % 2), SV + i - i % 2, AC + 2*j, mods=sel))
    def run_side(side, vm, n=10000, issued=100):
        while side and n > 0:
            x = side[0]
            if x.startswith("WAIT"):
                tag = x.split()[1]
                if tag[0] == "M" and int(tag[1:]) > issued - OPT["mlag"]: return
                if tag not in vm.ops: return
                x = f"s_waitcnt vmcnt({vm.count(tag)})"
            a(x); side.pop(0); n -= 1
            if x.startswith("buffer_"): vm.add("S")
    def side_of(*fs):
        w = Asm()
        for f in fs: f(w)
        return [x.strip() for x in w.lines]
    def gemv(vm, side, hooks, wide=False):
        for i in range(16):
            a(f"buffer_load_dwordx4 {R('v', WD + 4*i)}, v{vMO}, {S4(S_M)}, s{sMO} offen"); vm.add(f"M{i}")
            if i < 15: a(f"s_add_u32 s{sMO}, s{sMO}, 12288")
            if i in hooks: hooks[i]()
            if OPT["mlead"] <= i < 15: run_side(side, vm, OPT["mslice"], i)
        run_side(side, vm)
        a("s_nop 1")
        for sh in ((8,) if wide else (8, 4)):
            for j in range(8): a(f"v_add_f32_dpp v{AC+j}, v{AC+j}, v{AC+j} row_ror:{sh} row_mask:0xf bank_mask:0xf")
        a(f"v_lshrrev_b32 v{U}, 4, v0\nv_lshlrev_b32 v{U}, {8 if wide else 7}, v{U}\nv_and_b32 v{U+1}, {7 if wide else 3}, v0\nv_lshl_add_u32 v{U}, v{U+1}, 5, v{U}")
        a(f"ds_write_b128 v{U}, {R('v', AC)} offset:1024\nds_write_b128 v{U}, {R('v', AC+4)} offset:1040")
    def finish():
        a(f"v_lshlrev_b32 v{U}, 9, v{vG}\nv_lshl_add_u32 v{U}, v{vQ}, 3, v{U}")
        for i in range(4): a(f"ds_read_b64 v[{AC+2*i}:{AC+2*i+1}], v{U} offset:{1024 + 128*i}")
        a(f"v_lshlrev_b32 v{U+2}, 24, v{vG}\ns_waitcnt lgkmcnt(0)")
        a(pk("add", AC, AC, AC + 2)); a(pk("add", AC + 4, AC + 4, AC + 6)); a(pk("add", AC, AC, AC + 4))
        swap_red(a, [AC, AC + 1], [AC + 2, AC + 3])
        a(f"v_cvt_pk_bf16_f32 v{AC+4}, v{AC}, v{AC+1}")
    def nonce(a, tag):
        a(f"WAIT {tag}")
        a(f"""
        v_readfirstlane_b32 s{sNONCE}, v{NV}
        s_nop 3
        s_mul_i32 s{sNONCE}, s{sNONCE}, 0x9e3779b1
        s_add_u32 s{sNONCE}, s{sNONCE}, 0x7f4a7c15
        """)
        if OPT["par"]:
            a(f"""
            s_lshr_b32 s42, s2, 1
            s_lshl_b32 s42, s42, {FS}
            s_add_u32 s42, s42, {WS_FX}
            s_add_u32 s41, s{sNONCE}, s{sXP}
            v_mov_b32 v222, s41
            s_and_b32 s41, s2, 1
            v_xor_b32 v223, 0xc0, v0
            v_or_b32 v223, s41, v223
            v_min_u32 v223, 64, v223
            v_lshlrev_b32 v223, 24, v223
            buffer_store_dword v222, v223, {S4(S_L)}, s42 offen sc1
            """)

    g.setup()
    bc, join, join2 = a.label("roleBC"), a.label("join"), a.label("join")
    a(f"s_cmp_ge_u32 s2, 64\ns_cbranch_scc1 {bc}")
    vm = VM()
    cloads(vm)
    xa = OPT["xa"]
    gemv(vm, side_of(w_zero, lambda w: nonce(w, 'C'), w_silu, lambda w: w_fma(w, range(xa)), w_stats, lambda w: w_fma(w, range(xa, 16))),
         {xa: lambda: xloads(vm)})
    n0 = st.n
    st()
    a("s_waitcnt lgkmcnt(0)\ns_barrier")
    a(f"s_cmp_lg_u32 s{sWAVE}, 0\ns_cbranch_scc1 {join}")
    finish()
    a(f"s_cmp_ge_u32 s{sCG}, 32\ns_cselect_b32 s{sT0}, 1.0, 0\ns_mov_b32 s{sT1}, s{sT0}")
    unpack(a, AC, AC + 1, AC + 4)
    a(pk("add", AC, AC, f"s[{sT0}:{sT1}]"))
    a(f"""
    v_lshl_add_u32 v{U+2}, v{vQ}, 3, v{U+2}
    v_cvt_pk_bf16_f32 v{AC+2}, v{AC}, v{AC+1}
    v_mov_b32 v{AC+3}, s{sNONCE}
    s_lshl_b32 s{sT0}, s{sCG}, 7
    s_add_u32 s{sT0}, s{sT0}, {WS_MODG}
    buffer_store_dwordx2 v[{AC+2}:{AC+3}], v{U+2}, {S4(S_L)}, s{sT0} offen sc1
    s_branch {join}
    """)
    a(f"{bc}:")
    vm = VM()
    isc = a.label("roleC")
    a(f"""
    s_lshr_b32 s{sT0}, s2, 3
    s_sub_u32 s{sT0}, s{sT0}, 8
    s_lshl_b32 s{sT0}, s{sT0}, 2
    s_add_u32 s{sT0}, s{sT0}, s{sWAVE}
    s_mul_i32 s{sT0}, s{sT0}, {8*12288}
    s_lshl_b32 s{sT3}, s{sT3}, 9
    v_lshrrev_b32 v{T+4}, 2, v{vLANE}
    v_mul_u32_u24 v{T+4}, 12288, v{T+4}
    v_lshl_add_u32 v{T+4}, v{T+2}, 7, v{T+4}
    s_cmp_ge_u32 s2, 192
    s_cbranch_scc1 {isc}
    s_add_u32 s{sT0}, s{sT0}, s{sT3}
    v_lshrrev_b32 v{T+5}, 5, v{vLANE}
    {"v_mul_u32_u24 v%d, %d, v%d" % (T+5, 8*12288 - 64, T+5) if OPT["t64"] & 4 else "v_lshlrev_b32 v%d, 24, v%d" % (T+5, T+5)}
    {"v_sub_u32" if OPT["t64"] & 4 else "v_add_u32"} v{T+4}, v{T+4}, v{T+5}
    buffer_load_dword v212, v{T+4}, {S4(S_M)}, s{sT0} offen
    v_lshrrev_b32 v{T+1}, 3, v0
    s_and_b32 s{sT0}, s{sCG}, 1
    s_lshl_b32 s{sT0}, s{sT0}, 5
    v_add_u32 v{T+1}, s{sT0}, v{T+1}
    v_mul_u32_u24 v{vMO}, {16*12288}, v{T+1}
    v_lshl_add_u32 v{vMO}, v{vROW}, 4, v{vMO}
    v_lshlrev_b32 v{T+1}, 5, v{T+1}
    s_and_b32 s{sMO}, s{sMO}, {0xffffff80}
    """)
    vm.add("T")
    xloads(vm); cloads(vm)
    jb = join2 if OPT["bnorm"] else join
    mid = [lambda w: w("s_waitcnt lgkmcnt(0)\ns_barrier"), w_norm] if OPT["bnorm"] else []
    gemv(vm, side_of(w_zero, lambda w: nonce(w, 'X'), w_stats, w_silu, *mid, lambda w: w_fma(w, range(16))), {}, wide=True)
    st.n = n0
    st()
    a("s_waitcnt lgkmcnt(0)\ns_barrier")
    a(f"s_cmp_lg_u32 s{sWAVE}, 0\ns_cbranch_scc1 {jb}")
    a(f"v_lshlrev_b32 v{U}, 10, v{vG}\nv_lshl_add_u32 v{U}, v{vQ}, 4, v{U}")
    for i in range(4): a(f"ds_read_b128 {R('v', WD + 4*i)}, v{U} offset:{1024 + 256*i}")
    a(f"""
    v_lshlrev_b32 v{U+2}, 24, v{vG}
    v_lshl_add_u32 v{U+2}, v{vQ}, 4, v{U+2}
    s_and_b32 s{sT0}, s{sCG}, 1
    s_lshl_b32 s{sT0}, s{sT0}, 14
    s_lshr_b32 s{sT1}, s{sCG}, 1
    s_lshl_b32 s{sT1}, s{sT1}, 8
    s_add_u32 s{sT0}, s{sT0}, s{sT1}
    s_add_u32 s{sT0}, s{sT0}, {WS_MODP - 32*256}
    s_waitcnt lgkmcnt(0)
    """)
    for j in (0, 2):
        a(pk("add", WD + j, WD + j, WD + 4 + j)); a(pk("add", WD + 8 + j, WD + 8 + j, WD + 12 + j)); a(pk("add", WD + j, WD + j, WD + 8 + j))
    swap_red(a, [WD + i for i in range(4)], [WD + 4 + i for i in range(4)])
    a(f"buffer_store_dwordx4 {R('v', WD)}, v{U+2}, {S4(S_L)}, s{sT0} offen sc1\ns_branch {jb}")
    a(f"{isc}:\ns_lshl_b32 s{sT0}, s{sT0}, 1\ns_add_u32 s{sT0}, s{sT0}, s{sT3}\ns_sub_u32 s{sT0}, s{sT0}, {512*12288}")
    vm = VM()
    a(f"buffer_load_dword v212, v{T+4}, {S4(S_M)}, s{sT0} offen"); vm.add("T")
    if OPT["t64"] & 4:
        a(f"v_xor_b32 v{T+5}, 3, v{T+2}\nv_lshl_add_u32 v{T+5}, v{T+5}, 24, v{T+4}\nbuffer_load_dword v219, v{T+5}, {S4(S_M)}, s{sT0} offen offset:64"); vm.add("T")
    if OPT["c3"]:
        a(f"""
        s_lshr_b32 s{sT0}, s2, 3
        s_sub_u32 s{sT0}, s{sT0}, 24
        s_lshl_b32 s{sT0}, s{sT0}, 2
        s_add_u32 s{sT0}, s{sT0}, s{sWAVE}
        s_mul_i32 s{sT0}, s{sT0}, {32*12288}
        s_lshl_b32 s{sT3}, s{sT3}, 1
        s_add_u32 s{sT0}, s{sT0}, s{sT3}
        s_add_u32 s{sT0}, s{sT0}, {4096 + 384}
        v_and_b32 v{T+5}, 31, v{vLANE}
        v_mul_u32_u24 v{T+5}, 12288, v{T+5}
        v_and_b32 v{T+6}, {32 if OPT["t64"] & 4 else 0}, v{vLANE}
        v_lshl_add_u32 v{T+5}, v{T+6}, 1, v{T+5}
        buffer_load_dword v213, v{T+5}, {S4(S_M)}, s{sT0} offen
        """)
        vm.add("T")
    xloads(vm)
    if OPT["tlb"]:
        mb = [4, 16, 16, 8, 8, 0, 1, 7, 7, 7, 0, 0, 4, 0, 32, 0]
        w = [sum(mb[4*i + j] << (8*j) for j in range(4)) for i in range(4)]
        a(f"""
        s_bfe_u32 s{sT0}, s2, 0x20003
        s_cmp_eq_u32 s{sT0}, 1
        s_mov_b32 s{sT2}, {w[0]}
        s_cselect_b32 s{sT2}, {w[1]}, s{sT2}
        s_cmp_eq_u32 s{sT0}, 2
        s_cselect_b32 s{sT2}, {w[2]}, s{sT2}
        s_cmp_eq_u32 s{sT0}, 3
        s_cselect_b32 s{sT2}, {w[3]}, s{sT2}
        s_lshl_b32 s{sT0}, s{sT0}, 2
        s_add_u32 s{sT0}, s{sT0}, s{sWAVE}
        s_min_u32 s{sT0}, s{sT0}, 14
        s_lshl_b32 s{sT0}, s{sT0}, 3
        s_load_dwordx2 s[{S_D}:{S_D+1}], s[0:1], s{sT0}
        s_lshl_b32 s{sT1}, s{sWAVE}, 3
        s_lshr_b32 s{sT2}, s{sT2}, s{sT1}
        s_and_b32 s{sT2}, s{sT2}, 0xff
        s_lshl_b32 s{sT2}, s{sT2}, 20
        s_sub_u32 s{sT2}, s{sT2}, {(1 << 20) - 4}
        s_cselect_b32 s{S_D+2}, 0, s{sT2}
        s_mov_b32 s{S_D+3}, 0x20000
        v_lshlrev_b32 v{T+5}, 20, v{vLANE}
        s_waitcnt lgkmcnt(0)
        s_and_b32 s{S_D+1}, s{S_D+1}, 0xffff
        buffer_load_dword v221, v{T+5}, {S4(S_D)}, 0 offen
        """)
        vm.add("T")
    if OPT["cwq"]:
        a(f"""
        s_sub_u32 s{sT0}, s{sG64}, 24
        s_lshl_b32 s{sT0}, s{sT0}, 18
        v_lshrrev_b32 v{T+5}, 1, v{vLANE}
        v_lshlrev_b32 v{T+5}, 13, v{T+5}
        v_and_b32 v{T+6}, 1, v{vLANE}
        v_lshl_add_u32 v{T+5}, v{T+6}, 7, v{T+5}
        buffer_load_dword v214, v{T+5}, {S4(S_W)}, s{sT0} offen
        """)
        vm.add("T")
        if OPT["t64"] & 8:
            a(f"v_xor_b32 v{T+6}, 1, v{T+6}\nv_lshl_add_u32 v{T+5}, v{T+6}, 24, v{T+5}\nbuffer_load_dword v220, v{T+5}, {S4(S_W)}, s{sT0} offen offset:64"); vm.add("T")
    run_side(side_of(w_zero, lambda w: nonce(w, 'X'), w_stats), vm)
    st.n = n0
    st()
    a("s_waitcnt lgkmcnt(0)\ns_barrier")
    a(f"{join}:")
    w_norm(a)
    a(f"{join2}:")
    st()
    vm = VM()
    for i in range(OPT["qt0"]): g.issue(g.touch(), vm)
    LW, LR, HO = T, T + 1, T + 2
    a(f"""
    v_lshlrev_b32 v{LW}, 3, v{vLANE}
    v_lshl_add_u32 v{LW}, v10, 10, v{LW}
    v_add_u32 v{LW}, 8192, v{LW}
    v_lshrrev_b32 v{HO}, 3, v{vLANE}
    v_lshlrev_b32 v{LR}, 4, v{HO}
    v_lshl_add_u32 v{LR}, v10, 10, v{LR}
    v_lshl_add_u32 v{HO}, v10, 5, v{HO}
    v_lshlrev_b32 v{HO}, 8, v{HO}
    v_lshl_add_u32 v{HO}, v{vROW}, 4, v{HO}
    v_mov_b32 v{NV}, s{sNONCE}
    s_lshr_b32 s{sT2}, s{sSL}, 1
    s_lshl_b32 s{sT2}, s{sT2}, 15
    s_and_b32 s{sT3}, s{sSL}, 1
    s_lshl_b32 s{sT3}, s{sT3}, 7
    s_add_u32 s{sT2}, s{sT2}, s{sT3}
    s_add_u32 s{sT2}, s{sT2}, {WS_H}
    s_add_u32 s{sT3}, s{sT2}, 4096
    s_lshl_b32 s{sT0}, s{sWAVE}, 10
    s_add_u32 s{sT0}, s{sT0}, {WS_MODG}
    s_add_u32 s{sT1}, s{sT0}, 4096
    """)
    d3()
    G = XP
    ld = [f"buffer_load_dwordx4 {R('v', G)}, v{vL16}, {S4(S_L)}, s{sT0} offen sc1", f"buffer_load_dwordx4 {R('v', G+4)}, v{vL16}, {S4(S_L)}, s{sT1} offen sc1"]
    bad = bad_tags([G + 1, G + 3, G + 5, G + 7], U)
    if OPT["par"]:
        ld.append(f"buffer_load_dword v222, off, {S4(S_L)}, s42 sc1")
        bad = bad[:-1] + [f"v_subrev_u32 v222, s{sNONCE}, v222", f"v_lshrrev_b32 v{U+1}, 1, v222", f"v_or_b32 v{U}, v{U}, v{U+1}", bad[-1]]
    poll(a, ld, bad, "mod")
    st()
    a(f"ds_write2_b32 v{LW}, v{G}, v{G+2} offset0:0 offset1:1\nds_write2_b32 v{LW}, v{G+4}, v{G+6} offset0:128 offset1:129\ns_waitcnt lgkmcnt(0)")
    SH, SC = 112, 128
    for i in range(4):
        a(f"ds_read_b128 {R('v', SC + 4*i)}, v{LR} offset:{8192 + 512 + 128*i}\nds_read_b128 {R('v', SH + 4*i)}, v{LR} offset:{8192 + 128*i}")
    a(f"""
    s_lshl_b32 s{sT0}, s{sSL}, 2
    s_add_u32 s{sT0}, s{sT0}, s{sWAVE}
    s_lshl_b32 s{sT0}, s{sT0}, {FS}
    s_add_u32 s{sT0}, s{sT0}, {WS_F2}
    s_lshl_b32 s{sT1}, s{sG64}, {5+FS}
    s_add_u32 s{sT1}, s{sT1}, {WS_F2}
    v_and_b32 v212, {28 if OPT["wgf"] else 31}, v{vLANE}
    v_lshl_add_u32 v212, v212, {FS}, s{sT1}
    """)
    vm = VM()
    for i in range(4):
        a(f"s_waitcnt lgkmcnt({6 - 2*i})")
        for j in range(4*i, 4*i + 4):
            unpack(a, U + 2, U + 3, SC + j); a(pk("mul", X + 2*j, X + 2*j, U + 2)); rnd(a, X + 2*j, X + 2*j + 1)
            unpack(a, U + 2, U + 3, SH + j); a(pk("add", X + 2*j, X + 2*j, U + 2))
            a(f"v_cvt_pk_bf16_f32 v{SH+j}, v{X+2*j}, v{X+2*j+1}")
        a(f"buffer_store_dwordx4 {R('v', SH + 4*i)}, v{HO}, {S4(S_L)}, s{sT2 if i < 2 else sT3} offen offset:{2048*(i % 2)} sc1"); vm.add("H")
    if OPT["par"]:
        a(f"v_readfirstlane_b32 s41, v222\ns_mov_b32 s42, s{sT0}\ns_nop 2\ns_and_b32 s41, s41, 1\ns_xor_b32 s2, s2, s41")
        ids2(a)
        a(f"s_lshl_b32 s{sT0}, s{sHEAD}, 8")
        a.srd(S_W, PTR["wq"], (8 << 20) - 31*256, f"s{sT0}")
        a(f"s_mov_b32 s{sT0}, s42")
    wq = [(c, p) for c in range(4) for p in range(4)][:13]
    for c, p in wq[:OPT["w1"]]: g.issue(g.dma(c, p), vm)
    d3()
    if OPT["full"]: a(f"v_lshrrev_b32 v{vF0}, 5, v{0 if OPT['wgf'] else vLANE}\nv_lshlrev_b32 v{vF0}, 24, v{vF0}\nv_lshl_add_u32 v{vF0}, v{vLANE}, 2, v{vF0}")
    elif OPT["wgf"]: a(f"v_min_u32 v{vF0}, 64, v0\nv_lshlrev_b32 v{vF0}, 24, v{vF0}")
    a(f"s_waitcnt vmcnt({vm.count('H')})")
    if OPT["wgf"]: a("s_barrier")
    a(f"buffer_store_dword v{NV}, v{vF0}, {S4(S_L)}, s{sT0} offen sc1"); vm.add("F")
    st()
    for c, p in wq[OPT["w1"]:OPT["w2"]]: g.issue(g.dma(c, p), vm)
    g.wrest = wq[OPT["w2"]:]
    if OPT["cwq"]: a(g.touch()[2])
    for i in range(OPT["qt0"] + OPT["cwq"], 2): g.issue(g.touch(), vm)
    a(f"s_sub_u32 s{sT0}, s2, 64\ns_cmp_lt_u32 s{sT0}, 128\ns_cselect_b32 s{sT0}, 0, {1 << 24}\ns_add_u32 s{sT0}, s{sT0}, {WS_F1}\ns_lshl_b32 s{sCG}, s{sCG}, {FS}\ns_add_u32 s{sT0}, s{sT0}, s{sCG}")
    a(f"buffer_store_dword v{NV}, v{vF0}, {S4(S_L)}, s{sT0} offen sc1")
    d3()
    hl = f"buffer_load_dword v213, v212, {S4(S_L)}, 0 offen sc1"
    if OPT["hearly"]: a(hl)
    g.between()
    if OPT["hearly"]: poll(a, [hl], bad_tags([213], None), "h", first="s_waitcnt vmcnt(0)")
    else: a("s_waitcnt vmcnt(0)"); poll(a, [hl], bad_tags([213], None), "h")
    st()
    def after_b():
        for i in range(0, 128, 2): a(f"v_mov_b64 v[{16+i}:{17+i}], 0")
    g.after_b = after_b
```

```python
import sys
from common import *
from front import *
import attn as A, back as K

HEAD = open("adaLN_cond__mha_block_cached__moe_arch_mod__prompt.s.ref").read().split("\n")[:18]

DOC = """
One persistent launch, 256 workgroups (one per CU), phases joined by tagged hand-offs in d_ws (write-through stores, bounded polls):
 1. mod = silu(c) @ w_mod (column slices), LayerNorm statistics, h = LN(x)*(1+ca)+sa stored in MFMA fragment order
 2. workgroup (head, 256 rows): q = h @ wq, then attention over 32 key tiles (16x16x32 bf16 MFMA, row sums by SMFMAC,
    run-time checked stand-in for the row maximum with a true-maximum fallback)
 3. o-projection, 128x128 tiles, K shared by a workgroup pair; residual, LayerNorm 2 (statistics exchanged), router keys, output
 4. top-2 rows: gate/up/down on 16-column slices, final rows
Flags carry a per-launch tag derived from the word the previous launch left; data areas are cleared to a sentinel by their owner.
"""

def generate():
    a = Asm()
    for t in DOC.strip().split("\n"): a.lines.append("; " + t)
    a.begin_kernel(NAME)
    l = a.label("go")
    a(f"s_cmp_lt_u32 s2, 256\ns_cbranch_scc1 {l}\ns_endpgm\n{l}:")
    if OPT["flip"] == 1: a("s_xor_b32 s2, s2, 1")
    if OPT["flip"] == 2:
        a("s_getreg_b32 s3, hwreg(HW_REG_XCC_ID, 0, 1)\ns_andn2_b32 s2, s2, 1\ns_or_b32 s2, s2, s3")
    st = Stamps(a)
    ids(a)
    if OPT["ctch"] & 1:
        code_touch(a, "L_code_lo", "L_code_hi", 216, 218, 7); a("L_code_lo:")
    g = A.QProj(a)
    wpre = [K.OProj(a).dma(c, p) for c in (0, 1, 4, 2, 5, 3, 6)[:OPT['nw']] for p in range(4)]
    at = A.Attn(a, False, wpre)
    T64 = OPT['t64'] & 1
    def between():
        a(f"""
        v_lshl_add_u32 v{vKV}, v10, 12, v{vL16}
        v_mul_u32_u24 v{vKADDR}, {PIECE}, v{vQ}
        v_lshl_add_u32 v{vKADDR}, v{vG}, 4, v{vKADDR}
        s_mov_b32 s{sKOFF}, 0
        s_mov_b32 s{sVOFF}, 0
        s_lshl_b32 s{sT0}, s{sHEAD}, 19
        s_lshl_b32 s{sT1}, s{sG64}, 14
        s_add_u32 s{sT1}, s{sT1}, s{sT0}
        s_add_u32 s{sT1}, s{sT1}, {WS_O}
        """)
        a.srd(S_K, PTR["k"], 1 << 19, f"s{sT0}"); a.srd(S_V, PTR["v"], 1 << 19, f"s{sT0}"); a.srd(S_O, PTR["ws"], 16384, f"s{sT1}")
        for i in range(4): a(f"v_mov_b32 v{A.ONES+i}, 0x3f803f80")
        a(f"v_and_b32 v14, 1, v{vLANE}\nv_mul_u32_u24 v15, 0xaaaa, v14\nv_add_u32 v15, 0x4444, v15\nv_lshl_add_u32 v{A.IDX}, v15, 16, v15")
        a(f"""
        v_lshrrev_b32 v15, 1, v{vLANE}
        v_mul_u32_u24 v{vGA}, 7168, v15
        v_lshl_add_u32 v{vGA}, v14, 4, v{vGA}
        v_lshrrev_b32 v15, {2 if T64 else 1}, v{vLANE}
        v_lshlrev_b32 v{vTO}, 11, v15
        v_and_b32 v15, {3 if T64 else 1}, v{vLANE}
        v_lshl_add_u32 v{vTO}, v15, {6 if T64 else 7}, v{vTO}
        v_lshrrev_b32 v15, {5 if T64 else 4}, v{vLANE}
        v_lshl_add_u32 v{vTO}, v15, 24, v{vTO}
        s_lshl_b32 s{sT0}, s{sU}, 15
        s_mul_i32 s{sT1}, s{sWAVE}, 7168
        s_add_u32 s{sT0}, s{sT0}, s{sT1}
        s_add_u32 s{sT0}, s{sT0}, {WS_HO}
        v_add_u32 v{vCL}, s{sT0}, v{vL16}
        s_xor_b32 s{sT1}, s{sSL}, {4*OPT['slx']}
        s_min_u32 s{sT1}, s{sT1}, 223
        s_lshl_b32 s{sT1}, s{sT1}, 15
        s_cmp_lt_u32 s2, 224
        s_cselect_b32 s{sT2}, 32768, 0
        """)
        a.srd(S_WD, PTR["wd"], f"s{sT2}", f"s{sT1}")
        g.setup_b()
        K.const_setup(a)
    g.between = between
    a.c("phase 1: modulation vector and first LayerNorm")
    front(a, g, st)
    kv, cs = at.first_dmas(), K.const_ops()
    tail = []
    while kv or cs:
        if kv: tail.append(kv.pop(0))
        if cs: tail.append(cs.pop(0))
    w = Asm()
    K.setup_w(w)
    w(f"s_cmp_lt_u32 s2, 224\ns_cselect_b32 s{sT2}, {1024*7168}, 0")
    w.srd(S_WG, PTR["wg"], f"s{sT2}"); w.srd(S_WU, PTR["wu"], f"s{sT2}")
    for qb in range(4): w(f"v_add_u32 v{vBOFF+qb}, {qb*4096}, v{vL16}")
    w(f"v_lshrrev_b32 v14, 5, v{vLANE}\nv_and_b32 v15, 0x1ff, v{vL16}\nv_lshl_add_u32 v14, v14, 11, v15\nv_lshl_add_u32 v{A.vDN}, v10, 9, v14")
    w.uid = 1000
    if OPT["ctch"] & 4: code_touch(w, "L_code_mid", "L_code_tail", 236, None)
    w(f"s_mul_i32 s{A.sGA}, s{sWAVE}, {256*7168}\ns_xor_b32 s{A.sIX}, s{sSL}, {4*OPT['slx']}\ns_lshl_b32 s{A.sIX}, s{A.sIX}, 5\ns_add_u32 s{A.sGA}, s{A.sGA}, s{A.sIX}\ns_mov_b32 s{A.sIX}, -12\ns_mov_b32 s{A.sR4}, 0\ns_lshl_b32 s{A.sWT}, s{sKH}, 5\ns_add_u32 s{A.sWT}, s{A.sWT}, s{sG64}\ns_lshl_b32 s{A.sWT}, s{A.sWT}, 17\ns_mov_b32 s{A.sR1}, 0")
    w(f"s_mov_b32 s50, {f2u(LOG2E * 128 ** -0.5)}\ns_mov_b32 s51, s50")
    for i in range(4): w(f"v_mov_b32 v{A.NEG+i}, -1")
    fill = []
    for x in w.lines:
        if x.endswith(":"): fill[-1] += "\n" + x
        else: fill.append(x.strip())
    a.c("phase 2a: q projection")
    vm = g.run(tail, st, fill)
    st()
    for s in range(11, 16): a(at.kread(*at.kread_at(-2, s)))
    for n in range(16):
        for i in range(0, 8, 2): a(pk("mul", A.ACC + 8*n + i, A.ACC + 8*n + i, "s[50:51]"))
        for i in range(4): a(f"v_cvt_pk_bf16_f32 v{A.QF + 4*n + i}, v{A.ACC + 8*n + 2*i}, v{A.ACC + 8*n + 2*i + 1}")
    st()
    a.c("phase 2b: attention")
    at.body(vm.count(("K", 1), ("V", 0)), st)
    st()
    safe, cont = a.label("safe"), a.label("cont")
    A.verdict(a, safe)
    a(f"{cont}:")
    st()
    a.c("phases 3 and 4")
    K.moe(a, st, *K.oproj(a, st))
    st.flush()
    if OPT["xcc"]:
        a.srd(8, PTR["dbg"], 64)
        a("s_getreg_b32 s98, hwreg(HW_REG_XCC_ID)\nv_mov_b32 v254, s98\ns_lshl_b32 s99, s2, 2\nv_mov_b32 v253, 0\nbuffer_store_dword v254, v253, s[8:11], s99 offen")
    a("s_endpgm")
    K.OUT[0]()
    a("L_code_hi:")
    g.outofline()
    a(f"{safe}:")
    A.safe_path(a, wpre, cont)
    a.end_kernel(NAME, 256, 256, sgpr=102)
    return a.text(HEAD + [f"; @launch grid=(256,1,1) block=(256,1,1) lds={LDS_TOTAL}"])

if __name__ == "__main__":
    for arg in sys.argv[2:]:
        k, v = arg.split("=")
        assert k in OPT, k
        OPT[k] = [int(c) for c in v] if isinstance(OPT[k], list) else int(v)
    open(sys.argv[1], "w").write(generate())
```
